```python
import torch

def _softmax(x, axis=-1):
    return torch.softmax(x, dim=axis)
def _gelu(x):
    return torch.nn.functional.gelu(x, approximate="tanh")
def _silu(x):
    return torch.nn.functional.silu(x)
def _sigmoid(x):
    return torch.sigmoid(x)
def _layernorm(x, axis=-1, eps=1e-5):
    m = x.mean(dim=axis, keepdim=True)
    v = x.var(dim=axis, keepdim=True, unbiased=False)
    return (x - m) / torch.sqrt(v + eps)
def _scatter_add(tgt, idx, src, axis=0):
    return tgt.clone().index_add_(axis, idx, src)
def _segment_sum(src, seg, n):
    out = torch.zeros((n,) + src.shape[1:], dtype=src.dtype)
    return out.index_add_(0, seg, src)
def _pad(x, pw):
    flat = tuple(v for pair in reversed(pw) for v in pair)
    return torch.nn.functional.pad(x, flat)

kernel_name = 'interleave_layers__mha_block_cached__glu_gated_geglu__decode'

def setup_inputs():

    _w = (lambda a: (lambda t: t.to(torch.bfloat16) if t.is_floating_point() else t)(torch.as_tensor(a)))
    def _A_setup():
        B, Sq, D = 2, 1, 512
        H, Sk, Dh = 32, 8192, 128
        return {
            "x": _w((lambda *s: torch.randn(*s, dtype=torch.bfloat16) * 0.05)(B, Sq, D)),
            "k_cache": _w((lambda *s: torch.randn(*s, dtype=torch.bfloat16) * 0.8)(B, H, Sk, Dh)),
            "v_cache": _w((lambda *s: torch.randn(*s, dtype=torch.bfloat16) * 1.6)(B, H, Sk, Dh)),
            "wq": _w((lambda *s: torch.randn(*s, dtype=torch.bfloat16) * 0.8)(D, H * Dh) * (D ** -0.5)),
            "wo": _w((lambda *s: torch.randn(*s, dtype=torch.bfloat16) * 1.6)(H * Dh, D) * ((H * Dh) ** -0.5)),
        }
    _A_in = _A_setup()

    def _B_setup():
        B, S, Dm, Df = 2, 1, 512, 1792
        return {
            "x": _w((lambda *s: torch.randn(*s, dtype=torch.bfloat16) * 0.05)(B, S, Dm)),
            "w_gate": _w((lambda *s: torch.randn(*s, dtype=torch.bfloat16) * 0.4)(Dm, Df) * (Dm ** -0.5)),
            "w_up": _w((lambda *s: torch.randn(*s, dtype=torch.bfloat16) * 0.4)(Dm, Df) * (Dm ** -0.5)),
            "w_down": _w((lambda *s: torch.randn(*s, dtype=torch.bfloat16) * 0.4)(Df, Dm) * (Df ** -0.5)),
        }
    _B_in = _B_setup()

    return {
        "A_x": _A_in["x"],
        "A_k_cache": _A_in["k_cache"],
        "A_v_cache": _A_in["v_cache"],
        "A_wq": _A_in["wq"],
        "A_wo": _A_in["wo"],
        "B_x": _B_in["x"],
        "B_w_gate": _B_in["w_gate"],
        "B_w_up": _B_in["w_up"],
        "B_w_down": _B_in["w_down"],
    }

def reference(A_x, A_k_cache, A_v_cache, A_wq, A_wo, B_x, B_w_gate, B_w_up, B_w_down):
    def _A_ref(x, k_cache, v_cache, wq, wo):
        B, Sq, D = x.shape
        H, Dh = 32, 128
        q = (lambda x, *d: x.permute(*d))((x @ wq).reshape(B, Sq, H, Dh), 0, 2, 1, 3)
        scores = torch.einsum("bhqd,bhkd->bhqk", q, k_cache) * (Dh ** -0.5)
        p = _softmax(scores, axis=-1)
        o = torch.einsum("bhqk,bhkd->bhqd", p, v_cache)
        return (lambda x, *d: x.permute(*d))(o, 0, 2, 1, 3).reshape(B, Sq, H * Dh) @ wo

    def _B_ref(x, w_gate, w_up, w_down):
        g = torch.einsum("bsd,df->bsf", x, w_gate)
        u = torch.einsum("bsd,df->bsf", x, w_up)
        h = _gelu(g) * u
        return torch.einsum("bsf,fd->bsd", h, w_down)

    x = A_x
    x = x + _A_ref(_layernorm(x, axis=-1), A_k_cache, A_v_cache, A_wq, A_wo)
    x = x + _B_ref(_layernorm(x, axis=-1), B_w_gate, B_w_up, B_w_down)
    x = x + _A_ref(_layernorm(x, axis=-1), A_k_cache, A_v_cache, A_wq, A_wo)
    x = x + _B_ref(_layernorm(x, axis=-1), B_w_gate, B_w_up, B_w_down)
    return x
```

```python
import re

_REG = re.compile(r'^(-?)(?:abs\()?([vas])(?:(\d+)|\[(\d+):(\d+)\])\)?$')
TRANS = ('v_exp_f32', 'v_log_f32', 'v_rcp_f32', 'v_rsq_f32', 'v_sqrt_f32', 'v_sin_f32', 'v_cos_f32')


def regs(op):
    op = op.strip()
    if op == 'vcc':
        return {('s', 106), ('s', 107)}
    if op == 'vcc_lo':
        return {('s', 106)}
    if op == 'vcc_hi':
        return {('s', 107)}
    if op == 'exec':
        return {('s', 126), ('s', 127)}
    if op == 'm0':
        return {('s', 124)}
    m = _REG.match(op)
    if not m:
        return set()
    f = m.group(2)
    if m.group(3) is not None:
        return {(f, int(m.group(3)))}
    return {(f, i) for i in range(int(m.group(4)), int(m.group(5)) + 1)}


def split_ops(rest):
    parts = []
    depth = 0
    cur = ''
    for ch in rest:
        if ch in '[(':
            depth += 1
        if ch in '])':
            depth -= 1
        if ch == ',' and depth == 0:
            parts.append(cur.strip())
            cur = ''
        else:
            cur += ch
    if cur.strip():
        parts.append(cur.strip())
    mods = ''
    if parts:
        last = parts[-1].split(None, 1)
        parts[-1] = last[0]
        if len(last) > 1:
            mods = last[1]
    return parts, mods


class Ins:
    __slots__ = ('kind', 'dst', 'src', 'srcC', 'srcAB', 'trans', 'dpp', 'perm', 'rdl', 'sdata', 'lds', 'pos', 'dtuple', 'ctuple')


class Asm:
    def __init__(self):
        self.lines = []
        self.hist = []
        self.pos = 0
        self.vm = []
        self.vm_done = 0
        self.lg = []
        self.lg_done = 0
        self.nlabel = 0

    def raw(self, text):
        self.lines.append(text)

    def comment(self, text):
        self.lines.append('    ; ' + text)

    def label(self, name):
        self.fence()
        self.lines.append(name + ':')

    def newlabel(self, base='L'):
        self.nlabel += 1
        return '%s_%d' % (base, self.nlabel)

    def nop(self, n):
        while n > 0:
            k = min(n, 16)
            self.lines.append('    s_nop %d' % (k - 1))
            self.pos += k
            n -= k

    def fence(self):
        need = 0
        for p in self.hist:
            d = self.pos - p.pos - 1
            if p.kind == 'mfma':
                r = 8
            elif p.kind == 'valu':
                r = 5 if any(f == 's' for f, _ in p.dst) else 2
            elif p.sdata:
                r = 2
            elif p.kind == 'salu' and ('s', 124) in p.dst:
                r = 1
            else:
                r = 0
            need = max(need, r - d)
        if need > 0:
            self.nop(need)
        self.hist = []

    def classify(self, text):
        t = text.strip()
        sp = t.split(None, 1)
        mn = sp[0]
        ops, mods = split_ops(sp[1]) if len(sp) > 1 else ([], '')
        i = Ins()
        i.kind = 'other'
        i.dst = set(); i.src = set(); i.srcC = set(); i.srcAB = set()
        i.trans = False; i.dpp = False; i.perm = False; i.rdl = False; i.sdata = set(); i.lds = False
        i.dtuple = None; i.ctuple = None
        R = [regs(o) for o in ops]
        if mn.startswith('v_mfma'):
            i.kind = 'mfma'
            i.dst = R[0]; i.srcAB = R[1] | R[2]; i.srcC = R[3]; i.src = i.srcAB | i.srcC
            i.dtuple = 'd' + ops[0]; i.ctuple = 'd' + ops[3]
        elif mn.startswith('v_smfmac'):
            i.kind = 'mfma'
            i.dst = R[0]; i.srcAB = R[1] | R[2] | R[3]; i.srcC = R[0] | R[3]; i.src = i.srcAB | i.srcC
            i.dtuple = 's' + ops[0]; i.ctuple = 's' + ops[0]
        elif mn.startswith('v_'):
            i.kind = 'valu'
            base = mn.replace('_dpp', '').replace('_e32', '').replace('_e64', '')
            i.trans = base in TRANS
            i.dpp = mn.endswith('_dpp')
            if base.startswith('v_permlane') or base == 'v_swap_b32':
                i.dst = R[0] | R[1]; i.src = R[0] | R[1]; i.perm = base.startswith('v_permlane')
            elif base in ('v_readlane_b32', 'v_readfirstlane_b32'):
                i.dst = R[0]; i.src = set().union(*R[1:]); i.rdl = True
            elif base.endswith('_co_u32'):
                i.dst = R[0] | R[1]; i.src = set().union(*R[2:])
            else:
                i.dst = R[0]; i.src = set().union(*R[1:]) if len(R) > 1 else set()
                if base.startswith('v_fmac') or base.startswith('v_dot2c') or i.dpp:
                    i.src |= R[0]
        elif mn.startswith('buffer_') or mn.startswith('global_'):
            i.kind = 'vmem'
            if 'load' in mn:
                if re.search(r'\blds\b', mods):
                    i.lds = True
                    i.src = set().union(*R) | {('s', 124)}
                else:
                    i.dst = R[0]; i.src = set().union(*R[1:])
            else:
                i.src = set().union(*R)
                if 'x4' in mn or 'x3' in mn:
                    i.sdata = R[0]
        elif mn.startswith('ds_'):
            i.kind = 'ds'
            if 'read' in mn or 'permute' in mn or 'swizzle' in mn:
                i.dst = R[0]; i.src = set().union(*R[1:])
            else:
                i.src = set().union(*R)
        elif mn.startswith('s_'):
            i.kind = 'salu'
            if R and not mn.startswith('s_cmp') and not mn.startswith('s_cbranch'):
                i.dst = R[0]
            i.src = set().union(*R[1:]) if len(R) > 1 else set()
        return i, mn

    def need(self, p, c):
        r = 0
        if p.kind == 'mfma':
            if c.kind == 'mfma':
                if c.srcC & p.dst:
                    r = max(r, 0 if c.ctuple == p.dtuple else 6)
                if c.srcAB & p.dst:
                    r = max(r, 8)
            elif c.kind in ('valu', 'vmem', 'ds'):
                if (c.src | c.dst) & p.dst:
                    r = max(r, 8)
            if c.kind == 'valu' and c.dst & p.srcC:
                r = max(r, 3)
        elif p.kind == 'valu':
            vd = {x for x in p.dst if x[0] != 's'}
            sd = {x for x in p.dst if x[0] == 's'}
            if c.kind == 'mfma' and c.src & vd:
                r = max(r, 2)
            if c.kind == 'valu':
                if (c.dpp or c.perm) and c.src & vd:
                    r = max(r, 2)
                if c.rdl and c.src & vd:
                    r = max(r, 1)
                if p.trans and c.src & vd:
                    r = max(r, 1)
                if c.src & sd:
                    r = max(r, 4 if c.rdl else 2)
            if c.kind == 'vmem' and c.src & sd:
                r = max(r, 5)
            if c.kind == 'salu' and c.src & sd:
                r = max(r, 1)
        elif p.kind == 'salu':
            if c.lds and ('s', 124) in p.dst:
                r = max(r, 1)
        if p.sdata and c.dst & p.sdata:
            r = max(r, 2)
        return r

    def needed(self, text):
        c, mn = self.classify(text)
        n = 0
        for p in self.hist:
            d = self.pos - p.pos - 1
            n = max(n, self.need(p, c) - d)
        return n

    def chain(self, ops, fill):
        for op in ops:
            while fill and self.needed(op) > 0 and self.needed(fill[0]) == 0:
                self.e(fill.pop(0))
            self.e(op)

    def skip_begin(self, br, lbl):
        self.lines.append('    %s %s' % (br, lbl))
        self.pos += 1
        self._skip = (self.pos, list(self.hist))

    def skip_end(self, lbl):
        pos, hist = self._skip
        inner = [p for p in self.hist if p.pos >= pos]
        for p in inner:
            assert p.kind not in ('valu', 'mfma') and not p.sdata
        self.pos = pos
        self.hist = hist
        self.lines.append(lbl + ':')

    def e(self, text):
        c, mn = self.classify(text)
        if mn.startswith('s_cbranch') or mn == 's_branch' or mn == 's_setpc_b64' or mn == 's_swappc_b64':
            self.fence()
        else:
            n = 0
            for p in self.hist:
                d = self.pos - p.pos - 1
                n = max(n, self.need(p, c) - d)
            if n > 0:
                self.nop(n)
        c.pos = self.pos
        self.pos += 1
        self.lines.append('    ' + text.strip())
        self.hist.append(c)
        self.hist = [p for p in self.hist if self.pos - p.pos <= 10]

    def vmem(self, text):
        if len(self.vm) - self.vm_done >= 60:
            self._vmwait_n(59)
        self.e(text)
        self.vm.append(len(self.vm))
        return len(self.vm) - 1

    def _vmwait_n(self, n):
        self.e('s_waitcnt vmcnt(%d)' % n)
        self.vm_done = max(self.vm_done, len(self.vm) - n)

    def vmwait(self, tok):
        if tok < self.vm_done:
            return
        n = len(self.vm) - 1 - tok
        assert n <= 63
        self._vmwait_n(n)

    def vmwait_all(self, force=False):
        if force or self.vm_done < len(self.vm):
            self._vmwait_n(0)

    def lds(self, text):
        if len(self.lg) - self.lg_done >= 15:
            self._lgwait_n(14)
        self.e(text)
        self.lg.append(len(self.lg))
        return len(self.lg) - 1

    def _lgwait_n(self, n):
        self.e('s_waitcnt lgkmcnt(%d)' % n)
        self.lg_done = max(self.lg_done, len(self.lg) - n)

    def lgwait(self, tok):
        if tok < self.lg_done:
            return
        self._lgwait_n(len(self.lg) - 1 - tok)

    def lgwait_all(self, force=False):
        if force or self.lg_done < len(self.lg):
            self._lgwait_n(0)

    def reset_counters(self):
        self.vm = []; self.vm_done = 0; self.lg = []; self.lg_done = 0

    def text(self):
        return '\n'.join(self.lines) + '\n'


def q4(f, i):
    return '%s[%d:%d]' % (f, i, i + 3)
```

```python
import sys, math, struct, argparse
sys.path.insert(0, 'gen')
from asmlib import Asm

NAME = 'interleave_layers__mha_block_cached__glu_gated_geglu__decode'

ap = argparse.ArgumentParser()
ap.add_argument('-o', default='cdna_kernels/%s.s' % NAME)
ap.add_argument('--D', type=int, default=8)
ap.add_argument('--DE', type=int, default=8)
ap.add_argument('--NE', type=int, default=24)
ap.add_argument('--DC0', type=int, default=8)
ap.add_argument('--NC0', type=int, default=8)
ap.add_argument('--DC', type=int, default=8)
ap.add_argument('--X', type=int, default=68)
ap.add_argument('--QF', type=int, default=126)
ap.add_argument('--budget', type=int, default=200)
ap.add_argument('--pol', default='nt')
ap.add_argument('--polA', default=None)
ap.add_argument('--polB', default=None)
ap.add_argument('--polC', default=None)
ap.add_argument('--polB1', default=None)
ap.add_argument('--DA', type=int, default=None)
ap.add_argument('--ms', default='')
ap.add_argument('--Dlo', type=int, default=5)
ap.add_argument('--Dhi', type=int, default=8)
ap.add_argument('--Elo', type=int, default=6)
ap.add_argument('--DB0h', type=int, default=None)
ap.add_argument('--q2fb', action='store_true')
ap.add_argument('--ons', type=int, default=3)
ap.add_argument('--qns', type=int, default=3)
ap.add_argument('--qsl', type=int, default=1)
ap.add_argument('--b1ts', action='store_true')
ap.add_argument('--lts', default='')
ap.add_argument('--nofyz', type=int, default=0)
ap.add_argument('--par', default='race')
ap.add_argument('--RR', type=int, default=1)
ap.add_argument('--novote', type=int, default=0)
ap.add_argument('--QI', type=int, default=44)
ap.add_argument('--stch', default='pyz')
ap.add_argument('--XE', type=int, default=None)
ap.add_argument('--sq', action='store_true')
ap.add_argument('--Cm', type=int, default=0)
ap.add_argument('--polM', default='')
ap.add_argument('--polCf', default=None)
ap.add_argument('--B1t', type=int, default=0)
ap.add_argument('--B1tp', default='sc1')
ap.add_argument('--B1tl', type=int, default=0)
ap.add_argument('--DC1h', type=int, default=None)
ap.add_argument('--DCl', type=int, default=None)
ap.add_argument('--wsoff', type=int, default=0)
ap.add_argument('--ypol', default='sc1')
ap.add_argument('--fpol', default='sc1')
ap.add_argument('--ilv', type=int, default=0)
ap.add_argument('--zl', type=int, default=0)
ap.add_argument('--yoff', type=int, default=0)
ap.add_argument('--goff', type=int, default=0)
ap.add_argument('--ysl', type=int, default=0)
ap.add_argument('--y1', type=int, default=0)
ap.add_argument('--Ce', type=int, default=0)
ap.add_argument('--Cs', type=int, default=0)
ap.add_argument('--Cp', type=int, default=2)
ap.add_argument('--Cc', type=int, default=1)
ap.add_argument('--Cn', type=int, default=0)
ap.add_argument('--w0', type=int, default=0)
ap.add_argument('--vfull', type=int, default=0)
ap.add_argument('--xfill', type=int, default=0)
ap.add_argument('--wo0', type=int, default=0)
ap.add_argument('--p2d', type=int, default=0)
ap.add_argument('--cskip', type=int, default=0)
ap.add_argument('--park', type=int, default=0)
ap.add_argument('--warm', type=int, default=1)
ap.add_argument('--gb', type=int, default=0)
ap.add_argument('--gb0', type=int, default=13)
ap.add_argument('--gbn', type=int, default=3)
ap.add_argument('--gbl', type=int, default=8)
ap.add_argument('--gbk', default='0123456')
ap.add_argument('--wS', type=int, default=0)
ap.add_argument('--wA', default='')
ap.add_argument('--wR', default='')
ap.add_argument('--al', type=int, default=0)
ap.add_argument('--sh', type=int, default=0)
ap.add_argument('--lay', type=int, default=1)
ap.add_argument('--tch', default='')
ap.add_argument('--tchm', default='0xfffff')
ap.add_argument('--tchp', default='sc1')
ap.add_argument('--quiet', action='store_true')
ap.add_argument('--ffirst', type=int, default=99)
ap.add_argument('--noof', type=int, default=0)
ap.add_argument('--plain', default='')
ap.add_argument('--B1pat', default='')
ap.add_argument('--acky', type=int, default=0)
ap.add_argument('--ackz', type=int, default=0)
ap.add_argument('--acko', type=int, default=0)
ap.add_argument('--nk', type=int, default=None)
ap.add_argument('--nv', type=int, default=0)
ap.add_argument('--alt', type=int, default=0)
ap.add_argument('--pfn', type=int, default=0)
ap.add_argument('--pfi', type=int, default=2)
ap.add_argument('--pf0', type=int, default=0)
ap.add_argument('--K72', type=int, default=2)
ap.add_argument('--q2p', type=int, default=None)
ap.add_argument('--pfpol', default='')
ap.add_argument('--pfs', type=int, default=2)
ap.add_argument('--DP2', type=int, default=None)
ap.add_argument('--B1lo', type=int, default=None)
ap.add_argument('--B1hi', type=int, default=None)
ap.add_argument('--sf', type=int, default=0)
ap.add_argument('--cts', action='store_true')
ap.add_argument('--Cfirst', action='store_true')
ap.add_argument('--msl', action='store_true')
ap.add_argument('--mlag', type=int, default=6)
ap.add_argument('--B1n', type=int, default=99)
ap.add_argument('--NC1', type=int, default=99)
ap.add_argument('--DC1', type=int, default=4)
ap.add_argument('--wpol', default='nt')
ap.add_argument('--nofast', action='store_true')
ap.add_argument('--skip', default='')
ap.add_argument('--bwtest', type=int, default=0)
ap.add_argument('--DB0', type=int, default=8)
ap.add_argument('--NB0', type=int, default=8)
ap.add_argument('--gateA', type=int, default=-1)
ap.add_argument('--gateB', type=int, default=-1)
ap.add_argument('--thA', type=int, default=0)
ap.add_argument('--thB', type=int, default=0)
ap.add_argument('--gsleep', type=int, default=1)
ap.add_argument('--gone', type=int, default=1)
ap.add_argument('--NEB', type=int, default=None)
ap.add_argument('--DEB', type=int, default=None)
ap.add_argument('--NP2', default='6,3,3,3,3')
ap.add_argument('--P2POS', default='9,30,55,80,100')
ap.add_argument('--P2ND', type=int, default=9)
ap.add_argument('--P2B1', type=int, default=2)
ap.add_argument('--P2H', type=int, default=0)
ap.add_argument('--P2G', default='')
ap.add_argument('--P2DS2', type=int, default=1)
ap.add_argument('--P2DSL', type=int, default=30)
ap.add_argument('--P2OOL', type=int, default=1)
ap.add_argument('--Cmix', action='store_true')
ap.add_argument('--icprobe', type=int, default=0)
ap.add_argument('--noack', action='store_true')
ap.add_argument('--map', type=int, default=2)
ap.add_argument('--ts', action='store_true')
ap.add_argument('--pad', type=int, default=0)
args = ap.parse_args()
polA = args.pol if args.polA is None else args.polA
polB = args.pol if args.polB is None else args.polB
polC = args.pol if args.polC is None else args.polC
polB1 = polB if args.polB1 is None else args.polB1


def sc(c):
    return '' if c in args.plain else 'sc1'


def f32(x):
    return '0x%08x' % struct.unpack('<I', struct.pack('<f', x))[0]


OFF_Q, OFF_O = 1024, 3072
HEADA = 11264
YB = 32 * HEADA
ZB = YB + 4 * 32768
if args.zl:
    ZB = (ZB + 131071) // 131072 * 131072
RACEB = ZB + (4 + args.xfill) * 131072
assert YB % 16384 == 0
WS_USED = RACEB + 2 * 16384
if args.yoff:
    YB = WS_USED = (WS_USED + 16383) // 16384 * 16384 + (args.yoff - 1) * 32768
    WS_USED += 131072
WS_USED += args.goff * 131072
GATEB = WS_USED
WS_USED += 2048
GBB = WS_USED
WS_USED += 8192 if args.gb else 0
TSB = WS_USED
WS_SIZE = TSB + (256 * 4 * 64 * 8 if args.ts else 0)
BATCH = 0x4000000
PARTB = 299008
LOG2E = 1.4426950408889634
SPIN_BUDGET = 400000

sU = 3
SK, SV, SWS, SDBG = 28, 32, 36, 40
SWQ, SWO, SGA, SUP, SDN, SX, SOUT = 44, 48, 52, 56, 60, 64, 68
sBud = 72
sT0, sT1 = 73, 74
sMaskJ8 = 76
sMaskV = 78
sMt = 80
sTS = 75
sTm = 82
sHA = 89
sBase, sOff, sLds, sPubJ, sStatJ, sPub, sStat, sH, sTail, sGate, sGo, sFo, sEx = 86, 87, 88, 90, 91, 92, 93, 94, 95, 96, 97, 98, 99
sIt, sJA, sYp, sYg, sRet, sQa, sG0, sG1, sG2, sG3, sKV, sOutB, sFast = 86, 87, 88, 90, 91, 92, 95, 96, 97, 98, 99, 100, 101
sHU, sZg = 93, 94
sHS, sVt, sIod = 0, 1, 27
sOt, sOm, sLoc = 6, 7, 8
sTag = 45
sQm = 4


def srd(i):
    return 's[%d:%d]' % (i, i + 3)


def sp(i):
    return 's[%d:%d]' % (i, i + 1)


def vq(i):
    return 'v[%d:%d]' % (i, i + 3)


def vp(i):
    return 'v[%d:%d]' % (i, i + 1)


def base_of(q):
    return int(q[2:].split(':')[0])


def pair(q0, q1):
    assert q0[0] == q1[0] and base_of(q1) == base_of(q0) + 4, (q0, q1)
    return '%s[%d:%d]' % (q0[0], base_of(q0), base_of(q0) + 7)


DPPF = 'row_mask:0xf bank_mask:0xf'
OOL = []
RAW = []
RAW2 = []
a = Asm()
e = a.e
_vmem = a.vmem


def vmem_dbg(text):
    drop = {'q': srd(SWQ), 'o': srd(SWO), 'g': srd(SGA), 'G': srd(SUP), 'd': srd(SDN)}
    sk = args.skip.replace('g', 'gG')
    for k, v in drop.items():
        if k in sk and v in text:
            text = text.replace(v, srd(SX))
    if 'store' in text and 'sc1' in text and srd(SWS) in text:
        small = any(l.strip() in ('s_mov_b64 exec, 15', 's_mov_b32 exec_hi, 0') for l in a.lines[-8:]) and not any(l.strip() == 's_mov_b64 exec, -1' for l in a.lines[-3:])
        svc = 'L_service:' in a.lines
        if 'f' in sk or ('s' in sk and small) or ('r' in sk and not small and not svc) or ('y' in sk and not small and svc):
            e('s_nop 0')
            return len(a.vm) - 1
        if 'p' in sk:
            text = text.replace('sc1', '')
        if 'n' in sk:
            text = text.replace('sc1', 'sc1 nt')
    return _vmem(text)


if args.skip:
    assert args.bwtest or args.ts
    a.vmem = vmem_dbg


def mk_srd(s, ptr, size):
    if s == SWS and args.wsoff:
        e('s_add_u32 s%d, s%d, 0x%x' % (s, ptr, args.wsoff << 20))
        e('s_addc_u32 s%d, s%d, 0' % (s + 1, ptr + 1))
    else:
        e('s_mov_b32 s%d, s%d' % (s, ptr))
        e('s_mov_b32 s%d, s%d' % (s + 1, ptr + 1))
    e('s_mov_b32 s%d, 0x%x' % (s + 2, size))
    e('s_mov_b32 s%d, 0x00020000' % (s + 3))


def smask(s, val):
    e('s_mov_b32 s%d, 0x%08x' % (s, val & 0xffffffff))
    e('s_mov_b32 s%d, 0x%08x' % (s + 1, val >> 32))


QSK = [0]


def stamp(tmp, entry=False):
    if args.quiet:
        if not entry and not args.lts and 'L_service:' not in a.lines and QSK[0] < 9:
            e('s_memrealtime s[%d:%d]' % (6 + 2 * QSK[0], 7 + 2 * QSK[0]))
            QSK[0] += 1
        return
    if not args.ts or (args.cts and not entry):
        return
    a.lgwait_all()
    e('s_memrealtime %s' % sp(sTm))
    if not entry:
        e('s_getreg_b32 s%d, hwreg(HW_REG_XCC_ID, 0, 4)' % (sTm + 2))
    e('s_waitcnt lgkmcnt(0)')
    e('v_mov_b32 v%d, s%d' % (tmp, sTm))
    e('v_mov_b32 v%d, s%d' % (tmp + 1, sTm + 2))
    e('s_mov_b64 exec, 1')
    a.vmem('buffer_store_dwordx2 %s, off, %s, s%d' % (vp(tmp), srd(SWS), sTS))
    e('s_mov_b64 exec, -1')
    e('s_add_u32 s%d, s%d, 8' % (sTS, sTS))


def ct(k):
    if args.cts:
        e('s_memtime s[%d:%d]' % (6 + 2 * k, 7 + 2 * k))


def sq_(k):
    if args.sq:
        e('s_memrealtime s[%d:%d]' % (10 + 2 * k, 11 + 2 * k))


def sq_dump(tmp):
    if not args.sq:
        return
    e('s_waitcnt lgkmcnt(0)')
    e('s_mov_b64 exec, 1')
    for k in range(7):
        e('v_mov_b32 v%d, s%d' % (tmp, 10 + 2 * k))
        e('buffer_store_dword v%d, off, %s, s%d offset:%d' % (tmp, srd(SWS), sTS, k * 8))
        e('s_nop 1')
    e('s_add_u32 s%d, s%d, 64' % (sTS, sTS))
    e('s_mov_b64 exec, -1')


def ct_dump(tmp):
    if not (args.cts or args.b1ts or args.lts or args.quiet):
        return
    if args.quiet:
        e('s_memrealtime s[24:25]')
    e('s_waitcnt lgkmcnt(0)')
    e('s_and_b32 s%d, s%d, 0xfffffe00' % (sTS, sTS))
    e('s_mov_b64 exec, 1')
    if args.quiet:
        e('v_mov_b32 v%d, s84' % tmp)
        e('buffer_store_dword v%d, off, %s, s%d offset:4' % (tmp, srd(SWS), sTS))
        e('s_waitcnt vmcnt(0)')
    for k in range(11):
        e('v_mov_b32 v%d, s%d' % (tmp, 6 + 2 * k))
        e('buffer_store_dword v%d, off, %s, s%d offset:%d' % (tmp, srd(SWS), sTS, (40 + k) * 8))
        e('s_waitcnt vmcnt(0)')
    e('s_mov_b64 exec, -1')


SITES = []


def warm_site(grp):
    k = len(SITES)
    SITES.append(grp)
    e('s_mov_b64 exec, 0')
    for w in range(1, 4):
        e('s_cmp_eq_u32 s%d, %d' % (sU, w))
        a.raw('    s_cbranch_scc1 @W%d_%d' % (k, w))
    a.raw('    s_branch @W%d_0' % k)
    a.raw('L_wr%d:' % k)
    e('s_mov_b64 exec, -1')


def spin_tail(lbl, sleep=0):
    if sleep:
        e('s_sleep %d' % sleep)
    e('s_sub_u32 s%d, s%d, 1' % (sBud, sBud))
    e('s_cbranch_scc0 %s' % lbl)
    e('s_endpgm')


def allreduce_list(op, r, t, steps=(0, 1, 2, 3, 4, 5)):
    d = {0: 'quad_perm:[1,0,3,2]', 1: 'quad_perm:[2,3,0,1]', 2: 'row_ror:4', 3: 'row_ror:8'}
    out = []
    for s in steps:
        if s < 4:
            out.append('%s_dpp v%d, v%d, v%d %s %s' % (op, r, r, r, d[s], DPPF))
        else:
            out.append('v_mov_b32 v%d, v%d' % (t, r))
            out.append('v_permlane%d_swap_b32 v%d, v%d' % (16 if s == 4 else 32, r, t))
            out.append('%s v%d, v%d, v%d' % (op, r, r, t))
    return out


def build_bt(bt, q, n=4):
    for t in range(n):
        smask(sMt, 0x000F000F000F000F << (4 * t))
        for r in range(4):
            e('v_cndmask_b32 v%d, 0, v%d, %s' % (bt + 4 * t + r, q + r, sp(sMt)))


def score_ops(P, g, D, C, first):
    out = []
    for r in range(4):
        op = 'v_mul_f32_dpp' if first and r == 0 else 'v_fmac_f32_dpp'
        out.append('%s v%d, v%d, v%d quad_perm:[%d,%d,%d,%d] %s' % (op, P[g >> 2], D + r, C + (g & 3), r, r, r, r, DPPF))
    return out


def softmax(P, m, t, stat_soff, fill1, fill2, sw16, exm, tag):
    l = m + 1
    e('v_mov_b32 v%d, 0xff800000' % t)
    e('v_cndmask_b32 v%d, v%d, v%d, %s' % (P[-1], t, P[-1], sp(sMaskV)))
    if len(P) == 1:
        e('v_mov_b32 v%d, v%d' % (m, P[0]))
    else:
        e('v_max3_f32 v%d, v%d, v%d, v%d' % (m, P[0], P[1], P[2]))
        e('v_max3_f32 v%d, v%d, v%d, v%d' % (m, m, P[3], P[4]))
    a.chain(allreduce_list('v_max_f32', m, t), fill1)
    for p in P:
        e('v_sub_f32 v%d, v%d, v%d' % (p, p, m))
    for p in P:
        e('v_exp_f32 v%d, v%d' % (p, p))
    for p in P:
        e('v_cvt_pk_bf16_f32 v%d, 0, v%d' % (p, p))
    if len(P) == 1:
        e('v_mov_b32 v%d, v%d' % (l, P[0]))
    else:
        e('v_add_f32 v%d, v%d, v%d' % (l, P[0], P[1]))
        e('v_add_f32 v%d, v%d, v%d' % (t, P[2], P[3]))
        e('v_add_f32 v%d, v%d, v%d' % (l, l, P[4]))
        e('v_add_f32 v%d, v%d, v%d' % (l, l, t))
    fill = fill1 + fill2
    a.chain(allreduce_list('v_add_f32', l, t), fill)
    e('v_min_u32 v%d, -2, v%d' % (m, m))
    e('v_min_u32 v%d, -2, v%d' % (l, l))
    e('v_mov_b32 v%d, s%d' % (t, sw16))
    e('s_mov_b64 exec, 1')
    if stat_soff is not None:
        store_sel('buffer_store_dwordx2 %s, off, %s, s%d' % (vp(m), srd(SWS), stat_soff), tag, True)
    a.lds('ds_write_b32 v%d, v%d offset:%d' % (t, m, exm))
    e('s_mov_b64 exec, -1')
    for op in fill:
        e(op)


def store_sel(text, tag, count, raw=False, sFo=sFo):
    emit = a.vmem if count else e
    if tag is None:
        emit(text + ' ' + sc('D' if count else 'E'))
        return
    e('s_cmp_eq_u32 s%d, 0' % sFo)
    if raw:
        a.nop(a.needed(text))
        a.raw('    s_cbranch_scc0 L_st_%s' % tag)
        a.pos += 1
        emit(text)
        a.raw('L_str_%s:' % tag)
        RAW.append(['L_st_%s:' % tag, '    %s sc1' % text, '    s_branch L_str_%s' % tag])
        return
    e('s_cbranch_scc0 L_st_%s' % tag)
    emit(text)
    a.label('L_str_%s' % tag)
    OOL.append(('L_st_%s' % tag, [text + ' sc1', 's_branch L_str_%s' % tag]))


def scale_a(c, l16, exm):
    e('v_and_b32 v%d, 0x30, v%d' % (c, l16))
    a.lgwait_all()
    e('s_barrier')
    return a.lds('ds_read_b32 v%d, v%d offset:%d' % (c, c, exm))


def scale_b(c, m):
    return allreduce_list('v_max_f32', c, None, (0, 1)) + ['v_sub_f32 v%d, v%d, v%d' % (c, m, c), 'v_exp_f32 v%d, v%d' % (c, c)]


def wg_publish(O, c, wa, l8, exo, T, soff, tag, lbl, ack=0, sTag=sTag, sFo=sFo):
    if c is not None:
        e('v_mul_f32 v%d, v%d, v%d' % (O, O, c))
        e('v_mul_f32 v%d, v%d, v%d' % (O + 1, O + 1, c))
        e('s_cmp_lg_u32 s%d, 0' % sU)
    a.lds('ds_write_b64 v%d, %s offset:%d' % (wa, vp(O), exo))
    a.lgwait_all()
    e('s_barrier')
    e('s_cbranch_scc1 %s' % lbl)
    for w in range(3):
        a.lds('ds_read_b64 %s, v%d offset:%d' % (vp(T + 2 * w), l8, exo + 512 * (w + 1)))
    e('s_waitcnt lgkmcnt(2)')
    e('v_pk_add_f32 %s, %s, %s' % (vp(O), vp(O), vp(T)))
    a.lgwait_all()
    e('v_pk_add_f32 %s, %s, %s' % (vp(T + 2), vp(T + 2), vp(T + 4)))
    e('v_pk_add_f32 %s, %s, %s' % (vp(O), vp(O), vp(T + 2)))
    e('v_and_or_b32 v%d, v%d, -4, s%d' % (O, O, sTag))
    e('v_and_or_b32 v%d, v%d, -4, s%d' % (O + 1, O + 1, sTag))
    store_sel('buffer_store_dwordx2 %s, v%d, %s, s%d offen' % (vp(O), l8, srd(SWS), soff), tag, False, True, sFo)
    if ack:
        e('s_waitcnt vmcnt(0)')
    a.label(lbl)


def a_ops(A, src, sw, r):
    q = lambda x: 'quad_perm:[%d,%d,%d,%d]' % (x, x, x, x)
    return ['v_mov_b32_dpp v%d, v%d %s row_mask:0xf bank_mask:0x5' % (A, src, q(r)),
            'v_mov_b32_dpp v%d, v%d %s row_mask:0xf bank_mask:0xa' % (A + 1, sw, q(3 - r)),
            'v_mov_b32_dpp v%d, v%d %s row_mask:0xf bank_mask:0x5' % (A + 2, sw, q(3 - r)),
            'v_mov_b32_dpp v%d, v%d %s row_mask:0xf bank_mask:0xa' % (A + 3, src, q(r))]


def mirror(d, s):
    return 'v_mov_b32_dpp v%d, v%d row_half_mirror %s' % (d, s, DPPF)


def tail_a(A, p, lane, M, t):
    return ['v_lshrrev_b32 v%d, 16, v%d' % (t, p), 'v_or_b32 v%d, v%d, v%d' % (t, t, p)] + \
           ['v_and_b32_dpp v%d, v%d, v%d row_newbcast:%d %s' % (A + k, t, M + k, lane, DPPF) for k in range(4)]


def merge(O1, O2):
    e('v_permlane32_swap_b32 v%d, v%d' % (O1, O1 + 2))
    e('v_permlane32_swap_b32 v%d, v%d' % (O1 + 1, O1 + 3))
    if O2 is not None:
        e('v_permlane32_swap_b32 v%d, v%d' % (O2, O2 + 2))
        e('v_permlane32_swap_b32 v%d, v%d' % (O2 + 1, O2 + 3))
        e('v_add_f32 v%d, v%d, v%d' % (O1, O1, O2 + 2))
        e('v_add_f32 v%d, v%d, v%d' % (O1 + 1, O1 + 1, O2 + 3))


def publish2(r, voff, soff):
    e('v_min_u32 v%d, -2, v%d' % (r, r))
    e('v_min_u32 v%d, -2, v%d' % (r + 1, r + 1))
    a.vmem('buffer_store_dwordx2 %s, v%d, %s, s%d offen sc1' % (vp(r), voff, srd(SWS), soff))


def publish_local(r, voff, soff, tag):
    a.vmem('buffer_store_dwordx2 %s, v%d, %s, s%d offen %s' % (vp(r), voff, srd(SWS), soff, args.ypol))


def mfma(D, A, B, first):
    e('v_mfma_f32_16x16x32_bf16 %s, %s, %s, %s' % (D, A, B, '0' if first else D))


def smf(D, A, B, idx):
    e('v_smfmac_f32_16x16x64_bf16 %s, %s, %s, v%d' % (vq(D), vq(A), B, idx))


def mk_masks(M, t):
    rep = 0x0001000100010001
    e('v_mov_b32 v%d, 0xffff' % t)
    e('v_mov_b32 v%d, 0xffff0000' % (t + 1))
    for k in range(4):
        smask(sMt, rep << (2 * k))
        e('v_cndmask_b32 v%d, 0, v%d, %s' % (M + k, t, sp(sMt)))
        smask(sMt, rep << (2 * k + 1))
        e('v_cndmask_b32 v%d, v%d, v%d, %s' % (M + k, M + k, t + 1, sp(sMt)))


def mk_c(C, n, t):
    e('v_mov_b32 v%d, %s' % (t, f32(LOG2E / math.sqrt(128.0))))
    for r in range(n):
        smask(sMt, 0x1111111111111111 << r)
        e('v_cndmask_b32 v%d, 0, v%d, %s' % (C + r, t, sp(sMt)))


def mk_koff(d, lane, t):
    e('v_and_b32 v%d, 3, v%d' % (d, lane))
    e('v_lshlrev_b32 v%d, 4, v%d' % (d, d))
    e('v_bfe_u32 v%d, v%d, 2, 2' % (t, lane))
    e('v_lshl_or_b32 v%d, v%d, 9, v%d' % (d, t, d))
    e('v_lshrrev_b32 v%d, 4, v%d' % (t, lane))
    e('v_lshl_or_b32 v%d, v%d, 6, v%d' % (d, t, d))


def mk_qoff(d, lane, t):
    e('v_and_b32 v%d, 3, v%d' % (d, lane))
    e('v_lshlrev_b32 v%d, 4, v%d' % (d, d))
    e('v_lshrrev_b32 v%d, 4, v%d' % (t, lane))
    e('v_lshl_or_b32 v%d, v%d, 6, v%d' % (d, t, d))


def idx_ops(d, l16):
    return ['v_bfe_u32 v%d, v%d, 4, 2' % (d, l16), 'v_mul_u32_u24 v%d, 0x4444, v%d' % (d, d)]


def tail_soff(dst, t):
    e('s_lshr_b32 s%d, s%d, 1' % (dst, sU))
    e('s_lshl_b32 s%d, s%d, 11' % (dst, dst))
    e('s_and_b32 s%d, s%d, 1' % (t, sU))
    e('s_lshl_b32 s%d, s%d, 8' % (t, t))
    e('s_add_u32 s%d, s%d, s%d' % (dst, dst, t))


if args.ts or args.pad:
    e('s_memrealtime s[84:85]')
e('s_cmp_ge_u32 s2, 256')
e('s_cbranch_scc0 L_go')
e('s_endpgm')
a.label('L_go')
e('s_load_dwordx16 s[4:19], s[0:1], 0')
e('s_load_dwordx8 s[20:27], s[0:1], 64')
e('v_lshrrev_b32 v1, 6, v0')
e('v_and_b32 v0, 63, v0')
e('v_readfirstlane_b32 s%d, v1' % sU)
e('s_mov_b32 s%d, %d' % (sBud, SPIN_BUDGET))
if args.ts:
    e('s_lshl_b32 s%d, s2, 2' % sTS)
    e('s_add_u32 s%d, s%d, s%d' % (sTS, sTS, sU))
    e('s_lshl_b32 s%d, s%d, 9' % (sTS, sTS))
    e('s_add_u32 s%d, s%d, 0x%x' % (sTS, sTS, TSB))
if args.map == 0:
    e('s_cmp_lt_u32 s2, 32')
    e('s_cbranch_scc1 L_service')
elif args.map == 1:
    e('s_and_b32 s%d, s2, 7' % sT0)
    e('s_lshr_b32 s2, s2, 3')
    e('s_sub_u32 s%d, s%d, 1' % (sT0, sT0))
    e('s_cbranch_scc1 L_service')
else:
    e('s_lshr_b32 s%d, s2, 5' % sT0)
    e('s_and_b32 s2, s2, 31')
    e('s_sub_u32 s%d, s%d, 1' % (sT0, sT0))
    e('s_cbranch_scc1 L_service')

vKo, vVo, vLd, vM, vC, vBT, vD = 4, 1, 11, 44, 7, 12, 28
vO1, vO2, vIdx, vMl = 12, 16, 25, 26
PA = [40, 41, 42, 43, 2]
PB = [48, 49, 50, 51, 3]
PS = [20, 21, 22, 23, 24]
vQ1, vQo, vPo = 48, 6, 5
PARK = {0: 32, 4: 16, 1: 20, 5: 24, 2: 36, 6: 44, 3: 8, 7: 0} if args.park else {}
sBM, sMM = 56, 64
vQL = 40
vSc = vMl + 1
NQ = 73
NR = 8
RING = ['v[%d:%d]' % (52 + 4 * i, 55 + 4 * i) for i in range(NR)]
_ka = ['a[%d:%d]' % (4 * i, 4 * i + 3) for i in range(64)]
_kv = ['v[%d:%d]' % (84 + 4 * i, 87 + 4 * i) for i in range(9)]
KS = _ka[:args.X - 8] + _kv[:8] + _ka[args.X - 8:] + _kv[8:]
VSR = ['v[%d:%d]' % (120 + 4 * i, 123 + 4 * i) for i in range(34)]
NLV = 38
EXO, EXM, LVB, LVS = 0, 2048, 4096, 39936
VORD = list(range(NLV)) + [72] + list(range(NLV, 72))


def vslot(i):
    return ('L', i) if i < NLV else ('L', NLV) if i == 72 else VSR[i - NLV]


for x in range(224):
    assert (x * 293) >> 11 == x // 7
if args.map == 0:
    e('s_sub_u32 s%d, s2, 32' % sT0)
    e('s_mul_i32 s%d, s%d, 293' % (sH, sT0))
    e('s_lshr_b32 s%d, s%d, 11' % (sH, sH))
    e('s_mul_i32 s%d, s%d, 7' % (sT1, sH))
    e('s_sub_u32 s%d, s%d, s%d' % (sT0, sT0, sT1))
else:
    e('s_mov_b32 s%d, s2' % sH)
e('s_lshl_b32 s%d, s%d, 21' % (sLds, sH))
e('s_mul_i32 s%d, s%d, %d' % (sT1, sT0, args.ilv * 16384 or PARTB))
e('s_add_u32 s%d, s%d, s%d' % (sLds, sLds, sT1))
e('s_lshl_b32 s%d, s%d, 12' % (sT1, sU))
e('s_add_u32 s%d, s%d, s%d' % (sBase, sLds, sT1))
sBase2 = 44
sBaseV, sTailV = 45, 46
if args.nk == 2:
    e('s_waitcnt lgkmcnt(0)')
    e('s_load_dwordx2 s[50:51], s[14:15], 0')
    e('s_waitcnt lgkmcnt(0)')
if args.nk is not None:
    e('s_andn2_b32 s47, s%d, 4' % sH)
    e('s_lshr_b32 s48, s%d, 1' % sU)
    e('s_lshl2_add_u32 s47, s48, s47')
    e('s_getreg_b32 s48, hwreg(HW_REG_XCC_ID, 2, 1)')
    e('s_xor_b32 s48, s48, s47')
    e('s_xor_b32 s48, s48, %s' % (args.nk if args.nk < 2 else 's50'))
    e('s_and_b32 s48, s48, 1')
    e('s_lshl_b32 s48, s48, 13')
    e('s_lshl_b32 s47, s47, 21')
    e('s_add_u32 s47, s47, s48')
    e('s_and_b32 s48, s%d, 1' % sU)
    e('s_lshl_b32 s49, s48, 12')
    e('s_mul_i32 s%d, s%d, %d' % (sBase, sT0, 18 * 16384))
    e('s_add_u32 s%d, s%d, s49' % (sBase, sBase))
    e('s_add_u32 s%d, s%d, s47' % (sBase, sBase))
    e('s_xor_b32 s%d, s%d, %s' % (sBaseV, sBase, (args.nk ^ args.nv) << 13 if args.nk < 2 else 's51'))
    e('s_lshr_b32 s49, s%d, 2' % sT0)
    e('s_lshl_b32 s49, s49, 14')
    e('s_add_u32 s47, s47, s49')
    e('s_and_b32 s49, s%d, 3' % sT0)
    e('s_lshl_b32 s49, s49, 11')
    e('s_add_u32 s47, s47, s49')
    e('s_lshl_b32 s48, s48, 8')
    e('s_add_u32 s47, s47, s48')
    e('s_add_u32 s47, s47, %d' % (126 * 16384))
    e('s_xor_b32 s%d, s47, %s' % (sTailV, (args.nk ^ args.nv) << 13 if args.nk < 2 else 's51'))
if args.alt:
    e('s_xor_b32 s%d, s%d, 0x2000' % (sT1, sT1))
    e('s_add_u32 s%d, s%d, s%d' % (sBase2, sLds, sT1))
e('v_lshlrev_b32 v%d, 4, v0' % vVo)
mk_koff(vKo, 0, vD)
e('s_waitcnt lgkmcnt(0)')
mk_srd(SK, 6, 2 * BATCH)


sMode, sVote = 100, 101
MS = {'on': False, 'list': [tuple(int(y) for y in x.split(':')) for x in args.ms.split(',') if x], 'k': 0, 'pend': None, 'reg': 51, 'ok': True}


def rmode():
    if MS['on'] and args.vfull:
        e('s_cmp_lg_u32 s%d, 0' % sMode)
        e('s_cselect_b64 vcc, -1, 0')
    elif MS['on']:
        e('s_mov_b32 vcc_lo, s%d' % sMode)
        e('s_mov_b32 vcc_hi, 0')


sRep, sRp, sGl, sXb, sGb, sOwn = 52, 53, 54, 55, 46, 47


def ms_hook(n):
    if MS['pend'] and n >= MS['pend'][0] and MS['pend'][2] is None:
        _, nv, thr, reg = MS['pend']
        MS['pend'] = None
        lb = a.newlabel('L_gb')
        e('s_cmp_lt_u32 s%d, s%d' % (sRp, sRep))
        e('s_cbranch_scc0 %s' % lb)
        e('s_waitcnt vmcnt(%d)' % (len(a.vm) - nv))
        e('v_cmp_ne_u32 %s, 0, v%d' % (sp(sMt), reg))
        e('s_and_b32 s%d, s%d, 0xff' % (sMt, sMt))
        e('s_or_b32 s%d, s%d, s%d' % (sMt, sMt, sOwn))
        e('s_bcnt1_i32_b32 s%d, s%d' % (sMt, sMt))
        e('s_lshr_b32 s%d, s%d, 1' % (sMt, sMt))
        e('s_bfm_b64 %s, s%d, 0' % (sp(sMt), sMt))
        e('v_cndmask_b32 v%d, 0, 1, %s' % (reg, sp(sMt)))
        e('s_mov_b64 exec, 15')
        e('buffer_store_byte v%d, v%d, %s, s%d offen offset:%d' % (reg, vPo, srd(SWS), sGate, 224 + MS['k']))
        e('s_mov_b64 exec, -1')
        a.label(lb)
    if MS['pend'] and n >= MS['pend'][0]:
        _, tk, thr, reg = MS['pend']
        MS['pend'] = None
        a.vmwait(tk)
        e('v_cmp_ne_u32 vcc, 0, v%d' % reg)
        if args.gb:
            e('s_lshr_b32 s%d, vcc_lo, 28' % sXb)
            e('s_bcnt1_i32_b32 s%d, s%d' % (sXb, sXb))
            e('s_mul_i32 s%d, s%d, %d' % (sXb, sXb, args.gb))
        if args.msl:
            e('s_and_b32 vcc_lo, vcc_lo, 0x0fffffff')
        e('s_bcnt1_i32_b32 s%d, vcc_lo' % sMode)
        k = MS['k'] - 1
        if args.gb and str(k) in args.gbk:
            lb = a.newlabel('L_gr')
            e('v_lshlrev_b32 v%d, 7, v%d' % (reg, vPo))
            e('s_sub_u32 s%d, s%d, %d' % (sRp, sMode, args.gb0))
            e('s_cmp_lt_u32 s%d, s%d' % (sRp, sRep))
            a.skip_begin('s_cbranch_scc0', lb)
            e('s_mov_b64 exec, 0xffff')
            assert vPo & 1
            e('buffer_store_dwordx2 %s, v%d, %s, s%d offen offset:%d sc1' % (vp(vPo - 1), vPo, srd(SWS), sGl, 128 * k))
            e('s_andn2_b32 exec_lo, 0xff, s%d' % sOwn)
            e('buffer_load_dword v%d, v%d, %s, s%d offen offset:%d sc1' % (reg, reg, srd(SWS), sGb, 128 * k + 12))
            e('s_mov_b64 exec, -1')
            a.skip_end(lb)
            MS['pend'] = (n + args.gbl, len(a.vm), None, reg)
        if args.gb:
            e('s_add_u32 s%d, s%d, s%d' % (sMode, sMode, sXb))
            thr += 2 * args.gb
        e('s_cmp_lt_u32 s%d, %d' % (sMode, thr))
        e('s_cselect_b32 s%d, -1, 0' % sMode)
        MS['on'] = True
        rmode()
    if MS['list'] and n >= MS['list'][0][0] and not MS['pend']:
        pos, thr = MS['list'].pop(0)
        k = MS['k']
        MS['k'] += 1
        assert k < 8 and MS['ok'] and args.msl
        lb = a.newlabel('L_nv')
        if args.msl:
            e('s_cmp_eq_u32 s%d, 1' % sU)
            a.skip_begin('s_cbranch_scc0', lb)
            e('s_mov_b64 exec, 2')
            e('buffer_store_byte v%d, off, %s, s%d offset:%d' % (vPo, srd(SWS), sVote, k))
            e('s_mov_b32 exec_lo, -1')
            a.skip_end(lb)
            e('s_mov_b32 exec_hi, 0')
            tk = a.vmem('buffer_load_ubyte v%d, v%d, %s, s%d offen offset:%d sc1' % (MS['reg'], vPo, srd(SWS), sGate, k))
            e('s_mov_b32 exec_hi, -1')
            MS['pend'] = (n + args.mlag, tk, thr, MS['reg'])
            return
        e('s_cmp_lt_u32 s%d, 256' % sVote)
        a.skip_begin('s_cbranch_scc0', lb)
        e('s_mov_b64 exec, 1')
        e('buffer_store_byte v%d, off, %s, s%d offset:%d sc1' % (vM, srd(SDBG), sVote, k))
        e('s_mov_b64 exec, -1')
        a.skip_end(lb)
        tk = a.vmem('buffer_load_ubyte v%d, v%d, %s, 0 offen offset:%d sc1' % (MS['reg'], vPo, srd(SDBG), 128 + k))
        MS['pend'] = (n + 6, tk, thr, MS['reg'])


def goff(g):
    if args.ilv:
        assert 18 % args.ilv == 0
        return (g // args.ilv * 7 * args.ilv + g % args.ilv) * 16384
    return g * 16384


class Sched:
    def __init__(self):
        self.tok = []
        self.queue = []
        self.lastgrp = None

    def issue(self, kind, b, i, dest, pol):
        g, t = i >> 2, i & 3
        LTS = [int(x) for x in args.lts.split(',') if x]
        if len(self.tok) in LTS:
            kk = LTS.index(len(self.tok))
            e('s_memrealtime s[%d:%d]' % (6 + 2 * kk, 7 + 2 * kk))
        key = (kind, b, g, dest[0] == 'L')
        if self.lastgrp != key:
            if g == 18:
                e('s_add_u32 s%d, s%d, 0x%x' % (sOff, sTail if args.nk is None else 47 if kind == 'K' else sTailV, b * BATCH))
            else:
                e('s_add_u32 s%d, s%d, 0x%x' % (sOff, sBase2 if args.alt and (g // args.alt) & 1 else sBaseV if args.nk is not None and kind == 'V' else sBase, goff(g) + b * BATCH))
            if dest[0] == 'L':
                e('s_add_u32 m0, s%d, 0x%x' % (sLds, (dest[1] - t) * 1024))
            self.lastgrp = key
        s = srd(SK if kind == 'K' else SV)
        vo = vKo if kind == 'K' else vVo
        imm = (t >> 1) * 2048 + (t & 1) * 256 if kind == 'K' else t * 1024
        if kind == 'V' and g == 18:
            e('v_and_b32 v0, 0x300, v%d' % vVo)
            e('v_add_u32 v0, v0, v%d' % vVo)
            vo = 0
        if pol == 'X':
            e('s_mov_b32 exec_lo, 0x1111')
            e('s_mov_b32 exec_hi, 0x1111')
            a.vmem('buffer_load_dword v%d, v%d, %s, s%d offen offset:%d nt' % (base_of(dest), vo, s, sOff, imm))
            e('s_mov_b64 exec, -1')
            pol = ''
        if dest[0] == 'L':
            tk = a.vmem('buffer_load_dwordx4 v%d, %s, s%d offen offset:%d %s lds' % (vo, s, sOff, imm, pol))
        else:
            tk = a.vmem('buffer_load_dwordx4 %s, v%d, %s, s%d offen offset:%d %s' % (dest, vo, s, sOff, imm, pol))
        self.tok.append(tk)
        if str(len(self.tok)) in args.wA.split(','):
            warm_site('a')
        return tk

    def pace(self, d, lo=None, hi=None):
        n = len(self.tok)
        if lo is not None:
            ms_hook(n)
        if lo is not None and MS['on'] and lo != hi:
            a.vmwait(self.tok[n - hi])
            tk = self.tok[n - lo]
            if tk >= a.vm_done:
                lb = a.newlabel('L_pc')
                a.skip_begin('s_cbranch_vccz', lb)
                e('s_waitcnt vmcnt(%d)' % (len(a.vm) - 1 - tk))
                a.skip_end(lb)
            return
        if lo is not None and MS['on']:
            d = lo
        if n >= d:
            a.vmwait(self.tok[n - d])

    def run_item(self, it):
        for tk in it.get('need', []):
            a.vmwait(tk())
        it['fn']()
        it['done'] = True

    def ready(self, it):
        for tk in it.get('need', []):
            v = tk()
            if v is None or v >= a.vm_done:
                return False
        return True

    def run_until(self, it):
        while not it.get('done'):
            self.run_item(self.queue.pop(0))

    def run_budget(self, budget):
        while self.queue and budget > 0 and self.ready(self.queue[0]):
            it = self.queue.pop(0)
            self.run_item(it)
            budget -= it['cost']

    def drain(self):
        while self.queue:
            self.run_item(self.queue.pop(0))


S = Sched()
LT = {}
LOC = {}


def need(kind, b, i):
    return lambda: LT.get((kind, b, i))


def item(fn, cost, needs=()):
    it = {'fn': fn, 'cost': cost, 'need': list(needs)}
    S.queue.append(it)
    return it


def add_k_items(b, P, idxs):
    its = {}
    for i in idxs:
        g, t = i >> 2, i & 3
        D = vD + 4 * (g % 3)
        last = t == 3 or i == NQ - 1

        def fn(i=i, g=g, t=t, D=D, last=last):
            mfma(vq(D), LOC[('K', b, i)], vq(vBT + 4 * t), t == 0)
            if last:
                for op in score_ops(P, g, D, vC, (g & 3) == 0):
                    e(op)
        its[i] = item(fn, 4 + (18 if last else 0), [need('K', b, i)])
    return its


def att_softmax(P, g0, g1, tag):
    f1 = ['v_mov_b32 v%d, 0' % r for r in list(range(vD, vD + 12)) + list(range(vO1, vO1 + 8))] + idx_ops(vIdx, vVo)
    f2 = [mirror(PS[k], P[k]) for k in range(5)]
    f2 += a_ops(vD, P[g0 >> 2], PS[g0 >> 2], g0 & 3) + a_ops(vD + 4, P[g1 >> 2], PS[g1 >> 2], g1 & 3)
    softmax(P, vMl, 0, sStatJ, f1, f2, sEx, EXM, 's' + tag)


def pv_end(tag):
    e('s_lshl_b32 s%d, s%d, 5' % (sT0, sEx))
    e('v_add_u32 v0, s%d, v%d' % (sT0, vPo))
    merge(vO1, vO2)
    wg_publish(vO1, vSc, 0, vPo, EXO, vD, sPubJ, 'o' + tag, 'L_np' + tag)


st_ = {}


def add_v_items(b, P, temps, tag):
    tcount = [0]
    sc = {}

    def sca():
        sc['tk'] = scale_a(vSc, vVo, EXM)

    def scb():
        a.lgwait(sc['tk'])
        for op in scale_b(vSc, vMl):
            e(op)

    def tail_rd():
        k = tcount[0] % (len(temps) // 2)
        tcount[0] += 1
        sc['t'] = (temps[2 * k], temps[2 * k + 1], a.lds('ds_read_b128 %s, v%d offset:%d' % (temps[2 * k], vLd, NLV * 1024)))

    def tail_mm():
        src, A, tk = sc['t']
        for op in tail_a(base_of(A), P[4], 2, vM, 0):
            e(op)
        a.lgwait(tk)
        mfma(vq(vO1), A, src, False)

    for g in range(18):
        if g == 2:
            item(sca, 10)
        if g == 3:
            item(scb, 12)
        A = vD + 4 * (g % 3)
        An = vD + 4 * ((g + 2) % 3)
        if g + 2 < 18:
            nxt = a_ops(An, P[(g + 2) >> 2], PS[(g + 2) >> 2], (g + 2) & 3)
        else:
            nxt = []
        for half in range(2):
            i0 = 4 * g + 2 * half
            if i0 == NLV:
                item(tail_rd, 2, [need('V', b, 72)])
                st_['tmp' + tag] = item(tail_mm, 30)
            O = (vO1, vO2)[half]
            ops = nxt[:len(nxt) // 2] if half == 0 else nxt[len(nxt) // 2:]
            st = {}
            if i0 < NLV:
                def rd(i0=i0, st=st):
                    k = tcount[0] % (len(temps) // 2)
                    tcount[0] += 1
                    a.lds('ds_read_b128 %s, v%d offset:%d' % (temps[2 * k], vLd, i0 * 1024))
                    st['tk'] = a.lds('ds_read_b128 %s, v%d offset:%d' % (temps[2 * k + 1], vLd, i0 * 1024 + 1024))
                    st['src'] = pair(temps[2 * k], temps[2 * k + 1])
                item(rd, 2, [need('V', b, i0), need('V', b, i0 + 1)])

                def fn(A=A, O=O, st=st, ops=ops):
                    for op in ops:
                        e(op)
                    a.lgwait(st['tk'])
                    smf(O, A, st['src'], vIdx)
                item(fn, 30)
            else:
                def fn(A=A, O=O, i0=i0, ops=ops):
                    smf(O, A, pair(VSR[i0 - NLV], VSR[i0 + 1 - NLV]), vIdx)
                    for op in ops:
                        e(op)
                item(fn, 6, [need('V', b, i0), need('V', b, i0 + 1)])

    def pub():
        a.raw('M_pub%s:' % tag)
        pv_end(tag)
        stamp(vD)
    return item(pub, 40)


def q_load(job, land):
    e('s_add_u32 s%d, s%d, 0x%x' % (sT0, sHA, job * 256 + OFF_Q))
    return 'buffer_load_dwordx4 %s, v%d, %s, s%d offen sc1' % (vq(land), vQo, srd(SWS), sT0)


def q_check(job, land, tk, tmp):
    pf = job == 2 and (args.pfn or args.pf0)
    if pf:
        assert args.X // 4 + args.pfn * args.pfi + args.pf0 <= 18
        e('s_add_u32 s%d, s%d, 0x%x' % (sOff, sBase, args.X // 4 * 16384 + BATCH))
        e('s_mov_b32 s%d, %d' % (sT1, args.pfi))
        e('s_mov_b32 m0, 3072')
        e('v_lshlrev_b32 v%d, %d, v%d' % (tmp + 1, args.pfs, vVo))
        S.lastgrp = None
        for k in range(args.pf0):
            a.vmem('buffer_load_dword v%d, %s, s%d offen %s lds' % (tmp + 1, srd(SK), sOff, args.pfpol))
            e('s_add_u32 s%d, s%d, 16384' % (sOff, sOff))
    a.vmwait(tk)
    if job == 2 and args.q2fb:
        e('s_mov_b32 s%d, 0' % sMode)
        MS['on'] = True
    lc = a.newlabel('L_qc')
    lok = a.newlabel('L_qok')
    pf = job == 2 and args.pfn
    a.label(lc)
    e('v_max3_u32 v%d, v%d, v%d, v%d' % (tmp, land, land + 1, land + 2))
    e('v_max_u32 v%d, v%d, v%d' % (tmp, tmp, land + 3))
    e('v_cmp_eq_u32 vcc, -1, v%d' % tmp)
    e('s_cbranch_vccz %s' % lok)
    e(q_load(job, land))
    if pf:
        e('s_cmp_eq_u32 s%d, 0' % sT1)
        e('s_cbranch_scc1 L_nopf')
        e('s_sub_u32 s%d, s%d, 1' % (sT1, sT1))
        if args.pfs == 3:
            e('s_mov_b32 exec_hi, 0')
        for k in range(args.pfn):
            e('buffer_load_dword v%d, %s, s%d offen %s lds' % (tmp + 1, srd(SK), sOff, args.pfpol))
            e('s_add_u32 s%d, s%d, 16384' % (sOff, sOff))
        if args.pfs == 3:
            e('s_mov_b32 exec_hi, -1')
        e('s_waitcnt vmcnt(%d)' % args.pfn)
        e('s_branch %s' % lc)
        a.label('L_nopf')
    e('s_waitcnt vmcnt(0)')
    if job == 2 and args.q2fb:
        e('s_mov_b32 s%d, -1' % sMode)
    spin_tail(lc)
    a.label(lok)
    if job < 2:
        rmode()


def late_setup():
    mk_srd(SV, 8, 2 * BATCH)
    mk_srd(SWS, 26, WS_SIZE)
    mk_srd(SDBG, 24, 256)
    smask(sMaskV, 0x3337333733373337)
    tail_soff(sTail, sT1)
    e('s_add_u32 s%d, s%d, s%d' % (sTail, sTail, sLds))
    if args.ilv:
        e('s_mul_i32 s%d, s%d, %d' % (sT1, sT0, args.ilv * 16384 - 4096))
        e('s_sub_u32 s%d, s%d, s%d' % (sTail, sTail, sT1))
    e('s_add_u32 s%d, s%d, %d' % (sTail, sTail, (126 if args.ilv else 18) * 16384))
    e('s_mul_i32 s%d, s%d, %d' % (sLds, sU, LVS))
    e('s_add_u32 s%d, s%d, %d' % (sLds, sLds, LVB))
    e('s_lshl_b32 s%d, s%d, 4' % (sEx, sU))
    e('v_add_u32 v%d, s%d, v%d' % (vLd, sLds, vVo))
    e('s_mul_i32 s%d, s%d, %d' % (sHA, sH, HEADA))
    if args.gateA >= 0 or args.gateB >= 0:
        if args.map == 1:
            e('s_lshl_b32 s%d, s%d, 8' % (sGate, sT0))
            e('s_lshl_b32 s%d, s%d, 2' % (sGo, sH))
        else:
            e('s_and_b32 s%d, s%d, 7' % (sGate, sH))
            e('s_lshl_b32 s%d, s%d, 8' % (sGate, sGate))
            e('s_lshr_b32 s%d, s%d, 3' % (sGo, sH))
            e('s_lshl2_add_u32 s%d, s%d, s%d' % (sGo, sT0, sGo))
            e('s_lshl_b32 s%d, s%d, 2' % (sGo, sGo))
        e('s_add_u32 s%d, s%d, 0x%x' % (sGate, sGate, GATEB))
        e('s_add_u32 s%d, s%d, s%d' % (sGo, sGo, sU))
        e('s_add_u32 s%d, s%d, s%d' % (sGo, sGo, sGate))
        e('v_mov_b32 v%d, 0' % vD)
        e('s_mov_b64 exec, 1')
        a.vmem('buffer_store_byte v%d, off, %s, s%d' % (vD, srd(SWS), sGo))
        a.vmem('buffer_store_byte v%d, off, %s, s%d offset:128' % (vD, srd(SWS), sGo))
        e('s_mov_b64 exec, -1')
    if args.msl:
        e('s_and_b32 s%d, s%d, 7' % (sGate, sH))
        e('s_lshl_b32 s%d, s%d, 8' % (sGate, sGate))
        e('s_add_u32 s%d, s%d, 0x%x' % (sGate, sGate, GATEB))
        e('s_lshr_b32 s%d, s%d, 3' % (sVote, sH))
        e('s_lshl2_add_u32 s%d, s%d, s%d' % (sVote, sT0, sVote))
        e('s_lshl3_add_u32 s%d, s%d, s%d' % (sVote, sVote, sGate))
        e('v_mov_b32 v%d, 0' % vD)
        e('v_mov_b32 v%d, 0' % (vD + 1))
        e('s_cmp_eq_u32 s%d, 1' % sU)
        e('s_cbranch_scc0 L_nz')
        e('s_mov_b64 exec, 1')
        e('buffer_store_dwordx2 %s, off, %s, s%d' % (vp(vD), srd(SWS), sVote))
        if args.gb:
            e('s_cmp_eq_u32 s%d, 0' % sT0)
            e('s_cbranch_scc0 L_nz1')
            e('s_bitcmp1_b32 s%d, 4' % sH)
            e('s_cselect_b32 s%d, 0, -1' % sRep)
            e('v_mov_b32 v%d, s%d' % (vD + 2, sRep))
            e('v_mov_b32 v%d, s%d' % (vD + 3, sRep))
            e('buffer_store_dwordx2 %s, off, %s, s%d offset:224' % (vp(vD + 2), srd(SWS), sVote))
            a.label('L_nz1')
        e('s_mov_b64 exec, -1')
        e('s_nop 1')
        a.label('L_nz')
        if args.gb:
            e('s_cmp_eq_u32 s%d, 1' % sU)
            e('s_cselect_b32 s%d, %d, 0' % (sRep, args.gbn))
            e('s_and_b32 s%d, s%d, 7' % (sGl, sH))
            e('s_lshl_b32 s%d, 1, s%d' % (sOwn, sGl))
            e('s_lshl_b32 s%d, s%d, 10' % (sGl, sGl))
            e('s_mov_b32 s%d, 0x%x' % (sGb, GBB))
            e('s_add_u32 s%d, s%d, s%d' % (sGl, sGl, sGb))
            e('s_lshr_b32 s%d, s%d, 3' % (sXb, sH))
            e('s_lshl2_add_u32 s%d, s%d, s%d' % (sXb, sXb, sU))
            e('s_lshl3_add_u32 s%d, s%d, s%d' % (sXb, sXb, sT0))
            e('s_cmp_eq_u32 s%d, %d' % (sXb, 2 * 8 + 1))
            e('s_cbranch_scc0 L_nz2')
            e('v_mov_b32 v%d, 0' % (vD + 2))
            e('v_mov_b32 v%d, 0' % (vD + 3))
            e('buffer_store_dwordx4 %s, v%d, %s, s%d offen sc1' % (vq(vD), vVo, srd(SWS), sGl))
            a.label('L_nz2')
    elif args.ms:
        e('s_lshr_b32 s%d, s%d, 3' % (sVote, sH))
        e('s_lshl2_add_u32 s%d, s%d, 1' % (sVote, sVote))
        e('s_xor_b32 s%d, s%d, s%d' % (sVote, sVote, sT0))
        e('s_xor_b32 s%d, s%d, 1' % (sMode, sU))
        e('s_or_b32 s%d, s%d, s%d' % (sMode, sMode, sVote))
        e('s_lshl3_add_u32 s%d, s%d, 128' % (sVote, sH))
        e('s_cmp_eq_u32 s%d, 0' % sMode)
        e('s_cselect_b32 s%d, s%d, -1' % (sVote, sVote))
    mk_qoff(vQo, 0, vD)
    e('s_lshl_b32 s%d, s%d, 9' % (sPub, sT0))
    e('s_add_u32 s%d, s%d, s%d' % (sPub, sPub, sHA))
    e('s_add_u32 s%d, s%d, %d' % (sPub, sPub, OFF_O))
    e('s_lshl_b32 s%d, s%d, 7' % (sStat, sT0))
    e('s_lshl3_add_u32 s%d, s%d, s%d' % (sStat, sU, sStat))
    e('s_add_u32 s%d, s%d, s%d' % (sStat, sStat, sHA))
    e('s_and_b32 s%d, s%d, 7' % (sH, sH))
    e('s_lshl_b32 s%d, s%d, 4' % (sH, sH))
    e('s_getreg_b32 s%d, hwreg(HW_REG_XCC_ID, 0, 4)' % sFo)
    e('s_or_b32 s%d, s%d, 0x80000000' % (sFo, sFo))
    mk_masks(vM, vD)
    mk_c(vC, 4, vD)
    e('v_lshlrev_b32 v%d, 3, v0' % vPo)


GW = 32 if args.map == 1 else 28


def gate_signal(k):
    e('v_mov_b32 v0, -1')
    e('s_mov_b64 exec, 1')
    a.vmem('buffer_store_byte v0, off, %s, s%d offset:%d' % (srd(SWS), sGo, k * 128))
    e('s_mov_b64 exec, -1')


def gate_wait(k, th):
    a.vmwait_all()
    if args.gone:
        e('s_cmp_lg_u32 s%d, 0' % sU)
        e('s_cbranch_scc1 L_gok%d' % k)
    e('s_mov_b32 s%d, 100' % sT1)
    e('v_lshrrev_b32 v%d, 2, v%d' % (vD + 1, vVo))
    e('s_mov_b64 exec, 0x%x' % ((1 << GW) - 1) if GW < 32 else 's_mov_b32 exec_hi, 0')
    a.label('L_gw%d' % k)
    e('buffer_load_dword v0, v%d, %s, s%d offen offset:%d sc1' % (vD + 1, srd(SWS), sGate, k * 128))
    e('s_waitcnt vmcnt(0)')
    e('v_cmp_eq_u32 vcc, -1, v0')
    e('s_bcnt1_i32_b32 s%d, vcc_lo' % sT0)
    e('s_cmp_ge_u32 s%d, %d' % (sT0, GW - th))
    e('s_cbranch_scc1 L_gok%d' % k)
    if args.gsleep:
        e('s_sleep %d' % args.gsleep)
    e('s_sub_u32 s%d, s%d, 1' % (sT1, sT1))
    e('s_cbranch_scc0 L_gw%d' % k)
    a.label('L_gok%d' % k)
    e('s_mov_b64 exec, -1')
    if args.gone:
        e('s_barrier')


def set_job(job):
    e('s_add_u32 s%d, s%d, 0x%x' % (sPubJ, sPub, (job >> 1) * 4096))
    e('s_add_u32 s%d, s%d, 0x%x' % (sStatJ, sStat, job * 32))
    e('s_mov_b32 s%d, %d' % (sTag, 2 - (job & 1)))


def o_fill(r, k):
    e('v_mov_b32 v%d, -1' % r)
    e('v_mov_b32 v%d, -1' % (r + 1))
    e('s_lshl3_add_u32 s%d, s%d, s%d' % (sT0, sEx, sPub))
    if k:
        e('s_add_u32 s%d, s%d, 4096' % (sT0, sT0))
    e('s_mov_b64 exec, 0xffff')
    store_sel('buffer_store_dwordx2 %s, v%d, %s, s%d offen' % (vp(r), vPo, srd(SWS), sT0), 'fill%d' % k, True)
    e('s_mov_b64 exec, -1')
    return len(a.vm) - 1


D_ = args.D
X = args.X
R = NR
XE = args.XE or X
assert X % 4 == 0 and X <= 72 and XE % 4 == 0 and XE <= X
st = {}

seqA = [('K', i) for i in range(NQ)] + [('V', i) for i in VORD]
QF = args.QF if not args.bwtest else 2 * NQ - 1
flag_ld = 'buffer_load_dwordx4 %s, off, %s, s%d sc1' % (vq(vD), srd(SDBG), sH)
for n, (kind, i) in enumerate(seqA):
    dest = KS[i] if kind == 'K' else vslot(i)
    LOC[(kind, 0, i)] = dest
    S.pace(args.DE if n >= 2 * NQ - args.NE else (args.DA or D_), *((args.Elo, args.DE) if n >= 2 * NQ - args.NE else (args.Dlo, args.Dhi)))
    LT[(kind, 0, i)] = S.issue(kind, 0, i, dest, polA)
    if n == D_ - 1:
        late_setup()
        stamp(vD, True)
    if args.bwtest:
        if n in (40, 72, 112):
            stamp(vD)
        if n == 2 * NQ - 1:
            a.vmwait_all()
            stamp(vD)
            for n2, (kind, i) in enumerate(seqA):
                S.pace(D_)
                S.issue(kind, 1, i, KS[i] if kind == 'K' else vslot(i), polB1 if n2 < args.B1n else polA)
                if n2 in (40, 72):
                    stamp(vD)
            a.vmwait_all()
            stamp(vD)
            ct_dump(vD)
            e('s_endpgm')
    if n == QF - (3 * D_ if not args.bwtest else 0):
        st['ftk'] = a.vmem(flag_ld)
    if n == QF - (D_ if not args.bwtest else 0):
        a.vmwait(st['ftk'])
        a.label('L_fc')
        e('v_min3_u32 v%d, v%d, v%d, v%d' % (vD + 4, vD, vD + 1, vD + 2))
        e('v_min_u32 v%d, v%d, v%d' % (vD + 4, vD + 4, vD + 3))
        e('v_cmp_eq_u32 vcc, 0, v%d' % (vD + 4))
        e('s_cbranch_vccz L_fok')
        e(flag_ld)
        e('s_waitcnt vmcnt(0)')
        spin_tail('L_fc')
        a.label('L_fok')
        e('v_max3_u32 v%d, v%d, v%d, v%d' % (vD + 5, vD, vD + 1, vD + 2))
        e('v_max_u32 v%d, v%d, v%d' % (vD + 5, vD + 5, vD + 3))
        e('v_xor_b32 v%d, s%d, v%d' % (vD + 4, sFo, vD + 4))
        e('v_xor_b32 v%d, s%d, v%d' % (vD + 5, sFo, vD + 5))
        e('v_or_b32 v%d, v%d, v%d' % (vD + 4, vD + 4, vD + 5))
        e('v_readfirstlane_b32 s%d, v%d' % (sFo, vD + 4))
        if args.nofast:
            e('s_mov_b32 s%d, 1' % sFo)
        e('s_cmp_eq_u32 s%d, 0' % sFo)
        e('s_cselect_b32 s%d, 0, 1024' % sT0)
        e('v_add_u32 v%d, s%d, v%d' % (vQo, sT0, vQo))
        st['qtk'] = a.vmem(q_load(0, vQL))
        st['filltk'] = o_fill(vD + 6, 0)
        rmode()
    if n == 2 * NQ - 1 - D_:
        assert not MS['pend']
        MS['ok'] = False
        st['q1tk'] = a.vmem(q_load(1, vQ1))
    if n == 2 * NQ - 1 - args.gateA:
        gate_signal(0)
    if n == QF:
        q_check(0, vQL, st['qtk'], vD)
        stamp(vD)
        item(lambda: build_bt(vBT, vQL), 24)
        add_k_items(0, PA, range(NQ))

        def sm():
            a.vmwait(st['filltk'])
            set_job(0)
            att_softmax(PA, 0, 1, '0')
        item(sm, 80)
        st['pub0'] = add_v_items(0, PA, RING[:4], '0')
    S.run_budget(args.budget)

def q1_start():
    q_check(1, vQ1, st['q1tk'], vD)
    if PARK:
        for r in range(0, 4, 2):
            e('v_mov_b64 %s, %s' % (vp(vBT + r), vp(vQ1 + r)))
    else:
        build_bt(vBT, vQ1)
    MS['ok'] = True
    MS['reg'] = vQL


def c_move(d, k0, k):
    return 'v_mov_b32_dpp v%%d, v%%d quad_perm:[%d,%d,%d,%d] %%s' % tuple(k0 if p == k else k0 ^ 1 for p in range(4)) % (d, vC, DPPF)


def add_k_lean(idxs):
    its = {}
    seen = set()
    for i in idxs:
        g, t = i >> 2, i & 3

        its[i] = item(lambda i=i: mfma(vq(vD), LOC[('K', 1, i)], vq(vBT), True), 4, [need('K', 1, i)])

        def fn(i=i, g=g, t=t):
            if st['ck'] != g & 3:
                e(c_move(vC, st['ck'], g & 3))
                st['ck'] = g & 3
            for r in range(4):
                op = 'v_mul_f32_dpp' if (g >> 2, t) not in seen and r == 0 else 'v_fmac_f32_dpp'
                e('%s v%d, v%d, v%d quad_perm:[%d,%d,%d,%d] row_mask:0xf bank_mask:0x%x' % (op, PB[g >> 2], vD + r, vC, r, r, r, r, 1 << t))
            seen.add((g >> 2, t))
        item(fn, 18)
    return its


st['ck'] = 0
item(q1_start, 24, [lambda: st['q1tk']])
seqB1 = [i for i in range(XE) if i not in PARK]
seqB1[args.park:args.park] = sorted(PARK)
assert args.park <= XE - 2 * R
kits = add_k_lean(seqB1[:-R]) if PARK else add_k_items(1, PB, range(XE - R))
ringbusy = {}
lds_done = False
if args.gateA >= 0:
    S.run_until(st['pub0'])
    gate_wait(0, args.thA)
CQ = [i for i in range(XE - R) if i not in PARK]
KEEP = {i: polB1 for i in CQ[:args.B1n]}
rn = 0
for n, i in enumerate(seqB1):
    if i in PARK:
        dest = vq(PARK[i])
    else:
        dest = RING[(rn + 4) % NR]
        rn += 1
    S.pace(args.DB0 if n < args.NB0 else D_, *((args.DB0, args.DB0h or args.DB0) if n < args.NB0 else (args.B1lo or args.Dlo, args.B1hi or args.Dhi)))
    S.run_budget(1 if PARK and MS['ok'] else args.budget)
    if dest in ringbusy:
        S.run_until(ringbusy.pop(dest))
    if n == 4:
        S.run_until(st_['tmp0'])
    if i in PARK:
        S.run_until(st['pub0'])
    if st['pub0'].get('done') and not st.get('p0n'):
        st['p0n'] = 1
        print('pub0 before B1 index', n)
    LOC[('K', 1, i)] = dest
    if n == args.QI:
        st['filltk'] = o_fill(base_of(dest), 1)
    LT[('K', 1, i)] = S.issue('K', 1, i, dest, KEEP.get(i, polB))
    if i in kits:
        ringbusy[dest] = kits[i]
    if n == XE - (args.q2p or D_) + 1:
        assert st['pub0'].get('done') and not MS['pend']
        MS['reg'] = None
        st['q2tk'] = a.vmem(q_load(2, vQL))
    S.run_budget(args.budget)
S.drain()
a.raw('M_j2:')
assert not MS['pend']
assert st['filltk'] < st['q2tk']
if PARK:
    for t in range(4):
        smask(sBM + 2 * t, 0x000F000F000F000F << (4 * t))
        smask(sMM + 2 * t, 0x0003000300030003 << (2 * t))
    e('s_mov_b32 s%d, 0xffff' % sMt)
q_check(2, vQL, st['q2tk'], vD)
stamp(vD)
set_job(2)
e('s_mov_b64 vcc, -1')


def bt_ops(t):
    return ['v_mov_b32_dpp v%d, v%d quad_perm:[0,1,2,3] row_mask:0xf bank_mask:0x%x' % (vBT + 4 * t + r, vQL + r, 1 << t) for r in range(4)]


def z64(r, n):
    return ['v_mov_b64 %s, 0' % vp(r + k) for k in range(0, n, 2)]


for k in range(args.p2d):
    e('v_mov_b32 v0, v0')
ct(0)
if PARK:
    def bt_full(t):
        return ['v_cndmask_b32 v%d, 0, v%d, %s' % (vBT + 4 * t + r, vQL + r, sp(sBM + 2 * t)) for r in range(4)]
    after = {4: bt_full(1), 1: bt_full(2), 5: bt_full(3),
             3: [c_move(vC + k, st['ck'], k) for k in (1, 2, 3, 0)] + ['v_lshl_add_u32 v%d, v%d, 1, s%d' % (vLd, vPo, sLds)],
             7: ['v_lshlrev_b32 v%d, 1, v%d' % (vVo, vPo), 'v_and_b32 v0, 16, v%d' % vVo, 'v_lshlrev_b32 v0, v0, s%d' % sMt] +
                ['v_cndmask_b32 v%d, 0, v0, %s' % (vM + k, sp(sMM + 2 * k)) for k in range(4)] + ['v_mov_b32 v0, 0xff800000']}
    for op in bt_full(0):
        e(op)
    for i in (0, 4, 1, 5, 2, 6, 3, 7):
        assert LT[('K', 1, i)] < a.vm_done
        mfma(vq(vD + 4 * (i >> 2)), KS[i], vq(vBT + 4 * (i & 3)), (i & 3) == 0)
        for k in range(4):
            e('v_accvgpr_write_b32 a%d, v%d' % (base_of(KS[i]) + k, PARK[i] + k))
        for op in after.get(i, []):
            e(op)
    e('s_branch L_p2b')
else:
    a.fence()
    for op in bt_ops(0) + bt_ops(1)[:2]:
        e(op)
    a.raw('    s_branch L_p2')
    a.hist = []

mainlines, a.lines = a.lines, []
q3ld = 'buffer_load_dwordx4 %s, v%d, %s, s%d offen sc1' % (vq(vQL), vQo, srd(SWS), sT0)
a.label('L_q3r')
e(q3ld)
e('s_sub_u32 s%d, s%d, 1' % (sBud, sBud))
e('s_cbranch_scc0 L_q3')
e('s_endpgm')
a.label('L_q3')
e('s_cmp_lg_u32 s%d, s%d' % (sU, sU))
e('s_waitcnt vmcnt(0)')
e('v_max3_u32 v%d, v%d, v%d, v%d' % (vD + 8, vQL, vQL + 1, vQL + 2))
e('v_max_u32 v%d, v%d, v%d' % (vD + 8, vD + 8, vQL + 3))
e('v_cmp_eq_u32 vcc, -1, v%d' % (vD + 8))
for op in bt_ops(0) + bt_ops(1)[:2]:
    e(op)
a.raw('    s_cbranch_vccnz L_q3r')
a.pos += 1
a.raw('@Q3OK')

a.raw('L_p2:')
seqB2 = [('K', i) for i in range(X, NQ - 1)] + [('V', i) for i in VORD]
seqB2.insert(NQ - 1 - X + args.K72, ('K', NQ - 1))
gx = X // 4
SC = 84
AB = [SC, SC + 4, SC + 8]
Oa, Ob, Oc, Od = SC + 12, SC + 16, SC + 20, SC + 24
PSn = [SC + 28 + k for k in range(5)]
nIdx, nM1, nL = SC + 33, SC + 34, SC + 35
sM1, sM2 = sT0, sT1
head = [gx, gx + 1, gx - 2, gx - 1] + list(range(gx + 2, 19))
blk1 = sorted({g >> 2 for g in head})
if len(blk1) < args.P2B1:
    blk1 = [0] + blk1
blk2 = [k for k in range(5) if k not in blk1]
g1 = head + [g for g in range(18) if g >> 2 in blk1 and g not in head]
g2 = [g for g in range(18) if g >> 2 in blk2]
gg = g1 + g2
if args.P2G:
    gg = [int(x) for x in args.P2G.split(',')]
if PARK:
    gg = [0, 1] + [g for g in gg if g > 1]
assert sorted(gg) == list(range(19))
QK = []
for t in range(4):
    QK += [(0, gg[0], t), (1, gg[1], t)]
for gi, g in enumerate(gg[2:]):
    QK += [(gi + 2, g, t) for t in range(4 if g < 18 else 1)]


def scored(ks):
    return not [x for x in QK if x[1] >> 2 in ks] and not [x for x in sq if x[2] in ks]


v1 = [g for g in g1 if g < 18]
v1.sort(key=lambda g: (4 * g < NLV, g >> 2 != 4, g))
v2 = sorted(g2, key=lambda g: (4 * g < NLV, g >> 2 != max(g2) >> 2, g))
vall = v1 + v2
PV = [('t',)] + [(vi, g, h) for vi, g in enumerate(vall) for h in range(2)]
n1 = 1 + 2 * len(v1)
NP2 = [int(x) for x in args.NP2.split(',')]
P2POS = [int(x) for x in args.P2POS.split(',')]
kfree = set()
reserved = set(range(X - 8, NQ)) | set(PARK)
ldq = [NLV] + [4 * g + k for g in vall for k in range(4) if 4 * g + k < NLV]
pref = {}
tempq = []


def p2_load():
    n = NP2.pop(0) if NP2 else 0
    todo = []
    while n > 0:
        kind, i = seqB2[len(todo)]
        if kind == 'K':
            if i not in kfree or i == NQ - 1:
                break
            dest = KS[i]
        else:
            dest = vslot(i)
            if i >= NLV or i not in pref:
                break
        todo.append((kind, i, dest))
        n -= 1
    if not todo:
        return
    sk = a.newlabel('L_sk')
    a.skip_begin(*(('s_cbranch_vccnz', sk + 'o') if args.P2OOL else ('s_cbranch_vccz', sk)))
    main, a.lines, lgd = a.lines, [], a.lg_done
    S.lastgrp = None
    for kind, i, dest in todo:
        seqB2.pop(0)
        if kind == 'V':
            a.lgwait(pref[i][1])
        S.pace(args.DP2 or D_)
        LOC[(kind, 1, i)] = dest
        LT[(kind, 1, i)] = S.issue(kind, 1, i, dest, polB)
    if args.P2OOL:
        RAW2.append([sk + 'o:'] + a.lines + ['    s_branch ' + sk])
    else:
        main.append('\n'.join(a.lines))
    a.lines, a.lg_done = main, lgd
    a.skip_end(sk)


def prefetch_one():
    v = ldq[0]
    if v == NLV:
        r = tempq.pop(0)
        tempq.pop(0)
    else:
        r = tempq.pop(0)
        assert (KS.index(r) & 1) == (v & 1)
    ldq.pop(0)
    if len(a.lg) - a.lg_done >= 14:
        a._lgwait_n(7)
    pref[v] = (r, a.lds('ds_read_b128 %s, v%d offset:%d' % (r, vLd, v * 1024)))


def can_ds():
    return ldq and len(tempq) > (1 if ldq[0] == NLV else 0)


def red63(op, r):
    return allreduce_list(op, r, None, (0, 1, 2, 3)) + \
        ['%s_dpp v%d, v%d, v%d row_bcast:15 row_mask:0xa bank_mask:0xf' % (op, r, r, r),
         '%s_dpp v%d, v%d, v%d row_bcast:31 row_mask:0xc bank_mask:0xf' % (op, r, r, r)]


def pexp(k, sm):
    p = PA[k]
    return ['v_subrev_f32 v%d, s%d, v%d' % (p, sm, p), 'v_exp_f32 v%d, v%d' % (p, p), 'v_cvt_pk_bf16_f32 v%d, 0, v%d' % (p, p),
            mirror(PSn[k], p), ('P', k)]


sq = []
cq = []
fq = bt_ops(1)[2:] + bt_ops(2) + bt_ops(3) + ['v_mov_b32 v0, 0xff800000']
aq = []
flags = set()
anext = [0]
adone = set()
vdone = set()
vpend = []
lgt = {}


def pop(q):
    x = q.pop(0)
    if callable(x):
        x()
    else:
        e(x)
    while q and isinstance(q[0], tuple):
        flags.add(q.pop(0))


def ok(q):
    if not q:
        return False
    if callable(q[0]):
        w = a.lines[-1].split()[0]
        return not w.startswith('v_') or w.startswith('v_smf')
    return a.needed(q[0]) == 0


def refill():
    while anext[0] < len(vall) and not aq:
        vi = anext[0]
        g = vall[vi]
        if ('P', g >> 2) not in flags or ('Z', AB[vi % 3]) not in flags or (vi >= 3 and vi - 3 not in vdone):
            return
        aq.extend(a_ops(AB[vi % 3], PA[g >> 2], PSn[g >> 2], g & 3) + [('A', vi)])
        anext[0] += 1


def slot(order, force=False):
    refill()
    for q in order:
        if q is sq:
            seen = set()
            for k, x in enumerate(sq):
                if x[2] not in seen and a.needed(x[1]) == 0:
                    e(sq.pop(k)[1])
                    return True
                seen.add(x[2])
        elif q == 0:
            a.nop(1)
            return True
        elif ok(q):
            pop(q)
            return True
    if force:
        for q in order:
            if q is sq and sq:
                e(sq.pop(0)[1])
                return True
            if q:
                pop(q)
                return True
        assert False
    return False


def pv_ready(x):
    if x[0] == 't':
        return ('T', 0) in flags
    if QK and x[2] == 0 and ('A', x[0] + 1) not in flags:
        return False
    return {('A', x[0]), ('Z', SC + 32), ('Z', Ob), ('Z', Oc), ('Z', Ob if x[0] < len(v1) else Od)} <= flags


def emit_pv(x):
    if x[0] == 't':
        a.lgwait(pref[NLV][1])
        mfma(vq(Oa), vq(Od), pref[NLV][0], True)
        fq.extend(z64(Od, 4) + [('Z', Od)])
        return
    vi, g, h = x
    i0 = 4 * g + 2 * h
    if i0 < NLV:
        src = pair(pref[i0][0], pref[i0 + 1][0])
        a.lgwait(pref[i0 + 1][1])
    else:
        src = pair(VSR[i0 - NLV], VSR[i0 + 1 - NLV])
    smf(((Oa, Ob) if vi < len(v1) else (Oc, Od))[h], AB[vi % 3], src, nIdx)
    if h:
        vpend.append(vi)


def chain1():
    o = [4] + [k for k in blk1 if k != 4][::-1]
    c = ['v_max3_f32 v%d, v%d, v%d, v%d' % ((nM1,) + tuple(PA[k] for k in (blk1 + blk1)[:3]))] + red63('v_max_f32', nM1)
    c += ['v_readlane_b32 s%d, v%d, 63' % (sM1, nM1)]
    c += pexp(o[0], sM1)
    cq.extend(c)
    f = tail_a(Od, PA[4], 2, vM, 0) + [('T', 0)] + pexp(o[1], sM1)
    f += ['v_add_f32 v%d, v%d, v%d' % (nL, PA[o[0]], PA[o[1]]), 'v_mov_b32 v%d, s%d' % (nM1, sM1)]
    if len(o) > 2:
        f += pexp(o[2], sM1) + ['v_add_f32 v%d, v%d, v%d' % (nL, nL, PA[o[2]])]
    cq.extend(f)


vF1, vR1, vC2, vT2 = 20, 22, 24, 25


def chain2():
    o = [v2[0] >> 2] + [k for k in blk2 if k != v2[0] >> 2]
    m, l = vMl, vMl + 1
    if len(o) > 2:
        c = ['v_max3_f32 v%d, v%d, v%d, v0' % (m, PA[blk2[1]], PA[blk2[2]])] + red63('v_max_f32', m)
    else:
        c = ['v_max3_f32 v%d, v%d, v%d, s%d' % (m, PA[o[0]], PA[o[1]], sM1)] + red63('v_max_f32', m)
    c += ['v_readlane_b32 s%d, v%d, 63' % (sM2, m)]
    c += pexp(o[0], sM2)

    def wr():
        while ('X', 0) not in flags:
            pop(fq)
        e('s_brev_b64 exec, 1')
        lgt['w'] = a.lds('ds_write_b32 v%d, v%d offset:%d' % (vT2, m, EXM))
        e('s_mov_b64 exec, -1')

    def bar():
        ct(4)
        a.lgwait(lgt['w'])
        e('s_barrier')
        ct(5)
        lgt['r'] = a.lds('ds_read_b32 v%d, v%d offset:%d' % (vC2, vC2, EXM))

    def stt():
        ct(6)
        e('s_brev_b64 exec, 1')
        store_sel('buffer_store_dwordx2 %s, off, %s, s%d' % (vp(m), srd(SWS), sStatJ), 'sp', True, True)
        e('s_mov_b64 exec, -1')
    n0 = len(c)
    c += [wr] + pexp(o[1], sM2)
    c += ['v_subrev_f32 v%d, s%d, v%d' % (vF1, sM2, nM1), 'v_add_f32 v%d, v%d, v%d' % (l, PA[o[0]], PA[o[1]]),
          'v_exp_f32 v%d, v%d' % (vF1, vF1), bar, 'v_fmac_f32 v%d, v%d, v%d' % (l, nL, vF1), 'v_min_u32 v%d, -2, v%d' % (m, m)]
    if len(o) > 2:
        c += pexp(o[2], sM2) + ['v_add_f32 v%d, v%d, v%d' % (l, l, PA[o[2]])]
    c += red63('v_add_f32', l) + ['v_min_u32 v%d, -2, v%d' % (l, l), lambda: a.lgwait(lgt['r'])]
    sb = allreduce_list('v_max_f32', vC2, None, (0, 1))
    c += [sb[0], stt, sb[1], 'v_sub_f32 v%d, s%d, v%d' % (vC2, sM2, vC2), 'v_exp_f32 v%d, v%d' % (vC2, vC2), ('W', 0)]
    cq.extend(c)
    lgt['rest'] = len(c) - n0
    fq[:0] = ['v_mov_b32 v%d, s%d' % (vT2, sEx), 'v_and_b32 v%d, 0x30, v%d' % (vC2, vVo), ('X', 0)]


def chain3():
    c = ['v_permlane32_swap_b32 v%d, v%d' % (Oa, Oa + 2), 'v_permlane32_swap_b32 v%d, v%d' % (Oa + 1, Oa + 3),
         'v_permlane32_swap_b32 v%d, v%d' % (Ob, Ob + 2), 'v_permlane32_swap_b32 v%d, v%d' % (Ob + 1, Ob + 3),
         'v_mul_f32 v%d, v%d, v%d' % (vF1, vF1, vC2),
         'v_pk_add_f32 %s, %s, %s' % (vp(vR1), vp(Oa), vp(Ob + 2)),
         'v_lshl_add_u32 v0, v%d, 5, v%d' % (vT2, vPo),
         'v_pk_mul_f32 %s, %s, %s op_sel_hi:[1,0]' % (vp(vR1), vp(vR1), vp(vF1))]
    cq.extend(c)


seen_reg = set()
tnew = None
ilast = None
nm = 0
p2start = len(a.lines)
npv = 0
lastm = None
st2 = 0
left1 = len(g1)
while QK or PV:
    refill()
    vd_ = list(vpend)
    del vpend[:]
    if tnew:
        tempq.append(tnew)
    tnew = None
    if QK and not (lastm == 'q' and npv < n1 - args.P2ND and pv_ready(PV[0])):
        gi, g, t = QK.pop(0)
        D = vD + 4 * (gi % 3)
        if t == 0:
            while [x for x in sq if x[0] <= gi - 3]:
                slot([sq, cq, aq, fq]) or slot([sq], True)
        while fq and isinstance(fq[0], str) and fq[0] in bt_ops(t):
            pop(fq)
        i = 4 * g + t
        if PARK and nm == 7:
            if a.lines[-1].split() == ['s_nop', '0']:
                a.lines.pop()
                a.pos -= 1
            a.raw('    s_cbranch_scc1 L_q3')
            a.pos += 1
        mfma(vq(D), KS[i], vq(vBT + 4 * t), t == 0)
        if PARK and nm == 7:
            assert not fq and len(sq) == 4 and not [x for x in a.lines[p2start:] if x.split()[0][:3] in ('ds_', 'buf')]
            a.raw('L_p2b:')
        lastm = 'q'
        mline, mpos = len(a.lines), a.pos
        kfree.add(i)
        if i not in reserved:
            tnew = KS[i]
        if t == 3 or g == 18:
            sq.extend((gi, op, g >> 2) for op in score_ops(PA, g, D, vC, (g >> 2) not in seen_reg))
            seen_reg.add(g >> 2)
            if g >= 16 and not [x for x in QK if x[1] >= 16]:
                sq.append((gi, 'v_cndmask_b32 v%d, v0, v%d, %s' % (PA[4], PA[4], sp(sMaskV)), 4))
        if ilast is not None and KS[ilast][0] == 'v':
            b = base_of(KS[ilast])
            if b in AB:
                fq.extend(z64(b, 4) + [('Z', b)])
            if b in (Ob, Oc):
                fq.extend(z64(b, 4) + [('Z', b)])
            if b == SC + 32:
                fq.extend(idx_ops(nIdx, vVo) + [('Z', b)])
        ilast = i
        order = [[sq, cq, aq, fq]] * 2
    else:
        while not pv_ready(PV[0]):
            vdone.update(vd_)
            slot([aq, sq, cq, fq]) or slot([sq, cq, aq, fq], True)
            if st2 == 1 and not QK and not sq:
                chain2()
                st2 = 2
        emit_pv(PV.pop(0))
        npv += 1
        lastm = 'p'
        for k in range(2 if npv % 2 and args.P2DS2 else 1):
            if can_ds():
                prefetch_one()
        order = [[aq, sq, cq, fq]] if QK else [[sq, cq, fq], [aq], [aq], [sq, cq, fq]]
        if not QK and ('A', len(v1)) not in flags:
            crit = len(sq) + (12 if st2 < 2 else len(cq) - lgt['rest']) + 2
            hurry = crit > n1 - npv + args.P2H
            order = [[sq, cq], [aq, fq, 0], [aq, fq, 0] if hurry else [aq, fq]] + ([[sq, cq]] if hurry else [])
        elif st2 == 3:
            order = [[cq]]
        elif not QK and PV and ('A', PV[0][0] + 1) not in flags and PV[0][2] == 1:
            order = [[aq], [aq], [aq], [sq, cq, fq]]
    vdone.update(vd_)
    nm += 1
    if nm in P2POS:
        p2_load()
    dsd = False
    if lastm == 'q' and can_ds() and (ldq[0] == NLV or len(ldq) > args.P2DSL + len(QK)):
        prefetch_one()
        dsd = True
        order = order[:1]
    for k, o in enumerate(order):
        if lastm == 'q' and k == 1 and ('v_exp' in a.lines[-1] or nm in P2POS):
            break
        if not slot(o) and lastm == 'q':
            if can_ds() and not dsd and len(a.lg) - a.lg_done < 14:
                prefetch_one()
                dsd = True
                if k == 1:
                    a.lines.insert(mline, a.lines.pop())
                    for p in a.hist:
                        if p.pos >= mpos:
                            p.pos = mpos if p.kind == 'ds' else p.pos + 1
            elif can_ds() and not dsd:
                a._lgwait_n(7)
            elif sq or cq:
                a.nop(1)
        if st2 == 0 and scored(blk1):
            chain1()
            st2 = 1
            print('chain1 at', nm)
        if st2 == 1 and len(blk2) > 2 and 'f' not in flags and ('T', 0) in flags and scored(blk2[:1]):
            flags.add('f')
            cq.append('v_max_f32 v0, s%d, v%d' % (sM1, PA[blk2[0]]))
        if st2 == 1 and not QK and not sq:
            assert len(blk2) == 2 or 'f' in flags
            chain2()
            st2 = 2
            print('chain2 at', nm, 'pv done', npv, 'cq', len(cq))
        if st2 == 2 and ('W', 0) in flags and npv >= n1 + 2 and anext[0] == len(vall) and not aq:
            chain3()
            st2 = 3
            print('chain3 at', nm)
    if nm == 8:
        ct(1)
    if not QK and 'q' not in flags:
        flags.add('q')
        ct(2)
    if npv == n1 and lastm == 'p':
        ct(3)
assert st2 == 3 and not ldq and not sq and not aq and not fq
ct(7)
e('s_cmp_lg_u32 s%d, 0' % sU)
while cq:
    pop(cq)
merge(Oc, Od)
e('v_pk_fma_f32 %s, %s, %s, %s op_sel_hi:[1,0,1]' % (vp(Oc), vp(Oc), vp(vC2), vp(vR1)))
wg_publish(Oc, None, 0, vPo, EXO, vD, sPubJ, 'op', 'L_npp')
ct(8)


def cost(lines):
    tot, segs, cur = 0, [], None
    for ln in lines:
        w = ln.split()
        if w[0].endswith(':'):
            continue
        if w[0].startswith('v_mfma') or w[0].startswith('v_smf'):
            cur = [w[0][2], []]
            segs.append(cur)
        else:
            cur[1].append(w)
    out = []
    for kind, ws in segs:
        u, lead, seenv, pv = 0, 0, False, False
        for w in ws:
            isv = w[0].startswith('v_')
            n = int(w[1]) + 1 if w[0] == 's_nop' else 2 if w[0] == 'v_exp_f32' else 1
            if w[0].startswith('ds_') and pv:
                n += 2
            if kind == 's' and not isv and not seenv:
                lead += n
            else:
                u += n
            seenv |= isv
            pv = isv
        c = max(17, 9 + 4 * u) if kind == 'm' else max(17, 13 + 4 * (u + max(0, lead - 2)))
        out.append(c)
    return out


cc = cost(a.lines[p2start:])
print('P2 model', sum(cc[:-1]), ''.join(str(min(9, (c - 17) // 4)) for c in cc))
stamp(vD)
e('s_cbranch_vccnz L_p2ret')
ct_dump(vD)
e('s_endpgm')
for blk in RAW2:
    for ln in blk:
        a.raw(ln)
p2lines, a.lines = a.lines, mainlines
if args.lay:
    lb = a.lines.pop().split()[1]
    k = p2lines.index(lb + ':')
    a.lines += p2lines[k:]
    if PARK:
        assert p2lines[k + 1].split() == ['s_nop', '0']
        a.lines.pop(a.lines.index(lb + ':') + 1)
    p2lines = p2lines[:k] + ['    s_branch ' + lb]
a.label('L_p2ret')
S.lastgrp = None
MS['reg'] = PA[4]
rmode()

st['q1r'] = a.vmem(q_load(1, vQL))
item(lambda: build_bt(vBT, vQL), 24, [lambda: st['q1r']])
seqB2 = [('K', i) for i in range(XE, X)] + seqB2
for i in range(XE - R, NQ):
    add_k_items(1, PB, [i])
    if i < XE:
        def mv(i=i):
            src = base_of(LOC[('K', 1, i)])
            d = KS[i]
            for k in range(4):
                if d[0] == 'a':
                    e('v_accvgpr_write_b32 a%d, v%d' % (base_of(d) + k, src + k))
                else:
                    e('v_mov_b32 v%d, v%d' % (base_of(d) + k, src + k))
        item(mv, 4)


def sm1():
    set_job(1)
    att_softmax(PB, 0, 1, '1')


item(sm1, 80)
pub1 = add_v_items(1, PB, RING[:4], '1')
seqC = [('K', i) for i in CQ]
if args.cskip:
    seqC = seqC[:-args.cskip]
early, seqC = seqC[:args.Ce], seqC[args.Ce:]
args.NC1 = max(0, args.NC1 - args.Ce)
nB2 = len(seqB2)
for n, (kind, i) in enumerate(seqB2 + seqC):
    assert n < nB2 or not early
    dest = KS[i] if kind == 'K' else vslot(i)
    if n < nB2:
        S.pace((args.DEB or args.DE) if n >= nB2 - (args.NEB or args.NE) else D_,
               *((args.Elo, args.DEB or args.DE) if n >= nB2 - (args.NEB or args.NE) else (args.Dlo, args.Dhi)))
    else:
        if n == nB2 and args.gateB >= 0:
            S.drain()
            gate_wait(1, args.thB)
        dc = args.DC0 if n < nB2 + args.NC0 else args.DC if n < nB2 + args.NC1 else args.DC1
        if args.w0 and pub1.get('done') and n < nB2 + args.NC0:
            if not pub1.get('w0'):
                pub1['w0'] = 1
                e('s_cmp_lg_u32 s%d, 0' % sU)
                e('s_cselect_b64 vcc, -1, 0')
            S.pace(dc, dc, args.DC)
        else:
            S.pace(dc, (args.DCl or dc) if dc == args.DC else dc, (args.DC1h or dc) if n >= nB2 + args.NC1 else dc)
        S.run_budget(args.budget)
    key = (kind, 1, i)
    tk = S.issue(kind, 1, i, dest, polB if n < nB2 else polC if args.polCf is None or n < nB2 + args.NC1 else args.polCf)
    if key not in LT:
        LOC[key] = dest
        LT[key] = tk
    if n >= args.Cs and (n - args.Cs) % args.Cp == 0:
        for x in early[:args.Cc]:
            S.issue('K', 1, x[1], KS[x[1]], polC)
            if not args.Cn:
                S.tok.pop()
        early = early[args.Cc:]
    if n == nB2 - 1 - args.gateB and args.gateB >= 0:
        gate_signal(1)
    S.run_budget(args.budget)
S.drain()
assert not MS['pend'] and not MS['list']
stamp(vD)
set_job(3)
assert q_load(3, vQL) == q3ld
e(q3ld)
for op in z64(vBT, 16):
    e(op)
if PARK and args.warm:
    e('s_cmp_eq_u32 s%d, s%d' % (sU, sU))
    e('s_branch L_p2')
else:
    e('s_branch L_q3')
mainlines, a.lines = a.lines, []
if args.ts:
    stamp(vD)
    ct(0)
    if not args.quiet:
        a.nop(5)
k = p2lines.index('@Q3OK')
a.lines = mainlines + p2lines[:k] + a.lines + p2lines[k + 1:]

for k in range(args.sh):
    a.raw('    s_endpgm')
a.label('L_service')
if args.bwtest == 1:
    e('s_endpgm')
a.reset_counters()
vL16, vL8, vSI, vOg, vSt, vXo, vEw, vQr, vFr, vFr2, vWw, vWr, vSw = 1, 2, 3, 4, 5, 6, 7, 8, 9, 10, 11, 12, 13
vX0 = 14
vA = 16
vT = 28
vLA = 32
vAc = 96
vX, vX1, vCq, vCf = 112, 114, 116, 118
vMi = 120
TILES = ['a[%d:%d]' % (4 * i, 4 * i + 3) for i in range(64)] + ['v[%d:%d]' % (128 + 4 * i, 131 + 4 * i) for i in range(32)]
TQ, TO, TG = TILES[0:32], TILES[32:64], TILES[64:96]
E1, EO, EOM, E2, E2S, E3, E3S, EQ, EKV, EDN = 0, 2048, 4096, 8192, 10240, 12288, 14336, 15360, 20480, 65536
wpol = args.wpol
t0, t1 = vLA, vLA + 1
vRs, vAd = vLA + 2, vLA + 3

e('v_lshlrev_b32 v%d, 4, v0' % vL16)
e('v_and_b32 v%d, 7, v0' % t0)
e('v_lshlrev_b32 v%d, 5, v%d' % (vXo, t0))
e('v_lshrrev_b32 v%d, 5, v0' % t0)
e('v_lshl_or_b32 v%d, v%d, 4, v%d' % (vXo, t0, vXo))
e('v_bfe_u32 v%d, v0, 3, 1' % t0)
e('v_lshl_or_b32 v%d, v%d, 3, v%d' % (vXo, t0, vXo))
e('v_bfe_u32 v%d, v0, 4, 1' % t0)
e('v_lshl_or_b32 v%d, v%d, 2, v%d' % (vXo, t0, vXo))
e('s_lshl_b32 s%d, s%d, 8' % (sT0, sU))
e('v_add_u32 v%d, s%d, v%d' % (vXo, sT0, vXo))
e('v_lshlrev_b32 v%d, 6, v%d' % (vRs, t0))
e('v_lshrrev_b32 v%d, 5, v0' % t0)
e('v_lshl_or_b32 v%d, v%d, 1, v%d' % (vRs, t0, vRs))
e('v_and_b32 v%d, 0xf0, v%d' % (t1, vL16))
e('v_lshl_or_b32 v%d, v%d, 13, v%d' % (vAd, vRs, t1))
e('s_lshl_b32 s%d, s%d, 20' % (sT0, sU))
e('s_lshl_b32 s%d, s2, 8' % sT1)
e('s_add_u32 s%d, s%d, s%d' % (sT0, sT0, sT1))
e('s_waitcnt lgkmcnt(0)')
mk_srd(SWQ, 10, 512 * 8192)
mk_srd(SX, 4, 2048)


def gtile(n):
    tau, pi, r, k = n & 1, (n >> 1) & 1, (n >> 2) & 3, n >> 4
    return 16 * r + 8 * tau + 4 * pi + k


if 'c' in args.skip:
    e('v_mov_b32 v%d, v%d' % (vAd, vL16))
    e('s_lshl_b32 s%d, s2, 17' % sT0)
    e('s_lshl_b32 s%d, s%d, 12' % (sT1, sU))
    e('s_add_u32 s%d, s%d, s%d' % (sT0, sT0, sT1))
if 'k' in args.skip:
    e('v_mov_b32 v%d, v%d' % (vAd, vL16))
    e('s_lshr_b32 s%d, s2, 3' % sT0)
    e('s_lshl_b32 s%d, s%d, 20' % (sT0, sT0))
    e('s_lshl_b32 s%d, s%d, 18' % (sT1, sU))
    e('s_add_u32 s%d, s%d, s%d' % (sT0, sT0, sT1))
    e('s_and_b32 s%d, s2, 7' % sT1)
    e('s_lshl_b32 s%d, s%d, 10' % (sT1, sT1))
    e('s_add_u32 s%d, s%d, s%d' % (sT0, sT0, sT1))
def fills():
    mk_srd(SWS, 26, WS_SIZE)
    e('v_lshlrev_b32 v%d, 3, v0' % vL8)
    e('s_mul_i32 s%d, s2, %d' % (sHA, HEADA))
    for k in range(4):
        e('v_mov_b32 v%d, -1' % (vT + k))
    e('s_lshl_b32 s%d, s%d, 8' % (sG0, sU))
    e('s_add_u32 s%d, s%d, s%d' % (sG0, sG0, sHA))
    e('s_mov_b64 exec, 0xffff')
    a.vmem('buffer_store_dwordx4 %s, v%d, %s, s%d offen %s' % (vq(vT), vL16, srd(SWS), sG0, sc('B')))
    a.vmem('buffer_store_dwordx4 %s, v%d, %s, s%d offen offset:1024' % (vq(vT), vL16, srd(SWS), sG0))
    a.vmem('buffer_store_dwordx4 %s, v%d, %s, s%d offen offset:2048 %s' % (vq(vT), vL16, srd(SWS), sG0, sc('C')))
    e('s_mov_b64 exec, -1')
    e('s_and_b32 s%d, s2, 16' % sHS)
    e('s_add_u32 s%d, s%d, s2' % (sHS, sHS))
    e('s_lshl_b32 s%d, s%d, 9' % (sHS, sHS))
    e('s_lshl_b32 s%d, s%d, 15' % (sG0, sU))
    e('s_add_u32 s%d, s%d, s%d' % (sG0, sG0, sHS))
    e('v_lshrrev_b32 v%d, 5, v0' % t0)
    e('v_mul_u32_u24 v%d, %d, v%d' % (t0, 8192 - 512, t0))
    e('v_add_u32 v%d, v%d, v%d' % (t0, t0, vL16))
    e('s_add_u32 s%d, s%d, 0x%x' % (sT1, sG0, YB))
    if args.nofyz < 5:
        a.vmem('buffer_store_dwordx4 %s, v%d, %s, s%d offen %s' % (vq(vT), t0, srd(SWS), sT1, args.fpol))
    for k in range(4 + args.xfill - min(4, args.nofyz)):
        e('s_add_u32 s%d, s%d, 0x%x' % (sT1, sG0, ZB + k * 131072))
        a.vmem('buffer_store_dwordx4 %s, v%d, %s, s%d offen %s' % (vq(vT), t0, srd(SWS), sT1, args.fpol))


for n in range(32):
    if n == args.ffirst:
        fills()
    e('s_add_u32 s%d, s%d, 0x%x' % (sT1, sT0, (n >> 2) * 16384 + (n & 3) * 1024 if 'c' in args.skip else n * 8192 if 'k' in args.skip else gtile(n) * 8192))
    if 't' in args.skip and n >= 8:
        e('s_waitcnt vmcnt(7)')
    wqtk = a.vmem('buffer_load_dwordx4 %s, v%d, %s, s%d offen %s' % (TQ[n], vAd, srd(SWQ), sT1, wpol))
a.vmem('buffer_load_dword v%d, v%d, %s, 0 offen' % (vX0, vXo, srd(SX)))
wqtk = a.vmem('buffer_load_dword v%d, v%d, %s, 0 offen offset:1024' % (vX1, vXo, srd(SX)))
if args.ffirst >= 32:
    fills()
mk_srd(SK, 6, 2 * BATCH)
mk_srd(SV, 8, 2 * BATCH)
mk_srd(SDBG, 24, 256)
mk_srd(SWO, 12, 4096 * 1024)
mk_srd(SGA, 16, 512 * 3584)
mk_srd(SUP, 18, 512 * 3584)
mk_srd(SDN, 20, 1792 * 1024)
mk_srd(SOUT, 22, 2048)
smask(sMaskJ8, 0x00FF00FF00FF00FF)
smask(sMaskV, 0x0001000100010001)
mk_koff(t0, 0, t1)
e('v_and_b32 v%d, 0x300, v%d' % (t1, vL16))
e('v_add_u32 v%d, v%d, v%d' % (t1, t1, vL16))
tail_soff(sT0, sT1)
e('s_lshl_b32 s%d, s2, 21' % sT1)
e('s_add_u32 s%d, s%d, s%d' % (sT0, sT0, sT1))
e('s_lshl_b32 s%d, s%d, 12' % (sKV, sU))
e('s_add_u32 s%d, s%d, %d' % (sKV, sKV, EKV))
for b in range(2):
    e('s_add_u32 s%d, s%d, 0x%x' % (sT1, sT0, 7 * PARTB + b * BATCH))
    for kv in range(2):
        e('s_add_u32 m0, s%d, 0x%x' % (sKV, (b * 2 + kv) * 1024))
        a.vmem('buffer_load_dwordx4 v%d, %s, s%d offen %s lds' % ((t0, t1)[kv], srd((SK, SV)[kv]), sT1, wpol))
for op in idx_ops(vSI, vL16):
    e(op)
for k in range(12):
    e('v_mov_b32 v%d, 0' % (vA + k))
e('v_and_b32 v%d, 0x18, v%d' % (vSt, vL8))
e('v_bfe_u32 v%d, v0, 2, 2' % t0)
e('v_lshl_or_b32 v%d, v%d, 8, v%d' % (vSt, t0, vSt))
e('v_lshrrev_b32 v%d, 5, v0' % t0)
e('v_lshl_or_b32 v%d, v%d, 7, v%d' % (vSt, t0, vSt))
e('v_lshlrev_b32 v%d, 9, v0' % vOg)
e('s_lshl_b32 s%d, s%d, 9' % (sT0, sU))
e('v_add_u32 v%d, s%d, v%d' % (vEw, sT0, vL8))
e('s_and_b32 s%d, s2, 7' % sT0)
e('s_lshl3_add_u32 s%d, s%d, s%d' % (sG3, sU, sT0))
e('s_mul_i32 s%d, s%d, %d' % (sHU, sG3, HEADA))
e('s_lshl_b32 s%d, s%d, 4' % (sT0, sU))
e('s_lshl_b64 %s, 0xffff, s%d' % (sp(sQm), sT0))
e('v_lshrrev_b32 v%d, 4, v0' % vSw)
e('v_lshlrev_b32 v%d, 2, v%d' % (vSw, vSw))
e('v_add_u32 v%d, s%d, v%d' % (vSw, sT0, vSw))
e('v_and_b32 v%d, 0x30, v%d' % (vWr, vL16))
e('s_lshl_b32 s%d, s%d, 14' % (sT0, sU))
e('s_add_u32 s%d, s%d, %d' % (sT0, sT0, EDN))
e('v_add_u32 v%d, s%d, v%d' % (vWw, sT0, vL16))
e('v_lshrrev_b32 v%d, 2, v0' % t0)
e('v_lshlrev_b32 v%d, 3, v%d' % (vQr, t0))
e('v_and_b32 v%d, 1, v0' % t0)
e('v_lshl_or_b32 v%d, v%d, 8, v%d' % (vQr, t0, vQr))
e('v_bfe_u32 v%d, v0, 1, 1' % t0)
e('v_lshl_or_b32 v%d, v%d, 7, v%d' % (vQr, t0, vQr))
e('v_and_b32 v%d, 15, v0' % t0)
e('v_lshlrev_b32 v%d, 2, v%d' % (t0, t0))
e('v_lshrrev_b32 v%d, 4, v0' % t1)
e('v_lshl_or_b32 v%d, v%d, 7, v%d' % (t0, t1, t0))
e('v_add_u32 v%d, %d, v%d' % (vFr, E2, t0))
e('v_add_u32 v%d, %d, v%d' % (vFr2, E2 + 1024, t0))
e('s_lshl_b32 s%d, s%d, 8' % (sQa, sU))
e('s_add_u32 s%d, s%d, %d' % (sQa, sQa, EQ))
e('v_mov_b32 v%d, 1.0' % vX)
e('v_mov_b32 v%d, 1.0' % (vX + 1))
for k in range(8):
    e('v_mov_b32 v%d, 0' % (vAc + k))
e('v_and_b32 v%d, 0xf0, v%d' % (t0, vL16))
e('v_lshl_or_b32 v%d, v%d, 10, v%d' % (vAd, vRs, t0))
e('s_lshl_b32 s%d, s%d, 17' % (sG3, sG3))
e('s_lshr_b32 s%d, s2, 3' % sT0)
e('s_lshl_b32 s%d, s%d, 8' % (sT0, sT0))
e('s_add_u32 s%d, s%d, s%d' % (sG3, sG3, sT0))


def wo_loads(lst):
    for it_ in lst:
        if it_ >= 8:
            continue
        for n in range(4 * it_, 4 * it_ + 4):
            e('s_add_u32 s%d, s%d, 0x%x' % (sT1, sG3, gtile(n) * 1024))
            a.vmem('buffer_load_dwordx4 %s, v%d, %s, s%d offen %s' % (TO[n], vAd, srd(SWO), sT1, wpol))


W0 = args.wo0
wo_loads(range(W0))
stamp(vT, True)
sq_(0)
a.vmwait(wqtk)
sq_(1)
stamp(vT)
wo_loads(range(W0, W0 + 2))
e('v_and_b32 v%d, 0xffff0000, v%d' % (vX0 + 1, vX0))
e('v_lshlrev_b32 v%d, 16, v%d' % (vX0, vX0))
e('v_and_b32 v%d, 0xffff0000, v%d' % (vX1 + 1, vX1))
e('v_lshlrev_b32 v%d, 16, v%d' % (vX1, vX1))
e('v_mul_u32_u24 v%d, 3584, v%d' % (vRs, vRs))
e('v_and_b32 v%d, 0x70, v%d' % (t1, vL16))
e('v_add_u32 v%d, v%d, v%d' % (vRs, t1, vRs))
e('s_mul_i32 s%d, s%d, %d' % (sG2, sU, 128 * 3584))
e('s_lshl_b32 s%d, s2, 7' % sT1)
e('s_add_u32 s%d, s%d, s%d' % (sG2, sG2, sT1))
e('s_cmp_ge_u32 s2, 28')
e('s_cselect_b32 s%d, 0x40000000, s%d' % (sG2, sG2))
e('s_mov_b32 s%d, 0' % sRet)
e('s_branch L_qstage')


def setx(src):
    e('v_mov_b32 v%d, v%d' % (vX, src))
    e('v_mov_b32 v%d, v%d' % (vX + 1, src + 1))


def zero_acc(lo, n):
    for k in range(n):
        e('v_mov_b32 v%d, 0' % (vAc + lo + k))


def bound(n):
    a.reset_counters()
    e('s_waitcnt vmcnt(%d)' % n)
    a.vm = list(range(n))


def gu_loads(lst):
    e('s_not_b64 %s, %s' % (sp(sMt), sp(sMaskJ8)))
    for n in lst:
        e('s_add_u32 s%d, s%d, 0x%x' % (sT1, sG2, gtile(n) * 3584))
        e('s_mov_b64 exec, %s' % sp(sMaskJ8))
        a.vmem('buffer_load_dwordx4 %s, v%d, %s, s%d offen %s' % (TG[n], vRs, srd(SGA), sT1, wpol))
        e('s_mov_b64 exec, %s' % sp(sMt))
        a.vmem('buffer_load_dwordx4 %s, v%d, %s, s%d offen %s' % (TG[n], vRs, srd(SUP), sT1, wpol))
    e('s_mov_b64 exec, -1')


a.label('L_csq')
e('v_mov_b32 v%d, v%d' % (vCq, vAc))
e('v_mov_b32 v%d, v%d' % (vCq + 1, vAc + 1))
zero_acc(0, 8)
setx(vX0)
e('s_getreg_b32 s%d, hwreg(HW_REG_XCC_ID, 0, 4)' % sFast)
e('s_or_b32 s%d, s%d, 0x80000000' % (sT0, sFast))
e('v_mov_b32 v%d, s%d' % (vMi + 7, sT0))
e('s_and_b32 s%d, s2, 7' % sT0)
e('s_lshr_b32 s%d, s2, 3' % sT1)
e('s_lshl2_add_u32 s%d, s%d, s%d' % (sT0, sT0, sT1))
e('s_lshl_b32 s%d, s%d, 2' % (sT0, sT0))
bound(8 + 4 * W0)
wo_loads(range(W0 + 2, W0 + 4))
e('s_mov_b32 s%d, 0' % sJA)
e('s_mov_b32 s%d, 1' % sRet)
e('s_barrier')
e('s_cmp_lg_u32 s%d, 0' % sU)
e('s_cbranch_scc1 L_qstage')
e('s_mov_b64 exec, 1')
e('buffer_store_dword v%d, off, %s, s%d sc1' % (vMi + 7, srd(SDBG), sT0))
e('s_mov_b64 exec, -1')
e('s_branch L_qstage')

a.label('L_i1')
zero_acc(0, 8)
setx(vX1)
bound(30)
wo_loads(range(W0 + 4, W0 + 6))
e('s_mov_b32 s%d, 32' % sJA)
e('s_add_u32 s%d, s%d, 1024' % (sQa, sQa))
e('s_mov_b32 s%d, 2' % sRet)
e('s_barrier')
e('s_branch L_qstage')

a.label('L_i2')
bound(30)
wo_loads(range(W0 + 6, 8))
gu_loads(range(12))
fl4 = vLA + 8
e('s_and_b32 s%d, s2, 7' % sLoc)
e('s_lshl_b32 s%d, s%d, 4' % (sLoc, sLoc))
fl4ld = 'buffer_load_dwordx4 %s, off, %s, s%d sc1' % (vq(fl4), srd(SDBG), sLoc)
a.vmem(fl4ld)
gu_loads(range(12, 32))
e('v_bfe_u32 v%d, v0, 4, 1' % t0)
e('v_lshlrev_b32 v%d, 14, v%d' % (vAd, t0))
e('v_lshrrev_b32 v%d, 5, v0' % t0)
e('v_lshl_or_b32 v%d, v%d, 12, v%d' % (vAd, t0, vAd))
e('v_and_b32 v%d, 0xf0, v%d' % (t0, vL16))
e('v_or_b32 v%d, v%d, v%d' % (vAd, vAd, t0))
e('s_lshl_b32 s%d, s2, 16' % sT0)
e('s_lshl_b32 s%d, s%d, 8' % (sT1, sU))
e('s_add_u32 s%d, s%d, s%d' % (sT0, sT0, sT1))
e('s_lshl_b32 s%d, s%d, 14' % (sG0, sU))
for n in range(16):
    tau, pi, r = n & 1, (n >> 1) & 1, n >> 2
    e('s_add_u32 s%d, s%d, 0x%x' % (sT1, sT0, (32 * pi + 8 * (r >> 1) + 2 * tau + (r & 1)) * 1024))
    e('s_add_u32 m0, s%d, 0x%x' % (sG0, EDN + n * 1024))
    a.vmem('buffer_load_dwordx4 v%d, %s, s%d offen %s lds' % (vAd, srd(SDN), sT1, wpol))
sq_(2)
if args.wS:
    warm_site('s')
bound(52)
sq_(3)
stamp(vT)
a.label('L_f4')
e('v_min3_u32 v%d, v%d, v%d, v%d' % (vT, fl4, fl4 + 1, fl4 + 2))
e('v_min_u32 v%d, v%d, v%d' % (vT, vT, fl4 + 3))
e('v_cmp_eq_u32 vcc, 0, v%d' % vT)
e('s_cbranch_vccz L_f4ok')
e(fl4ld)
e('s_waitcnt vmcnt(0)')
spin_tail('L_f4')
a.label('L_f4ok')
e('v_max3_u32 v%d, v%d, v%d, v%d' % (vT + 1, fl4, fl4 + 1, fl4 + 2))
e('v_max_u32 v%d, v%d, v%d' % (vT + 1, vT + 1, fl4 + 3))
e('v_xor_b32 v%d, v%d, v%d' % (vT, vT, vT + 1))
e('v_readfirstlane_b32 s%d, v%d' % (sLoc, vT))
if args.nofast:
    e('s_mov_b32 s%d, 1' % sLoc)
e('s_sub_u32 s%d, s%d, 1024' % (sQa, sQa))
e('s_mov_b32 s%d, 0' % sJA)
e('s_mov_b32 s%d, 4' % sRet)
e('s_branch L_own')

a.label('L_i4')
sq_(4)
e('v_mov_b32 v%d, 1.0' % vX)
e('v_mov_b32 v%d, 1.0' % (vX + 1))
zero_acc(0, 8)
stamp(vT)
e('s_branch L_fgemv')

a.label('L_csf')
if args.bwtest == 2:
    e('s_endpgm')
a.reset_counters()
e('v_mov_b32 v%d, v%d' % (vCf, vAc))
e('v_mov_b32 v%d, v%d' % (vCf + 1, vAc + 1))
setx(vX0)
e('v_lshlrev_b32 v%d, 2, v0' % vT)
e('s_lshr_b32 s%d, s%d, 2' % (sIod, sFast))
if args.RR:
    e('s_cmp_lt_u32 s2, 28')
    e('s_cbranch_scc1 L_flags')
    e('s_lshl2_add_u32 s%d, s2, s%d' % (sG0, sU))
    e('s_lshl_b32 s%d, s%d, 8' % (sT0, sG0))
    e('s_add_u32 s%d, s%d, 0x%x' % (sT0, sT0, RACEB - 112 * 256))
    e('s_mov_b32 s%d, 0' % sVt)
    e('s_mov_b32 exec_hi, 0')
    e('s_waitcnt vmcnt(0)')
    for k in range(2 * args.RR):
        r = k >> 1
        c = (k ^ r) & 1
        e('s_movk_i32 s%d, 1000' % sG1)
        e('s_add_u32 s%d, s%d, 0x%x' % (sG2, sT0, (r >> 1) * 16384 + (r & 1) * 4096 + c * 8192))
        e('buffer_store_dword v%d, v%d, %s, s%d offen sc1' % (vT, vT, srd(SWS), sG2))
        a.label('L_rc%d' % k)
        e('s_getreg_b32 s%d, hwreg(HW_REG_IB_STS, 0, 4)' % sT1)
        e('s_%s_u32 s%d, s%d, 1' % ('add' if c else 'sub', sVt, sVt))
        e('s_sub_u32 s%d, s%d, 1' % (sG1, sG1))
        e('s_cselect_b32 s%d, 0, s%d' % (sT1, sT1))
        e('s_cmp_lg_u32 s%d, 0' % sT1)
        e('s_cbranch_scc1 L_rc%d' % k)
    if args.par == 'dbg':
        e('s_mov_b32 s11, s%d' % sVt)
    e('s_lshr_b32 s%d, s%d, 31' % (sVt, sVt))
    e('s_xor_b32 s%d, s%d, s%d' % (sVt, sVt, sIod))
    e('s_add_u32 s%d, s%d, 1' % (sVt, sVt))
    e('v_mov_b32 v%d, s%d' % (vT + 1, sVt if args.par != 'dbg' else 11))
    e('s_lshl_b32 s%d, s%d, 2' % (sG0, sG0))
    e('s_sub_u32 s%d, s%d, %d' % (sG0, sG0, 448 - 128))
    e('s_mov_b64 exec, 1')
    e('buffer_store_dword v%d, off, %s, s%d sc1' % (vT + 1, srd(SDBG), sG0))
    e('s_mov_b64 exec, -1')
    e('s_waitcnt vmcnt(0)')
    stamp(vT + 2)
    if args.ts and not args.quiet:
        e('s_sub_u32 s%d, s%d, 8' % (sTS, sTS))
a.label('L_flags')
e('buffer_load_dword v%d, v%d, %s, 0 offen sc1' % (vT + 1, vT, srd(SDBG)))
e('s_waitcnt vmcnt(0)')
e('v_cmp_eq_u32 vcc, 0, v%d' % (vT + 1))
e('s_nop 0')
e('s_cmp_eq_u32 vcc_lo, 0')
e('s_cbranch_scc1 L_flagsok')
spin_tail('L_flags', 4)
a.label('L_flagsok')
sq_(5)


def count_votes():
    e('v_cmp_eq_u32 vcc, 2, v%d' % (vT + 1))
    e('s_bcnt1_i32_b32 s%d, vcc_hi' % sT0)
    e('v_cmp_eq_u32 vcc, 1, v%d' % (vT + 1))
    e('s_bcnt1_i32_b32 s%d, vcc_hi' % sT1)
    e('s_cmp_gt_u32 s%d, s%d' % (sT0, sT1))
    e('s_cselect_b32 s%d, 1, 0' % sVt)
    if args.par.startswith('host'):
        e('s_load_dword s%d, s[14:15], 8' % sVt)
        e('s_waitcnt lgkmcnt(0)')
        e('s_lshr_b32 s%d, s%d, 13' % (sVt, sVt))
        if args.par == 'hostx':
            e('s_xor_b32 s%d, s%d, 1' % (sVt, sVt))
    e('s_xor_b32 s%d, s%d, s%d' % (sVt, sVt, sIod))
    e('s_and_b32 s%d, s%d, 1' % (sVt, sVt))
    e('s_lshl_b32 s%d, s%d, 13' % (sFast, sVt))


count_votes()
e('s_mov_b32 s%d, 0' % sIt)
e('s_mov_b32 s%d, 0' % sOutB)
e('s_mov_b32 s%d, 5' % sRet)

a.label('L_loop')
a.reset_counters()
e('s_and_b32 s%d, s%d, 1' % (sT0, sIt))
e('s_lshl_b32 s%d, s%d, 1' % (sT0, sT0))
e('s_lshr_b32 s%d, s%d, 1' % (sT1, sIt))
e('s_or_b32 s%d, s%d, s%d' % (sT0, sT0, sT1))
e('s_add_u32 s%d, s%d, 1' % (sOm, sT1))
e('s_lshl_b32 s%d, s%d, 5' % (sJA, sT0))
e('s_add_u32 s%d, s%d, s%d' % (sG1, sJA, sHU))
e('s_bitcmp1_b32 s%d, 0' % sIt)
e('s_cselect_b32 s%d, 4096, 0' % sG0)
e('s_add_u32 s%d, s%d, %d' % (sG0, sG0, OFF_O))
e('s_add_u32 s%d, s%d, s%d' % (sG0, sG0, sHU))
e('s_lshl_b32 s%d, s%d, 15' % (sYg, sT0))
if not args.y1:
    e('s_add_u32 s%d, s%d, s%d' % (sYg, sYg, sFast))
e('s_add_u32 s%d, s%d, 0x%x' % (sYg, sYg, YB))
e('s_add_u32 s%d, s%d, s%d' % (sYp, sYg, sHS))
e('s_xor_b32 s%d, s%d, 8192' % (sVt, sYp))
e('s_and_b32 s%d, s%d, 2' % (sT1, sU))
e('s_add_u32 s%d, s%d, s%d' % (sT1, sT1, sU))
e('s_lshl_b32 s%d, s%d, 12' % (sT1, sT1))
e('s_add_u32 s%d, s%d, s%d' % (sYg, sYg, sT1))
e('s_lshl2_add_u32 s%d, s%d, s%d' % ((sZg, sU, sT0) if args.zl == 1 else (sZg, sT0, sU)))
e('s_lshl_b32 s%d, s%d, 15' % (sZg, sZg))
e('s_add_u32 s%d, s%d, s%d' % (sZg, sZg, sFast))
e('s_add_u32 s%d, s%d, 0x%x' % (sZg, sZg, ZB))
zero_acc(0, 16)
sq_dump(vT)
stamp(vT)
sv = vLA
a.label('L_stats')
e('buffer_load_dwordx2 %s, v%d, %s, s%d offen sc1' % (vp(sv), vSt, srd(SWS), sG1))
e('s_waitcnt vmcnt(0)')
e('v_max_u32 v%d, v%d, v%d' % (vT, sv, sv + 1))
e('v_cmp_eq_u32 vcc, -1, v%d' % vT)
e('s_cbranch_vccz L_statsok')
spin_tail('L_stats', 2)
a.label('L_statsok')
sq_(0)
stamp(vT)
oa = vLA + 16
fF = vLA + 8
Gs = [sG0, sG1, sG2, sG3]


def o_loads(k=0):
    for i in range(4):
        e('buffer_load_dwordx4 %s, v%d, %s, s%d offen offset:%d sc1' % (vq(oa + 16 * k + 4 * i), vL16, srd(SWS), sG0, i * 1024))


def touch(k, r):
    if k not in args.stch:
        return
    e('s_cmp_lg_u32 s%d, 0' % sIt)
    e('s_cbranch_scc1 L_nt' + k)
    e('v_lshlrev_b32 v%d, 3, v%d' % (r, vL16))
    e('s_mov_b32 exec_lo, 0xff00ffff')
    e('s_mov_b32 exec_hi, 0x00ffffff')
    e('buffer_load_dword v%d, v%d, %s, s%d offen sc1' % (r, r, srd(SWS), sHU))
    e('s_mov_b64 exec, -1')
    a.label('L_nt' + k)


e('s_bitcmp1_b32 s%d, 0' % sIt)
e('s_cbranch_scc1 L_noprobe')
e('s_mov_b64 exec, 0x7f')
a.label('L_probe')
e('buffer_load_dword v%d, v%d, %s, s%d offen sc1' % (oa, vOg, srd(SWS), sG0))
e('s_waitcnt vmcnt(0)')
e('v_and_b32 v%d, s%d, v%d' % (oa, sOm, oa))
e('v_cmp_eq_u32 vcc, 0, v%d' % oa)
e('s_cbranch_vccnz L_probeok')
spin_tail('L_probe', 2)
a.label('L_probeok')
e('s_mov_b64 exec, -1')
touch('p', oa)
a.label('L_noprobe')
o_loads()
M_, L_ = vT, vT + 1
e('v_mov_b32 v%d, v%d' % (fF, sv))
a.chain(allreduce_list('v_max_f32', fF, None, (0, 1)), [])
e('v_mov_b32 v%d, v%d' % (M_, fF))
a.chain(allreduce_list('v_max_f32', M_, vT + 2, (2, 3, 5)), [])
e('v_sub_f32 v%d, v%d, v%d' % (L_, sv, M_))
e('v_sub_f32 v%d, v%d, v%d' % (fF, fF, M_))
e('v_exp_f32 v%d, v%d' % (L_, L_))
e('v_exp_f32 v%d, v%d' % (fF, fF))
e('v_mul_f32 v%d, v%d, v%d' % (L_, L_, sv + 1))
if args.ons > 2:
    o_loads(1)
a.chain(allreduce_list('v_add_f32', L_, vT + 2, (0, 1, 2, 3, 5)), [])
e('v_rcp_f32 v%d, v%d' % (L_, L_))
e('v_mul_f32 v%d, v%d, v%d' % (fF, fF, L_))
ac = vLA + 12
od = vLA + 10


def sentinel_check(base, n, t):
    e('v_max3_u32 v%d, v%d, v%d, v%d' % (t, base, base + 1, base + 2))
    k = 3
    while k + 1 < n:
        e('v_max3_u32 v%d, v%d, v%d, v%d' % (t, t, base + k, base + k + 1))
        k += 2
    if k < n:
        e('v_max_u32 v%d, v%d, v%d' % (t, t, base + k))
    e('v_cmp_eq_u32 vcc, -1, v%d' % t)


if args.ons > 1:
    o_loads(args.ons - 1)
a.label('L_ogather')
assert args.ons == 1
ob = oa
ot = vT + 1
for i in range(4):
    e('s_waitcnt vmcnt(%d)' % (3 - i))
    for k in range(4):
        e('%s v%d, v%d, v%d row_newbcast:%d %s' % ('v_mul_f32_dpp' if i == 0 else 'v_fmac_f32_dpp', ac + k, fF, ob + 4 * i + k, 4 * i, DPPF))
    r = ob + 4 * i
    if i == 0:
        e('v_or3_b32 v%d, v%d, v%d, v%d' % (ot, r, r + 1, r + 2))
        e('v_or_b32 v%d, v%d, v%d' % (ot, ot, r + 3))
    elif i < 3:
        e('v_or3_b32 v%d, v%d, v%d, v%d' % (ot, ot, r, r + 1))
        e('v_or3_b32 v%d, v%d, v%d, v%d' % (ot, ot, r + 2, r + 3))
e('v_or3_b32 v%d, v%d, v%d, v%d' % (ot, ot, r, r + 1))
e('v_permlane32_swap_b32 v%d, v%d' % (ac, ac + 2))
e('v_permlane32_swap_b32 v%d, v%d' % (ac + 1, ac + 3))
e('v_or3_b32 v%d, v%d, v%d, v%d' % (ot, ot, r + 2, r + 3))
e('v_add_f32 v%d, v%d, v%d' % (ac, ac, ac + 2))
e('v_and_b32 v%d, s%d, v%d' % (ot, sOm, ot))
e('v_cmp_ne_u32 vcc, 0, v%d' % ot)
e('v_add_f32 v%d, v%d, v%d' % (ac + 1, ac + 1, ac + 3))
e('v_cvt_pk_bf16_f32 v%d, 0, v%d' % (od, ac))
e('v_cvt_pk_bf16_f32 v%d, 0, v%d' % (od + 1, ac + 1))
e('s_cbranch_vccz L_ook')
o_loads()
spin_tail('L_ogather')
a.label('L_ook')
sq_(1)
ct(0)
stamp(vT + 2)


def ackwait(n):
    if not args.noack:
        e('s_waitcnt vmcnt(%d)' % (n and n + (1 if args.ts and not args.cts and not args.quiet else 0)))


NPF = 12


def dn_read(c):
    return a.lds('ds_read_b128 %s, v%d offset:%d' % (vq(vLA + 4 * c), vWw, c * 1024))


def gather_y():
    e('s_waitcnt vmcnt(%d)' % (3 if args.ts and not args.cts and not args.quiet else 2))
    touch('y', vLA + 63)
    for c in range(NPF):
        dn_read(c)
    zero_acc(0, 8)
    ackwait(args.acky)
    if args.ysl:
        e('s_sleep %d' % args.ysl)
    b = vLA + 48
    a.label('L_y_ld')
    for i in range(4):
        e('buffer_load_dwordx4 %s, v%d, %s, s%d offen offset:%d sc1' % (vq(b + 4 * i), vL16, srd(SWS), sYg, i * 1024))
    e('s_waitcnt vmcnt(2)')
    e('v_pk_add_f32 %s, %s, %s' % (vp(vT), vp(b), vp(b + 4)))
    e('v_pk_add_f32 %s, %s, %s' % (vp(vT + 2), vp(b + 2), vp(b + 6)))
    e('s_waitcnt vmcnt(1)')
    e('v_pk_add_f32 %s, %s, %s' % (vp(vT), vp(vT), vp(b + 8)))
    e('v_pk_add_f32 %s, %s, %s' % (vp(vT + 2), vp(vT + 2), vp(b + 10)))
    e('s_waitcnt vmcnt(0)')
    e('v_pk_add_f32 %s, %s, %s' % (vp(vT), vp(vT), vp(b + 12)))
    e('v_pk_add_f32 %s, %s, %s' % (vp(vT + 2), vp(vT + 2), vp(b + 14)))
    finish_x('y')
    OOL.append(('L_y_bad', lambda: (sentinel_check(b, 16, vT + 2), e('s_cbranch_vccz L_y_ok'), spin_tail('L_y_ld'))))


def finish_x(tag):
    e('v_permlane32_swap_b32 v%d, v%d' % (vT, vT + 2))
    e('v_permlane32_swap_b32 v%d, v%d' % (vT + 1, vT + 3))
    e('v_add_f32 v%d, v%d, v%d' % (vT, vT, vT + 2))
    e('v_add_f32 v%d, v%d, v%d' % (vT + 1, vT + 1, vT + 3))
    e('v_cmp_u_f32 vcc, v%d, v%d' % (vT, vT + 1))
    e('v_cvt_pk_bf16_f32 v%d, 0, v%d' % (vT, vT))
    e('v_cvt_pk_bf16_f32 v%d, 0, v%d' % (vT + 1, vT + 1))
    e('v_add_f32 v%d, v%d, v%d' % (vT, vX, vT))
    e('v_add_f32 v%d, v%d, v%d' % (vT + 1, vX + 1, vT + 1))
    e('s_nop 0')
    a.raw('    s_cbranch_vccnz L_%s_bad' % tag)
    a.pos += 1
    a.raw('L_%s_ok:' % tag)
    e('v_cvt_pk_bf16_f32 v%d, 0, v%d' % (vX, vT))
    e('v_cvt_pk_bf16_f32 v%d, 0, v%d' % (vX + 1, vT + 1))


def gather(tag, yz, nz):
    e('s_lshr_b32 s%d, s2, 3' % sT0)
    for q in range(4):
        e('s_add_u32 s%d, s%d, %d' % (sT1, sT0, q))
        e('s_and_b32 s%d, s%d, 2' % (Gs[q], sT1))
        e('s_and_b32 s%d, s%d, 3' % (sT1, sT1))
        e('s_add_u32 s%d, s%d, s%d' % (sT1, sT1, Gs[q]))
        e('s_lshl_b32 s%d, s%d, 12' % (sT1, sT1))
        e('s_add_u32 s%d, s%d, s%d' % (Gs[q], sZg, sT1))
    zero_acc(0, nz)
    touch('z', vLA + 63)
    ackwait(args.ackz)
    pend = sMt

    def loads(q):
        for i in range(4):
            e('buffer_load_dwordx4 %s, v%d, %s, s%d offen offset:%d sc1' % (vq(vLA + 16 * q + 4 * i), vL16, srd(SWS), Gs[q], i * 1024))

    def red(q):
        b = vLA + 16 * q
        e('v_pk_add_f32 %s, %s, %s' % (vp(b), vp(b), vp(b + 4)))
        e('v_pk_add_f32 %s, %s, %s' % (vp(b + 2), vp(b + 2), vp(b + 6)))
        e('v_pk_add_f32 %s, %s, %s' % (vp(b + 8), vp(b + 8), vp(b + 12)))
        e('v_pk_add_f32 %s, %s, %s' % (vp(b + 10), vp(b + 10), vp(b + 14)))
        e('v_pk_add_f32 %s, %s, %s' % (vp(b), vp(b), vp(b + 8)))
        e('v_pk_add_f32 %s, %s, %s' % (vp(b + 2), vp(b + 2), vp(b + 10)))

    def s02():
        e('v_pk_add_f32 %s, %s, %s' % (vp(vMi), vp(vLA), vp(vLA + 32)))
        e('v_pk_add_f32 %s, %s, %s' % (vp(vMi + 2), vp(vLA + 2), vp(vLA + 34)))

    def fin():
        e('v_pk_add_f32 %s, %s, %s' % (vp(vT), vp(vLA + 16), vp(vLA + 48)))
        e('v_pk_add_f32 %s, %s, %s' % (vp(vT + 2), vp(vLA + 18), vp(vLA + 50)))
        e('v_pk_add_f32 %s, %s, %s' % (vp(vT), vp(vT), vp(vMi)))
        e('v_pk_add_f32 %s, %s, %s' % (vp(vT + 2), vp(vT + 2), vp(vMi + 2)))
    for q in range(4):
        loads(q)
    e('s_mov_b32 s%d, 15' % pend)
    for q in range(4):
        e('s_waitcnt vmcnt(%d)' % (12 - 4 * q))
        red(q)
        if q == 2:
            s02()
    a.raw('L_%s_fin:' % tag)
    fin()
    finish_x(tag)

    def bad():
        e('s_cmp_eq_u32 s%d, 0' % pend)
        e('s_cbranch_scc1 L_%s_ok' % tag)
        for q in range(4):
            b = vLA + 16 * q
            e('v_add_f32 v%d, v%d, v%d' % (vT, b, b + 1))
            e('v_add_f32 v%d, v%d, v%d' % (vT + 1, b + 2, b + 3))
            e('v_cmp_u_f32 vcc, v%d, v%d' % (vT, vT + 1))
            e('s_cbranch_vccnz L_%s_n%d' % (tag, q))
            e('s_bitset0_b32 s%d, %d' % (pend, q))
            a.label('L_%s_n%d' % (tag, q))
        a.label('L_%s_again' % tag)
        for q in range(4):
            lk = 'L_%s_r%d' % (tag, q)
            e('s_bitcmp1_b32 s%d, %d' % (pend, q))
            e('s_cbranch_scc0 %s' % lk)
            loads(q)
            a.label(lk)
        e('s_waitcnt vmcnt(0)')
        for q in range(4):
            lk = 'L_%s_k%d' % (tag, q)
            e('s_bitcmp1_b32 s%d, %d' % (pend, q))
            e('s_cbranch_scc0 %s' % lk)
            sentinel_check(vLA + 16 * q, 16, vT)
            red(q)
            e('s_cbranch_vccnz %s' % lk)
            e('s_bitset0_b32 s%d, %d' % (pend, q))
            a.label(lk)
        s02()
        e('s_cmp_eq_u32 s%d, 0' % pend)
        e('s_cbranch_scc1 L_%s_fin' % tag)
        spin_tail('L_%s_again' % tag)
    OOL.append(('L_%s_bad' % tag, bad))


def resid():
    e('v_cvt_pk_bf16_f32 v%d, 0, v%d' % (vT, vT))
    e('v_cvt_pk_bf16_f32 v%d, 0, v%d' % (vT + 1, vT + 1))
    e('v_add_f32 v%d, v%d, v%d' % (vX, vX, vT))
    e('v_add_f32 v%d, v%d, v%d' % (vX + 1, vX + 1, vT + 1))
    e('v_cvt_pk_bf16_f32 v%d, 0, v%d' % (vX, vX))
    e('v_cvt_pk_bf16_f32 v%d, 0, v%d' % (vX + 1, vX + 1))


def gemv32(tiles, E, ES, reads, extra=(), vX=vX, cs=None, ret=None, lbl=None, pre=()):
    sC = sT1
    r, t2, d0, d1 = vMi, vMi + 1, vMi + 2, vMi + 3
    side = []
    if ES is not None:
        side = ['v_readfirstlane_b32 s%d, v%d' % (sC, vX),
                'v_subrev_f32 v%d, s%d, v%d' % (d0, sC, vX), 'v_subrev_f32 v%d, s%d, v%d' % (d1, sC, vX + 1),
                'v_mul_f32 v%d, v%d, v%d' % (t2, d0, d0), 'v_add_f32 v%d, v%d, v%d' % (r, d0, d1),
                'v_fmac_f32 v%d, v%d, v%d' % (t2, d1, d1),
                'v_permlane32_swap_b32 v%d, v%d' % (r, t2), 'v_add_f32 v%d, v%d, v%d' % (r, r, t2)]
        side += allreduce_list('v_add_f32', r, None, (0, 1, 2, 3))
        side += ['v_add_f32_dpp v%d, v%d, v%d row_bcast:15 row_mask:0xa bank_mask:0xf' % (r, r, r),
                 'v_writelane_b32 v%d, s%d, 0' % (r, sC)]
    extra = list(extra)
    aset = lambda j: a_ops(vA + 4 * (j % 3), vX + (j >> 2), vT + (j >> 2), j & 3)
    a0, a1 = aset(0), aset(1)
    q = [mirror(vT, vX), a0[0], a0[3]] + side[:1] + [a0[1], a0[2], a1[0], a1[3]]
    side = side[1:]
    for op in q:
        e(op)
    build = [a1[1], a1[2], mirror(vT + 1, vX + 1)]
    for j in range(2, 8):
        build += aset(j)
    wtk = None
    stk = None
    for n2 in range(16):
        j, pi = n2 >> 1, n2 & 1
        smf(vAc + 4 * pi, vA + 4 * (j % 3), pair(tiles[2 * n2], tiles[2 * n2 + 1]), vSI)
        nb = 3 if n2 == 0 else 2
        for k in range(nb):
            if build:
                e(build.pop(0))
            if side and a.needed(side[0]) == 0:
                e(side.pop(0))
        if ES is not None and not side and wtk is None:
            e('s_mov_b64 exec, %s' % sp(sMaskV))
            wtk = a.lds('ds_write_b32 v%d, v%d offset:%d' % (vSw, r, ES))
            e('s_mov_b64 exec, -1')
            wn = n2
        elif wtk is not None and stk is None and n2 >= wn + 3:
            a.lgwait(wtk)
            e('s_barrier')
            stk = a.lds('ds_read_b128 %s, v%d offset:%d' % (vq(vMi + 4), vWr, ES))
        if extra and n2 >= 12:
            extra.pop(0)()
    assert not side and not build
    math_ = []
    nm, rs = vMi, vMi + 2
    if ES is not None:
        assert stk is not None
        c, S_, T_ = vMi + 4, vMi + 5, vMi + 7
        mw, mu, v, ee = vMi + 4, vMi + 6, vMi + 7, vMi + 5
        qs = lambda d, s_: ['v_add_f32_dpp v%d, v%d, v%d quad_perm:[1,0,3,2] %s' % (d, s_, s_, DPPF),
                            'v_add_f32_dpp v%d, v%d, v%d quad_perm:[2,3,0,1] %s' % (d, d, d, DPPF)]
        math_ = ['v_mul_f32 v%d, %s, v%d' % (S_, f32(1.0 / 128), S_),
                 'v_mul_f32 v%d, %s, v%d' % (T_, f32(1.0 / 128), T_),
                 'v_add_f32 v%d, v%d, v%d' % (mw, c, S_),
                 'v_fma_f32 v%d, -v%d, v%d, v%d' % (v, S_, S_, T_)]
        math_ += qs(mu, mw)
        math_ += ['v_mul_f32 v%d, 0.25, v%d' % (mu, mu),
                  'v_sub_f32 v%d, v%d, v%d' % (ee, mw, mu),
                  'v_fmac_f32 v%d, v%d, v%d' % (v, ee, ee),
                  'v_cvt_pk_bf16_f32 v%d, 0, v%d' % (mu, mu),
                  'v_mul_f32 v%d, v%d, v%d' % (nm, mu, cs)]
        math_ += [qs(v, v)[0], 'v_mul_f32 v%d, v%d, v%d' % (nm + 1, mu, cs + 1), qs(v, v)[1]]
        math_ += ['v_mul_f32 v%d, 0.25, v%d' % (v, v),
                  'v_max_f32 v%d, 0, v%d' % (v, v),
                  'v_cvt_pk_bf16_f32 v%d, 0, v%d' % (v, v),
                  'v_add_f32 v%d, %s, v%d' % (v, f32(1e-5), v),
                  'v_cvt_pk_bf16_f32 v%d, 0, v%d' % (v, v),
                  'v_sqrt_f32 v%d, v%d' % (v, v),
                  'v_cvt_pk_bf16_f32 v%d, 0, v%d' % (v, v),
                  'v_rcp_f32 v%d, v%d' % (rs, v),
                  'v_mul_f32 v%d, -v%d, v%d' % (nm, nm, rs),
                  'v_mul_f32 v%d, -v%d, v%d' % (nm + 1, nm + 1, rs)]
        a.lgwait(stk)
    math_[5:5] = list(pre)
    m0 = 'v_permlane32_swap_b32 v%d, v%d' % (vAc, vAc + 2)
    while math_ and a.needed(m0) > 0:
        e(math_.pop(0))
    merge(vAc, vAc + 4)
    a.lds('ds_write_b64 v%d, %s offset:%d' % (vEw, vp(vAc), E))
    for k in range(13):
        if math_:
            e(math_.pop(0))
    a.lgwait_all()
    e('s_barrier')
    tks = [a.lds(x) for x in reads]
    if ret is not None:
        e('s_cmp_eq_u32 s%d, %d' % (sRet, ret))
    for op in math_:
        e(op)
    a.lgwait(tks[1])
    e('v_pk_add_f32 %s, %s, %s' % (vp(vAc), vp(vAc), vp(vAc + 2)))
    a.lgwait(tks[3])
    e('v_pk_add_f32 %s, %s, %s' % (vp(vAc + 4), vp(vAc + 4), vp(vAc + 6)))
    e('v_pk_add_f32 %s, %s, %s' % (vp(vAc), vp(vAc), vp(vAc + 4)))
    if ES is not None:
        a.raw('    s_cbranch_scc1 %s' % lbl)
        a.pos += 1
        e('v_pk_fma_f32 %s, %s, %s, %s op_sel_hi:[1,0,1]' % (vp(vAc), vp(vAc), vp(rs), vp(nm)))


gemv32(TO, E1, None, ['ds_read_b64 %s, v%d offset:%d' % (vp(vAc + 2 * w), vL8, E1 + 512 * w) for w in range(4)], (), od)
ct(1)
e('s_mov_b64 exec, %s' % sp(sQm))
publish_local(vAc, vL8, sYp, 'y')
if args.y1:
    a.vmem('buffer_load_dword v%d, off, %s, 0' % (vT + 3, srd(SX)))
else:
    publish_local(vAc, vL8, sVt, 'y')
sq_(2)
ct(2)
e('s_mov_b64 exec, -1')
stamp(vT + 2)

gather_y()
sq_(3)
ct(3)
stamp(vT + 2)
a.raw('L_fgemv:')
ex = [(lambda c=c: dn_read(c)) for c in range(NPF, 16)]
k1 = -2.0 * math.sqrt(2.0 / math.pi) * LOG2E
G_, U_ = vAc, vAc + 1
t, z = vT + 2, vT + 3
gemv32(TG, E2, E2S, ['ds_read2_b32 %s, v%d offset0:%d offset1:%d' % (vp(vAc + 2 * i), (vFr, vFr2)[i >> 1], 128 * (i & 1), 128 * (i & 1) + 16) for i in range(4)],
       ex, vX, vCf, 4, 'L_csf', ['v_mov_b32 v%d, %s' % (t, f32(k1))])
ct(4)
ct(5)
e('v_cvt_pk_bf16_f32 v%d, 0, v%d' % (G_, G_))
e('v_mul_f32 v%d, v%d, v%d' % (z, G_, G_))
e('v_fmac_f32 v%d, %s, v%d' % (t, f32(k1 * 0.044715), z))
e('v_mul_f32 v%d, v%d, v%d' % (z, t, G_))
e('v_exp_f32 v%d, v%d' % (z, z))
e('v_cvt_pk_bf16_f32 v%d, 0, v%d' % (U_, U_))
e('v_add_f32 v%d, 1.0, v%d' % (z, z))
e('v_rcp_f32 v%d, v%d' % (z, z))
e('v_mul_f32 v%d, v%d, v%d' % (z, z, G_))
e('v_cvt_pk_bf16_f32 v%d, 0, v%d' % (z, z))
e('v_mul_f32 v%d, v%d, v%d' % (z, z, U_))
e('v_cvt_pk_bf16_f32 v%d, 0, v%d' % (z, z))
e('s_add_u32 s%d, s%d, s%d' % (sT0, sHS, sZg))
e('s_xor_b32 s%d, s%d, 8192' % (sVt, sT0))
ct(6)
e(mirror(t, z))
dset = lambda r: a_ops(vA + 4 * (r % 3), z, t, r)
d0_, d1_ = dset(0), dset(1)
for op in (d0_[0], d0_[3], d0_[1], d0_[2], d1_[0], d1_[3]):
    e(op)
build = [d1_[1], d1_[2]] + dset(2) + dset(3)
for r in range(4):
    for pi in range(2):
        n = (r * 2 + pi) * 2
        smf(vAc + 8 + 4 * pi, vA + 4 * (r % 3), 'v[%d:%d]' % (vLA + 4 * n, vLA + 4 * n + 7), vSI)
        for k in range(2):
            if build:
                e(build.pop(0))
e('s_bitcmp1_b32 s%d, 0' % sIt)
merge(vAc + 8, vAc + 12)
publish_local(vAc + 8, vL8, sT0, 'z')
publish_local(vAc + 8, vL8, sVt, 'z')
sq_(4)
ct(7)
stamp(vT)
if args.ts:
    e('s_bitcmp1_b32 s%d, 0' % sIt)
e('s_cbranch_scc1 L_out')

gather('z', 1, 8)
sq_(5)
ct(9)
stamp(vT + 2)
e('s_add_u32 s%d, s%d, 64' % (sJA, sJA))
a.raw('L_qstage:')
a.reset_counters()
e('s_lshl3_add_u32 s%d, s%d, s%d' % (sT0, sJA, sHA))
qd = vT
gemv32(TQ, E3, E3S, ['ds_read_b64 %s, v%d offset:%d' % (vp(vAc + 2 * i), vQr, E3 + 512 * i) for i in range(4)], (), vX, vCq, 0, 'L_csq',
       ['v_lshlrev_b32 v%d, 2, v0' % (vT + 1)])
e('s_cmp_lg_u32 s%d, 0' % sU)
e('v_cvt_pk_bf16_f32 v%d, v%d, v%d' % (qd, vAc, vAc + 1))
e('v_min_u32 v%d, -2, v%d' % (qd, qd))
a.raw('    s_cbranch_scc1 L_qn')
e('buffer_store_dword v%d, v%d, %s, s%d offen offset:1024' % (qd, vT + 1, srd(SWS), sT0))
e('buffer_store_dword v%d, v%d, %s, s%d offen offset:2048 %s' % (qd, vT + 1, srd(SWS), sT0, sc('F')))
a.label('L_qn')
if args.quiet and not args.sq:
    e('s_memrealtime s[18:19]')
sq_(6)
ct(10)
stamp(vT + 2)
e('v_add_u32 v%d, s%d, v%d' % (vT + 1, sQa, vT + 1))
a.lds('ds_write_b32 v%d, v%d' % (vT + 1, qd))
a.lgwait_all()
e('s_cmp_eq_u32 s%d, 1' % sRet)
e('s_cbranch_scc1 L_i1')
e('s_cmp_eq_u32 s%d, 2' % sRet)
e('s_cbranch_scc1 L_i2')
a.label('L_own')
a.reset_counters()
oq, obt, ok_, ov, oc, om, op_, oml, oA, oD = vLA, vLA + 4, vLA + 8, vLA + 12, vLA + 16, vLA + 20, vLA + 17, vLA + 18, vLA + 24, vLA + 28
mk_qoff(vT + 2, 0, vT + 3)
e('v_add_u32 v%d, s%d, v%d' % (vT + 2, sQa, vT + 2))
e('v_add_u32 v%d, s%d, v%d' % (vT + 3, sKV, vL16))
a.lds('ds_read_b128 %s, v%d' % (vq(oq), vT + 2))
a.lds('ds_read_b128 %s, v%d' % (vq(ok_), vT + 3))
a.lds('ds_read_b128 %s, v%d offset:1024' % (vq(ov), vT + 3))
mk_c(oc, 1, vT)
mk_masks(om, vT)
a.lgwait_all()
build_bt(obt, oq, 1)
mfma(vq(oD), vq(ok_), vq(obt), True)
for o in score_ops([op_], 0, oD, oc, True):
    e(o)
e('s_lshl3_add_u32 s%d, s%d, s%d' % (sT0, sU, sJA))
e('s_add_u32 s%d, s%d, s%d' % (sT0, sT0, sHA))
e('s_lshl_b32 s%d, s%d, 4' % (sT1, sU))
softmax([op_], oml, vT, None, [], [], sT1, EOM, None)
osc = vLA + 32
for o in tail_a(oA, op_, 0, om, vT):
    e(o)
mfma(vq(oD), vq(oA), vq(ov), True)
tk = scale_a(osc, vL16, EOM)
e('s_bitcmp1_b32 s%d, 5' % sJA)
e('s_cselect_b32 s%d, 1, 2' % sOt)
e('s_bitcmp1_b32 s%d, 6' % sJA)
e('s_cselect_b32 s%d, 4096, 0' % sT1)
e('s_add_u32 s%d, s%d, %d' % (sT1, sT1, OFF_O + 7 * 512))
e('s_add_u32 s%d, s%d, s%d' % (sT1, sT1, sHA))
merge(oD, None)
a.lgwait(tk)
for o in scale_b(osc, oml):
    e(o)
wg_publish(oD, osc, vEw, vL8, EO, vLA, sT1, 'own', 'L_ownn', 0, sOt, sLoc)
e('s_waitcnt vmcnt(0)')
e('s_mov_b64 exec, 1')
store_sel('buffer_store_dwordx2 %s, off, %s, s%d offset:896' % (vp(oml), srd(SWS), sT0), 'owns', False, False, sLoc)
e('s_mov_b64 exec, -1')
e('s_cmp_eq_u32 s%d, 4' % sRet)
e('s_cbranch_scc1 L_i4')
e('s_add_u32 s%d, s%d, 1' % (sIt, sIt))
e('s_branch L_loop')

a.label('L_out')
a.reset_counters()
e('v_and_b32 v%d, 31, v0' % t0)
e('v_and_b32 v%d, 16, v0' % t1)
e('v_add_lshl_u32 v%d, v%d, v%d, 9' % (t0, t0, t1))
e('v_lshrrev_b32 v%d, 5, v0' % t1)
e('v_lshl_or_b32 v%d, v%d, 3, v%d' % (t0, t1, t0))
e('s_lshl_b32 s%d, s2, 4' % sT0)
e('s_add_u32 s%d, s%d, s%d' % (sT0, sT0, sZg))
ackwait(args.acko)
a.label('L_outw')
e('buffer_load_dwordx2 %s, v%d, %s, s%d offen sc1' % (vp(vT), t0, srd(SWS), sT0))
e('s_waitcnt vmcnt(0)')
e('v_max_u32 v%d, v%d, v%d' % (t1, vT, vT + 1))
e('v_cmp_eq_u32 vcc, -1, v%d' % t1)
e('s_cbranch_vccz L_outok')
spin_tail('L_outw')
a.label('L_outok')
sq_(5)
ra = allreduce_list('v_add_f32', vT, vT + 2, (0, 1, 2, 3, 4))
rb = allreduce_list('v_add_f32', vT + 1, vT + 3, (0, 1, 2, 3, 4))
for x, y in zip(ra, rb):
    e(x)
    e(y)
e('v_cvt_pk_bf16_f32 v%d, 0, v%d' % (vT, vT))
e('v_cvt_pk_bf16_f32 v%d, 0, v%d' % (vT + 1, vT + 1))
e('v_add_f32 v%d, v%d, v%d' % (vT, vX, vT))
e('v_add_f32 v%d, v%d, v%d' % (vT + 1, vX + 1, vT + 1))
e('v_cvt_pk_bf16_f32 v%d, v%d, v%d' % (vT, vT, vT + 1))
e('s_lshl_b32 s%d, 1, s2' % sMt)
e('s_mov_b32 s%d, s%d' % (sMt + 1, sMt))
e('s_mov_b64 exec, %s' % sp(sMt))
e('buffer_store_dword v%d, v%d, %s, s%d offen sc1' % (vT, vXo, srd(SOUT), sOutB))
e('s_mov_b64 exec, -1')
stamp(vLA)
ct(8)
e('s_cmp_eq_u32 s%d, 3' % sIt)
e('s_cbranch_scc0 L_next')
sq_dump(vLA)
ct_dump(vLA)
if args.pad:
    a.label('L_pad')
    e('s_memrealtime s[82:83]')
    e('s_waitcnt lgkmcnt(0)')
    e('s_sub_u32 s82, s82, s84')
    e('s_cmp_lt_u32 s82, %d' % (args.pad * 100))
    e('s_cbranch_scc1 L_pad')
if args.icprobe:
    e('s_branch L_ic0')
e('s_endpgm')
a.label('L_next')
if args.quiet and not args.sq:
    e('s_mov_b32 s16, s18')
if not args.novote:
    e('v_lshlrev_b32 v%d, 2, v0' % vT)
    e('buffer_load_dword v%d, v%d, %s, 0 offen sc1' % (vT + 1, vT, srd(SDBG)))
    e('s_waitcnt vmcnt(0)')
    count_votes()
setx(vX1)
e('s_add_u32 s%d, s%d, 2048' % (sKV, sKV))
e('s_mov_b32 s%d, 1024' % sOutB)
e('s_add_u32 s%d, s%d, 1024' % (sQa, sQa))
e('s_mov_b32 s%d, 32' % sJA)
e('s_branch L_own')

for lbl, ops in OOL:
    a.label(lbl)
    if callable(ops):
        e('s_nop 1')
        ops()
        continue
    for op in ops:
        e(op)

for blk in RAW:
    for ln in blk:
        a.raw(ln)
for k in range(args.icprobe):
    a.raw('    s_endpgm\n.p2align 8\nL_ic%d:\n    s_branch L_ic%d' % (k, k + 1))
if args.icprobe:
    a.raw('L_ic%d:' % args.icprobe)

hdr = open('cdna_kernels/%s.s.ref' % NAME).read().split('\n')
head = []
for ln in hdr:
    if ln.startswith('; @launch'):
        head.append('; @launch grid=(256,1,1) block=(256,1,1) lds=163840')
    elif ln.startswith('.p2align 8') and args.al:
        head += ['.p2align 12', ln]
    elif ln.startswith(NAME + '_kernel:'):
        head.append(ln)
        break
    else:
        head.append(ln)
tail = '''.section .rodata,"a"
.p2align 6
.amdhsa_kernel %s_kernel
  .amdhsa_next_free_vgpr 512
  .amdhsa_next_free_sgpr 102
  .amdhsa_accum_offset 256
  .amdhsa_group_segment_fixed_size 0
  .amdhsa_kernarg_size 96
  .amdhsa_user_sgpr_count 2
  .amdhsa_user_sgpr_kernarg_segment_ptr 1
  .amdhsa_system_sgpr_workgroup_id_x 1
.end_amdhsa_kernel
''' % NAME
if SITES:
    import warm
    a.lines = warm.place('\n'.join(a.lines).split('\n'), head, tail, SITES, 0 if args.al else 0xc00, args.wR)
open(args.o, 'w').write('\n'.join(head) + '\n' + a.text() + 's_endpgm\n' + tail + ('; TSB=%d\n' % (TSB + (args.wsoff << 20)) if args.ts else ''))
print('wrote', args.o, len(a.lines), 'lines')
```

```python
import sys, math, struct, argparse
sys.path.insert(0, 'gen')
from asmlib import Asm

NAME = 'interleave_layers__mha_block_cached__glu_gated_geglu__decode'

ap = argparse.ArgumentParser()
ap.add_argument('-o', default='cdna_kernels/%s.s' % NAME)
ap.add_argument('--D', type=int, default=8)
ap.add_argument('--DE', type=int, default=8)
ap.add_argument('--NE', type=int, default=24)
ap.add_argument('--DC0', type=int, default=8)
ap.add_argument('--NC0', type=int, default=8)
ap.add_argument('--DC', type=int, default=8)
ap.add_argument('--X', type=int, default=68)
ap.add_argument('--QF', type=int, default=126)
ap.add_argument('--budget', type=int, default=200)
ap.add_argument('--pol', default='nt')
ap.add_argument('--polA', default=None)
ap.add_argument('--polB', default=None)
ap.add_argument('--polC', default=None)
ap.add_argument('--polB1', default=None)
ap.add_argument('--DA', type=int, default=None)
ap.add_argument('--ms', default='')
ap.add_argument('--Dlo', type=int, default=5)
ap.add_argument('--Dhi', type=int, default=8)
ap.add_argument('--Elo', type=int, default=6)
ap.add_argument('--DB0h', type=int, default=None)
ap.add_argument('--q2fb', action='store_true')
ap.add_argument('--ons', type=int, default=3)
ap.add_argument('--qns', type=int, default=3)
ap.add_argument('--qsl', type=int, default=1)
ap.add_argument('--b1ts', action='store_true')
ap.add_argument('--lts', default='')
ap.add_argument('--nofyz', type=int, default=0)
ap.add_argument('--par', default='race')
ap.add_argument('--RR', type=int, default=1)
ap.add_argument('--novote', type=int, default=0)
ap.add_argument('--QI', type=int, default=44)
ap.add_argument('--stch', default='pyz')
ap.add_argument('--XE', type=int, default=None)
ap.add_argument('--sq', action='store_true')
ap.add_argument('--Cm', type=int, default=0)
ap.add_argument('--polM', default='')
ap.add_argument('--polCf', default=None)
ap.add_argument('--B1t', type=int, default=0)
ap.add_argument('--B1tp', default='sc1')
ap.add_argument('--B1tl', type=int, default=0)
ap.add_argument('--DC1h', type=int, default=None)
ap.add_argument('--DCl', type=int, default=None)
ap.add_argument('--wsoff', type=int, default=0)
ap.add_argument('--ypol', default='sc1')
ap.add_argument('--fpol', default='sc1')
ap.add_argument('--ilv', type=int, default=0)
ap.add_argument('--zl', type=int, default=0)
ap.add_argument('--yoff', type=int, default=0)
ap.add_argument('--goff', type=int, default=0)
ap.add_argument('--ysl', type=int, default=0)
ap.add_argument('--y1', type=int, default=0)
ap.add_argument('--Ce', type=int, default=0)
ap.add_argument('--Cs', type=int, default=0)
ap.add_argument('--Cp', type=int, default=2)
ap.add_argument('--Cc', type=int, default=1)
ap.add_argument('--Cn', type=int, default=0)
ap.add_argument('--w0', type=int, default=0)
ap.add_argument('--vfull', type=int, default=0)
ap.add_argument('--xfill', type=int, default=0)
ap.add_argument('--wo0', type=int, default=0)
ap.add_argument('--p2d', type=int, default=0)
ap.add_argument('--cskip', type=int, default=0)
ap.add_argument('--park', type=int, default=0)
ap.add_argument('--warm', type=int, default=1)
ap.add_argument('--zh', type=int, default=0)
ap.add_argument('--zb', type=int, default=0)
ap.add_argument('--yh', type=int, default=0)
ap.add_argument('--yb', type=int, default=0)
ap.add_argument('--z1', type=int, default=0)
ap.add_argument('--zo', type=int, default=0)
ap.add_argument('--osv', type=int, default=0)
ap.add_argument('--z28', type=int, default=0)
ap.add_argument('--noit1', type=int, default=0)
ap.add_argument('--DC0h', type=int, default=None)
ap.add_argument('--Cx', type=int, default=0)
ap.add_argument('--Cx0', type=int, default=0)
ap.add_argument('--Cf0', type=int, default=None)
ap.add_argument('--x4', type=int, default=0)
ap.add_argument('--far1', type=int, default=0)
ap.add_argument('--B2lo', type=int, default=None)
ap.add_argument('--B2hi', type=int, default=None)
ap.add_argument('--B3lo', type=int, default=None)
ap.add_argument('--gb', type=int, default=0)
ap.add_argument('--gb0', type=int, default=13)
ap.add_argument('--gbn', type=int, default=3)
ap.add_argument('--gbl', type=int, default=8)
ap.add_argument('--gbk', default='0123456')
ap.add_argument('--wS', type=int, default=0)
ap.add_argument('--wA', default='')
ap.add_argument('--wR', default='')
ap.add_argument('--al', type=int, default=0)
ap.add_argument('--sh', type=int, default=0)
ap.add_argument('--lay', type=int, default=1)
ap.add_argument('--tch', default='')
ap.add_argument('--tchm', default='0xfffff')
ap.add_argument('--tchp', default='sc1')
ap.add_argument('--quiet', action='store_true')
ap.add_argument('--ffirst', type=int, default=99)
ap.add_argument('--noof', type=int, default=0)
ap.add_argument('--plain', default='')
ap.add_argument('--B1pat', default='')
ap.add_argument('--acky', type=int, default=0)
ap.add_argument('--ackz', type=int, default=0)
ap.add_argument('--acko', type=int, default=0)
ap.add_argument('--nk', type=int, default=None)
ap.add_argument('--nv', type=int, default=0)
ap.add_argument('--alt', type=int, default=0)
ap.add_argument('--pfn', type=int, default=0)
ap.add_argument('--pfi', type=int, default=2)
ap.add_argument('--pf0', type=int, default=0)
ap.add_argument('--K72', type=int, default=2)
ap.add_argument('--q2p', type=int, default=None)
ap.add_argument('--pfpol', default='')
ap.add_argument('--pfs', type=int, default=2)
ap.add_argument('--DP2', type=int, default=None)
ap.add_argument('--B1lo', type=int, default=None)
ap.add_argument('--B1hi', type=int, default=None)
ap.add_argument('--sf', type=int, default=0)
ap.add_argument('--cts', action='store_true')
ap.add_argument('--Cfirst', action='store_true')
ap.add_argument('--msl', action='store_true')
ap.add_argument('--mlag', type=int, default=6)
ap.add_argument('--B1n', type=int, default=99)
ap.add_argument('--NC1', type=int, default=99)
ap.add_argument('--DC1', type=int, default=4)
ap.add_argument('--wpol', default='nt')
ap.add_argument('--nofast', action='store_true')
ap.add_argument('--skip', default='')
ap.add_argument('--bwtest', type=int, default=0)
ap.add_argument('--DB0', type=int, default=8)
ap.add_argument('--NB0', type=int, default=8)
ap.add_argument('--gateA', type=int, default=-1)
ap.add_argument('--gateB', type=int, default=-1)
ap.add_argument('--thA', type=int, default=0)
ap.add_argument('--thB', type=int, default=0)
ap.add_argument('--gsleep', type=int, default=1)
ap.add_argument('--gone', type=int, default=1)
ap.add_argument('--NEB', type=int, default=None)
ap.add_argument('--DEB', type=int, default=None)
ap.add_argument('--NP2', default='6,3,3,3,3')
ap.add_argument('--P2POS', default='9,30,55,80,100')
ap.add_argument('--P2ND', type=int, default=9)
ap.add_argument('--P2B1', type=int, default=2)
ap.add_argument('--P2H', type=int, default=0)
ap.add_argument('--P2G', default='')
ap.add_argument('--P2DS2', type=int, default=1)
ap.add_argument('--P2DSL', type=int, default=30)
ap.add_argument('--P2OOL', type=int, default=1)
ap.add_argument('--Cmix', action='store_true')
ap.add_argument('--icprobe', type=int, default=0)
ap.add_argument('--noack', action='store_true')
ap.add_argument('--map', type=int, default=2)
ap.add_argument('--ts', action='store_true')
ap.add_argument('--pad', type=int, default=0)
args = ap.parse_args()
polA = args.pol if args.polA is None else args.polA
polB = args.pol if args.polB is None else args.polB
polC = args.pol if args.polC is None else args.polC
polB1 = polB if args.polB1 is None else args.polB1


def sc(c):
    return '' if c in args.plain else 'sc1'


def f32(x):
    return '0x%08x' % struct.unpack('<I', struct.pack('<f', x))[0]


OFF_Q, OFF_O = 1024, 3072
HEADA = 11264
YB = 32 * HEADA
ZB = YB + 4 * 32768
if args.zl:
    ZB = (ZB + 131071) // 131072 * 131072
RACEB = ZB + (4 + args.xfill) * 131072
assert YB % 16384 == 0
WS_USED = RACEB + 2 * 16384
if args.yoff:
    YB = WS_USED = (WS_USED + 16383) // 16384 * 16384 + (args.yoff - 1) * 32768
    WS_USED += 131072
WS_USED += args.goff * 131072
GATEB = WS_USED
WS_USED += 2048
GBB = WS_USED
WS_USED += 8192 if args.gb else 0
TSB = WS_USED
WS_SIZE = TSB + (256 * 4 * 64 * 8 if args.ts else 0)
BATCH = 0x4000000
PARTB = 299008
LOG2E = 1.4426950408889634
SPIN_BUDGET = 400000

sU = 3
SK, SV, SWS, SDBG = 28, 32, 36, 40
SWQ, SWO, SGA, SUP, SDN, SX, SOUT = 44, 48, 52, 56, 60, 64, 68
sBud = 72
sT0, sT1 = 73, 74
sMaskJ8 = 76
sMaskV = 78
sMt = 80
sTS = 75
sTm = 82
sHA = 89
sBase, sOff, sLds, sPubJ, sStatJ, sPub, sStat, sH, sTail, sGate, sGo, sFo, sEx = 86, 87, 88, 90, 91, 92, 93, 94, 95, 96, 97, 98, 99
sIt, sJA, sYp, sYg, sRet, sQa, sG0, sG1, sG2, sG3, sKV, sOutB, sFast = 86, 87, 88, 90, 91, 92, 95, 96, 97, 98, 99, 100, 101
sHU, sZg = 93, 94
sHS, sVt, sIod = 0, 1, 27
sOt, sOm, sLoc = 6, 7, 8
sTag = 45
sQm = 4


def srd(i):
    return 's[%d:%d]' % (i, i + 3)


def sp(i):
    return 's[%d:%d]' % (i, i + 1)


def vq(i):
    return 'v[%d:%d]' % (i, i + 3)


def vp(i):
    return 'v[%d:%d]' % (i, i + 1)


def base_of(q):
    return int(q[2:].split(':')[0])


def pair(q0, q1):
    assert q0[0] == q1[0] and base_of(q1) == base_of(q0) + 4, (q0, q1)
    return '%s[%d:%d]' % (q0[0], base_of(q0), base_of(q0) + 7)


DPPF = 'row_mask:0xf bank_mask:0xf'
OOL = []
RAW = []
RAW2 = []
a = Asm()
e = a.e
_vmem = a.vmem


def vmem_dbg(text):
    drop = {'q': srd(SWQ), 'o': srd(SWO), 'g': srd(SGA), 'G': srd(SUP), 'd': srd(SDN)}
    sk = args.skip.replace('g', 'gG')
    for k, v in drop.items():
        if k in sk and v in text:
            text = text.replace(v, srd(SX))
    if 'store' in text and 'sc1' in text and srd(SWS) in text:
        small = any(l.strip() in ('s_mov_b64 exec, 15', 's_mov_b32 exec_hi, 0') for l in a.lines[-8:]) and not any(l.strip() == 's_mov_b64 exec, -1' for l in a.lines[-3:])
        svc = 'L_service:' in a.lines
        if 'f' in sk or ('s' in sk and small) or ('r' in sk and not small and not svc) or ('y' in sk and not small and svc):
            e('s_nop 0')
            return len(a.vm) - 1
        if 'p' in sk:
            text = text.replace('sc1', '')
        if 'n' in sk:
            text = text.replace('sc1', 'sc1 nt')
    return _vmem(text)


if args.skip:
    assert args.bwtest or args.ts
    a.vmem = vmem_dbg


def mk_srd(s, ptr, size):
    if s == SWS and args.wsoff:
        e('s_add_u32 s%d, s%d, 0x%x' % (s, ptr, args.wsoff << 20))
        e('s_addc_u32 s%d, s%d, 0' % (s + 1, ptr + 1))
    else:
        e('s_mov_b32 s%d, s%d' % (s, ptr))
        e('s_mov_b32 s%d, s%d' % (s + 1, ptr + 1))
    e('s_mov_b32 s%d, 0x%x' % (s + 2, size))
    e('s_mov_b32 s%d, 0x00020000' % (s + 3))


def smask(s, val):
    e('s_mov_b32 s%d, 0x%08x' % (s, val & 0xffffffff))
    e('s_mov_b32 s%d, 0x%08x' % (s + 1, val >> 32))


QSK = [0]


def stamp(tmp, entry=False):
    if args.quiet:
        if not entry and not args.lts and 'L_service:' not in a.lines and QSK[0] < 9:
            e('s_memrealtime s[%d:%d]' % (6 + 2 * QSK[0], 7 + 2 * QSK[0]))
            QSK[0] += 1
        return
    if not args.ts or (args.cts and not entry):
        return
    a.lgwait_all()
    e('s_memrealtime %s' % sp(sTm))
    if not entry:
        e('s_getreg_b32 s%d, hwreg(HW_REG_XCC_ID, 0, 4)' % (sTm + 2))
    e('s_waitcnt lgkmcnt(0)')
    e('v_mov_b32 v%d, s%d' % (tmp, sTm))
    e('v_mov_b32 v%d, s%d' % (tmp + 1, sTm + 2))
    e('s_mov_b64 exec, 1')
    a.vmem('buffer_store_dwordx2 %s, off, %s, s%d' % (vp(tmp), srd(SWS), sTS))
    e('s_mov_b64 exec, -1')
    e('s_add_u32 s%d, s%d, 8' % (sTS, sTS))


def ct(k):
    if args.cts:
        e('s_memtime s[%d:%d]' % (6 + 2 * k, 7 + 2 * k))


def sq_(k):
    if args.sq:
        e('s_memrealtime s[%d:%d]' % (10 + 2 * k, 11 + 2 * k))


def sq_dump(tmp):
    if not args.sq:
        return
    e('s_waitcnt lgkmcnt(0)')
    e('s_mov_b64 exec, 1')
    for k in range(7):
        e('v_mov_b32 v%d, s%d' % (tmp, 10 + 2 * k))
        e('buffer_store_dword v%d, off, %s, s%d offset:%d' % (tmp, srd(SWS), sTS, k * 8))
        e('s_nop 1')
    e('s_add_u32 s%d, s%d, 64' % (sTS, sTS))
    e('s_mov_b64 exec, -1')


def ct_dump(tmp):
    if not (args.cts or args.b1ts or args.lts or args.quiet):
        return
    if args.quiet:
        e('s_memrealtime s[24:25]')
    e('s_waitcnt lgkmcnt(0)')
    e('s_and_b32 s%d, s%d, 0xfffffe00' % (sTS, sTS))
    e('s_mov_b64 exec, 1')
    if args.quiet:
        e('v_mov_b32 v%d, s84' % tmp)
        e('buffer_store_dword v%d, off, %s, s%d offset:4' % (tmp, srd(SWS), sTS))
        e('s_waitcnt vmcnt(0)')
    for k in range(11):
        e('v_mov_b32 v%d, s%d' % (tmp, 6 + 2 * k))
        e('buffer_store_dword v%d, off, %s, s%d offset:%d' % (tmp, srd(SWS), sTS, (40 + k) * 8))
        e('s_waitcnt vmcnt(0)')
    e('s_mov_b64 exec, -1')


SITES = []


def warm_site(grp):
    k = len(SITES)
    SITES.append(grp)
    e('s_mov_b64 exec, 0')
    for w in range(1, 4):
        e('s_cmp_eq_u32 s%d, %d' % (sU, w))
        a.raw('    s_cbranch_scc1 @W%d_%d' % (k, w))
    a.raw('    s_branch @W%d_0' % k)
    a.raw('L_wr%d:' % k)
    e('s_mov_b64 exec, -1')


def spin_tail(lbl, sleep=0):
    if sleep:
        e('s_sleep %d' % sleep)
    e('s_sub_u32 s%d, s%d, 1' % (sBud, sBud))
    e('s_cbranch_scc0 %s' % lbl)
    e('s_endpgm')


def allreduce_list(op, r, t, steps=(0, 1, 2, 3, 4, 5)):
    d = {0: 'quad_perm:[1,0,3,2]', 1: 'quad_perm:[2,3,0,1]', 2: 'row_ror:4', 3: 'row_ror:8'}
    out = []
    for s in steps:
        if s < 4:
            out.append('%s_dpp v%d, v%d, v%d %s %s' % (op, r, r, r, d[s], DPPF))
        else:
            out.append('v_mov_b32 v%d, v%d' % (t, r))
            out.append('v_permlane%d_swap_b32 v%d, v%d' % (16 if s == 4 else 32, r, t))
            out.append('%s v%d, v%d, v%d' % (op, r, r, t))
    return out


def build_bt(bt, q, n=4):
    for t in range(n):
        smask(sMt, 0x000F000F000F000F << (4 * t))
        for r in range(4):
            e('v_cndmask_b32 v%d, 0, v%d, %s' % (bt + 4 * t + r, q + r, sp(sMt)))


def score_ops(P, g, D, C, first):
    out = []
    for r in range(4):
        op = 'v_mul_f32_dpp' if first and r == 0 else 'v_fmac_f32_dpp'
        out.append('%s v%d, v%d, v%d quad_perm:[%d,%d,%d,%d] %s' % (op, P[g >> 2], D + r, C + (g & 3), r, r, r, r, DPPF))
    return out


def softmax(P, m, t, stat_soff, fill1, fill2, sw16, exm, tag):
    l = m + 1
    e('v_mov_b32 v%d, 0xff800000' % t)
    e('v_cndmask_b32 v%d, v%d, v%d, %s' % (P[-1], t, P[-1], sp(sMaskV)))
    if len(P) == 1:
        e('v_mov_b32 v%d, v%d' % (m, P[0]))
    else:
        e('v_max3_f32 v%d, v%d, v%d, v%d' % (m, P[0], P[1], P[2]))
        e('v_max3_f32 v%d, v%d, v%d, v%d' % (m, m, P[3], P[4]))
    a.chain(allreduce_list('v_max_f32', m, t), fill1)
    for p in P:
        e('v_sub_f32 v%d, v%d, v%d' % (p, p, m))
    for p in P:
        e('v_exp_f32 v%d, v%d' % (p, p))
    for p in P:
        e('v_cvt_pk_bf16_f32 v%d, 0, v%d' % (p, p))
    if len(P) == 1:
        e('v_mov_b32 v%d, v%d' % (l, P[0]))
    else:
        e('v_add_f32 v%d, v%d, v%d' % (l, P[0], P[1]))
        e('v_add_f32 v%d, v%d, v%d' % (t, P[2], P[3]))
        e('v_add_f32 v%d, v%d, v%d' % (l, l, P[4]))
        e('v_add_f32 v%d, v%d, v%d' % (l, l, t))
    fill = fill1 + fill2
    a.chain(allreduce_list('v_add_f32', l, t), fill)
    e('v_min_u32 v%d, -2, v%d' % (m, m))
    e('v_min_u32 v%d, -2, v%d' % (l, l))
    e('v_mov_b32 v%d, s%d' % (t, sw16))
    e('s_mov_b64 exec, 1')
    if stat_soff is not None:
        store_sel('buffer_store_dwordx2 %s, off, %s, s%d' % (vp(m), srd(SWS), stat_soff), tag, True)
    a.lds('ds_write_b32 v%d, v%d offset:%d' % (t, m, exm))
    e('s_mov_b64 exec, -1')
    for op in fill:
        e(op)


def store_sel(text, tag, count, raw=False, sFo=sFo):
    emit = a.vmem if count else e
    if tag is None:
        emit(text + ' ' + sc('D' if count else 'E'))
        return
    e('s_cmp_eq_u32 s%d, 0' % sFo)
    if raw:
        a.nop(a.needed(text))
        a.raw('    s_cbranch_scc0 L_st_%s' % tag)
        a.pos += 1
        emit(text)
        a.raw('L_str_%s:' % tag)
        RAW.append(['L_st_%s:' % tag, '    %s sc1' % text, '    s_branch L_str_%s' % tag])
        return
    e('s_cbranch_scc0 L_st_%s' % tag)
    emit(text)
    a.label('L_str_%s' % tag)
    OOL.append(('L_st_%s' % tag, [text + ' sc1', 's_branch L_str_%s' % tag]))


def scale_a(c, l16, exm):
    e('v_and_b32 v%d, 0x30, v%d' % (c, l16))
    a.lgwait_all()
    e('s_barrier')
    return a.lds('ds_read_b32 v%d, v%d offset:%d' % (c, c, exm))


def scale_b(c, m):
    return allreduce_list('v_max_f32', c, None, (0, 1)) + ['v_sub_f32 v%d, v%d, v%d' % (c, m, c), 'v_exp_f32 v%d, v%d' % (c, c)]


def wg_publish(O, c, wa, l8, exo, T, soff, tag, lbl, ack=0, sTag=sTag, sFo=sFo):
    if c is not None:
        e('v_mul_f32 v%d, v%d, v%d' % (O, O, c))
        e('v_mul_f32 v%d, v%d, v%d' % (O + 1, O + 1, c))
        e('s_cmp_lg_u32 s%d, 0' % sU)
    a.lds('ds_write_b64 v%d, %s offset:%d' % (wa, vp(O), exo))
    a.lgwait_all()
    e('s_barrier')
    e('s_cbranch_scc1 %s' % lbl)
    for w in range(3):
        a.lds('ds_read_b64 %s, v%d offset:%d' % (vp(T + 2 * w), l8, exo + 512 * (w + 1)))
    e('s_waitcnt lgkmcnt(2)')
    e('v_pk_add_f32 %s, %s, %s' % (vp(O), vp(O), vp(T)))
    a.lgwait_all()
    e('v_pk_add_f32 %s, %s, %s' % (vp(T + 2), vp(T + 2), vp(T + 4)))
    e('v_pk_add_f32 %s, %s, %s' % (vp(O), vp(O), vp(T + 2)))
    e('v_and_or_b32 v%d, v%d, -4, s%d' % (O, O, sTag))
    e('v_and_or_b32 v%d, v%d, -4, s%d' % (O + 1, O + 1, sTag))
    store_sel('buffer_store_dwordx2 %s, v%d, %s, s%d offen' % (vp(O), l8, srd(SWS), soff), tag, False, True, sFo)
    if ack:
        e('s_waitcnt vmcnt(0)')
    a.label(lbl)


def a_ops(A, src, sw, r):
    q = lambda x: 'quad_perm:[%d,%d,%d,%d]' % (x, x, x, x)
    return ['v_mov_b32_dpp v%d, v%d %s row_mask:0xf bank_mask:0x5' % (A, src, q(r)),
            'v_mov_b32_dpp v%d, v%d %s row_mask:0xf bank_mask:0xa' % (A + 1, sw, q(3 - r)),
            'v_mov_b32_dpp v%d, v%d %s row_mask:0xf bank_mask:0x5' % (A + 2, sw, q(3 - r)),
            'v_mov_b32_dpp v%d, v%d %s row_mask:0xf bank_mask:0xa' % (A + 3, src, q(r))]


def mirror(d, s):
    return 'v_mov_b32_dpp v%d, v%d row_half_mirror %s' % (d, s, DPPF)


def tail_a(A, p, lane, M, t):
    return ['v_lshrrev_b32 v%d, 16, v%d' % (t, p), 'v_or_b32 v%d, v%d, v%d' % (t, t, p)] + \
           ['v_and_b32_dpp v%d, v%d, v%d row_newbcast:%d %s' % (A + k, t, M + k, lane, DPPF) for k in range(4)]


def merge(O1, O2):
    e('v_permlane32_swap_b32 v%d, v%d' % (O1, O1 + 2))
    e('v_permlane32_swap_b32 v%d, v%d' % (O1 + 1, O1 + 3))
    if O2 is not None:
        e('v_permlane32_swap_b32 v%d, v%d' % (O2, O2 + 2))
        e('v_permlane32_swap_b32 v%d, v%d' % (O2 + 1, O2 + 3))
        e('v_add_f32 v%d, v%d, v%d' % (O1, O1, O2 + 2))
        e('v_add_f32 v%d, v%d, v%d' % (O1 + 1, O1 + 1, O2 + 3))


def publish2(r, voff, soff):
    e('v_min_u32 v%d, -2, v%d' % (r, r))
    e('v_min_u32 v%d, -2, v%d' % (r + 1, r + 1))
    a.vmem('buffer_store_dwordx2 %s, v%d, %s, s%d offen sc1' % (vp(r), voff, srd(SWS), soff))


def publish_local(r, voff, soff, tag):
    a.vmem('buffer_store_dwordx2 %s, v%d, %s, s%d offen %s' % (vp(r), voff, srd(SWS), soff, args.ypol))


def mfma(D, A, B, first):
    e('v_mfma_f32_16x16x32_bf16 %s, %s, %s, %s' % (D, A, B, '0' if first else D))


def smf(D, A, B, idx):
    e('v_smfmac_f32_16x16x64_bf16 %s, %s, %s, v%d' % (vq(D), vq(A), B, idx))


def mk_masks(M, t):
    rep = 0x0001000100010001
    e('v_mov_b32 v%d, 0xffff' % t)
    e('v_mov_b32 v%d, 0xffff0000' % (t + 1))
    for k in range(4):
        smask(sMt, rep << (2 * k))
        e('v_cndmask_b32 v%d, 0, v%d, %s' % (M + k, t, sp(sMt)))
        smask(sMt, rep << (2 * k + 1))
        e('v_cndmask_b32 v%d, v%d, v%d, %s' % (M + k, M + k, t + 1, sp(sMt)))


def mk_c(C, n, t):
    e('v_mov_b32 v%d, %s' % (t, f32(LOG2E / math.sqrt(128.0))))
    for r in range(n):
        smask(sMt, 0x1111111111111111 << r)
        e('v_cndmask_b32 v%d, 0, v%d, %s' % (C + r, t, sp(sMt)))


def mk_koff(d, lane, t):
    e('v_and_b32 v%d, 3, v%d' % (d, lane))
    e('v_lshlrev_b32 v%d, 4, v%d' % (d, d))
    e('v_bfe_u32 v%d, v%d, 2, 2' % (t, lane))
    e('v_lshl_or_b32 v%d, v%d, 9, v%d' % (d, t, d))
    e('v_lshrrev_b32 v%d, 4, v%d' % (t, lane))
    e('v_lshl_or_b32 v%d, v%d, 6, v%d' % (d, t, d))


def mk_qoff(d, lane, t):
    e('v_and_b32 v%d, 3, v%d' % (d, lane))
    e('v_lshlrev_b32 v%d, 4, v%d' % (d, d))
    e('v_lshrrev_b32 v%d, 4, v%d' % (t, lane))
    e('v_lshl_or_b32 v%d, v%d, 6, v%d' % (d, t, d))


def idx_ops(d, l16):
    return ['v_bfe_u32 v%d, v%d, 4, 2' % (d, l16), 'v_mul_u32_u24 v%d, 0x4444, v%d' % (d, d)]


def tail_soff(dst, t):
    e('s_lshr_b32 s%d, s%d, 1' % (dst, sU))
    e('s_lshl_b32 s%d, s%d, 11' % (dst, dst))
    e('s_and_b32 s%d, s%d, 1' % (t, sU))
    e('s_lshl_b32 s%d, s%d, 8' % (t, t))
    e('s_add_u32 s%d, s%d, s%d' % (dst, dst, t))


if args.ts or args.pad:
    e('s_memrealtime s[84:85]')
e('s_cmp_ge_u32 s2, 256')
e('s_cbranch_scc0 L_go')
e('s_endpgm')
a.label('L_go')
e('s_load_dwordx16 s[4:19], s[0:1], 0')
e('s_load_dwordx8 s[20:27], s[0:1], 64')
e('v_lshrrev_b32 v1, 6, v0')
e('v_and_b32 v0, 63, v0')
e('v_readfirstlane_b32 s%d, v1' % sU)
e('s_mov_b32 s%d, %d' % (sBud, SPIN_BUDGET))
if args.ts:
    e('s_lshl_b32 s%d, s2, 2' % sTS)
    e('s_add_u32 s%d, s%d, s%d' % (sTS, sTS, sU))
    e('s_lshl_b32 s%d, s%d, 9' % (sTS, sTS))
    e('s_add_u32 s%d, s%d, 0x%x' % (sTS, sTS, TSB))
if args.map == 0:
    e('s_cmp_lt_u32 s2, 32')
    e('s_cbranch_scc1 L_service')
elif args.map == 1:
    e('s_and_b32 s%d, s2, 7' % sT0)
    e('s_lshr_b32 s2, s2, 3')
    e('s_sub_u32 s%d, s%d, 1' % (sT0, sT0))
    e('s_cbranch_scc1 L_service')
else:
    e('s_lshr_b32 s%d, s2, 5' % sT0)
    e('s_and_b32 s2, s2, 31')
    e('s_sub_u32 s%d, s%d, 1' % (sT0, sT0))
    e('s_cbranch_scc1 L_service')

vKo, vVo, vLd, vM, vC, vBT, vD = 4, 1, 11, 44, 7, 12, 28
vO1, vO2, vIdx, vMl = 12, 16, 25, 26
PA = [40, 41, 42, 43, 2]
PB = [48, 49, 50, 51, 3]
PS = [20, 21, 22, 23, 24]
vQ1, vQo, vPo = 48, 6, 5
PARK = {0: 32, 4: 16, 1: 20, 5: 24, 2: 36, 6: 44, 3: 8, 7: 0} if args.park else {}
sBM, sMM = 56, 64
vQL = 40
vSc = vMl + 1
NQ = 73
NR = 8
RING = ['v[%d:%d]' % (52 + 4 * i, 55 + 4 * i) for i in range(NR)]
_ka = ['a[%d:%d]' % (4 * i, 4 * i + 3) for i in range(64)]
_kv = ['v[%d:%d]' % (84 + 4 * i, 87 + 4 * i) for i in range(9)]
KS = _ka[:args.X - 8] + _kv[:8] + _ka[args.X - 8:] + _kv[8:]
VSR = ['v[%d:%d]' % (120 + 4 * i, 123 + 4 * i) for i in range(34)]
NLV = 38
EXO, EXM, LVB, LVS = 0, 2048, 4096, 39936
VORD = list(range(NLV)) + [72] + list(range(NLV, 72))


def vslot(i):
    return ('L', i) if i < NLV else ('L', NLV) if i == 72 else VSR[i - NLV]


for x in range(224):
    assert (x * 293) >> 11 == x // 7
if args.map == 0:
    e('s_sub_u32 s%d, s2, 32' % sT0)
    e('s_mul_i32 s%d, s%d, 293' % (sH, sT0))
    e('s_lshr_b32 s%d, s%d, 11' % (sH, sH))
    e('s_mul_i32 s%d, s%d, 7' % (sT1, sH))
    e('s_sub_u32 s%d, s%d, s%d' % (sT0, sT0, sT1))
else:
    e('s_mov_b32 s%d, s2' % sH)
e('s_lshl_b32 s%d, s%d, 21' % (sLds, sH))
e('s_mul_i32 s%d, s%d, %d' % (sT1, sT0, args.ilv * 16384 or PARTB))
e('s_add_u32 s%d, s%d, s%d' % (sLds, sLds, sT1))
e('s_lshl_b32 s%d, s%d, 12' % (sT1, sU))
e('s_add_u32 s%d, s%d, s%d' % (sBase, sLds, sT1))
sBase2 = 44
sBaseV, sTailV = 45, 46
if args.nk == 2:
    e('s_waitcnt lgkmcnt(0)')
    e('s_load_dwordx2 s[50:51], s[14:15], 0')
    e('s_waitcnt lgkmcnt(0)')
if args.nk is not None:
    e('s_andn2_b32 s47, s%d, 4' % sH)
    e('s_lshr_b32 s48, s%d, 1' % sU)
    e('s_lshl2_add_u32 s47, s48, s47')
    e('s_getreg_b32 s48, hwreg(HW_REG_XCC_ID, 2, 1)')
    e('s_xor_b32 s48, s48, s47')
    e('s_xor_b32 s48, s48, %s' % (args.nk if args.nk < 2 else 's50'))
    e('s_and_b32 s48, s48, 1')
    e('s_lshl_b32 s48, s48, 13')
    e('s_lshl_b32 s47, s47, 21')
    e('s_add_u32 s47, s47, s48')
    e('s_and_b32 s48, s%d, 1' % sU)
    e('s_lshl_b32 s49, s48, 12')
    e('s_mul_i32 s%d, s%d, %d' % (sBase, sT0, 18 * 16384))
    e('s_add_u32 s%d, s%d, s49' % (sBase, sBase))
    e('s_add_u32 s%d, s%d, s47' % (sBase, sBase))
    e('s_xor_b32 s%d, s%d, %s' % (sBaseV, sBase, (args.nk ^ args.nv) << 13 if args.nk < 2 else 's51'))
    e('s_lshr_b32 s49, s%d, 2' % sT0)
    e('s_lshl_b32 s49, s49, 14')
    e('s_add_u32 s47, s47, s49')
    e('s_and_b32 s49, s%d, 3' % sT0)
    e('s_lshl_b32 s49, s49, 11')
    e('s_add_u32 s47, s47, s49')
    e('s_lshl_b32 s48, s48, 8')
    e('s_add_u32 s47, s47, s48')
    e('s_add_u32 s47, s47, %d' % (126 * 16384))
    e('s_xor_b32 s%d, s47, %s' % (sTailV, (args.nk ^ args.nv) << 13 if args.nk < 2 else 's51'))
if args.alt:
    e('s_xor_b32 s%d, s%d, 0x2000' % (sT1, sT1))
    e('s_add_u32 s%d, s%d, s%d' % (sBase2, sLds, sT1))
e('v_lshlrev_b32 v%d, 4, v0' % vVo)
mk_koff(vKo, 0, vD)
e('s_waitcnt lgkmcnt(0)')
mk_srd(SK, 6, 2 * BATCH)


sMode, sVote = 100, 101
MS = {'on': False, 'list': [tuple(int(y) for y in x.split(':')) for x in args.ms.split(',') if x], 'k': 0, 'pend': None, 'reg': 51, 'ok': True}


def rmode():
    if MS['on'] and args.vfull:
        e('s_cmp_lg_u32 s%d, 0' % sMode)
        e('s_cselect_b64 vcc, -1, 0')
    elif MS['on']:
        e('s_mov_b32 vcc_lo, s%d' % sMode)
        e('s_mov_b32 vcc_hi, 0')


sRep, sRp, sGl, sXb, sGb, sOwn = 52, 53, 54, 55, 46, 47


def ms_hook(n):
    if MS['pend'] and n >= MS['pend'][0] and MS['pend'][2] is None:
        _, nv, thr, reg = MS['pend']
        MS['pend'] = None
        lb = a.newlabel('L_gb')
        e('s_cmp_lt_u32 s%d, s%d' % (sRp, sRep))
        e('s_cbranch_scc0 %s' % lb)
        e('s_waitcnt vmcnt(%d)' % (len(a.vm) - nv))
        e('v_cmp_ne_u32 %s, 0, v%d' % (sp(sMt), reg))
        e('s_and_b32 s%d, s%d, 0xff' % (sMt, sMt))
        e('s_or_b32 s%d, s%d, s%d' % (sMt, sMt, sOwn))
        e('s_bcnt1_i32_b32 s%d, s%d' % (sMt, sMt))
        e('s_lshr_b32 s%d, s%d, 1' % (sMt, sMt))
        e('s_bfm_b64 %s, s%d, 0' % (sp(sMt), sMt))
        e('v_cndmask_b32 v%d, 0, 1, %s' % (reg, sp(sMt)))
        e('s_mov_b64 exec, 15')
        e('buffer_store_byte v%d, v%d, %s, s%d offen offset:%d' % (reg, vPo, srd(SWS), sGate, 224 + MS['k']))
        e('s_mov_b64 exec, -1')
        a.label(lb)
    if MS['pend'] and n >= MS['pend'][0]:
        _, tk, thr, reg = MS['pend']
        MS['pend'] = None
        a.vmwait(tk)
        e('v_cmp_ne_u32 vcc, 0, v%d' % reg)
        if args.gb:
            e('s_lshr_b32 s%d, vcc_lo, 28' % sXb)
            e('s_bcnt1_i32_b32 s%d, s%d' % (sXb, sXb))
            e('s_mul_i32 s%d, s%d, %d' % (sXb, sXb, args.gb))
        if args.msl:
            e('s_and_b32 vcc_lo, vcc_lo, 0x0fffffff')
        e('s_bcnt1_i32_b32 s%d, vcc_lo' % sMode)
        k = MS['k'] - 1
        if args.gb and str(k) in args.gbk:
            lb = a.newlabel('L_gr')
            e('v_lshlrev_b32 v%d, 7, v%d' % (reg, vPo))
            e('s_sub_u32 s%d, s%d, %d' % (sRp, sMode, args.gb0))
            e('s_cmp_lt_u32 s%d, s%d' % (sRp, sRep))
            a.skip_begin('s_cbranch_scc0', lb)
            e('s_mov_b64 exec, 0xffff')
            assert vPo & 1
            e('buffer_store_dwordx2 %s, v%d, %s, s%d offen offset:%d sc1' % (vp(vPo - 1), vPo, srd(SWS), sGl, 128 * k))
            e('s_andn2_b32 exec_lo, 0xff, s%d' % sOwn)
            e('buffer_load_dword v%d, v%d, %s, s%d offen offset:%d sc1' % (reg, reg, srd(SWS), sGb, 128 * k + 12))
            e('s_mov_b64 exec, -1')
            a.skip_end(lb)
            MS['pend'] = (n + args.gbl, len(a.vm), None, reg)
        if args.gb:
            e('s_add_u32 s%d, s%d, s%d' % (sMode, sMode, sXb))
            thr += 2 * args.gb
        e('s_cmp_lt_u32 s%d, %d' % (sMode, thr))
        e('s_cselect_b32 s%d, -1, 0' % sMode)
        MS['on'] = True
        rmode()
    if MS['list'] and n >= MS['list'][0][0] and not MS['pend']:
        pos, thr = MS['list'].pop(0)
        k = MS['k']
        MS['k'] += 1
        assert k < 8 and MS['ok'] and args.msl
        lb = a.newlabel('L_nv')
        if args.msl:
            e('s_cmp_eq_u32 s%d, 1' % sU)
            a.skip_begin('s_cbranch_scc0', lb)
            e('s_mov_b64 exec, 2')
            e('buffer_store_byte v%d, off, %s, s%d offset:%d' % (vPo, srd(SWS), sVote, k))
            e('s_mov_b32 exec_lo, -1')
            a.skip_end(lb)
            e('s_mov_b32 exec_hi, 0')
            tk = a.vmem('buffer_load_ubyte v%d, v%d, %s, s%d offen offset:%d sc1' % (MS['reg'], vPo, srd(SWS), sGate, k))
            e('s_mov_b32 exec_hi, -1')
            MS['pend'] = (n + args.mlag, tk, thr, MS['reg'])
            return
        e('s_cmp_lt_u32 s%d, 256' % sVote)
        a.skip_begin('s_cbranch_scc0', lb)
        e('s_mov_b64 exec, 1')
        e('buffer_store_byte v%d, off, %s, s%d offset:%d sc1' % (vM, srd(SDBG), sVote, k))
        e('s_mov_b64 exec, -1')
        a.skip_end(lb)
        tk = a.vmem('buffer_load_ubyte v%d, v%d, %s, 0 offen offset:%d sc1' % (MS['reg'], vPo, srd(SDBG), 128 + k))
        MS['pend'] = (n + 6, tk, thr, MS['reg'])


def goff(g):
    if args.ilv:
        assert 18 % args.ilv == 0
        return (g // args.ilv * 7 * args.ilv + g % args.ilv) * 16384
    return g * 16384


class Sched:
    def __init__(self):
        self.tok = []
        self.queue = []
        self.lastgrp = None

    def issue(self, kind, b, i, dest, pol):
        g, t = i >> 2, i & 3
        LTS = [int(x) for x in args.lts.split(',') if x]
        if len(self.tok) in LTS:
            kk = LTS.index(len(self.tok))
            e('s_memrealtime s[%d:%d]' % (6 + 2 * kk, 7 + 2 * kk))
        key = (kind, b, g, dest[0] == 'L')
        if self.lastgrp != key:
            if g == 18:
                e('s_add_u32 s%d, s%d, 0x%x' % (sOff, sTail if args.nk is None else 47 if kind == 'K' else sTailV, b * BATCH))
            else:
                e('s_add_u32 s%d, s%d, 0x%x' % (sOff, sBase2 if args.alt and (g // args.alt) & 1 else sBaseV if args.nk is not None and kind == 'V' else sBase, goff(g) + b * BATCH))
            if dest[0] == 'L':
                e('s_add_u32 m0, s%d, 0x%x' % (sLds, (dest[1] - t) * 1024))
            self.lastgrp = key
        s = srd(SK if kind == 'K' else SV)
        vo = vKo if kind == 'K' else vVo
        imm = (t >> 1) * 2048 + (t & 1) * 256 if kind == 'K' else t * 1024
        if kind == 'V' and g == 18:
            e('v_and_b32 v0, 0x300, v%d' % vVo)
            e('v_add_u32 v0, v0, v%d' % vVo)
            vo = 0
        if pol == 'X':
            e('s_mov_b32 exec_lo, 0x1111')
            e('s_mov_b32 exec_hi, 0x1111')
            a.vmem('buffer_load_dword v%d, v%d, %s, s%d offen offset:%d nt' % (base_of(dest), vo, s, sOff, imm))
            e('s_mov_b64 exec, -1')
            pol = ''
        if dest[0] == 'L':
            tk = a.vmem('buffer_load_dwordx4 v%d, %s, s%d offen offset:%d %s lds' % (vo, s, sOff, imm, pol))
        else:
            tk = a.vmem('buffer_load_dwordx4 %s, v%d, %s, s%d offen offset:%d %s' % (dest, vo, s, sOff, imm, pol))
        self.tok.append(tk)
        if str(len(self.tok)) in args.wA.split(','):
            warm_site('a')
        return tk

    def pace(self, d, lo=None, hi=None):
        n = len(self.tok)
        if lo is not None:
            ms_hook(n)
        if lo is not None and MS['on'] and lo != hi:
            a.vmwait(self.tok[n - hi])
            tk = self.tok[n - lo]
            if tk >= a.vm_done:
                lb = a.newlabel('L_pc')
                a.skip_begin('s_cbranch_vccz', lb)
                e('s_waitcnt vmcnt(%d)' % (len(a.vm) - 1 - tk))
                a.skip_end(lb)
            return
        if lo is not None and MS['on']:
            d = lo
        if n >= d:
            a.vmwait(self.tok[n - d])

    def run_item(self, it):
        for tk in it.get('need', []):
            a.vmwait(tk())
        it['fn']()
        it['done'] = True

    def ready(self, it):
        for tk in it.get('need', []):
            v = tk()
            if v is None or v >= a.vm_done:
                return False
        return True

    def run_until(self, it):
        while not it.get('done'):
            self.run_item(self.queue.pop(0))

    def run_budget(self, budget):
        while self.queue and budget > 0 and self.ready(self.queue[0]):
            it = self.queue.pop(0)
            self.run_item(it)
            budget -= it['cost']

    def drain(self):
        while self.queue:
            self.run_item(self.queue.pop(0))


S = Sched()
LT = {}
LOC = {}


def need(kind, b, i):
    return lambda: LT.get((kind, b, i))


def item(fn, cost, needs=()):
    it = {'fn': fn, 'cost': cost, 'need': list(needs)}
    S.queue.append(it)
    return it


def add_k_items(b, P, idxs):
    its = {}
    for i in idxs:
        g, t = i >> 2, i & 3
        D = vD + 4 * (g % 3)
        last = t == 3 or i == NQ - 1

        def fn(i=i, g=g, t=t, D=D, last=last):
            mfma(vq(D), LOC[('K', b, i)], vq(vBT + 4 * t), t == 0)
            if last:
                for op in score_ops(P, g, D, vC, (g & 3) == 0):
                    e(op)
        its[i] = item(fn, 4 + (18 if last else 0), [need('K', b, i)])
    return its


def att_softmax(P, g0, g1, tag):
    f1 = ['v_mov_b32 v%d, 0' % r for r in list(range(vD, vD + 12)) + list(range(vO1, vO1 + 8))] + idx_ops(vIdx, vVo)
    f2 = [mirror(PS[k], P[k]) for k in range(5)]
    f2 += a_ops(vD, P[g0 >> 2], PS[g0 >> 2], g0 & 3) + a_ops(vD + 4, P[g1 >> 2], PS[g1 >> 2], g1 & 3)
    softmax(P, vMl, 0, sStatJ, f1, f2, sEx, EXM, 's' + tag)


def pv_end(tag):
    e('s_lshl_b32 s%d, s%d, 5' % (sT0, sEx))
    e('v_add_u32 v0, s%d, v%d' % (sT0, vPo))
    merge(vO1, vO2)
    wg_publish(vO1, vSc, 0, vPo, EXO, vD, sPubJ, 'o' + tag, 'L_np' + tag)


st_ = {}


def add_v_items(b, P, temps, tag):
    tcount = [0]
    sc = {}

    def sca():
        sc['tk'] = scale_a(vSc, vVo, EXM)

    def scb():
        a.lgwait(sc['tk'])
        for op in scale_b(vSc, vMl):
            e(op)

    def tail_rd():
        k = tcount[0] % (len(temps) // 2)
        tcount[0] += 1
        sc['t'] = (temps[2 * k], temps[2 * k + 1], a.lds('ds_read_b128 %s, v%d offset:%d' % (temps[2 * k], vLd, NLV * 1024)))

    def tail_mm():
        src, A, tk = sc['t']
        for op in tail_a(base_of(A), P[4], 2, vM, 0):
            e(op)
        a.lgwait(tk)
        mfma(vq(vO1), A, src, False)

    for g in range(18):
        if g == 2:
            item(sca, 10)
        if g == 3:
            item(scb, 12)
        A = vD + 4 * (g % 3)
        An = vD + 4 * ((g + 2) % 3)
        if g + 2 < 18:
            nxt = a_ops(An, P[(g + 2) >> 2], PS[(g + 2) >> 2], (g + 2) & 3)
        else:
            nxt = []
        for half in range(2):
            i0 = 4 * g + 2 * half
            if i0 == NLV:
                item(tail_rd, 2, [need('V', b, 72)])
                st_['tmp' + tag] = item(tail_mm, 30)
            O = (vO1, vO2)[half]
            ops = nxt[:len(nxt) // 2] if half == 0 else nxt[len(nxt) // 2:]
            st = {}
            if i0 < NLV:
                def rd(i0=i0, st=st):
                    k = tcount[0] % (len(temps) // 2)
                    tcount[0] += 1
                    a.lds('ds_read_b128 %s, v%d offset:%d' % (temps[2 * k], vLd, i0 * 1024))
                    st['tk'] = a.lds('ds_read_b128 %s, v%d offset:%d' % (temps[2 * k + 1], vLd, i0 * 1024 + 1024))
                    st['src'] = pair(temps[2 * k], temps[2 * k + 1])
                item(rd, 2, [need('V', b, i0), need('V', b, i0 + 1)])

                def fn(A=A, O=O, st=st, ops=ops):
                    for op in ops:
                        e(op)
                    a.lgwait(st['tk'])
                    smf(O, A, st['src'], vIdx)
                item(fn, 30)
            else:
                def fn(A=A, O=O, i0=i0, ops=ops):
                    smf(O, A, pair(VSR[i0 - NLV], VSR[i0 + 1 - NLV]), vIdx)
                    for op in ops:
                        e(op)
                item(fn, 6, [need('V', b, i0), need('V', b, i0 + 1)])

    def pub():
        a.raw('M_pub%s:' % tag)
        pv_end(tag)
        stamp(vD)
    return item(pub, 40)


def q_load(job, land):
    e('s_add_u32 s%d, s%d, 0x%x' % (sT0, sHA, job * 256 + OFF_Q))
    return 'buffer_load_dwordx4 %s, v%d, %s, s%d offen sc1' % (vq(land), vQo, srd(SWS), sT0)


def q_check(job, land, tk, tmp):
    pf = job == 2 and (args.pfn or args.pf0)
    if pf:
        assert args.X // 4 + args.pfn * args.pfi + args.pf0 <= 18
        e('s_add_u32 s%d, s%d, 0x%x' % (sOff, sBase, args.X // 4 * 16384 + BATCH))
        e('s_mov_b32 s%d, %d' % (sT1, args.pfi))
        e('s_mov_b32 m0, 3072')
        e('v_lshlrev_b32 v%d, %d, v%d' % (tmp + 1, args.pfs, vVo))
        S.lastgrp = None
        for k in range(args.pf0):
            a.vmem('buffer_load_dword v%d, %s, s%d offen %s lds' % (tmp + 1, srd(SK), sOff, args.pfpol))
            e('s_add_u32 s%d, s%d, 16384' % (sOff, sOff))
    a.vmwait(tk)
    if job == 2 and args.q2fb:
        e('s_mov_b32 s%d, 0' % sMode)
        MS['on'] = True
    lc = a.newlabel('L_qc')
    lok = a.newlabel('L_qok')
    pf = job == 2 and args.pfn
    a.label(lc)
    e('v_max3_u32 v%d, v%d, v%d, v%d' % (tmp, land, land + 1, land + 2))
    e('v_max_u32 v%d, v%d, v%d' % (tmp, tmp, land + 3))
    e('v_cmp_eq_u32 vcc, -1, v%d' % tmp)
    e('s_cbranch_vccz %s' % lok)
    e(q_load(job, land))
    if pf:
        e('s_cmp_eq_u32 s%d, 0' % sT1)
        e('s_cbranch_scc1 L_nopf')
        e('s_sub_u32 s%d, s%d, 1' % (sT1, sT1))
        if args.pfs == 3:
            e('s_mov_b32 exec_hi, 0')
        for k in range(args.pfn):
            e('buffer_load_dword v%d, %s, s%d offen %s lds' % (tmp + 1, srd(SK), sOff, args.pfpol))
            e('s_add_u32 s%d, s%d, 16384' % (sOff, sOff))
        if args.pfs == 3:
            e('s_mov_b32 exec_hi, -1')
        e('s_waitcnt vmcnt(%d)' % args.pfn)
        e('s_branch %s' % lc)
        a.label('L_nopf')
    e('s_waitcnt vmcnt(0)')
    if job == 2 and args.q2fb:
        e('s_mov_b32 s%d, -1' % sMode)
    spin_tail(lc)
    a.label(lok)
    if job < 2:
        rmode()


def late_setup():
    mk_srd(SV, 8, 2 * BATCH)
    mk_srd(SWS, 26, WS_SIZE)
    mk_srd(SDBG, 24, 256)
    smask(sMaskV, 0x3337333733373337)
    tail_soff(sTail, sT1)
    e('s_add_u32 s%d, s%d, s%d' % (sTail, sTail, sLds))
    if args.ilv:
        e('s_mul_i32 s%d, s%d, %d' % (sT1, sT0, args.ilv * 16384 - 4096))
        e('s_sub_u32 s%d, s%d, s%d' % (sTail, sTail, sT1))
    e('s_add_u32 s%d, s%d, %d' % (sTail, sTail, (126 if args.ilv else 18) * 16384))
    e('s_mul_i32 s%d, s%d, %d' % (sLds, sU, LVS))
    e('s_add_u32 s%d, s%d, %d' % (sLds, sLds, LVB))
    e('s_lshl_b32 s%d, s%d, 4' % (sEx, sU))
    e('v_add_u32 v%d, s%d, v%d' % (vLd, sLds, vVo))
    e('s_mul_i32 s%d, s%d, %d' % (sHA, sH, HEADA))
    if args.gateA >= 0 or args.gateB >= 0:
        if args.map == 1:
            e('s_lshl_b32 s%d, s%d, 8' % (sGate, sT0))
            e('s_lshl_b32 s%d, s%d, 2' % (sGo, sH))
        else:
            e('s_and_b32 s%d, s%d, 7' % (sGate, sH))
            e('s_lshl_b32 s%d, s%d, 8' % (sGate, sGate))
            e('s_lshr_b32 s%d, s%d, 3' % (sGo, sH))
            e('s_lshl2_add_u32 s%d, s%d, s%d' % (sGo, sT0, sGo))
            e('s_lshl_b32 s%d, s%d, 2' % (sGo, sGo))
        e('s_add_u32 s%d, s%d, 0x%x' % (sGate, sGate, GATEB))
        e('s_add_u32 s%d, s%d, s%d' % (sGo, sGo, sU))
        e('s_add_u32 s%d, s%d, s%d' % (sGo, sGo, sGate))
        e('v_mov_b32 v%d, 0' % vD)
        e('s_mov_b64 exec, 1')
        a.vmem('buffer_store_byte v%d, off, %s, s%d' % (vD, srd(SWS), sGo))
        a.vmem('buffer_store_byte v%d, off, %s, s%d offset:128' % (vD, srd(SWS), sGo))
        e('s_mov_b64 exec, -1')
    if args.msl:
        e('s_and_b32 s%d, s%d, 7' % (sGate, sH))
        e('s_lshl_b32 s%d, s%d, 8' % (sGate, sGate))
        e('s_add_u32 s%d, s%d, 0x%x' % (sGate, sGate, GATEB))
        e('s_lshr_b32 s%d, s%d, 3' % (sVote, sH))
        e('s_lshl2_add_u32 s%d, s%d, s%d' % (sVote, sT0, sVote))
        e('s_lshl3_add_u32 s%d, s%d, s%d' % (sVote, sVote, sGate))
        e('v_mov_b32 v%d, 0' % vD)
        e('v_mov_b32 v%d, 0' % (vD + 1))
        e('s_cmp_eq_u32 s%d, 1' % sU)
        e('s_cbranch_scc0 L_nz')
        e('s_mov_b64 exec, 1')
        e('buffer_store_dwordx2 %s, off, %s, s%d' % (vp(vD), srd(SWS), sVote))
        if args.gb:
            e('s_cmp_eq_u32 s%d, 0' % sT0)
            e('s_cbranch_scc0 L_nz1')
            e('s_bitcmp1_b32 s%d, 4' % sH)
            e('s_cselect_b32 s%d, 0, -1' % sRep)
            e('v_mov_b32 v%d, s%d' % (vD + 2, sRep))
            e('v_mov_b32 v%d, s%d' % (vD + 3, sRep))
            e('buffer_store_dwordx2 %s, off, %s, s%d offset:224' % (vp(vD + 2), srd(SWS), sVote))
            a.label('L_nz1')
        e('s_mov_b64 exec, -1')
        e('s_nop 1')
        a.label('L_nz')
        if args.gb:
            e('s_cmp_eq_u32 s%d, 1' % sU)
            e('s_cselect_b32 s%d, %d, 0' % (sRep, args.gbn))
            e('s_and_b32 s%d, s%d, 7' % (sGl, sH))
            e('s_lshl_b32 s%d, 1, s%d' % (sOwn, sGl))
            e('s_lshl_b32 s%d, s%d, 10' % (sGl, sGl))
            e('s_mov_b32 s%d, 0x%x' % (sGb, GBB))
            e('s_add_u32 s%d, s%d, s%d' % (sGl, sGl, sGb))
            e('s_lshr_b32 s%d, s%d, 3' % (sXb, sH))
            e('s_lshl2_add_u32 s%d, s%d, s%d' % (sXb, sXb, sU))
            e('s_lshl3_add_u32 s%d, s%d, s%d' % (sXb, sXb, sT0))
            e('s_cmp_eq_u32 s%d, %d' % (sXb, 2 * 8 + 1))
            e('s_cbranch_scc0 L_nz2')
            e('v_mov_b32 v%d, 0' % (vD + 2))
            e('v_mov_b32 v%d, 0' % (vD + 3))
            e('buffer_store_dwordx4 %s, v%d, %s, s%d offen sc1' % (vq(vD), vVo, srd(SWS), sGl))
            a.label('L_nz2')
    elif args.ms:
        e('s_lshr_b32 s%d, s%d, 3' % (sVote, sH))
        e('s_lshl2_add_u32 s%d, s%d, 1' % (sVote, sVote))
        e('s_xor_b32 s%d, s%d, s%d' % (sVote, sVote, sT0))
        e('s_xor_b32 s%d, s%d, 1' % (sMode, sU))
        e('s_or_b32 s%d, s%d, s%d' % (sMode, sMode, sVote))
        e('s_lshl3_add_u32 s%d, s%d, 128' % (sVote, sH))
        e('s_cmp_eq_u32 s%d, 0' % sMode)
        e('s_cselect_b32 s%d, s%d, -1' % (sVote, sVote))
    mk_qoff(vQo, 0, vD)
    e('s_lshl_b32 s%d, s%d, 9' % (sPub, sT0))
    e('s_add_u32 s%d, s%d, s%d' % (sPub, sPub, sHA))
    e('s_add_u32 s%d, s%d, %d' % (sPub, sPub, OFF_O))
    e('s_lshl_b32 s%d, s%d, 7' % (sStat, sT0))
    e('s_lshl3_add_u32 s%d, s%d, s%d' % (sStat, sU, sStat))
    e('s_add_u32 s%d, s%d, s%d' % (sStat, sStat, sHA))
    e('s_and_b32 s%d, s%d, 7' % (sH, sH))
    e('s_lshl_b32 s%d, s%d, 4' % (sH, sH))
    e('s_getreg_b32 s%d, hwreg(HW_REG_XCC_ID, 0, 4)' % sFo)
    e('s_or_b32 s%d, s%d, 0x80000000' % (sFo, sFo))
    mk_masks(vM, vD)
    mk_c(vC, 4, vD)
    e('v_lshlrev_b32 v%d, 3, v0' % vPo)


GW = 32 if args.map == 1 else 28


def gate_signal(k):
    e('v_mov_b32 v0, -1')
    e('s_mov_b64 exec, 1')
    a.vmem('buffer_store_byte v0, off, %s, s%d offset:%d' % (srd(SWS), sGo, k * 128))
    e('s_mov_b64 exec, -1')


def gate_wait(k, th):
    a.vmwait_all()
    if args.gone:
        e('s_cmp_lg_u32 s%d, 0' % sU)
        e('s_cbranch_scc1 L_gok%d' % k)
    e('s_mov_b32 s%d, 100' % sT1)
    e('v_lshrrev_b32 v%d, 2, v%d' % (vD + 1, vVo))
    e('s_mov_b64 exec, 0x%x' % ((1 << GW) - 1) if GW < 32 else 's_mov_b32 exec_hi, 0')
    a.label('L_gw%d' % k)
    e('buffer_load_dword v0, v%d, %s, s%d offen offset:%d sc1' % (vD + 1, srd(SWS), sGate, k * 128))
    e('s_waitcnt vmcnt(0)')
    e('v_cmp_eq_u32 vcc, -1, v0')
    e('s_bcnt1_i32_b32 s%d, vcc_lo' % sT0)
    e('s_cmp_ge_u32 s%d, %d' % (sT0, GW - th))
    e('s_cbranch_scc1 L_gok%d' % k)
    if args.gsleep:
        e('s_sleep %d' % args.gsleep)
    e('s_sub_u32 s%d, s%d, 1' % (sT1, sT1))
    e('s_cbranch_scc0 L_gw%d' % k)
    a.label('L_gok%d' % k)
    e('s_mov_b64 exec, -1')
    if args.gone:
        e('s_barrier')


def set_job(job):
    e('s_add_u32 s%d, s%d, 0x%x' % (sPubJ, sPub, (job >> 1) * 4096))
    e('s_add_u32 s%d, s%d, 0x%x' % (sStatJ, sStat, job * 32))
    e('s_mov_b32 s%d, %d' % (sTag, 2 - (job & 1)))


def o_fill(r, k):
    e('v_mov_b32 v%d, -1' % r)
    e('v_mov_b32 v%d, -1' % (r + 1))
    e('s_lshl3_add_u32 s%d, s%d, s%d' % (sT0, sEx, sPub))
    if k:
        e('s_add_u32 s%d, s%d, 4096' % (sT0, sT0))
    e('s_mov_b64 exec, 0xffff')
    store_sel('buffer_store_dwordx2 %s, v%d, %s, s%d offen' % (vp(r), vPo, srd(SWS), sT0), 'fill%d' % k, True)
    e('s_mov_b64 exec, -1')
    return len(a.vm) - 1


D_ = args.D
X = args.X
R = NR
XE = args.XE or X
assert X % 4 == 0 and X <= 72 and XE % 4 == 0 and XE <= X
st = {}

seqA = [('K', i) for i in range(NQ)] + [('V', i) for i in VORD]
QF = args.QF if not args.bwtest else 2 * NQ - 1
flag_ld = 'buffer_load_dwordx4 %s, off, %s, s%d sc1' % (vq(vD), srd(SDBG), sH)
for n, (kind, i) in enumerate(seqA):
    dest = KS[i] if kind == 'K' else vslot(i)
    LOC[(kind, 0, i)] = dest
    S.pace(args.DE if n >= 2 * NQ - args.NE else (args.DA or D_), *((args.Elo, args.DE) if n >= 2 * NQ - args.NE else (args.Dlo, args.Dhi)))
    LT[(kind, 0, i)] = S.issue(kind, 0, i, dest, polA)
    if n == D_ - 1:
        late_setup()
        stamp(vD, True)
    if args.bwtest:
        if n in (40, 72, 112):
            stamp(vD)
        if n == 2 * NQ - 1:
            a.vmwait_all()
            stamp(vD)
            for n2, (kind, i) in enumerate(seqA):
                S.pace(D_)
                S.issue(kind, 1, i, KS[i] if kind == 'K' else vslot(i), polB1 if n2 < args.B1n else polA)
                if n2 in (40, 72):
                    stamp(vD)
            a.vmwait_all()
            stamp(vD)
            ct_dump(vD)
            e('s_endpgm')
    if n == QF - (3 * D_ if not args.bwtest else 0):
        st['ftk'] = a.vmem(flag_ld)
    if n == QF - (D_ if not args.bwtest else 0):
        a.vmwait(st['ftk'])
        a.label('L_fc')
        e('v_min3_u32 v%d, v%d, v%d, v%d' % (vD + 4, vD, vD + 1, vD + 2))
        e('v_min_u32 v%d, v%d, v%d' % (vD + 4, vD + 4, vD + 3))
        e('v_cmp_eq_u32 vcc, 0, v%d' % (vD + 4))
        e('s_cbranch_vccz L_fok')
        e(flag_ld)
        e('s_waitcnt vmcnt(0)')
        spin_tail('L_fc')
        a.label('L_fok')
        e('v_max3_u32 v%d, v%d, v%d, v%d' % (vD + 5, vD, vD + 1, vD + 2))
        e('v_max_u32 v%d, v%d, v%d' % (vD + 5, vD + 5, vD + 3))
        e('v_xor_b32 v%d, s%d, v%d' % (vD + 4, sFo, vD + 4))
        e('v_xor_b32 v%d, s%d, v%d' % (vD + 5, sFo, vD + 5))
        e('v_or_b32 v%d, v%d, v%d' % (vD + 4, vD + 4, vD + 5))
        e('v_readfirstlane_b32 s%d, v%d' % (sFo, vD + 4))
        if args.nofast:
            e('s_mov_b32 s%d, 1' % sFo)
        e('s_cmp_eq_u32 s%d, 0' % sFo)
        e('s_cselect_b32 s%d, 0, 1024' % sT0)
        e('v_add_u32 v%d, s%d, v%d' % (vQo, sT0, vQo))
        st['qtk'] = a.vmem(q_load(0, vQL))
        st['filltk'] = o_fill(vD + 6, 0)
        rmode()
    if n == 2 * NQ - 1 - D_:
        assert not MS['pend']
        MS['ok'] = False
        st['q1tk'] = a.vmem(q_load(1, vQ1))
    if n == 2 * NQ - 1 - args.gateA:
        gate_signal(0)
    if n == QF:
        q_check(0, vQL, st['qtk'], vD)
        stamp(vD)
        item(lambda: build_bt(vBT, vQL), 24)
        add_k_items(0, PA, range(NQ))

        def sm():
            a.vmwait(st['filltk'])
            set_job(0)
            att_softmax(PA, 0, 1, '0')
        item(sm, 80)
        st['pub0'] = add_v_items(0, PA, RING[:4], '0')
    S.run_budget(args.budget)

def q1_start():
    q_check(1, vQ1, st['q1tk'], vD)
    if PARK:
        for r in range(0, 4, 2):
            e('v_mov_b64 %s, %s' % (vp(vBT + r), vp(vQ1 + r)))
    else:
        build_bt(vBT, vQ1)
    MS['ok'] = True
    MS['reg'] = vQL


def c_move(d, k0, k):
    return 'v_mov_b32_dpp v%%d, v%%d quad_perm:[%d,%d,%d,%d] %%s' % tuple(k0 if p == k else k0 ^ 1 for p in range(4)) % (d, vC, DPPF)


def add_k_lean(idxs):
    its = {}
    seen = set()
    for i in idxs:
        g, t = i >> 2, i & 3

        its[i] = item(lambda i=i: mfma(vq(vD), LOC[('K', 1, i)], vq(vBT), True), 4, [need('K', 1, i)])

        def fn(i=i, g=g, t=t):
            if st['ck'] != g & 3:
                e(c_move(vC, st['ck'], g & 3))
                st['ck'] = g & 3
            for r in range(4):
                op = 'v_mul_f32_dpp' if (g >> 2, t) not in seen and r == 0 else 'v_fmac_f32_dpp'
                e('%s v%d, v%d, v%d quad_perm:[%d,%d,%d,%d] row_mask:0xf bank_mask:0x%x' % (op, PB[g >> 2], vD + r, vC, r, r, r, r, 1 << t))
            seen.add((g >> 2, t))
        item(fn, 18)
    return its


st['ck'] = 0
item(q1_start, 24, [lambda: st['q1tk']])
seqB1 = [i for i in range(XE) if i not in PARK]
seqB1[args.park:args.park] = sorted(PARK)
assert args.park <= XE - 2 * R
kits = add_k_lean(seqB1[:-R]) if PARK else add_k_items(1, PB, range(XE - R))
ringbusy = {}
lds_done = False
if args.gateA >= 0:
    S.run_until(st['pub0'])
    gate_wait(0, args.thA)
CQ = [i for i in range(XE - R) if i not in PARK]
KEEP = {i: polB1 for i in CQ[:args.B1n]}
rn = 0
for n, i in enumerate(seqB1):
    if i in PARK:
        dest = vq(PARK[i])
    else:
        dest = RING[(rn + 4) % NR]
        rn += 1
    S.pace(args.DB0 if n < args.NB0 else D_, *((args.DB0, args.DB0h or args.DB0) if n < args.NB0 else (args.B1lo or args.Dlo, args.B1hi or args.Dhi)))
    S.run_budget(1 if PARK and MS['ok'] else args.budget)
    if dest in ringbusy:
        S.run_until(ringbusy.pop(dest))
    if n == 4:
        S.run_until(st_['tmp0'])
    if i in PARK:
        S.run_until(st['pub0'])
    if st['pub0'].get('done') and not st.get('p0n'):
        st['p0n'] = 1
        print('pub0 before B1 index', n)
    LOC[('K', 1, i)] = dest
    if n == args.QI:
        st['filltk'] = o_fill(base_of(dest), 1)
    LT[('K', 1, i)] = S.issue('K', 1, i, dest, KEEP.get(i, polB))
    if i in kits:
        ringbusy[dest] = kits[i]
    if n == XE - (args.q2p or D_) + 1:
        assert st['pub0'].get('done') and not MS['pend']
        MS['reg'] = None
        st['q2tk'] = a.vmem(q_load(2, vQL))
    S.run_budget(args.budget)
S.drain()
a.raw('M_j2:')
assert not MS['pend']
assert st['filltk'] < st['q2tk']
if PARK:
    for t in range(4):
        smask(sBM + 2 * t, 0x000F000F000F000F << (4 * t))
        smask(sMM + 2 * t, 0x0003000300030003 << (2 * t))
    e('s_mov_b32 s%d, 0xffff' % sMt)
q_check(2, vQL, st['q2tk'], vD)
stamp(vD)
set_job(2)
e('s_mov_b64 vcc, -1')


def bt_ops(t):
    return ['v_mov_b32_dpp v%d, v%d quad_perm:[0,1,2,3] row_mask:0xf bank_mask:0x%x' % (vBT + 4 * t + r, vQL + r, 1 << t) for r in range(4)]


def z64(r, n):
    return ['v_mov_b64 %s, 0' % vp(r + k) for k in range(0, n, 2)]


for k in range(args.p2d):
    e('v_mov_b32 v0, v0')
ct(0)
if PARK:
    def bt_full(t):
        return ['v_cndmask_b32 v%d, 0, v%d, %s' % (vBT + 4 * t + r, vQL + r, sp(sBM + 2 * t)) for r in range(4)]
    after = {4: bt_full(1), 1: bt_full(2), 5: bt_full(3),
             3: [c_move(vC + k, st['ck'], k) for k in (1, 2, 3, 0)] + ['v_lshl_add_u32 v%d, v%d, 1, s%d' % (vLd, vPo, sLds)],
             7: ['v_lshlrev_b32 v%d, 1, v%d' % (vVo, vPo), 'v_and_b32 v0, 16, v%d' % vVo, 'v_lshlrev_b32 v0, v0, s%d' % sMt] +
                ['v_cndmask_b32 v%d, 0, v0, %s' % (vM + k, sp(sMM + 2 * k)) for k in range(4)] + ['v_mov_b32 v0, 0xff800000']}
    for op in bt_full(0):
        e(op)
    for i in (0, 4, 1, 5, 2, 6, 3, 7):
        assert LT[('K', 1, i)] < a.vm_done
        mfma(vq(vD + 4 * (i >> 2)), KS[i], vq(vBT + 4 * (i & 3)), (i & 3) == 0)
        for k in range(4):
            e('v_accvgpr_write_b32 a%d, v%d' % (base_of(KS[i]) + k, PARK[i] + k))
        for op in after.get(i, []):
            e(op)
    e('s_branch L_p2b')
else:
    a.fence()
    for op in bt_ops(0) + bt_ops(1)[:2]:
        e(op)
    a.raw('    s_branch L_p2')
    a.hist = []

mainlines, a.lines = a.lines, []
q3ld = 'buffer_load_dwordx4 %s, v%d, %s, s%d offen sc1' % (vq(vQL), vQo, srd(SWS), sT0)
a.label('L_q3r')
e(q3ld)
e('s_sub_u32 s%d, s%d, 1' % (sBud, sBud))
e('s_cbranch_scc0 L_q3')
e('s_endpgm')
a.label('L_q3')
e('s_cmp_lg_u32 s%d, s%d' % (sU, sU))
e('s_waitcnt vmcnt(0)')
e('v_max3_u32 v%d, v%d, v%d, v%d' % (vD + 8, vQL, vQL + 1, vQL + 2))
e('v_max_u32 v%d, v%d, v%d' % (vD + 8, vD + 8, vQL + 3))
e('v_cmp_eq_u32 vcc, -1, v%d' % (vD + 8))
for op in bt_ops(0) + bt_ops(1)[:2]:
    e(op)
a.raw('    s_cbranch_vccnz L_q3r')
a.pos += 1
a.raw('@Q3OK')

a.raw('L_p2:')
seqB2 = [('K', i) for i in range(X, NQ - 1)] + [('V', i) for i in VORD]
seqB2.insert(NQ - 1 - X + args.K72, ('K', NQ - 1))
gx = X // 4
SC = 84
AB = [SC, SC + 4, SC + 8]
Oa, Ob, Oc, Od = SC + 12, SC + 16, SC + 20, SC + 24
PSn = [SC + 28 + k for k in range(5)]
nIdx, nM1, nL = SC + 33, SC + 34, SC + 35
sM1, sM2 = sT0, sT1
head = [gx, gx + 1, gx - 2, gx - 1] + list(range(gx + 2, 19))
blk1 = sorted({g >> 2 for g in head})
if len(blk1) < args.P2B1:
    blk1 = [0] + blk1
blk2 = [k for k in range(5) if k not in blk1]
g1 = head + [g for g in range(18) if g >> 2 in blk1 and g not in head]
g2 = [g for g in range(18) if g >> 2 in blk2]
gg = g1 + g2
if args.P2G:
    gg = [int(x) for x in args.P2G.split(',')]
if PARK:
    gg = [0, 1] + [g for g in gg if g > 1]
assert sorted(gg) == list(range(19))
QK = []
for t in range(4):
    QK += [(0, gg[0], t), (1, gg[1], t)]
for gi, g in enumerate(gg[2:]):
    QK += [(gi + 2, g, t) for t in range(4 if g < 18 else 1)]


def scored(ks):
    return not [x for x in QK if x[1] >> 2 in ks] and not [x for x in sq if x[2] in ks]


v1 = [g for g in g1 if g < 18]
v1.sort(key=lambda g: (4 * g < NLV, g >> 2 != 4, g))
v2 = sorted(g2, key=lambda g: (4 * g < NLV, g >> 2 != max(g2) >> 2, g))
vall = v1 + v2
PV = [('t',)] + [(vi, g, h) for vi, g in enumerate(vall) for h in range(2)]
n1 = 1 + 2 * len(v1)
NP2 = [int(x) for x in args.NP2.split(',')]
P2POS = [int(x) for x in args.P2POS.split(',')]
kfree = set()
reserved = set(range(X - 8, NQ)) | set(PARK)
ldq = [NLV] + [4 * g + k for g in vall for k in range(4) if 4 * g + k < NLV]
pref = {}
tempq = []


def p2_load():
    n = NP2.pop(0) if NP2 else 0
    todo = []
    while n > 0:
        kind, i = seqB2[len(todo)]
        if kind == 'K':
            if i not in kfree or i == NQ - 1:
                break
            dest = KS[i]
        else:
            dest = vslot(i)
            if i >= NLV or i not in pref:
                break
        todo.append((kind, i, dest))
        n -= 1
    if not todo:
        return
    sk = a.newlabel('L_sk')
    a.skip_begin(*(('s_cbranch_vccnz', sk + 'o') if args.P2OOL else ('s_cbranch_vccz', sk)))
    main, a.lines, lgd = a.lines, [], a.lg_done
    S.lastgrp = None
    for kind, i, dest in todo:
        seqB2.pop(0)
        if kind == 'V':
            a.lgwait(pref[i][1])
        S.pace(args.DP2 or D_)
        LOC[(kind, 1, i)] = dest
        LT[(kind, 1, i)] = S.issue(kind, 1, i, dest, polB)
    if args.P2OOL:
        RAW2.append([sk + 'o:'] + a.lines + ['    s_branch ' + sk])
    else:
        main.append('\n'.join(a.lines))
    a.lines, a.lg_done = main, lgd
    a.skip_end(sk)


def prefetch_one():
    v = ldq[0]
    if v == NLV:
        r = tempq.pop(0)
        tempq.pop(0)
    else:
        r = tempq.pop(0)
        assert (KS.index(r) & 1) == (v & 1)
    ldq.pop(0)
    if len(a.lg) - a.lg_done >= 14:
        a._lgwait_n(7)
    pref[v] = (r, a.lds('ds_read_b128 %s, v%d offset:%d' % (r, vLd, v * 1024)))


def can_ds():
    return ldq and len(tempq) > (1 if ldq[0] == NLV else 0)


def red63(op, r):
    return allreduce_list(op, r, None, (0, 1, 2, 3)) + \
        ['%s_dpp v%d, v%d, v%d row_bcast:15 row_mask:0xa bank_mask:0xf' % (op, r, r, r),
         '%s_dpp v%d, v%d, v%d row_bcast:31 row_mask:0xc bank_mask:0xf' % (op, r, r, r)]


def pexp(k, sm):
    p = PA[k]
    return ['v_subrev_f32 v%d, s%d, v%d' % (p, sm, p), 'v_exp_f32 v%d, v%d' % (p, p), 'v_cvt_pk_bf16_f32 v%d, 0, v%d' % (p, p),
            mirror(PSn[k], p), ('P', k)]


sq = []
cq = []
fq = bt_ops(1)[2:] + bt_ops(2) + bt_ops(3) + ['v_mov_b32 v0, 0xff800000']
aq = []
flags = set()
anext = [0]
adone = set()
vdone = set()
vpend = []
lgt = {}


def pop(q):
    x = q.pop(0)
    if callable(x):
        x()
    else:
        e(x)
    while q and isinstance(q[0], tuple):
        flags.add(q.pop(0))


def ok(q):
    if not q:
        return False
    if callable(q[0]):
        w = a.lines[-1].split()[0]
        return not w.startswith('v_') or w.startswith('v_smf')
    return a.needed(q[0]) == 0


def refill():
    while anext[0] < len(vall) and not aq:
        vi = anext[0]
        g = vall[vi]
        if ('P', g >> 2) not in flags or ('Z', AB[vi % 3]) not in flags or (vi >= 3 and vi - 3 not in vdone):
            return
        aq.extend(a_ops(AB[vi % 3], PA[g >> 2], PSn[g >> 2], g & 3) + [('A', vi)])
        anext[0] += 1


def slot(order, force=False):
    refill()
    for q in order:
        if q is sq:
            seen = set()
            for k, x in enumerate(sq):
                if x[2] not in seen and a.needed(x[1]) == 0:
                    e(sq.pop(k)[1])
                    return True
                seen.add(x[2])
        elif q == 0:
            a.nop(1)
            return True
        elif ok(q):
            pop(q)
            return True
    if force:
        for q in order:
            if q is sq and sq:
                e(sq.pop(0)[1])
                return True
            if q:
                pop(q)
                return True
        assert False
    return False


def pv_ready(x):
    if x[0] == 't':
        return ('T', 0) in flags
    if QK and x[2] == 0 and ('A', x[0] + 1) not in flags:
        return False
    return {('A', x[0]), ('Z', SC + 32), ('Z', Ob), ('Z', Oc), ('Z', Ob if x[0] < len(v1) else Od)} <= flags


def emit_pv(x):
    if x[0] == 't':
        a.lgwait(pref[NLV][1])
        mfma(vq(Oa), vq(Od), pref[NLV][0], True)
        fq.extend(z64(Od, 4) + [('Z', Od)])
        return
    vi, g, h = x
    i0 = 4 * g + 2 * h
    if i0 < NLV:
        src = pair(pref[i0][0], pref[i0 + 1][0])
        a.lgwait(pref[i0 + 1][1])
    else:
        src = pair(VSR[i0 - NLV], VSR[i0 + 1 - NLV])
    smf(((Oa, Ob) if vi < len(v1) else (Oc, Od))[h], AB[vi % 3], src, nIdx)
    if h:
        vpend.append(vi)


def chain1():
    o = [4] + [k for k in blk1 if k != 4][::-1]
    c = ['v_max3_f32 v%d, v%d, v%d, v%d' % ((nM1,) + tuple(PA[k] for k in (blk1 + blk1)[:3]))] + red63('v_max_f32', nM1)
    c += ['v_readlane_b32 s%d, v%d, 63' % (sM1, nM1)]
    c += pexp(o[0], sM1)
    cq.extend(c)
    f = tail_a(Od, PA[4], 2, vM, 0) + [('T', 0)] + pexp(o[1], sM1)
    f += ['v_add_f32 v%d, v%d, v%d' % (nL, PA[o[0]], PA[o[1]]), 'v_mov_b32 v%d, s%d' % (nM1, sM1)]
    if len(o) > 2:
        f += pexp(o[2], sM1) + ['v_add_f32 v%d, v%d, v%d' % (nL, nL, PA[o[2]])]
    cq.extend(f)


vF1, vR1, vC2, vT2 = 20, 22, 24, 25


def chain2():
    o = [v2[0] >> 2] + [k for k in blk2 if k != v2[0] >> 2]
    m, l = vMl, vMl + 1
    if len(o) > 2:
        c = ['v_max3_f32 v%d, v%d, v%d, v0' % (m, PA[blk2[1]], PA[blk2[2]])] + red63('v_max_f32', m)
    else:
        c = ['v_max3_f32 v%d, v%d, v%d, s%d' % (m, PA[o[0]], PA[o[1]], sM1)] + red63('v_max_f32', m)
    c += ['v_readlane_b32 s%d, v%d, 63' % (sM2, m)]
    c += pexp(o[0], sM2)

    def wr():
        while ('X', 0) not in flags:
            pop(fq)
        e('s_brev_b64 exec, 1')
        lgt['w'] = a.lds('ds_write_b32 v%d, v%d offset:%d' % (vT2, m, EXM))
        e('s_mov_b64 exec, -1')

    def bar():
        ct(4)
        a.lgwait(lgt['w'])
        e('s_barrier')
        ct(5)
        lgt['r'] = a.lds('ds_read_b32 v%d, v%d offset:%d' % (vC2, vC2, EXM))

    def stt():
        ct(6)
        e('s_brev_b64 exec, 1')
        store_sel('buffer_store_dwordx2 %s, off, %s, s%d' % (vp(m), srd(SWS), sStatJ), 'sp', True, True)
        e('s_mov_b64 exec, -1')
    n0 = len(c)
    c += [wr] + pexp(o[1], sM2)
    c += ['v_subrev_f32 v%d, s%d, v%d' % (vF1, sM2, nM1), 'v_add_f32 v%d, v%d, v%d' % (l, PA[o[0]], PA[o[1]]),
          'v_exp_f32 v%d, v%d' % (vF1, vF1), bar, 'v_fmac_f32 v%d, v%d, v%d' % (l, nL, vF1), 'v_min_u32 v%d, -2, v%d' % (m, m)]
    if len(o) > 2:
        c += pexp(o[2], sM2) + ['v_add_f32 v%d, v%d, v%d' % (l, l, PA[o[2]])]
    c += red63('v_add_f32', l) + ['v_min_u32 v%d, -2, v%d' % (l, l), lambda: a.lgwait(lgt['r'])]
    sb = allreduce_list('v_max_f32', vC2, None, (0, 1))
    c += [sb[0], stt, sb[1], 'v_sub_f32 v%d, s%d, v%d' % (vC2, sM2, vC2), 'v_exp_f32 v%d, v%d' % (vC2, vC2), ('W', 0)]
    cq.extend(c)
    lgt['rest'] = len(c) - n0
    fq[:0] = ['v_mov_b32 v%d, s%d' % (vT2, sEx), 'v_and_b32 v%d, 0x30, v%d' % (vC2, vVo), ('X', 0)]


def chain3():
    c = ['v_permlane32_swap_b32 v%d, v%d' % (Oa, Oa + 2), 'v_permlane32_swap_b32 v%d, v%d' % (Oa + 1, Oa + 3),
         'v_permlane32_swap_b32 v%d, v%d' % (Ob, Ob + 2), 'v_permlane32_swap_b32 v%d, v%d' % (Ob + 1, Ob + 3),
         'v_mul_f32 v%d, v%d, v%d' % (vF1, vF1, vC2),
         'v_pk_add_f32 %s, %s, %s' % (vp(vR1), vp(Oa), vp(Ob + 2)),
         'v_lshl_add_u32 v0, v%d, 5, v%d' % (vT2, vPo),
         'v_pk_mul_f32 %s, %s, %s op_sel_hi:[1,0]' % (vp(vR1), vp(vR1), vp(vF1))]
    cq.extend(c)


seen_reg = set()
tnew = None
ilast = None
nm = 0
p2start = len(a.lines)
npv = 0
lastm = None
st2 = 0
left1 = len(g1)
while QK or PV:
    refill()
    vd_ = list(vpend)
    del vpend[:]
    if tnew:
        tempq.append(tnew)
    tnew = None
    if QK and not (lastm == 'q' and npv < n1 - args.P2ND and pv_ready(PV[0])):
        gi, g, t = QK.pop(0)
        D = vD + 4 * (gi % 3)
        if t == 0:
            while [x for x in sq if x[0] <= gi - 3]:
                slot([sq, cq, aq, fq]) or slot([sq], True)
        while fq and isinstance(fq[0], str) and fq[0] in bt_ops(t):
            pop(fq)
        i = 4 * g + t
        if PARK and nm == 7:
            if a.lines[-1].split() == ['s_nop', '0']:
                a.lines.pop()
                a.pos -= 1
            a.raw('    s_cbranch_scc1 L_q3')
            a.pos += 1
        mfma(vq(D), KS[i], vq(vBT + 4 * t), t == 0)
        if PARK and nm == 7:
            assert not fq and len(sq) == 4 and not [x for x in a.lines[p2start:] if x.split()[0][:3] in ('ds_', 'buf')]
            a.raw('L_p2b:')
        lastm = 'q'
        mline, mpos = len(a.lines), a.pos
        kfree.add(i)
        if i not in reserved:
            tnew = KS[i]
        if t == 3 or g == 18:
            sq.extend((gi, op, g >> 2) for op in score_ops(PA, g, D, vC, (g >> 2) not in seen_reg))
            seen_reg.add(g >> 2)
            if g >= 16 and not [x for x in QK if x[1] >= 16]:
                sq.append((gi, 'v_cndmask_b32 v%d, v0, v%d, %s' % (PA[4], PA[4], sp(sMaskV)), 4))
        if ilast is not None and KS[ilast][0] == 'v':
            b = base_of(KS[ilast])
            if b in AB:
                fq.extend(z64(b, 4) + [('Z', b)])
            if b in (Ob, Oc):
                fq.extend(z64(b, 4) + [('Z', b)])
            if b == SC + 32:
                fq.extend(idx_ops(nIdx, vVo) + [('Z', b)])
        ilast = i
        order = [[sq, cq, aq, fq]] * 2
    else:
        while not pv_ready(PV[0]):
            vdone.update(vd_)
            slot([aq, sq, cq, fq]) or slot([sq, cq, aq, fq], True)
            if st2 == 1 and not QK and not sq:
                chain2()
                st2 = 2
        emit_pv(PV.pop(0))
        npv += 1
        lastm = 'p'
        for k in range(2 if npv % 2 and args.P2DS2 else 1):
            if can_ds():
                prefetch_one()
        order = [[aq, sq, cq, fq]] if QK else [[sq, cq, fq], [aq], [aq], [sq, cq, fq]]
        if not QK and ('A', len(v1)) not in flags:
            crit = len(sq) + (12 if st2 < 2 else len(cq) - lgt['rest']) + 2
            hurry = crit > n1 - npv + args.P2H
            order = [[sq, cq], [aq, fq, 0], [aq, fq, 0] if hurry else [aq, fq]] + ([[sq, cq]] if hurry else [])
        elif st2 == 3:
            order = [[cq]]
        elif not QK and PV and ('A', PV[0][0] + 1) not in flags and PV[0][2] == 1:
            order = [[aq], [aq], [aq], [sq, cq, fq]]
    vdone.update(vd_)
    nm += 1
    if nm in P2POS:
        p2_load()
    dsd = False
    if lastm == 'q' and can_ds() and (ldq[0] == NLV or len(ldq) > args.P2DSL + len(QK)):
        prefetch_one()
        dsd = True
        order = order[:1]
    for k, o in enumerate(order):
        if lastm == 'q' and k == 1 and ('v_exp' in a.lines[-1] or nm in P2POS):
            break
        if not slot(o) and lastm == 'q':
            if can_ds() and not dsd and len(a.lg) - a.lg_done < 14:
                prefetch_one()
                dsd = True
                if k == 1:
                    a.lines.insert(mline, a.lines.pop())
                    for p in a.hist:
                        if p.pos >= mpos:
                            p.pos = mpos if p.kind == 'ds' else p.pos + 1
            elif can_ds() and not dsd:
                a._lgwait_n(7)
            elif sq or cq:
                a.nop(1)
        if st2 == 0 and scored(blk1):
            chain1()
            st2 = 1
            print('chain1 at', nm)
        if st2 == 1 and len(blk2) > 2 and 'f' not in flags and ('T', 0) in flags and scored(blk2[:1]):
            flags.add('f')
            cq.append('v_max_f32 v0, s%d, v%d' % (sM1, PA[blk2[0]]))
        if st2 == 1 and not QK and not sq:
            assert len(blk2) == 2 or 'f' in flags
            chain2()
            st2 = 2
            print('chain2 at', nm, 'pv done', npv, 'cq', len(cq))
        if st2 == 2 and ('W', 0) in flags and npv >= n1 + 2 and anext[0] == len(vall) and not aq:
            chain3()
            st2 = 3
            print('chain3 at', nm)
    if nm == 8:
        ct(1)
    if not QK and 'q' not in flags:
        flags.add('q')
        ct(2)
    if npv == n1 and lastm == 'p':
        ct(3)
assert st2 == 3 and not ldq and not sq and not aq and not fq
ct(7)
e('s_cmp_lg_u32 s%d, 0' % sU)
while cq:
    pop(cq)
merge(Oc, Od)
e('v_pk_fma_f32 %s, %s, %s, %s op_sel_hi:[1,0,1]' % (vp(Oc), vp(Oc), vp(vC2), vp(vR1)))
wg_publish(Oc, None, 0, vPo, EXO, vD, sPubJ, 'op', 'L_npp')
ct(8)


def cost(lines):
    tot, segs, cur = 0, [], None
    for ln in lines:
        w = ln.split()
        if w[0].endswith(':'):
            continue
        if w[0].startswith('v_mfma') or w[0].startswith('v_smf'):
            cur = [w[0][2], []]
            segs.append(cur)
        else:
            cur[1].append(w)
    out = []
    for kind, ws in segs:
        u, lead, seenv, pv = 0, 0, False, False
        for w in ws:
            isv = w[0].startswith('v_')
            n = int(w[1]) + 1 if w[0] == 's_nop' else 2 if w[0] == 'v_exp_f32' else 1
            if w[0].startswith('ds_') and pv:
                n += 2
            if kind == 's' and not isv and not seenv:
                lead += n
            else:
                u += n
            seenv |= isv
            pv = isv
        c = max(17, 9 + 4 * u) if kind == 'm' else max(17, 13 + 4 * (u + max(0, lead - 2)))
        out.append(c)
    return out


cc = cost(a.lines[p2start:])
print('P2 model', sum(cc[:-1]), ''.join(str(min(9, (c - 17) // 4)) for c in cc))
stamp(vD)
e('s_cbranch_vccnz L_p2ret')
ct_dump(vD)
e('s_endpgm')
for blk in RAW2:
    for ln in blk:
        a.raw(ln)
p2lines, a.lines = a.lines, mainlines
if args.lay:
    lb = a.lines.pop().split()[1]
    k = p2lines.index(lb + ':')
    a.lines += p2lines[k:]
    if PARK:
        assert p2lines[k + 1].split() == ['s_nop', '0']
        a.lines.pop(a.lines.index(lb + ':') + 1)
    p2lines = p2lines[:k] + ['    s_branch ' + lb]
a.label('L_p2ret')
S.lastgrp = None
MS['reg'] = PA[4]
rmode()

st['q1r'] = a.vmem(q_load(1, vQL))
item(lambda: build_bt(vBT, vQL), 24, [lambda: st['q1r']])
seqB2 = [('K', i) for i in range(XE, X)] + seqB2
for i in range(XE - R, NQ):
    add_k_items(1, PB, [i])
    if i < XE:
        def mv(i=i):
            src = base_of(LOC[('K', 1, i)])
            d = KS[i]
            for k in range(4):
                if d[0] == 'a':
                    e('v_accvgpr_write_b32 a%d, v%d' % (base_of(d) + k, src + k))
                else:
                    e('v_mov_b32 v%d, v%d' % (base_of(d) + k, src + k))
        item(mv, 4)


def sm1():
    set_job(1)
    att_softmax(PB, 0, 1, '1')


item(sm1, 80)
pub1 = add_v_items(1, PB, RING[:4], '1')
seqC = [('K', i) for i in CQ]
if args.Cf0 is not None:
    fa, ca = seqC[args.B1n:], seqC[args.Cf0:args.B1n]
    seqC = seqC[:args.Cf0]
    for k, x in enumerate(fa):
        seqC.append(x)
        if k >= args.Cx0:
            k -= args.Cx0
            for j in range((k + 1) * args.Cx // (len(fa) - args.Cx0) - k * args.Cx // (len(fa) - args.Cx0)):
                seqC.append(ca.pop(0))
    seqC += ca
    farn = []
if args.cskip:
    seqC = seqC[:-args.cskip]
early, seqC = seqC[:args.Ce], seqC[args.Ce:]
args.NC1 = max(0, args.NC1 - args.Ce)
nB2 = len(seqB2)
for n, (kind, i) in enumerate(seqB2 + seqC):
    assert n < nB2 or not early
    dest = KS[i] if kind == 'K' else vslot(i)
    if n < nB2:
        S.pace((args.DEB or args.DE) if n >= nB2 - (args.NEB or args.NE) else D_,
               *((args.B3lo or args.Elo, args.DEB or args.DE) if n >= nB2 - (args.NEB or args.NE) else (args.B2lo or args.Dlo, args.B2hi or args.Dhi)))
    else:
        if n == nB2 and args.gateB >= 0:
            S.drain()
            gate_wait(1, args.thB)
        dc = args.DC0 if n < nB2 + args.NC0 else args.DC if n < nB2 + args.NC1 else args.DC1
        if args.Cf0 is not None:
            dc = args.DC0 if n < nB2 + args.NC0 else args.DC if i in KEEP else args.DC1
            if i not in KEEP:
                if args.Cx:
                    dc = n - farn[-args.DC1] if len(farn) >= args.DC1 else args.DC
                farn.append(n)
        if args.w0 and pub1.get('done') and n < nB2 + args.NC0:
            if not pub1.get('w0'):
                pub1['w0'] = 1
                e('s_cmp_lg_u32 s%d, 0' % sU)
                e('s_cselect_b64 vcc, -1, 0')
            S.pace(dc, dc, args.DC)
        elif args.Cf0 is not None:
            S.pace(dc, dc, (args.DC0h or dc) if n < nB2 + args.NC0 and pub1.get('done') else (args.DC1h or dc) if i not in KEEP else dc)
        else:
            S.pace(dc, (args.DCl or dc) if dc == args.DC else dc, (args.DC1h or dc) if n >= nB2 + args.NC1 else dc)
        S.run_budget(args.budget)
    key = (kind, 1, i)
    tk = S.issue(kind, 1, i, dest, polB if n < nB2 else polC if args.polCf is None or n < nB2 + args.NC1 else args.polCf)
    if key not in LT:
        LOC[key] = dest
        LT[key] = tk
    if n >= args.Cs and (n - args.Cs) % args.Cp == 0:
        for x in early[:args.Cc]:
            S.issue('K', 1, x[1], KS[x[1]], polC)
            if not args.Cn:
                S.tok.pop()
        early = early[args.Cc:]
    if n == nB2 - 1 - args.gateB and args.gateB >= 0:
        gate_signal(1)
    S.run_budget(args.budget)
S.drain()
assert not MS['pend'] and not MS['list']
stamp(vD)
set_job(3)
assert q_load(3, vQL) == q3ld
e(q3ld)
for op in z64(vBT, 16):
    e(op)
if PARK and args.warm:
    e('s_cmp_eq_u32 s%d, s%d' % (sU, sU))
    e('s_branch L_p2')
else:
    e('s_branch L_q3')
mainlines, a.lines = a.lines, []
if args.ts:
    stamp(vD)
    ct(0)
    if not args.quiet:
        a.nop(5)
k = p2lines.index('@Q3OK')
a.lines = mainlines + p2lines[:k] + a.lines + p2lines[k + 1:]

for k in range(args.sh):
    a.raw('    s_endpgm')
a.label('L_service')
if args.bwtest == 1:
    e('s_endpgm')
a.reset_counters()
vL16, vL8, vSI, vOg, vSt, vXo, vEw, vQr, vFr, vFr2, vWw, vWr, vSw = 1, 2, 3, 4, 5, 6, 7, 8, 9, 10, 11, 12, 13
vX0 = 14
vA = 16
vT = 28
vLA = 32
vAc = 96
vX, vX1, vCq, vCf = 112, 114, 116, 118
vMi = 120
TILES = ['a[%d:%d]' % (4 * i, 4 * i + 3) for i in range(64)] + ['v[%d:%d]' % (128 + 4 * i, 131 + 4 * i) for i in range(32)]
TQ, TO, TG = TILES[0:32], TILES[32:64], TILES[64:96]
E1, EO, EOM, E2, E2S, E3, E3S, EQ, EKV, EDN = 0, 2048, 4096, 8192, 10240, 12288, 14336, 15360, 20480, 65536
wpol = args.wpol
t0, t1 = vLA, vLA + 1
vRs, vAd = vLA + 2, vLA + 3

e('v_lshlrev_b32 v%d, 4, v0' % vL16)
if args.x4:
    e('v_and_b32 v%d, 0xf0, v%d' % (vXo, vL16))
    e('v_lshrrev_b32 v%d, 5, v0' % t0)
    e('v_lshl_or_b32 v%d, v%d, 2, v%d' % (vXo, t0, vXo))
    e('v_lshlrev_b32 v%d, 2, v%d' % (vRs, t0))
    e('v_bfe_u32 v%d, v0, 4, 1' % t0)
    e('v_lshl_or_b32 v%d, v%d, 3, v%d' % (vXo, t0, vXo))
    e('v_lshl_or_b32 v%d, v%d, 5, v%d' % (vRs, t0, vRs))
    e('s_lshl_b32 s%d, s%d, 8' % (sT0, sU))
    e('v_add_u32 v%d, s%d, v%d' % (vXo, sT0, vXo))
else:
    e('v_and_b32 v%d, 7, v0' % t0)
    e('v_lshlrev_b32 v%d, 5, v%d' % (vXo, t0))
    e('v_lshrrev_b32 v%d, 5, v0' % t0)
    e('v_lshl_or_b32 v%d, v%d, 4, v%d' % (vXo, t0, vXo))
    e('v_bfe_u32 v%d, v0, 3, 1' % t0)
    e('v_lshl_or_b32 v%d, v%d, 3, v%d' % (vXo, t0, vXo))
    e('v_bfe_u32 v%d, v0, 4, 1' % t0)
    e('v_lshl_or_b32 v%d, v%d, 2, v%d' % (vXo, t0, vXo))
    e('s_lshl_b32 s%d, s%d, 8' % (sT0, sU))
    e('v_add_u32 v%d, s%d, v%d' % (vXo, sT0, vXo))
    e('v_lshlrev_b32 v%d, 6, v%d' % (vRs, t0))
    e('v_lshrrev_b32 v%d, 5, v0' % t0)
    e('v_lshl_or_b32 v%d, v%d, 1, v%d' % (vRs, t0, vRs))
e('v_and_b32 v%d, 0xf0, v%d' % (t1, vL16))
e('v_lshl_or_b32 v%d, v%d, 13, v%d' % (vAd, vRs, t1))
e('s_lshl_b32 s%d, s%d, 20' % (sT0, sU))
e('s_lshl_b32 s%d, s2, 8' % sT1)
e('s_add_u32 s%d, s%d, s%d' % (sT0, sT0, sT1))
e('s_waitcnt lgkmcnt(0)')
mk_srd(SWQ, 10, 512 * 8192)
mk_srd(SX, 4, 2048)


def gtile(n):
    tau, pi, r, k = n & 1, (n >> 1) & 1, (n >> 2) & 3, n >> 4
    return 16 * r + 8 * tau + 4 * pi + k


def xtile(n):
    tau, pi, r, k = n & 1, (n >> 1) & 1, (n >> 2) & 3, n >> 4
    return 8 * r + 64 * pi + 2 * tau + k if args.x4 else gtile(n)


if 'c' in args.skip:
    e('v_mov_b32 v%d, v%d' % (vAd, vL16))
    e('s_lshl_b32 s%d, s2, 17' % sT0)
    e('s_lshl_b32 s%d, s%d, 12' % (sT1, sU))
    e('s_add_u32 s%d, s%d, s%d' % (sT0, sT0, sT1))
if 'k' in args.skip:
    e('v_mov_b32 v%d, v%d' % (vAd, vL16))
    e('s_lshr_b32 s%d, s2, 3' % sT0)
    e('s_lshl_b32 s%d, s%d, 20' % (sT0, sT0))
    e('s_lshl_b32 s%d, s%d, 18' % (sT1, sU))
    e('s_add_u32 s%d, s%d, s%d' % (sT0, sT0, sT1))
    e('s_and_b32 s%d, s2, 7' % sT1)
    e('s_lshl_b32 s%d, s%d, 10' % (sT1, sT1))
    e('s_add_u32 s%d, s%d, s%d' % (sT0, sT0, sT1))
def fills():
    mk_srd(SWS, 26, WS_SIZE)
    e('v_lshlrev_b32 v%d, 3, v0' % vL8)
    e('s_mul_i32 s%d, s2, %d' % (sHA, HEADA))
    for k in range(4):
        e('v_mov_b32 v%d, -1' % (vT + k))
    e('s_lshl_b32 s%d, s%d, 8' % (sG0, sU))
    e('s_add_u32 s%d, s%d, s%d' % (sG0, sG0, sHA))
    e('s_mov_b64 exec, 0xffff')
    a.vmem('buffer_store_dwordx4 %s, v%d, %s, s%d offen %s' % (vq(vT), vL16, srd(SWS), sG0, sc('B')))
    a.vmem('buffer_store_dwordx4 %s, v%d, %s, s%d offen offset:1024' % (vq(vT), vL16, srd(SWS), sG0))
    a.vmem('buffer_store_dwordx4 %s, v%d, %s, s%d offen offset:2048 %s' % (vq(vT), vL16, srd(SWS), sG0, sc('C')))
    e('s_mov_b64 exec, -1')
    if not (args.zo and args.yb):
        e('s_and_b32 s%d, s2, 16' % sHS)
        e('s_add_u32 s%d, s%d, s2' % (sHS, sHS))
        e('s_lshl_b32 s%d, s%d, 9' % (sHS, sHS))
        e('s_lshl_b32 s%d, s%d, 15' % (sG0, sU))
        e('s_add_u32 s%d, s%d, s%d' % (sG0, sG0, sHS))
        e('v_lshrrev_b32 v%d, 5, v0' % t0)
        e('v_mul_u32_u24 v%d, %d, v%d' % (t0, 8192 - 512, t0))
        e('v_add_u32 v%d, v%d, v%d' % (t0, t0, vL16))
        e('s_add_u32 s%d, s%d, 0x%x' % (sT1, sG0, YB))
    if args.nofyz < 5 and not args.yb:
        a.vmem('buffer_store_dwordx4 %s, v%d, %s, s%d offen %s' % (vq(vT), t0, srd(SWS), sT1, args.fpol))
    for k in range(4 if args.zo else 2 if args.zb else 0, 4 + args.xfill - min(4, args.nofyz)):
        e('s_add_u32 s%d, s%d, 0x%x' % (sT1, sG0, ZB + k * 131072))
        a.vmem('buffer_store_dwordx4 %s, v%d, %s, s%d offen %s' % (vq(vT), t0, srd(SWS), sT1, args.fpol))
    if args.zb:
        assert args.zl == 2
        e('v_and_b32 v%d, 0xf0, v%d' % (t0, vL16))
        e('v_bfe_u32 v%d, v0, 4, 1' % t1)
        e('v_lshl_or_b32 v%d, v%d, 13, v%d' % (t0, t1, t0))
        e('v_lshrrev_b32 v%d, 5, v0' % t1)
        e('v_lshl_or_b32 v%d, v%d, 17, v%d' % (t0, t1, t0))
        e('s_lshl_b32 s%d, s%d, 7' % (sT1, sU))
        e('s_add_u32 s%d, s%d, s2' % (sT1, sT1))
        e('s_lshl_b32 s%d, s%d, 8' % (sT1, sT1))
        e('s_add_u32 s%d, s%d, 0x%x' % (sT1, sT1, ZB))
        if args.z28:
            e('s_cmp_lt_u32 s2, 28')
            e('s_cselect_b32 exec_lo, -1, 0xff')
            e('s_cselect_b32 exec_hi, -1, 0xff')
        a.vmem('buffer_store_dwordx4 %s, v%d, %s, s%d offen %s' % (vq(vT), t0, srd(SWS), sT1, args.fpol))
    if args.zo:
        e('s_add_u32 s%d, s%d, 0x%x' % (sG0, sT1, 2 * 131072))
        a.vmem('buffer_store_dwordx4 %s, v%d, %s, s%d offen %s' % (vq(vT), t0, srd(SWS), sG0, args.fpol))
        if args.z28:
            e('s_mov_b64 exec, -1')
    if args.yb:
        e('s_sub_u32 s%d, s%d, 0x%x' % (sT1, sT1, ZB - YB))
        e('s_mov_b32 exec_hi, 0')
        a.vmem('buffer_store_dwordx4 %s, v%d, %s, s%d offen %s' % (vq(vT), t0, srd(SWS), sT1, args.fpol))
        e('s_mov_b32 exec_hi, -1')


for n in range(32):
    if n == args.ffirst:
        fills()
    e('s_add_u32 s%d, s%d, 0x%x' % (sT1, sT0, (n >> 2) * 16384 + (n & 3) * 1024 if 'c' in args.skip else n * 8192 if 'k' in args.skip else xtile(n) * 8192))
    if 't' in args.skip and n >= 8:
        e('s_waitcnt vmcnt(7)')
    wqtk = a.vmem('buffer_load_dwordx4 %s, v%d, %s, s%d offen %s' % (TQ[n], vAd, srd(SWQ), sT1, wpol))
a.vmem('buffer_load_dword v%d, v%d, %s, 0 offen' % (vX0, vXo, srd(SX)))
wqtk = a.vmem('buffer_load_dword v%d, v%d, %s, 0 offen offset:1024' % (vX1, vXo, srd(SX)))
if args.ffirst >= 32:
    fills()
mk_srd(SK, 6, 2 * BATCH)
mk_srd(SV, 8, 2 * BATCH)
mk_srd(SDBG, 24, 256)
mk_srd(SWO, 12, 4096 * 1024)
mk_srd(SGA, 16, 512 * 3584)
mk_srd(SUP, 18, 512 * 3584)
mk_srd(SDN, 20, 1792 * 1024)
mk_srd(SOUT, 22, 2048)
smask(sMaskJ8, 0x00FF00FF00FF00FF)
smask(sMaskV, 0x0001000100010001)
mk_koff(t0, 0, t1)
e('v_and_b32 v%d, 0x300, v%d' % (t1, vL16))
e('v_add_u32 v%d, v%d, v%d' % (t1, t1, vL16))
tail_soff(sT0, sT1)
e('s_lshl_b32 s%d, s2, 21' % sT1)
e('s_add_u32 s%d, s%d, s%d' % (sT0, sT0, sT1))
e('s_lshl_b32 s%d, s%d, 12' % (sKV, sU))
e('s_add_u32 s%d, s%d, %d' % (sKV, sKV, EKV))
for b in range(2):
    e('s_add_u32 s%d, s%d, 0x%x' % (sT1, sT0, 7 * PARTB + b * BATCH))
    for kv in range(2):
        e('s_add_u32 m0, s%d, 0x%x' % (sKV, (b * 2 + kv) * 1024))
        a.vmem('buffer_load_dwordx4 v%d, %s, s%d offen %s lds' % ((t0, t1)[kv], srd((SK, SV)[kv]), sT1, wpol))
for op in idx_ops(vSI, vL16):
    e(op)
for k in range(12):
    e('v_mov_b32 v%d, 0' % (vA + k))
e('v_and_b32 v%d, 0x18, v%d' % (vSt, vL8))
e('v_bfe_u32 v%d, v0, 2, 2' % t0)
e('v_lshl_or_b32 v%d, v%d, 8, v%d' % (vSt, t0, vSt))
e('v_lshrrev_b32 v%d, 5, v0' % t0)
e('v_lshl_or_b32 v%d, v%d, 7, v%d' % (vSt, t0, vSt))
e('v_lshlrev_b32 v%d, 9, v0' % vOg)
e('s_lshl_b32 s%d, s%d, 9' % (sT0, sU))
e('v_add_u32 v%d, s%d, v%d' % (vEw, sT0, vL8))
e('s_and_b32 s%d, s2, 7' % sT0)
e('s_lshl3_add_u32 s%d, s%d, s%d' % (sG3, sU, sT0))
e('s_mul_i32 s%d, s%d, %d' % (sHU, sG3, HEADA))
if args.x4:
    e('s_lshl_b32 s%d, s%d, 3' % (sT0, sU))
    e('s_lshl_b64 %s, 0xff, s%d' % (sp(sQm), sT0))
e('s_lshl_b32 s%d, s%d, 4' % (sT0, sU))
if args.yb:
    e('s_bitcmp1_b32 s%d, 0' % sU)
    e('s_cselect_b32 s%d, 0, -1' % sQm)
    e('s_cselect_b32 s%d, -1, 0' % (sQm + 1))
elif not args.x4:
    e('s_lshl_b64 %s, 0xffff, s%d' % (sp(sQm), sT0))
e('v_lshrrev_b32 v%d, 4, v0' % vSw)
e('v_lshlrev_b32 v%d, 2, v%d' % (vSw, vSw))
e('v_add_u32 v%d, s%d, v%d' % (vSw, sT0, vSw))
e('v_and_b32 v%d, 0x30, v%d' % (vWr, vL16))
e('s_lshl_b32 s%d, s%d, 14' % (sT0, sU))
e('s_add_u32 s%d, s%d, %d' % (sT0, sT0, EDN))
e('v_add_u32 v%d, s%d, v%d' % (vWw, sT0, vL16))
e('v_lshrrev_b32 v%d, 2, v0' % t0)
e('v_lshlrev_b32 v%d, 3, v%d' % (vQr, t0))
e('v_and_b32 v%d, 1, v0' % t0)
e('v_lshl_or_b32 v%d, v%d, 8, v%d' % (vQr, t0, vQr))
e('v_bfe_u32 v%d, v0, 1, 1' % t0)
e('v_lshl_or_b32 v%d, v%d, 7, v%d' % (vQr, t0, vQr))
e('v_and_b32 v%d, 15, v0' % t0)
e('v_lshlrev_b32 v%d, 2, v%d' % (t0, t0))
e('v_lshrrev_b32 v%d, 4, v0' % t1)
e('v_lshl_or_b32 v%d, v%d, 7, v%d' % (t0, t1, t0))
e('v_add_u32 v%d, %d, v%d' % (vFr, E2, t0))
e('v_add_u32 v%d, %d, v%d' % (vFr2, E2 + 1024, t0))
e('s_lshl_b32 s%d, s%d, 8' % (sQa, sU))
e('s_add_u32 s%d, s%d, %d' % (sQa, sQa, EQ))
e('v_mov_b32 v%d, 1.0' % vX)
e('v_mov_b32 v%d, 1.0' % (vX + 1))
for k in range(8):
    e('v_mov_b32 v%d, 0' % (vAc + k))
e('v_and_b32 v%d, 0xf0, v%d' % (t0, vL16))
if args.x4:
    e('v_bfe_u32 v%d, v0, 4, 1' % t1)
    e('v_lshl_or_b32 v%d, v%d, 16, v%d' % (t0, t1, t0))
    e('v_lshrrev_b32 v%d, 5, v0' % t1)
    e('v_lshl_or_b32 v%d, v%d, 11, v%d' % (vAd, t1, t0))
else:
    e('v_lshl_or_b32 v%d, v%d, 10, v%d' % (vAd, vRs, t0))
e('s_lshl_b32 s%d, s%d, 17' % (sG3, sG3))
e('s_lshr_b32 s%d, s2, 3' % sT0)
e('s_lshl_b32 s%d, s%d, 8' % (sT0, sT0))
e('s_add_u32 s%d, s%d, s%d' % (sG3, sG3, sT0))


def wo_loads(lst):
    for it_ in lst:
        if it_ >= 8:
            continue
        for n in range(4 * it_, 4 * it_ + 4):
            e('s_add_u32 s%d, s%d, 0x%x' % (sT1, sG3, gtile(n) * 1024))
            a.vmem('buffer_load_dwordx4 %s, v%d, %s, s%d offen %s' % (TO[n], vAd, srd(SWO), sT1, wpol))


W0 = args.wo0
wo_loads(range(W0))
stamp(vT, True)
sq_(0)
a.vmwait(wqtk)
sq_(1)
stamp(vT)
wo_loads(range(W0, W0 + 2))
e('v_and_b32 v%d, 0xffff0000, v%d' % (vX0 + 1, vX0))
e('v_lshlrev_b32 v%d, 16, v%d' % (vX0, vX0))
e('v_and_b32 v%d, 0xffff0000, v%d' % (vX1 + 1, vX1))
e('v_lshlrev_b32 v%d, 16, v%d' % (vX1, vX1))
e('v_mul_u32_u24 v%d, 3584, v%d' % (vRs, vRs))
e('v_and_b32 v%d, 0x70, v%d' % (t1, vL16))
e('v_add_u32 v%d, v%d, v%d' % (vRs, t1, vRs))
e('s_mul_i32 s%d, s%d, %d' % (sG2, sU, 128 * 3584))
e('s_lshl_b32 s%d, s2, 7' % sT1)
e('s_add_u32 s%d, s%d, s%d' % (sG2, sG2, sT1))
e('s_cmp_ge_u32 s2, 28')
e('s_cselect_b32 s%d, 0x40000000, s%d' % (sG2, sG2))
e('s_mov_b32 s%d, 0' % sRet)
e('s_branch L_qstage')


def setx(src):
    e('v_mov_b32 v%d, v%d' % (vX, src))
    e('v_mov_b32 v%d, v%d' % (vX + 1, src + 1))


def zero_acc(lo, n):
    for k in range(n):
        e('v_mov_b32 v%d, 0' % (vAc + lo + k))


def bound(n):
    a.reset_counters()
    e('s_waitcnt vmcnt(%d)' % n)
    a.vm = list(range(n))


def gu_loads(lst):
    e('s_not_b64 %s, %s' % (sp(sMt), sp(sMaskJ8)))
    for n in lst:
        e('s_add_u32 s%d, s%d, 0x%x' % (sT1, sG2, xtile(n) * 3584))
        e('s_mov_b64 exec, %s' % sp(sMaskJ8))
        a.vmem('buffer_load_dwordx4 %s, v%d, %s, s%d offen %s' % (TG[n], vRs, srd(SGA), sT1, wpol))
        e('s_mov_b64 exec, %s' % sp(sMt))
        a.vmem('buffer_load_dwordx4 %s, v%d, %s, s%d offen %s' % (TG[n], vRs, srd(SUP), sT1, wpol))
    e('s_mov_b64 exec, -1')


a.label('L_csq')
e('v_mov_b32 v%d, v%d' % (vCq, vAc))
e('v_mov_b32 v%d, v%d' % (vCq + 1, vAc + 1))
zero_acc(0, 8)
setx(vX0)
e('s_getreg_b32 s%d, hwreg(HW_REG_XCC_ID, 0, 4)' % sFast)
e('s_or_b32 s%d, s%d, 0x80000000' % (sT0, sFast))
e('v_mov_b32 v%d, s%d' % (vMi + 7, sT0))
e('s_and_b32 s%d, s2, 7' % sT0)
e('s_lshr_b32 s%d, s2, 3' % sT1)
e('s_lshl2_add_u32 s%d, s%d, s%d' % (sT0, sT0, sT1))
e('s_lshl_b32 s%d, s%d, 2' % (sT0, sT0))
bound(8 + 4 * W0)
wo_loads(range(W0 + 2, W0 + 4))
e('s_mov_b32 s%d, 0' % sJA)
e('s_mov_b32 s%d, 1' % sRet)
e('s_barrier')
e('s_cmp_lg_u32 s%d, 0' % sU)
e('s_cbranch_scc1 L_qstage')
e('s_mov_b64 exec, 1')
e('buffer_store_dword v%d, off, %s, s%d sc1' % (vMi + 7, srd(SDBG), sT0))
e('s_mov_b64 exec, -1')
e('s_branch L_qstage')

a.label('L_i1')
zero_acc(0, 8)
setx(vX1)
bound(30)
wo_loads(range(W0 + 4, W0 + 6))
e('s_mov_b32 s%d, 32' % sJA)
e('s_add_u32 s%d, s%d, 1024' % (sQa, sQa))
e('s_mov_b32 s%d, 2' % sRet)
e('s_barrier')
e('s_branch L_qstage')

a.label('L_i2')
bound(30)
wo_loads(range(W0 + 6, 8))
gu_loads(range(12))
fl4 = vLA + 8
e('s_and_b32 s%d, s2, 7' % sLoc)
e('s_lshl_b32 s%d, s%d, 4' % (sLoc, sLoc))
fl4ld = 'buffer_load_dwordx4 %s, off, %s, s%d sc1' % (vq(fl4), srd(SDBG), sLoc)
a.vmem(fl4ld)
gu_loads(range(12, 32))
e('v_bfe_u32 v%d, v0, 4, 1' % t0)
e('v_lshlrev_b32 v%d, 14, v%d' % (vAd, t0))
e('v_lshrrev_b32 v%d, 5, v0' % t0)
e('v_lshl_or_b32 v%d, v%d, 12, v%d' % (vAd, t0, vAd))
e('v_and_b32 v%d, 0xf0, v%d' % (t0, vL16))
e('v_or_b32 v%d, v%d, v%d' % (vAd, vAd, t0))
e('s_lshl_b32 s%d, s2, 16' % sT0)
e('s_lshl_b32 s%d, s%d, 8' % (sT1, sU))
e('s_add_u32 s%d, s%d, s%d' % (sT0, sT0, sT1))
e('s_lshl_b32 s%d, s%d, 14' % (sG0, sU))
for n in range(16):
    tau, pi, r = n & 1, (n >> 1) & 1, n >> 2
    e('s_add_u32 s%d, s%d, 0x%x' % (sT1, sT0, (32 * pi + 8 * (r >> 1) + 2 * tau + (r & 1)) * 1024))
    e('s_add_u32 m0, s%d, 0x%x' % (sG0, EDN + n * 1024))
    a.vmem('buffer_load_dwordx4 v%d, %s, s%d offen %s lds' % (vAd, srd(SDN), sT1, wpol))
sq_(2)
if args.wS:
    warm_site('s')
bound(52)
sq_(3)
stamp(vT)
a.label('L_f4')
e('v_min3_u32 v%d, v%d, v%d, v%d' % (vT, fl4, fl4 + 1, fl4 + 2))
e('v_min_u32 v%d, v%d, v%d' % (vT, vT, fl4 + 3))
e('v_cmp_eq_u32 vcc, 0, v%d' % vT)
e('s_cbranch_vccz L_f4ok')
e(fl4ld)
e('s_waitcnt vmcnt(0)')
spin_tail('L_f4')
a.label('L_f4ok')
e('v_max3_u32 v%d, v%d, v%d, v%d' % (vT + 1, fl4, fl4 + 1, fl4 + 2))
e('v_max_u32 v%d, v%d, v%d' % (vT + 1, vT + 1, fl4 + 3))
e('v_xor_b32 v%d, v%d, v%d' % (vT, vT, vT + 1))
e('v_readfirstlane_b32 s%d, v%d' % (sLoc, vT))
if args.nofast:
    e('s_mov_b32 s%d, 1' % sLoc)
e('s_sub_u32 s%d, s%d, 1024' % (sQa, sQa))
e('s_mov_b32 s%d, 0' % sJA)
e('s_mov_b32 s%d, 4' % sRet)
e('s_branch L_own')

a.label('L_i4')
sq_(4)
e('v_mov_b32 v%d, 1.0' % vX)
e('v_mov_b32 v%d, 1.0' % (vX + 1))
zero_acc(0, 8)
stamp(vT)
e('s_branch L_fgemv')

a.label('L_csf')
if args.bwtest == 2:
    e('s_endpgm')
a.reset_counters()
e('v_mov_b32 v%d, v%d' % (vCf, vAc))
e('v_mov_b32 v%d, v%d' % (vCf + 1, vAc + 1))
setx(vX0)
e('v_lshlrev_b32 v%d, 2, v0' % vT)
e('s_lshr_b32 s%d, s%d, 2' % (sIod, sFast))
if args.RR:
    e('s_cmp_lt_u32 s2, 28')
    e('s_cbranch_scc1 L_flags')
    e('s_lshl2_add_u32 s%d, s2, s%d' % (sG0, sU))
    e('s_lshl_b32 s%d, s%d, 8' % (sT0, sG0))
    e('s_add_u32 s%d, s%d, 0x%x' % (sT0, sT0, RACEB - 112 * 256))
    e('s_mov_b32 s%d, 0' % sVt)
    e('s_mov_b32 exec_hi, 0')
    e('s_waitcnt vmcnt(0)')
    for k in range(2 * args.RR):
        r = k >> 1
        c = (k ^ r) & 1
        e('s_movk_i32 s%d, 1000' % sG1)
        e('s_add_u32 s%d, s%d, 0x%x' % (sG2, sT0, (r >> 1) * 16384 + (r & 1) * 4096 + c * 8192))
        e('buffer_store_dword v%d, v%d, %s, s%d offen sc1' % (vT, vT, srd(SWS), sG2))
        a.label('L_rc%d' % k)
        e('s_getreg_b32 s%d, hwreg(HW_REG_IB_STS, 0, 4)' % sT1)
        e('s_%s_u32 s%d, s%d, 1' % ('add' if c else 'sub', sVt, sVt))
        e('s_sub_u32 s%d, s%d, 1' % (sG1, sG1))
        e('s_cselect_b32 s%d, 0, s%d' % (sT1, sT1))
        e('s_cmp_lg_u32 s%d, 0' % sT1)
        e('s_cbranch_scc1 L_rc%d' % k)
    if args.par == 'dbg':
        e('s_mov_b32 s11, s%d' % sVt)
    e('s_lshr_b32 s%d, s%d, 31' % (sVt, sVt))
    e('s_xor_b32 s%d, s%d, s%d' % (sVt, sVt, sIod))
    e('s_add_u32 s%d, s%d, 1' % (sVt, sVt))
    e('v_mov_b32 v%d, s%d' % (vT + 1, sVt if args.par != 'dbg' else 11))
    e('s_lshl_b32 s%d, s%d, 2' % (sG0, sG0))
    e('s_sub_u32 s%d, s%d, %d' % (sG0, sG0, 448 - 128))
    e('s_mov_b64 exec, 1')
    e('buffer_store_dword v%d, off, %s, s%d sc1' % (vT + 1, srd(SDBG), sG0))
    e('s_mov_b64 exec, -1')
    e('s_waitcnt vmcnt(0)')
    stamp(vT + 2)
    if args.ts and not args.quiet:
        e('s_sub_u32 s%d, s%d, 8' % (sTS, sTS))
a.label('L_flags')
e('buffer_load_dword v%d, v%d, %s, 0 offen sc1' % (vT + 1, vT, srd(SDBG)))
e('s_waitcnt vmcnt(0)')
e('v_cmp_eq_u32 vcc, 0, v%d' % (vT + 1))
e('s_nop 0')
e('s_cmp_eq_u32 vcc_lo, 0')
e('s_cbranch_scc1 L_flagsok')
spin_tail('L_flags', 4)
a.label('L_flagsok')
sq_(5)


def count_votes():
    e('v_cmp_eq_u32 vcc, 2, v%d' % (vT + 1))
    e('s_bcnt1_i32_b32 s%d, vcc_hi' % sT0)
    e('v_cmp_eq_u32 vcc, 1, v%d' % (vT + 1))
    e('s_bcnt1_i32_b32 s%d, vcc_hi' % sT1)
    e('s_cmp_gt_u32 s%d, s%d' % (sT0, sT1))
    e('s_cselect_b32 s%d, 1, 0' % sVt)
    if args.par.startswith('host'):
        e('s_load_dword s%d, s[14:15], 8' % sVt)
        e('s_waitcnt lgkmcnt(0)')
        e('s_lshr_b32 s%d, s%d, 13' % (sVt, sVt))
        if args.par == 'hostx':
            e('s_xor_b32 s%d, s%d, 1' % (sVt, sVt))
    e('s_xor_b32 s%d, s%d, s%d' % (sVt, sVt, sIod))
    e('s_and_b32 s%d, s%d, 1' % (sVt, sVt))
    e('s_lshl_b32 s%d, s%d, 13' % (sFast, sVt))


count_votes()
e('s_mov_b32 s%d, 0' % sIt)
e('s_mov_b32 s%d, 0' % sOutB)
e('s_mov_b32 s%d, 5' % sRet)

a.label('L_loop')
a.reset_counters()
e('s_and_b32 s%d, s%d, 1' % (sT0, sIt))
e('s_lshl_b32 s%d, s%d, 1' % (sT0, sT0))
e('s_lshr_b32 s%d, s%d, 1' % (sT1, sIt))
e('s_or_b32 s%d, s%d, s%d' % (sT0, sT0, sT1))
e('s_add_u32 s%d, s%d, 1' % (sOm, sT1))
e('s_lshl_b32 s%d, s%d, 5' % (sJA, sT0))
e('s_add_u32 s%d, s%d, s%d' % (sG1, sJA, sHU))
e('s_bitcmp1_b32 s%d, 0' % sIt)
e('s_cselect_b32 s%d, 4096, 0' % sG0)
e('s_add_u32 s%d, s%d, %d' % (sG0, sG0, OFF_O))
e('s_add_u32 s%d, s%d, s%d' % (sG0, sG0, sHU))
e('s_lshl_b32 s%d, s%d, 15' % (sYg, sT0))
vEy, vL4 = vLA + 60, vLA + 61
if args.yb:
    e('s_add_u32 s%d, s%d, 0x%x' % (sYg, sYg, YB))
    e('s_and_b32 s%d, s%d, 2' % (sT1, sU))
    e('s_lshl4_add_u32 s%d, s%d, s2' % (sT1, sT1))
    e('s_lshl_b32 s%d, s%d, 8' % (sT1, sT1))
    e('s_add_u32 s%d, s%d, s%d' % (sYp, sYg, sT1))
    e('s_lshl_b32 s%d, s%d, 11' % (sT1, sU))
    e('s_add_u32 s%d, s%d, s%d' % (sYg, sYg, sT1))
    e('s_add_u32 s%d, s%d, s%d' % (sYg, sYg, sFast))
    e('v_and_b32 v%d, 0x1f0, v%d' % (vEy, vL16))
    e('v_lshrrev_b32 v%d, 5, v0' % vL4)
    e('v_lshl_or_b32 v%d, v%d, 3, v%d' % (vEy, vL4, vEy))
    e('s_lshl_b32 s%d, s%d, 9' % (sT1, sU))
    e('v_add_u32 v%d, s%d, v%d' % (vEy, sT1, vEy))
    e('v_lshlrev_b32 v%d, 2, v0' % vL4)
else:
    if not args.y1:
        e('s_add_u32 s%d, s%d, s%d' % (sYg, sYg, sFast))
    e('s_add_u32 s%d, s%d, 0x%x' % (sYg, sYg, YB))
    e('s_add_u32 s%d, s%d, s%d' % (sYp, sYg, sHS))
    e('s_xor_b32 s%d, s%d, 8192' % (sVt, sYp))
    e('s_and_b32 s%d, s%d, 2' % (sT1, sU))
    e('s_add_u32 s%d, s%d, s%d' % (sT1, sT1, sU))
    e('s_lshl_b32 s%d, s%d, 12' % (sT1, sT1))
    e('s_add_u32 s%d, s%d, s%d' % (sYg, sYg, sT1))
e('s_lshl2_add_u32 s%d, s%d, s%d' % ((sZg, sU, sT0) if args.zl == 1 else (sZg, sT0, sU)))
e('s_lshl_b32 s%d, s%d, 15' % (sZg, sZg))
e('s_add_u32 s%d, s%d, s%d' % (sZg, sZg, sFast))
e('s_add_u32 s%d, s%d, 0x%x' % (sZg, sZg, ZB))
zero_acc(0, 16)
sq_dump(vT)
stamp(vT)
sv = vLA
a.label('L_stats')
e('buffer_load_dwordx2 %s, v%d, %s, s%d offen sc1' % (vp(sv), vSt, srd(SWS), sG1))
e('s_waitcnt vmcnt(0)')
e('v_max_u32 v%d, v%d, v%d' % (vT, sv, sv + 1))
e('v_cmp_eq_u32 vcc, -1, v%d' % vT)
e('s_cbranch_vccz L_statsok')
spin_tail('L_stats', 2)
a.label('L_statsok')
sq_(0)
stamp(vT)
oa = vLA + 16
fF = vLA + 8
Gs = [sG0, sG1, sG2, sG3]


def o_loads(k=0):
    for i in range(4):
        e('buffer_load_dwordx4 %s, v%d, %s, s%d offen offset:%d sc1' % (vq(oa + 16 * k + 4 * i), vL16, srd(SWS), sG0, i * 1024))


def touch(k, r):
    if k not in args.stch:
        return
    e('s_cmp_lg_u32 s%d, 0' % sIt)
    e('s_cbranch_scc1 L_nt' + k)
    e('v_lshlrev_b32 v%d, 3, v%d' % (r, vL16))
    e('s_mov_b32 exec_lo, 0xff00ffff')
    e('s_mov_b32 exec_hi, 0x00ffffff')
    e('buffer_load_dword v%d, v%d, %s, s%d offen sc1' % (r, r, srd(SWS), sHU))
    e('s_mov_b64 exec, -1')
    a.label('L_nt' + k)


e('s_bitcmp1_b32 s%d, 0' % sIt)
e('s_cbranch_scc1 L_noprobe')
e('s_mov_b64 exec, 0x7f')
a.label('L_probe')
e('buffer_load_dword v%d, v%d, %s, s%d offen sc1' % (oa, vOg, srd(SWS), sG0))
e('s_waitcnt vmcnt(0)')
e('v_and_b32 v%d, s%d, v%d' % (oa, sOm, oa))
e('v_cmp_eq_u32 vcc, 0, v%d' % oa)
e('s_cbranch_vccnz L_probeok')
spin_tail('L_probe', 2)
a.label('L_probeok')
e('s_mov_b64 exec, -1')
touch('p', oa)
a.label('L_noprobe')
o_loads()
M_, L_ = vT, vT + 1
e('v_mov_b32 v%d, v%d' % (fF, sv))
a.chain(allreduce_list('v_max_f32', fF, None, (0, 1)), [])
e('v_mov_b32 v%d, v%d' % (M_, fF))
a.chain(allreduce_list('v_max_f32', M_, vT + 2, (2, 3, 5)), [])
e('v_sub_f32 v%d, v%d, v%d' % (L_, sv, M_))
e('v_sub_f32 v%d, v%d, v%d' % (fF, fF, M_))
e('v_exp_f32 v%d, v%d' % (L_, L_))
e('v_exp_f32 v%d, v%d' % (fF, fF))
e('v_mul_f32 v%d, v%d, v%d' % (L_, L_, sv + 1))
if args.ons > 2:
    o_loads(1)
a.chain(allreduce_list('v_add_f32', L_, vT + 2, (0, 1, 2, 3, 5)), [])
e('v_rcp_f32 v%d, v%d' % (L_, L_))
e('v_mul_f32 v%d, v%d, v%d' % (fF, fF, L_))
ac = vLA + 12
od = vLA + 10


def sentinel_check(base, n, t):
    e('v_max3_u32 v%d, v%d, v%d, v%d' % (t, base, base + 1, base + 2))
    k = 3
    while k + 1 < n:
        e('v_max3_u32 v%d, v%d, v%d, v%d' % (t, t, base + k, base + k + 1))
        k += 2
    if k < n:
        e('v_max_u32 v%d, v%d, v%d' % (t, t, base + k))
    e('v_cmp_eq_u32 vcc, -1, v%d' % t)


if args.ons > 1:
    o_loads(args.ons - 1)
a.label('L_ogather')
assert args.ons == 1
ob = oa
ot = vT + 1
for i in range(4):
    e('s_waitcnt vmcnt(%d)' % (3 - i))
    for k in range(4):
        e('%s v%d, v%d, v%d row_newbcast:%d %s' % ('v_mul_f32_dpp' if i == 0 else 'v_fmac_f32_dpp', ac + k, fF, ob + 4 * i + k, 4 * i, DPPF))
    r = ob + 4 * i
    if i == 0:
        e('v_or3_b32 v%d, v%d, v%d, v%d' % (ot, r, r + 1, r + 2))
        e('v_or_b32 v%d, v%d, v%d' % (ot, ot, r + 3))
    elif i < 3:
        e('v_or3_b32 v%d, v%d, v%d, v%d' % (ot, ot, r, r + 1))
        e('v_or3_b32 v%d, v%d, v%d, v%d' % (ot, ot, r + 2, r + 3))
e('v_or3_b32 v%d, v%d, v%d, v%d' % (ot, ot, r, r + 1))
e('v_permlane32_swap_b32 v%d, v%d' % (ac, ac + 2))
e('v_permlane32_swap_b32 v%d, v%d' % (ac + 1, ac + 3))
e('v_or3_b32 v%d, v%d, v%d, v%d' % (ot, ot, r + 2, r + 3))
e('v_add_f32 v%d, v%d, v%d' % (ac, ac, ac + 2))
e('v_and_b32 v%d, s%d, v%d' % (ot, sOm, ot))
e('v_cmp_ne_u32 vcc, 0, v%d' % ot)
e('v_add_f32 v%d, v%d, v%d' % (ac + 1, ac + 1, ac + 3))
e('v_cvt_pk_bf16_f32 v%d, 0, v%d' % (od, ac))
e('v_cvt_pk_bf16_f32 v%d, 0, v%d' % (od + 1, ac + 1))
e('s_cbranch_vccz L_ook')
o_loads()
spin_tail('L_ogather')
a.label('L_ook')
sq_(1)
ct(0)
stamp(vT + 2)
if args.noit1 == 2:
    e('s_cmp_eq_u32 s%d, 1' % sIt)
    e('s_cbranch_scc1 L_next')


def ackwait(n):
    if not args.noack:
        e('s_waitcnt vmcnt(%d)' % (n and n + (1 if args.ts and not args.cts and not args.quiet else 0)))


NPF = 12


def dn_read(c):
    return a.lds('ds_read_b128 %s, v%d offset:%d' % (vq(vLA + 4 * c), vWw, c * 1024))


def gather_y():
    e('s_waitcnt vmcnt(%d)' % ((3 if args.ts and not args.cts and not args.quiet else 2) - bool(args.yb)))
    touch('y', vLA + 63)
    for c in range(NPF):
        dn_read(c)
    zero_acc(0, 8)
    if args.zo:
        e('s_lshl_b32 s%d, s2, 8' % sYp)
        e('s_add_u32 s%d, s%d, s%d' % (sYp, sYp, sZg))
    elif args.zb:
        e('s_lshl_b32 s%d, s2, 8' % sYp)
        e('s_bitcmp1_b32 s%d, 0' % sIt)
        e('s_cselect_b32 s%d, s%d, s%d' % (sYp, sHS, sYp))
        e('s_add_u32 s%d, s%d, s%d' % (sYp, sYp, sZg))
        e('s_xor_b32 s%d, s%d, 8192' % (sVt, sYp))
    if args.z1:
        e('s_andn2_b32 s%d, s%d, 8192' % (sG0, sYp))
    if args.z28:
        assert sG1 % 2 == 0 and args.zo
        e('s_cmp_lt_u32 s2, 28')
        e('s_cselect_b32 s%d, -1, %d' % (sG1, args.z28))
        e('s_cselect_b32 s%d, -1, 0' % (sG1 + 1))
    if args.yb:
        pick_a(vLA + 56, vT)
    if args.yh:
        e('v_and_b32 v%d, 0x300, v%d' % (vLA + 56, vL16))
        e('v_add_u32 v%d, v%d, v%d' % (vLA + 56, vLA + 56, vL16))
    ackwait(args.acky)
    if args.ysl:
        e('s_sleep %d' % args.ysl)
    b = vLA + 48
    if args.yb:
        a.label('L_y_ld')
        for i in range(2):
            e('buffer_load_dwordx4 %s, v%d, %s, s%d offen offset:%d sc1' % (vq(b + 4 * i), vL16, srd(SWS), sYg, i * 1024))
        for i in range(2):
            e('s_waitcnt vmcnt(%d)' % (1 - i))
            mfma(vq(vT), vq(b + 8), vq(b + 4 * i), i == 0)
        finish_x('y', False)
        OOL.append(('L_y_bad', lambda: (sentinel_check(b, 8, vT + 2), e('s_cbranch_vccz L_y_ok'), spin_tail('L_y_ld'))))
        return
    if args.yh:
        a.label('L_y_ld')
        for i in range(2):
            e('buffer_load_dwordx4 %s, v%d, %s, s%d offen offset:%d sc1' % (vq(b + 4 * i), b + 8, srd(SWS), sYg, i * 2048))
        e('s_waitcnt vmcnt(0)')
        e('v_pk_add_f32 %s, %s, %s' % (vp(vT), vp(b), vp(b + 4)))
        e('v_pk_add_f32 %s, %s, %s' % (vp(vT + 2), vp(b + 2), vp(b + 6)))
        finish_x('y')
        OOL.append(('L_y_bad', lambda: (sentinel_check(b, 8, vT + 2), e('s_cbranch_vccz L_y_ok'), spin_tail('L_y_ld'))))
        return
    a.label('L_y_ld')
    for i in range(4):
        e('buffer_load_dwordx4 %s, v%d, %s, s%d offen offset:%d sc1' % (vq(b + 4 * i), vL16, srd(SWS), sYg, i * 1024))
    e('s_waitcnt vmcnt(2)')
    e('v_pk_add_f32 %s, %s, %s' % (vp(vT), vp(b), vp(b + 4)))
    e('v_pk_add_f32 %s, %s, %s' % (vp(vT + 2), vp(b + 2), vp(b + 6)))
    e('s_waitcnt vmcnt(1)')
    e('v_pk_add_f32 %s, %s, %s' % (vp(vT), vp(vT), vp(b + 8)))
    e('v_pk_add_f32 %s, %s, %s' % (vp(vT + 2), vp(vT + 2), vp(b + 10)))
    e('s_waitcnt vmcnt(0)')
    e('v_pk_add_f32 %s, %s, %s' % (vp(vT), vp(vT), vp(b + 12)))
    e('v_pk_add_f32 %s, %s, %s' % (vp(vT + 2), vp(vT + 2), vp(b + 14)))
    finish_x('y')
    OOL.append(('L_y_bad', lambda: (sentinel_check(b, 16, vT + 2), e('s_cbranch_vccz L_y_ok'), spin_tail('L_y_ld'))))


def finish_x(tag, fold=True):
    if fold:
        e('v_permlane32_swap_b32 v%d, v%d' % (vT, vT + 2))
        e('v_permlane32_swap_b32 v%d, v%d' % (vT + 1, vT + 3))
        e('v_add_f32 v%d, v%d, v%d' % (vT, vT, vT + 2))
        e('v_add_f32 v%d, v%d, v%d' % (vT + 1, vT + 1, vT + 3))
    e('v_cmp_u_f32 vcc, v%d, v%d' % (vT, vT + 1))
    e('v_cvt_pk_bf16_f32 v%d, 0, v%d' % (vT, vT))
    e('v_cvt_pk_bf16_f32 v%d, 0, v%d' % (vT + 1, vT + 1))
    e('v_add_f32 v%d, v%d, v%d' % (vT, vX, vT))
    e('v_add_f32 v%d, v%d, v%d' % (vT + 1, vX + 1, vT + 1))
    e('s_nop 0')
    a.raw('    s_cbranch_vccnz L_%s_bad' % tag)
    a.pos += 1
    a.raw('L_%s_ok:' % tag)
    e('v_cvt_pk_bf16_f32 v%d, 0, v%d' % (vX, vT))
    e('v_cvt_pk_bf16_f32 v%d, 0, v%d' % (vX + 1, vT + 1))


def pick_a(A, t):
    e('v_and_b32 v%d, 16, v%d' % (t, vL16))
    e('s_movk_i32 s%d, 0x3f80' % sT0)
    e('v_lshlrev_b32 v%d, v%d, s%d' % (t, t, sT0))
    for k in range(4):
        smask(sMt, 0x0003000300030003 << (4 * k))
        e('v_cndmask_b32 v%d, 0, v%d, %s' % (A + k, t, sp(sMt)))


def gather_b():
    A = vLA + 32
    pick_a(A, vT)
    if args.zb == 2:
        e('s_lshr_b32 s%d, s2, 3' % sT0)
        for q in range(3):
            e('s_add_u32 s%d, s%d, %d' % (sT1, sT0, q))
            e('s_sub_u32 s%d, s%d, 3' % (Gs[q], sT1))
            e('s_cselect_b32 s%d, s%d, s%d' % (sT1, sT1, Gs[q]))
            e('s_lshl_b32 s%d, s%d, 11' % (sT1, sT1))
            e('s_add_u32 s%d, s%d, s%d' % (Gs[q], sZg, sT1))
        e('s_add_u32 s%d, s%d, 6144' % (Gs[3], sZg))
        at = lambda i: (Gs[i >> 1], (i & 1) * 1024)
    else:
        e('s_add_u32 s%d, s%d, 4096' % (Gs[0], sZg))
        at = lambda i: (Gs[0] if i >> 2 else sZg, (i & 3) * 1024)
    zero_acc(0, 8)
    touch('z', vLA + 63)
    ackwait(args.ackz)
    a.label('L_z_ld')
    for i in range(7):
        e('buffer_load_dwordx4 %s, v%d, %s, s%d offen offset:%d sc1' % ((vq(vLA + 4 * i), vL16, srd(SWS)) + at(i)))
    for i in range(7):
        e('s_waitcnt vmcnt(%d)' % (6 - i))
        mfma(vq(vT), vq(A), vq(vLA + 4 * i), i == 0)
    finish_x('z', False)
    OOL.append(('L_z_bad', lambda: (sentinel_check(vLA, 28, vT + 2), e('s_cbranch_vccz L_z_ok'), spin_tail('L_z_ld'))))


def gather(tag, yz, nz):
    e('s_lshr_b32 s%d, s2, 3' % sT0)
    for q in range(4):
        e('s_add_u32 s%d, s%d, %d' % (sT1, sT0, q))
        e('s_and_b32 s%d, s%d, 2' % (Gs[q], sT1))
        e('s_and_b32 s%d, s%d, 3' % (sT1, sT1))
        e('s_add_u32 s%d, s%d, s%d' % (sT1, sT1, Gs[q]))
        e('s_lshl_b32 s%d, s%d, 12' % (sT1, sT1))
        e('s_add_u32 s%d, s%d, s%d' % (Gs[q], sZg, sT1))
    zero_acc(0, nz)
    touch('z', vLA + (7 if args.zh else 63))
    pend = sMt

    if args.zh:
        e('v_and_b32 v%d, 0x300, v%d' % (vMi + 7, vL16))
        e('v_add_u32 v%d, v%d, v%d' % (vMi + 7, vMi + 7, vL16))
        for q in range(4):
            for k in range(8, 16):
                e('v_mov_b32 v%d, 0' % (vLA + 16 * q + k))
    ackwait(args.ackz)

    def loads(q):
        if args.zh:
            for i in range(2):
                e('buffer_load_dwordx4 %s, v%d, %s, s%d offen offset:%d sc1' % (vq(vLA + 16 * q + 4 * i), vMi + 7, srd(SWS), Gs[q], i * 2048))
            return
        for i in range(4):
            e('buffer_load_dwordx4 %s, v%d, %s, s%d offen offset:%d sc1' % (vq(vLA + 16 * q + 4 * i), vL16, srd(SWS), Gs[q], i * 1024))

    def red(q):
        b = vLA + 16 * q
        e('v_pk_add_f32 %s, %s, %s' % (vp(b), vp(b), vp(b + 4)))
        e('v_pk_add_f32 %s, %s, %s' % (vp(b + 2), vp(b + 2), vp(b + 6)))
        e('v_pk_add_f32 %s, %s, %s' % (vp(b + 8), vp(b + 8), vp(b + 12)))
        e('v_pk_add_f32 %s, %s, %s' % (vp(b + 10), vp(b + 10), vp(b + 14)))
        e('v_pk_add_f32 %s, %s, %s' % (vp(b), vp(b), vp(b + 8)))
        e('v_pk_add_f32 %s, %s, %s' % (vp(b + 2), vp(b + 2), vp(b + 10)))

    def s02():
        e('v_pk_add_f32 %s, %s, %s' % (vp(vMi), vp(vLA), vp(vLA + 32)))
        e('v_pk_add_f32 %s, %s, %s' % (vp(vMi + 2), vp(vLA + 2), vp(vLA + 34)))

    def fin():
        e('v_pk_add_f32 %s, %s, %s' % (vp(vT), vp(vLA + 16), vp(vLA + 48)))
        e('v_pk_add_f32 %s, %s, %s' % (vp(vT + 2), vp(vLA + 18), vp(vLA + 50)))
        e('v_pk_add_f32 %s, %s, %s' % (vp(vT), vp(vT), vp(vMi)))
        e('v_pk_add_f32 %s, %s, %s' % (vp(vT + 2), vp(vT + 2), vp(vMi + 2)))
    for q in range(4):
        loads(q)
    e('s_mov_b32 s%d, 15' % pend)
    for q in range(4):
        e('s_waitcnt vmcnt(%d)' % (6 - 2 * q if args.zh else 12 - 4 * q))
        red(q)
        if q == 2:
            s02()
    a.raw('L_%s_fin:' % tag)
    fin()
    finish_x(tag)

    def bad():
        e('s_cmp_eq_u32 s%d, 0' % pend)
        e('s_cbranch_scc1 L_%s_ok' % tag)
        for q in range(4):
            b = vLA + 16 * q
            e('v_add_f32 v%d, v%d, v%d' % (vT, b, b + 1))
            e('v_add_f32 v%d, v%d, v%d' % (vT + 1, b + 2, b + 3))
            e('v_cmp_u_f32 vcc, v%d, v%d' % (vT, vT + 1))
            e('s_cbranch_vccnz L_%s_n%d' % (tag, q))
            e('s_bitset0_b32 s%d, %d' % (pend, q))
            a.label('L_%s_n%d' % (tag, q))
        a.label('L_%s_again' % tag)
        for q in range(4):
            lk = 'L_%s_r%d' % (tag, q)
            e('s_bitcmp1_b32 s%d, %d' % (pend, q))
            e('s_cbranch_scc0 %s' % lk)
            loads(q)
            a.label(lk)
        e('s_waitcnt vmcnt(0)')
        for q in range(4):
            lk = 'L_%s_k%d' % (tag, q)
            e('s_bitcmp1_b32 s%d, %d' % (pend, q))
            e('s_cbranch_scc0 %s' % lk)
            sentinel_check(vLA + 16 * q, 16, vT)
            red(q)
            e('s_cbranch_vccnz %s' % lk)
            e('s_bitset0_b32 s%d, %d' % (pend, q))
            a.label(lk)
        s02()
        e('s_cmp_eq_u32 s%d, 0' % pend)
        e('s_cbranch_scc1 L_%s_fin' % tag)
        spin_tail('L_%s_again' % tag)
    OOL.append(('L_%s_bad' % tag, bad))


def resid():
    e('v_cvt_pk_bf16_f32 v%d, 0, v%d' % (vT, vT))
    e('v_cvt_pk_bf16_f32 v%d, 0, v%d' % (vT + 1, vT + 1))
    e('v_add_f32 v%d, v%d, v%d' % (vX, vX, vT))
    e('v_add_f32 v%d, v%d, v%d' % (vX + 1, vX + 1, vT + 1))
    e('v_cvt_pk_bf16_f32 v%d, 0, v%d' % (vX, vX))
    e('v_cvt_pk_bf16_f32 v%d, 0, v%d' % (vX + 1, vX + 1))


def gemv32(tiles, E, ES, reads, extra=(), vX=vX, cs=None, ret=None, lbl=None, pre=(), wide=None, vEw=vEw):
    sC = sT1
    r, t2, d0, d1 = vMi, vMi + 1, vMi + 2, vMi + 3
    side = []
    if ES is not None:
        side = ['v_readfirstlane_b32 s%d, v%d' % (sC, vX),
                'v_subrev_f32 v%d, s%d, v%d' % (d0, sC, vX), 'v_subrev_f32 v%d, s%d, v%d' % (d1, sC, vX + 1),
                'v_mul_f32 v%d, v%d, v%d' % (t2, d0, d0), 'v_add_f32 v%d, v%d, v%d' % (r, d0, d1),
                'v_fmac_f32 v%d, v%d, v%d' % (t2, d1, d1),
                'v_permlane32_swap_b32 v%d, v%d' % (r, t2), 'v_add_f32 v%d, v%d, v%d' % (r, r, t2)]
        side += allreduce_list('v_add_f32', r, None, (0, 1, 2, 3))
        side += ['v_add_f32_dpp v%d, v%d, v%d row_bcast:15 row_mask:0xa bank_mask:0xf' % (r, r, r),
                 'v_writelane_b32 v%d, s%d, 0' % (r, sC)]
    extra = list(extra)
    aset = lambda j: a_ops(vA + 4 * (j % 3), vX + (j >> 2), vT + (j >> 2), j & 3)
    a0, a1 = aset(0), aset(1)
    q = [mirror(vT, vX), a0[0], a0[3]] + side[:1] + [a0[1], a0[2], a1[0], a1[3]]
    side = side[1:]
    for op in q:
        e(op)
    build = [a1[1], a1[2], mirror(vT + 1, vX + 1)]
    for j in range(2, 8):
        build += aset(j)
    wtk = None
    stk = None
    for n2 in range(16):
        j, pi = n2 >> 1, n2 & 1
        smf(vAc + 4 * pi, vA + 4 * (j % 3), pair(tiles[2 * n2], tiles[2 * n2 + 1]), vSI)
        nb = 3 if n2 == 0 else 2
        for k in range(nb):
            if build:
                e(build.pop(0))
            if side and a.needed(side[0]) == 0:
                e(side.pop(0))
        if ES is not None and not side and wtk is None:
            e('s_mov_b64 exec, %s' % sp(sMaskV))
            wtk = a.lds('ds_write_b32 v%d, v%d offset:%d' % (vSw, r, ES))
            e('s_mov_b64 exec, -1')
            wn = n2
        elif wtk is not None and stk is None and n2 >= wn + 3:
            a.lgwait(wtk)
            e('s_barrier')
            stk = a.lds('ds_read_b128 %s, v%d offset:%d' % (vq(vMi + 4), vWr, ES))
        if extra and n2 >= 12:
            extra.pop(0)()
    assert not side and not build
    math_ = []
    nm, rs = vMi, vMi + 2
    if ES is not None:
        assert stk is not None
        c, S_, T_ = vMi + 4, vMi + 5, vMi + 7
        mw, mu, v, ee = vMi + 4, vMi + 6, vMi + 7, vMi + 5
        qs = lambda d, s_: ['v_add_f32_dpp v%d, v%d, v%d quad_perm:[1,0,3,2] %s' % (d, s_, s_, DPPF),
                            'v_add_f32_dpp v%d, v%d, v%d quad_perm:[2,3,0,1] %s' % (d, d, d, DPPF)]
        math_ = ['v_mul_f32 v%d, %s, v%d' % (S_, f32(1.0 / 128), S_),
                 'v_mul_f32 v%d, %s, v%d' % (T_, f32(1.0 / 128), T_),
                 'v_add_f32 v%d, v%d, v%d' % (mw, c, S_),
                 'v_fma_f32 v%d, -v%d, v%d, v%d' % (v, S_, S_, T_)]
        math_ += qs(mu, mw)
        math_ += ['v_mul_f32 v%d, 0.25, v%d' % (mu, mu),
                  'v_sub_f32 v%d, v%d, v%d' % (ee, mw, mu),
                  'v_fmac_f32 v%d, v%d, v%d' % (v, ee, ee),
                  'v_cvt_pk_bf16_f32 v%d, 0, v%d' % (mu, mu),
                  'v_mul_f32 v%d, v%d, v%d' % (nm, mu, cs)]
        math_ += [qs(v, v)[0], 'v_mul_f32 v%d, v%d, v%d' % (nm + 1, mu, cs + 1), qs(v, v)[1]]
        math_ += ['v_mul_f32 v%d, 0.25, v%d' % (v, v),
                  'v_max_f32 v%d, 0, v%d' % (v, v),
                  'v_cvt_pk_bf16_f32 v%d, 0, v%d' % (v, v),
                  'v_add_f32 v%d, %s, v%d' % (v, f32(1e-5), v),
                  'v_cvt_pk_bf16_f32 v%d, 0, v%d' % (v, v),
                  'v_sqrt_f32 v%d, v%d' % (v, v),
                  'v_cvt_pk_bf16_f32 v%d, 0, v%d' % (v, v),
                  'v_rcp_f32 v%d, v%d' % (rs, v),
                  'v_mul_f32 v%d, -v%d, v%d' % (nm, nm, rs),
                  'v_mul_f32 v%d, -v%d, v%d' % (nm + 1, nm + 1, rs)]
        a.lgwait(stk)
    math_[5:5] = list(pre)
    m0 = 'v_permlane32_swap_b32 v%d, v%d' % (vAc, vAc + 2)
    while math_ and a.needed(m0) > 0:
        e(math_.pop(0))
    merge(vAc, vAc + 4)
    a.lds('ds_write_b64 v%d, %s offset:%d' % (vEw, vp(vAc), E))
    for k in range(13):
        if math_:
            e(math_.pop(0))
    if wide:
        e('s_mov_b64 exec, %s' % sp(sQm))
    a.lgwait_all()
    e('s_barrier')
    tks = [a.lds(x) for x in reads]
    if wide:
        add = lambda d, s_: [e('v_pk_add_f32 %s, %s, %s' % (vp(d + k), vp(d + k), vp(s_ + k))) for k in (0, 2)]
        a.lgwait(tks[1])
        add(wide[0], wide[1])
        a.lgwait(tks[2])
        add(wide[0], wide[2])
        a.lgwait(tks[3])
        add(wide[0], wide[3])
        return
    if ret is not None:
        e('s_cmp_eq_u32 s%d, %d' % (sRet, ret))
    for op in math_:
        e(op)
    a.lgwait(tks[1])
    e('v_pk_add_f32 %s, %s, %s' % (vp(vAc), vp(vAc), vp(vAc + 2)))
    a.lgwait(tks[3])
    e('v_pk_add_f32 %s, %s, %s' % (vp(vAc + 4), vp(vAc + 4), vp(vAc + 6)))
    e('v_pk_add_f32 %s, %s, %s' % (vp(vAc), vp(vAc), vp(vAc + 4)))
    if ES is not None:
        a.raw('    s_cbranch_scc1 %s' % lbl)
        a.pos += 1
        e('v_pk_fma_f32 %s, %s, %s, %s op_sel_hi:[1,0,1]' % (vp(vAc), vp(vAc), vp(rs), vp(nm)))


def publish4(r, s0, s1):
    for s_ in (s1, s0) if args.far1 else (s0, s1):
        a.vmem('buffer_store_dwordx4 %s, v%d, %s, s%d offen %s' % (vq(r), vL16, srd(SWS), s_, args.ypol))


if args.x4:
    assert E1 == 0
    WD = [vAc, vAc + 4, vLA + 48, vLA + 52]
    gemv32(TO, E1, None, ['ds_read2_b64 %s, v%d offset0:%d offset1:%d' % (vq(WD[w]), vL8, 64 * w, 64 * w + 32) for w in range(4)], (), od, wide=WD)
    publish4(vAc, sYp, sVt)
else:
    gemv32(TO, E1, None, ['ds_read_b64 %s, v%d offset:%d' % (vp(vAc + 2 * w), vL8, E1 + 512 * w) for w in range(4)], (), od,
           vEw=vEy if args.yb else vEw)
    ct(1)
    e('s_mov_b64 exec, %s' % sp(sQm))
    if args.yb:
        e('v_cvt_pk_bf16_f32 v%d, v%d, v%d' % (vAc, vAc, vAc + 1))
        e('v_min_u32 v%d, -2, v%d' % (vAc, vAc))
        a.vmem('buffer_store_dword v%d, v%d, %s, s%d offen %s' % (vAc, vL4, srd(SWS), sYp, args.ypol))
    elif args.yh == 2:
        e('s_bitcmp1_b32 s%d, 1' % sU)
        e('s_cselect_b32 s%d, s%d, s%d' % (sT0, sVt, sYp))
        e('s_cselect_b32 s%d, 256, 0' % sT1)
        e('s_sub_u32 s%d, s%d, s%d' % (sT0, sT0, sT1))
        publish_local(vAc, vL8, sT0, 'y')
        e('s_mov_b64 exec, 1')
        e('buffer_load_dword v%d, off, %s, 0' % (vLA + 63, srd(SX)))
    else:
        publish_local(vAc, vL8, sYp, 'y')
        publish_local(vAc, vL8, sVt, 'y')
sq_(2)
ct(2)
e('s_mov_b64 exec, -1')
stamp(vT + 2)

gather_y()
sq_(3)
ct(3)
stamp(vT + 2)
a.raw('L_fgemv:')
ex = [(lambda c=c: dn_read(c)) for c in range(NPF, 16)]
k1 = -2.0 * math.sqrt(2.0 / math.pi) * LOG2E
G_, U_ = vAc, vAc + 1
t, z = vT + 2, vT + 3
gemv32(TG, E2, E2S, ['ds_read2_b32 %s, v%d offset0:%d offset1:%d' % (vp(vAc + 2 * i), (vFr, vFr2)[i >> 1], 128 * (i & 1), 128 * (i & 1) + 16) for i in range(4)],
       ex, vX, vCf, 4, 'L_csf', ['v_mov_b32 v%d, %s' % (t, f32(k1))])
ct(4)
ct(5)
e('v_cvt_pk_bf16_f32 v%d, 0, v%d' % (G_, G_))
e('v_mul_f32 v%d, v%d, v%d' % (z, G_, G_))
e('v_fmac_f32 v%d, %s, v%d' % (t, f32(k1 * 0.044715), z))
e('v_mul_f32 v%d, v%d, v%d' % (z, t, G_))
e('v_exp_f32 v%d, v%d' % (z, z))
e('v_cvt_pk_bf16_f32 v%d, 0, v%d' % (U_, U_))
e('v_add_f32 v%d, 1.0, v%d' % (z, z))
e('v_rcp_f32 v%d, v%d' % (z, z))
e('v_mul_f32 v%d, v%d, v%d' % (z, z, G_))
e('v_cvt_pk_bf16_f32 v%d, 0, v%d' % (z, z))
e('v_mul_f32 v%d, v%d, v%d' % (z, z, U_))
e('v_cvt_pk_bf16_f32 v%d, 0, v%d' % (z, z))
if not args.zb:
    e('s_add_u32 s%d, s%d, s%d' % (sT0, sHS, sZg))
    e('s_xor_b32 s%d, s%d, 8192' % (sVt, sT0))
ct(6)
e(mirror(t, z))
dset = lambda r: a_ops(vA + 4 * (r % 3), z, t, r)
d0_, d1_ = dset(0), dset(1)
for op in (d0_[0], d0_[3], d0_[1], d0_[2], d1_[0], d1_[3]):
    e(op)
build = [d1_[1], d1_[2]] + dset(2) + dset(3)
for r in range(4):
    for pi in (1, 0) if args.x4 or args.zb and not args.z1 else (0, 1):
        n = (r * 2 + pi) * 2
        smf(vAc + 8 + 4 * pi, vA + 4 * (r % 3), 'v[%d:%d]' % (vLA + 4 * n, vLA + 4 * n + 7), vSI)
        for k in range(2):
            if build:
                e(build.pop(0))
if args.noit1 == 1:
    e('s_cmp_eq_u32 s%d, 1' % sIt)
    e('s_cbranch_scc1 L_next')
e('s_bitcmp1_b32 s%d, 0' % sIt)
if args.z1:
    e('v_lshrrev_b32 v%d, 5, v0' % vT)
    e('v_mul_u32_u24 v%d, %d, v%d' % (vT, 8192 - 256, vT))
    e('v_add_u32 v%d, v%d, v%d' % (vT, vT, vL8))
    merge(vAc + 8, vAc + 12)
    if not args.zo:
        a.raw('    s_cbranch_scc1 L_zodd')
        a.pos += 1
    e('v_cvt_pk_bf16_f32 v%d, v%d, v%d' % (vAc + 10, vAc + 8, vAc + 9))
    for k in (0, 1):
        e('v_min_u32 v%d, -2, v%d' % (vAc + 8 + k, vAc + 10))
    e('v_permlane32_swap_b32 v%d, v%d' % (vAc + 8, vAc + 9))
    if args.z28:
        e('s_mov_b64 exec, %s' % sp(sG1))
    publish_local(vAc + 8, vT, sG0, 'z')
    if args.z28:
        e('s_mov_b64 exec, -1')
elif args.zb:
    a.raw('    s_cbranch_scc1 L_zodd')
    a.pos += 1
    zodd = a.needed('v_permlane32_swap_b32 v%d, v%d' % (vAc + 12, vAc + 14))
    for k in range(4):
        e('v_permlane32_swap_b32 v%d, v%d' % (vAc + 12 + k, vT + k))
    e('s_mov_b32 exec_hi, 0')
    for k in (0, 2):
        e('v_pk_add_f32 %s, %s, %s' % (vp(vAc + 8 + k), vp(vAc + 8 + k), vp(vT + k)))
    for k in (0, 1):
        e('v_cvt_pk_bf16_f32 v%d, v%d, v%d' % (vAc + 8 + k, vAc + 8 + 2 * k, vAc + 9 + 2 * k))
    for k in (0, 1):
        e('v_min_u32 v%d, -2, v%d' % (vAc + 8 + k, vAc + 8 + k))
    publish_local(vAc + 8, vL8, sYp, 'z')
    publish_local(vAc + 8, vL8, sVt, 'z')
    e('s_mov_b32 exec_hi, -1')
elif args.x4:
    for k in range(4):
        e('v_permlane32_swap_b32 v%d, v%d' % (vAc + 12 + k, vT + k))
    e('s_mov_b32 exec_hi, 0')
    for k in (0, 2):
        e('v_pk_add_f32 %s, %s, %s' % (vp(vAc + 8 + k), vp(vAc + 8 + k), vp(vT + k)))
    publish4(vAc + 8, sT0, sVt)
    e('s_mov_b32 exec_hi, -1')
else:
    merge(vAc + 8, vAc + 12)
    publish_local(vAc + 8, vL8, sT0, 'z')
    publish_local(vAc + 8, vL8, sVt, 'z')
sq_(4)
ct(7)
stamp(vT)
if args.zb:
    if args.zo:
        assert args.z1
        if args.ts:
            e('s_bitcmp1_b32 s%d, 0' % sIt)
        e('s_cbranch_scc1 L_out')
    gather_b()
else:
    if args.ts:
        e('s_bitcmp1_b32 s%d, 0' % sIt)
    e('s_cbranch_scc1 L_out')
    gather('z', 1, 8)
sq_(5)
ct(9)
stamp(vT + 2)
e('s_add_u32 s%d, s%d, 64' % (sJA, sJA))
a.raw('L_qstage:')
a.reset_counters()
e('s_lshl3_add_u32 s%d, s%d, s%d' % (sT0, sJA, sHA))
qd = vT
gemv32(TQ, E3, E3S, ['ds_read_b64 %s, v%d offset:%d' % (vp(vAc + 2 * i), vQr, E3 + 512 * i) for i in range(4)], (), vX, vCq, 0, 'L_csq',
       ['v_lshlrev_b32 v%d, 2, v0' % (vT + 1)])
e('s_cmp_lg_u32 s%d, 0' % sU)
e('v_cvt_pk_bf16_f32 v%d, v%d, v%d' % (qd, vAc, vAc + 1))
e('v_min_u32 v%d, -2, v%d' % (qd, qd))
a.raw('    s_cbranch_scc1 L_qn')
e('buffer_store_dword v%d, v%d, %s, s%d offen offset:1024' % (qd, vT + 1, srd(SWS), sT0))
e('buffer_store_dword v%d, v%d, %s, s%d offen offset:2048 %s' % (qd, vT + 1, srd(SWS), sT0, sc('F')))
a.label('L_qn')
if args.quiet and not args.sq:
    e('s_memrealtime s[18:19]')
sq_(6)
ct(10)
stamp(vT + 2)
e('v_add_u32 v%d, s%d, v%d' % (vT + 1, sQa, vT + 1))
a.lds('ds_write_b32 v%d, v%d' % (vT + 1, qd))
a.lgwait_all()
e('s_cmp_eq_u32 s%d, 1' % sRet)
e('s_cbranch_scc1 L_i1')
e('s_cmp_eq_u32 s%d, 2' % sRet)
e('s_cbranch_scc1 L_i2')
a.label('L_own')
a.reset_counters()
oq, obt, ok_, ov, oc, om, op_, oml, oA, oD = vLA, vLA + 4, vLA + 8, vLA + 12, vLA + 16, vLA + 20, vLA + 17, vLA + 18, vLA + 24, vLA + 28
mk_qoff(vT + 2, 0, vT + 3)
e('v_add_u32 v%d, s%d, v%d' % (vT + 2, sQa, vT + 2))
e('v_add_u32 v%d, s%d, v%d' % (vT + 3, sKV, vL16))
a.lds('ds_read_b128 %s, v%d' % (vq(oq), vT + 2))
a.lds('ds_read_b128 %s, v%d' % (vq(ok_), vT + 3))
a.lds('ds_read_b128 %s, v%d offset:1024' % (vq(ov), vT + 3))
mk_c(oc, 1, vT)
mk_masks(om, vT)
a.lgwait_all()
build_bt(obt, oq, 1)
mfma(vq(oD), vq(ok_), vq(obt), True)
for o in score_ops([op_], 0, oD, oc, True):
    e(o)
e('s_lshl3_add_u32 s%d, s%d, s%d' % (sT0, sU, sJA))
e('s_add_u32 s%d, s%d, s%d' % (sT0, sT0, sHA))
e('s_lshl_b32 s%d, s%d, 4' % (sT1, sU))
softmax([op_], oml, vT, None, [], [], sT1, EOM, None)
osc = vLA + 32
for o in tail_a(oA, op_, 0, om, vT):
    e(o)
mfma(vq(oD), vq(oA), vq(ov), True)
tk = scale_a(osc, vL16, EOM)
e('s_bitcmp1_b32 s%d, 5' % sJA)
e('s_cselect_b32 s%d, 1, 2' % sOt)
e('s_bitcmp1_b32 s%d, 6' % sJA)
e('s_cselect_b32 s%d, 4096, 0' % sT1)
e('s_add_u32 s%d, s%d, %d' % (sT1, sT1, OFF_O + 7 * 512))
e('s_add_u32 s%d, s%d, s%d' % (sT1, sT1, sHA))
merge(oD, None)
a.lgwait(tk)
for o in scale_b(osc, oml):
    e(o)
wg_publish(oD, osc, vEw, vL8, EO, vLA, sT1, 'own', 'L_ownn', 0, sOt, sLoc)
e('s_waitcnt vmcnt(0)')
e('s_mov_b64 exec, 1')
store_sel('buffer_store_dwordx2 %s, off, %s, s%d offset:896' % (vp(oml), srd(SWS), sT0), 'owns', False, False, sLoc)
e('s_mov_b64 exec, -1')
e('s_cmp_eq_u32 s%d, 4' % sRet)
e('s_cbranch_scc1 L_i4')
e('s_add_u32 s%d, s%d, 1' % (sIt, sIt))
e('s_branch L_loop')

if args.zb and not args.zo:
    a.label('L_zodd')
    if not args.z1:
        a.nop(zodd)
        for O in (vAc + 12, vAc + 8):
            e('v_permlane32_swap_b32 v%d, v%d' % (O, O + 2))
            e('v_permlane32_swap_b32 v%d, v%d' % (O + 1, O + 3))
        e('v_add_f32 v%d, v%d, v%d' % (vAc + 8, vAc + 8, vAc + 14))
        e('v_add_f32 v%d, v%d, v%d' % (vAc + 9, vAc + 9, vAc + 15))
    publish_local(vAc + 8, vL8, sYp, 'z')
    publish_local(vAc + 8, vL8, sVt, 'z')
    sq_(4)
    stamp(vT)
    a.raw('L_out:')
else:
    a.label('L_out')
a.reset_counters()
if args.zo == 2:
    e('s_lshr_b32 s%d, s2, 1' % sT0)
    e('s_sub_u32 s%d, s%d, %d' % (sT0, sT0, 4 * args.osv))
    e('s_cmp_eq_u32 s%d, s%d' % (sT0, sU))
    e('s_cbranch_scc0 L_outn')
    oA = vLA + 16
    pick_a(oA, vT)
    e('v_and_b32 v%d, 0x380, v%d' % (vLA + 20, vL16))
    e('v_add_u32 v%d, v%d, v%d' % (vLA + 20, vLA + 20, vL16))
    for op in z64(vLA + 12, 4):
        e(op)
    e('s_and_b32 s%d, s2, 1' % sT1)
    e('s_lshl_b32 s%d, s%d, 7' % (sT0, sT1))
    e('s_add_u32 s%d, s%d, s%d' % (sT0, sT0, sZg))
    e('s_lshl_b32 s%d, s%d, 3' % (sT1, sT1))
    e('s_lshl_b64 %s, %s, s%d' % (sp(sMt), sp(sMaskJ8), sT1))
    e('s_add_u32 s%d, s%d, 4096' % (sT1, sT0))
    ackwait(args.acko)
    a.label('L_o_ld')
    for i in range(4):
        if i == 3:
            e('s_mov_b32 exec_hi, 0')
        e('buffer_load_dwordx4 %s, v%d, %s, s%d offen offset:%d sc1' % (vq(vLA + 4 * i), vLA + 20, srd(SWS), (sT0, sT1)[i >> 1], (i & 1) * 2048))
    e('s_mov_b32 exec_hi, -1')
    for i in range(4):
        e('s_waitcnt vmcnt(%d)' % (3 - i))
        mfma(vq(vT), vq(oA), vq(vLA + 4 * i), i == 0)
    for k in range(2):
        e('v_add_f32_dpp v%d, v%d, v%d row_ror:8 %s' % (vT + k, vT + k, vT + k, DPPF))
    e('v_cmp_u_f32 vcc, v%d, v%d' % (vT, vT + 1))
    OOL.append(('L_o_bad', lambda: (sentinel_check(vLA, 16, vT + 2), e('s_cbranch_vccz L_o_ok'), spin_tail('L_o_ld'))))
elif args.zo:
    e('v_and_b32 v%d, 31, v0' % t0)
    e('v_lshlrev_b32 v%d, 8, v%d' % (t0, t0))
    e('v_lshrrev_b32 v%d, 5, v0' % t1)
    e('v_lshl_or_b32 v%d, v%d, 3, v%d' % (t0, t1, t0))
    e('v_mov_b32 v%d, 0' % t1)
    e('s_and_b32 s%d, s2, 15' % sT0)
    e('s_lshr_b32 s%d, s2, 4' % sT1)
    e('s_lshl2_add_u32 s%d, s%d, s%d' % (sT0, sT0, sT1))
    e('s_lshl2_add_u32 s%d, s%d, s%d' % (sT0, sT0, sZg))
    e('s_lshl_b32 s%d, 1, s2' % sMt)
    e('s_mov_b32 s%d, s%d' % (sMt + 1, sMt))
    a.label('L_outw')
    e('s_mov_b32 exec_lo, 0x0fffffff')
    e('s_mov_b32 exec_hi, 0x0fffffff')
    ackwait(args.acko)
    e('buffer_load_dword v%d, v%d, %s, s%d offen sc1' % (t1, t0, srd(SWS), sT0))
    e('s_mov_b64 exec, -1')
    e('s_waitcnt vmcnt(0)')
    e('v_lshlrev_b32 v%d, 16, v%d' % (vT, t1))
    e('v_and_b32 v%d, 0xffff0000, v%d' % (vT + 1, t1))
    e('v_cmp_eq_u32 vcc, -1, v%d' % t1)
    OOL.append(('L_outr', lambda: spin_tail('L_outw')))
else:
    e('v_and_b32 v%d, 31, v0' % t0)
    e('v_and_b32 v%d, 16, v0' % t1)
    e('v_add_lshl_u32 v%d, v%d, v%d, 9' % (t0, t0, t1))
    e('v_lshrrev_b32 v%d, 5, v0' % t1)
    e('v_lshl_or_b32 v%d, v%d, 3, v%d' % (t0, t1, t0))
    e('s_lshl_b32 s%d, s2, 4' % sT0)
    e('s_add_u32 s%d, s%d, s%d' % (sT0, sT0, sZg))
    ackwait(args.acko)
    a.label('L_outw')
    e('buffer_load_dwordx2 %s, v%d, %s, s%d offen sc1' % (vp(vT), t0, srd(SWS), sT0))
    e('s_waitcnt vmcnt(0)')
    e('v_max_u32 v%d, v%d, v%d' % (t1, vT, vT + 1))
    e('v_cmp_eq_u32 vcc, -1, v%d' % t1)
    e('s_cbranch_vccz L_outok')
    spin_tail('L_outw')
    a.label('L_outok')
sq_(5)
ra = allreduce_list('v_add_f32', vT, vT + 2, (0, 1, 2, 3, 4))
rb = allreduce_list('v_add_f32', vT + 1, vT + 3, (0, 1, 2, 3, 4))
for k, (x, y) in enumerate(zip(ra, rb)):
    if args.zo == 2:
        break
    if args.zo and k == 2:
        a.raw('    s_cbranch_vccnz L_outr')
        a.pos += 1
    e(x)
    e(y)
e('v_cvt_pk_bf16_f32 v%d, 0, v%d' % (vT, vT))
e('v_cvt_pk_bf16_f32 v%d, 0, v%d' % (vT + 1, vT + 1))
e('v_add_f32 v%d, v%d, v%d' % (vT, vX, vT))
e('v_add_f32 v%d, v%d, v%d' % (vT + 1, vX + 1, vT + 1))
e('v_cvt_pk_bf16_f32 v%d, v%d, v%d' % (vT, vT, vT + 1))
if args.zo == 2:
    a.raw('    s_cbranch_vccnz L_o_bad')
    a.pos += 1
    a.raw('L_o_ok:')
if not args.zo:
    e('s_lshl_b32 s%d, 1, s2' % sMt)
    e('s_mov_b32 s%d, s%d' % (sMt + 1, sMt))
e('s_mov_b64 exec, %s' % sp(sMt))
e('buffer_store_dword v%d, v%d, %s, s%d offen sc1' % (vT, vXo, srd(SOUT), sOutB))
e('s_mov_b64 exec, -1')
if args.zo == 2:
    a.label('L_outn')
stamp(vLA)
ct(8)
e('s_cmp_eq_u32 s%d, 3' % sIt)
e('s_cbranch_scc0 L_next')
sq_dump(vLA)
ct_dump(vLA)
if args.pad:
    a.label('L_pad')
    e('s_memrealtime s[82:83]')
    e('s_waitcnt lgkmcnt(0)')
    e('s_sub_u32 s82, s82, s84')
    e('s_cmp_lt_u32 s82, %d' % (args.pad * 100))
    e('s_cbranch_scc1 L_pad')
if args.icprobe:
    e('s_branch L_ic0')
e('s_endpgm')
a.label('L_next')
if args.quiet and not args.sq:
    e('s_mov_b32 s16, s18')
if not args.novote:
    e('v_lshlrev_b32 v%d, 2, v0' % vT)
    e('buffer_load_dword v%d, v%d, %s, 0 offen sc1' % (vT + 1, vT, srd(SDBG)))
    e('s_waitcnt vmcnt(0)')
    count_votes()
setx(vX1)
e('s_add_u32 s%d, s%d, 2048' % (sKV, sKV))
e('s_mov_b32 s%d, 1024' % sOutB)
e('s_add_u32 s%d, s%d, 1024' % (sQa, sQa))
e('s_mov_b32 s%d, 32' % sJA)
e('s_branch L_own')

for lbl, ops in OOL:
    a.label(lbl)
    if callable(ops):
        e('s_nop 1')
        ops()
        continue
    for op in ops:
        e(op)

for blk in RAW:
    for ln in blk:
        a.raw(ln)
for k in range(args.icprobe):
    a.raw('    s_endpgm\n.p2align 11\nL_ic%d:\n    s_branch L_ic%d' % (k, k + 1))
if args.icprobe:
    a.raw('L_ic%d:' % args.icprobe)

hdr = open('cdna_kernels/%s.s.ref' % NAME).read().split('\n')
head = []
for ln in hdr:
    if ln.startswith('; @launch'):
        head.append('; @launch grid=(256,1,1) block=(256,1,1) lds=163840')
    elif ln.startswith('.p2align 8') and args.al:
        head += ['.p2align 12', ln]
    elif ln.startswith(NAME + '_kernel:'):
        head.append(ln)
        break
    else:
        head.append(ln)
tail = '''.section .rodata,"a"
.p2align 6
.amdhsa_kernel %s_kernel
  .amdhsa_next_free_vgpr 512
  .amdhsa_next_free_sgpr 102
  .amdhsa_accum_offset 256
  .amdhsa_group_segment_fixed_size 0
  .amdhsa_kernarg_size 96
  .amdhsa_user_sgpr_count 2
  .amdhsa_user_sgpr_kernarg_segment_ptr 1
  .amdhsa_system_sgpr_workgroup_id_x 1
.end_amdhsa_kernel
''' % NAME
if SITES:
    import warm
    a.lines = warm.place('\n'.join(a.lines).split('\n'), head, tail, SITES, 0 if args.al else 0xc00, args.wR)
open(args.o, 'w').write('\n'.join(head) + '\n' + a.text() + 's_endpgm\n' + tail + ('; TSB=%d\n' % (TSB + (args.wsoff << 20)) if args.ts else ''))
print('wrote', args.o, len(a.lines), 'lines')
```

```python
import sys, math, struct, argparse
sys.path.insert(0, 'gen')
from asmlib import Asm

NAME = 'interleave_layers__mha_block_cached__glu_gated_geglu__decode'

ap = argparse.ArgumentParser()
ap.add_argument('-o', default='cdna_kernels/%s.s' % NAME)
ap.add_argument('--D', type=int, default=8)
ap.add_argument('--DE', type=int, default=8)
ap.add_argument('--NE', type=int, default=24)
ap.add_argument('--DC0', type=int, default=8)
ap.add_argument('--NC0', type=int, default=8)
ap.add_argument('--DC', type=int, default=8)
ap.add_argument('--X', type=int, default=68)
ap.add_argument('--QF', type=int, default=126)
ap.add_argument('--budget', type=int, default=200)
ap.add_argument('--pol', default='nt')
ap.add_argument('--polA', default=None)
ap.add_argument('--polB', default=None)
ap.add_argument('--polC', default=None)
ap.add_argument('--polB1', default=None)
ap.add_argument('--DA', type=int, default=None)
ap.add_argument('--ms', default='')
ap.add_argument('--Dlo', type=int, default=5)
ap.add_argument('--Dhi', type=int, default=8)
ap.add_argument('--Elo', type=int, default=6)
ap.add_argument('--DB0h', type=int, default=None)
ap.add_argument('--q2fb', action='store_true')
ap.add_argument('--ons', type=int, default=3)
ap.add_argument('--qns', type=int, default=3)
ap.add_argument('--qsl', type=int, default=1)
ap.add_argument('--b1ts', action='store_true')
ap.add_argument('--lts', default='')
ap.add_argument('--nofyz', type=int, default=0)
ap.add_argument('--par', default='race')
ap.add_argument('--RR', type=int, default=1)
ap.add_argument('--novote', type=int, default=0)
ap.add_argument('--QI', type=int, default=44)
ap.add_argument('--stch', default='pyz')
ap.add_argument('--XE', type=int, default=None)
ap.add_argument('--sq', action='store_true')
ap.add_argument('--Cm', type=int, default=0)
ap.add_argument('--polM', default='')
ap.add_argument('--polCf', default=None)
ap.add_argument('--B1t', type=int, default=0)
ap.add_argument('--B1tp', default='sc1')
ap.add_argument('--B1tl', type=int, default=0)
ap.add_argument('--DC1h', type=int, default=None)
ap.add_argument('--DCl', type=int, default=None)
ap.add_argument('--wsoff', type=int, default=0)
ap.add_argument('--ypol', default='sc1')
ap.add_argument('--fpol', default='sc1')
ap.add_argument('--ilv', type=int, default=0)
ap.add_argument('--zl', type=int, default=0)
ap.add_argument('--yoff', type=int, default=0)
ap.add_argument('--goff', type=int, default=0)
ap.add_argument('--ysl', type=int, default=0)
ap.add_argument('--y1', type=int, default=0)
ap.add_argument('--Ce', type=int, default=0)
ap.add_argument('--Cs', type=int, default=0)
ap.add_argument('--Cp', type=int, default=2)
ap.add_argument('--Cc', type=int, default=1)
ap.add_argument('--Cn', type=int, default=0)
ap.add_argument('--w0', type=int, default=0)
ap.add_argument('--vfull', type=int, default=0)
ap.add_argument('--xfill', type=int, default=0)
ap.add_argument('--wo0', type=int, default=0)
ap.add_argument('--p2d', type=int, default=0)
ap.add_argument('--cskip', type=int, default=0)
ap.add_argument('--park', type=int, default=0)
ap.add_argument('--warm', type=int, default=1)
ap.add_argument('--zh', type=int, default=0)
ap.add_argument('--zb', type=int, default=0)
ap.add_argument('--yh', type=int, default=0)
ap.add_argument('--yb', type=int, default=0)
ap.add_argument('--z1', type=int, default=0)
ap.add_argument('--zo', type=int, default=0)
ap.add_argument('--osv', type=int, default=0)
ap.add_argument('--z28', type=int, default=0)
ap.add_argument('--lpol', default='sc1')
ap.add_argument('--lpolo', default=None)
ap.add_argument('--opol', default='sc1')
ap.add_argument('--zc', type=int, default=0)
ap.add_argument('--kpat', type=int, default=0)
ap.add_argument('--ssl', type=int, default=2)
ap.add_argument('--psl', type=int, default=2)
ap.add_argument('--pall', type=int, default=0)
ap.add_argument('--tr', type=int, default=0)
ap.add_argument('--lnb', type=int, default=4)
ap.add_argument('--sl', type=int, default=7)
ap.add_argument('--wo1', type=int, default=4)
ap.add_argument('--noit1', type=int, default=0)
ap.add_argument('--DC0h', type=int, default=None)
ap.add_argument('--Cx', type=int, default=0)
ap.add_argument('--Cx0', type=int, default=0)
ap.add_argument('--Cf0', type=int, default=None)
ap.add_argument('--x4', type=int, default=0)
ap.add_argument('--far1', type=int, default=0)
ap.add_argument('--B2lo', type=int, default=None)
ap.add_argument('--B2hi', type=int, default=None)
ap.add_argument('--B3lo', type=int, default=None)
ap.add_argument('--gb', type=int, default=0)
ap.add_argument('--gb0', type=int, default=13)
ap.add_argument('--gbn', type=int, default=3)
ap.add_argument('--gbl', type=int, default=8)
ap.add_argument('--gbk', default='0123456')
ap.add_argument('--wS', type=int, default=0)
ap.add_argument('--wA', default='')
ap.add_argument('--wR', default='')
ap.add_argument('--al', type=int, default=0)
ap.add_argument('--sh', type=int, default=0)
ap.add_argument('--lay', type=int, default=1)
ap.add_argument('--tch', default='')
ap.add_argument('--tchm', default='0xfffff')
ap.add_argument('--tchp', default='sc1')
ap.add_argument('--quiet', action='store_true')
ap.add_argument('--ffirst', type=int, default=99)
ap.add_argument('--noof', type=int, default=0)
ap.add_argument('--plain', default='')
ap.add_argument('--B1pat', default='')
ap.add_argument('--acky', type=int, default=0)
ap.add_argument('--ackz', type=int, default=0)
ap.add_argument('--acko', type=int, default=0)
ap.add_argument('--nk', type=int, default=None)
ap.add_argument('--nv', type=int, default=0)
ap.add_argument('--alt', type=int, default=0)
ap.add_argument('--pfn', type=int, default=0)
ap.add_argument('--pfi', type=int, default=2)
ap.add_argument('--pf0', type=int, default=0)
ap.add_argument('--K72', type=int, default=2)
ap.add_argument('--q2p', type=int, default=None)
ap.add_argument('--pfpol', default='')
ap.add_argument('--pfs', type=int, default=2)
ap.add_argument('--DP2', type=int, default=None)
ap.add_argument('--B1lo', type=int, default=None)
ap.add_argument('--B1hi', type=int, default=None)
ap.add_argument('--sf', type=int, default=0)
ap.add_argument('--cts', action='store_true')
ap.add_argument('--Cfirst', action='store_true')
ap.add_argument('--msl', action='store_true')
ap.add_argument('--mlag', type=int, default=6)
ap.add_argument('--B1n', type=int, default=99)
ap.add_argument('--NC1', type=int, default=99)
ap.add_argument('--DC1', type=int, default=4)
ap.add_argument('--wpol', default='nt')
ap.add_argument('--nofast', action='store_true')
ap.add_argument('--skip', default='')
ap.add_argument('--bwtest', type=int, default=0)
ap.add_argument('--DB0', type=int, default=8)
ap.add_argument('--NB0', type=int, default=8)
ap.add_argument('--gateA', type=int, default=-1)
ap.add_argument('--gateB', type=int, default=-1)
ap.add_argument('--thA', type=int, default=0)
ap.add_argument('--thB', type=int, default=0)
ap.add_argument('--gsleep', type=int, default=1)
ap.add_argument('--gone', type=int, default=1)
ap.add_argument('--NEB', type=int, default=None)
ap.add_argument('--DEB', type=int, default=None)
ap.add_argument('--NP2', default='6,3,3,3,3')
ap.add_argument('--P2POS', default='9,30,55,80,100')
ap.add_argument('--P2ND', type=int, default=9)
ap.add_argument('--P2B1', type=int, default=2)
ap.add_argument('--P2H', type=int, default=0)
ap.add_argument('--P2G', default='')
ap.add_argument('--P2DS2', type=int, default=1)
ap.add_argument('--P2DSL', type=int, default=30)
ap.add_argument('--P2OOL', type=int, default=1)
ap.add_argument('--Cmix', action='store_true')
ap.add_argument('--icprobe', type=int, default=0)
ap.add_argument('--noack', action='store_true')
ap.add_argument('--map', type=int, default=2)
ap.add_argument('--ts', action='store_true')
ap.add_argument('--pad', type=int, default=0)
args = ap.parse_args()
polA = args.pol if args.polA is None else args.polA
polB = args.pol if args.polB is None else args.polB
polC = args.pol if args.polC is None else args.polC
polB1 = polB if args.polB1 is None else args.polB1


def sc(c):
    return '' if c in args.plain else 'sc1'


def f32(x):
    return '0x%08x' % struct.unpack('<I', struct.pack('<f', x))[0]


OFF_Q, OFF_O = 1024, 3072
HEADA = 11264
YB = 32 * HEADA
ZB = YB + 4 * 32768
if args.zl:
    ZB = (ZB + 131071) // 131072 * 131072
RACEB = ZB + (4 + args.xfill) * 131072
assert YB % 16384 == 0
WS_USED = RACEB + 2 * 16384
if args.yoff:
    YB = WS_USED = (WS_USED + 16383) // 16384 * 16384 + (args.yoff - 1) * 32768
    WS_USED += 131072
WS_USED += args.goff * 131072
GATEB = WS_USED
WS_USED += 2048
GBB = WS_USED
WS_USED += 8192 if args.gb else 0
TSB = WS_USED
WS_SIZE = TSB + (256 * 4 * 64 * 8 if args.ts else 0)
BATCH = 0x4000000
PARTB = 299008
LOG2E = 1.4426950408889634
SPIN_BUDGET = 400000

sU = 3
SK, SV, SWS, SDBG = 28, 32, 36, 40
SWQ, SWO, SGA, SUP, SDN, SX, SOUT = 44, 48, 52, 56, 60, 64, 68
sBud = 72
sT0, sT1 = 73, 74
sMaskJ8 = 76
sMaskV = 78
sMt = 80
sTS = 75
sTm = 82
sHA = 89
sBase, sOff, sLds, sPubJ, sStatJ, sPub, sStat, sH, sTail, sGate, sGo, sFo, sEx = 86, 87, 88, 90, 91, 92, 93, 94, 95, 96, 97, 98, 99
sIt, sJA, sYp, sYg, sRet, sQa, sG0, sG1, sG2, sG3, sKV, sOutB, sFast = 86, 87, 88, 90, 91, 92, 95, 96, 97, 98, 99, 100, 101
sHU, sZg = 93, 94
sHS, sVt, sIod = 0, 1, 27
sOt, sOm, sLoc = 6, 7, 8
sTag = 45
sQm = 4


def srd(i):
    return 's[%d:%d]' % (i, i + 3)


def sp(i):
    return 's[%d:%d]' % (i, i + 1)


def vq(i):
    return 'v[%d:%d]' % (i, i + 3)


def vp(i):
    return 'v[%d:%d]' % (i, i + 1)


def base_of(q):
    return int(q[2:].split(':')[0])


def pair(q0, q1):
    assert q0[0] == q1[0] and base_of(q1) == base_of(q0) + 4, (q0, q1)
    return '%s[%d:%d]' % (q0[0], base_of(q0), base_of(q0) + 7)


DPPF = 'row_mask:0xf bank_mask:0xf'
OOL = []
RAW = []
RAW2 = []
a = Asm()
e = a.e
_vmem = a.vmem


def vmem_dbg(text):
    drop = {'q': srd(SWQ), 'o': srd(SWO), 'g': srd(SGA), 'G': srd(SUP), 'd': srd(SDN)}
    sk = args.skip.replace('g', 'gG')
    for k, v in drop.items():
        if k in sk and v in text:
            text = text.replace(v, srd(SX))
    if 'store' in text and 'sc1' in text and srd(SWS) in text:
        small = any(l.strip() in ('s_mov_b64 exec, 15', 's_mov_b32 exec_hi, 0') for l in a.lines[-8:]) and not any(l.strip() == 's_mov_b64 exec, -1' for l in a.lines[-3:])
        svc = 'L_service:' in a.lines
        if 'f' in sk or ('s' in sk and small) or ('r' in sk and not small and not svc) or ('y' in sk and not small and svc):
            e('s_nop 0')
            return len(a.vm) - 1
        if 'p' in sk:
            text = text.replace('sc1', '')
        if 'n' in sk:
            text = text.replace('sc1', 'sc1 nt')
    return _vmem(text)


if args.skip:
    assert args.bwtest or args.ts
    a.vmem = vmem_dbg


def mk_srd(s, ptr, size):
    if s == SWS and args.wsoff:
        e('s_add_u32 s%d, s%d, 0x%x' % (s, ptr, args.wsoff << 20))
        e('s_addc_u32 s%d, s%d, 0' % (s + 1, ptr + 1))
    else:
        e('s_mov_b32 s%d, s%d' % (s, ptr))
        e('s_mov_b32 s%d, s%d' % (s + 1, ptr + 1))
    e('s_mov_b32 s%d, 0x%x' % (s + 2, size))
    e('s_mov_b32 s%d, 0x00020000' % (s + 3))


def smask(s, val):
    e('s_mov_b32 s%d, 0x%08x' % (s, val & 0xffffffff))
    e('s_mov_b32 s%d, 0x%08x' % (s + 1, val >> 32))


QSK = [0]


def stamp(tmp, entry=False):
    if args.quiet:
        if not entry and not args.lts and 'L_service:' not in a.lines and QSK[0] < 9:
            e('s_memrealtime s[%d:%d]' % (6 + 2 * QSK[0], 7 + 2 * QSK[0]))
            QSK[0] += 1
        return
    if not args.ts or (args.cts and not entry):
        return
    a.lgwait_all()
    e('s_memrealtime %s' % sp(sTm))
    if not entry:
        e('s_getreg_b32 s%d, hwreg(HW_REG_XCC_ID, 0, 4)' % (sTm + 2))
    e('s_waitcnt lgkmcnt(0)')
    e('v_mov_b32 v%d, s%d' % (tmp, sTm))
    e('v_mov_b32 v%d, s%d' % (tmp + 1, sTm + 2))
    e('s_mov_b64 exec, 1')
    a.vmem('buffer_store_dwordx2 %s, off, %s, s%d' % (vp(tmp), srd(SWS), sTS))
    e('s_mov_b64 exec, -1')
    e('s_add_u32 s%d, s%d, 8' % (sTS, sTS))


def ct(k):
    if args.cts:
        e('s_memtime s[%d:%d]' % (6 + 2 * k, 7 + 2 * k))


def sq_(k):
    if args.sq:
        e('s_memrealtime s[%d:%d]' % (10 + 2 * k, 11 + 2 * k))


def sq_dump(tmp):
    if not args.sq:
        return
    e('s_waitcnt lgkmcnt(0)')
    e('s_mov_b64 exec, 1')
    for k in range(7):
        e('v_mov_b32 v%d, s%d' % (tmp, 10 + 2 * k))
        e('buffer_store_dword v%d, off, %s, s%d offset:%d' % (tmp, srd(SWS), sTS, k * 8))
        e('s_nop 1')
    e('s_add_u32 s%d, s%d, 64' % (sTS, sTS))
    e('s_mov_b64 exec, -1')


def ct_dump(tmp):
    if not (args.cts or args.b1ts or args.lts or args.quiet):
        return
    if args.quiet:
        e('s_memrealtime s[24:25]')
    e('s_waitcnt lgkmcnt(0)')
    e('s_and_b32 s%d, s%d, 0xfffffe00' % (sTS, sTS))
    e('s_mov_b64 exec, 1')
    if args.quiet:
        e('v_mov_b32 v%d, s84' % tmp)
        e('buffer_store_dword v%d, off, %s, s%d offset:4' % (tmp, srd(SWS), sTS))
        e('s_waitcnt vmcnt(0)')
    for k in range(11):
        e('v_mov_b32 v%d, s%d' % (tmp, 6 + 2 * k))
        e('buffer_store_dword v%d, off, %s, s%d offset:%d' % (tmp, srd(SWS), sTS, (40 + k) * 8))
        e('s_waitcnt vmcnt(0)')
    e('s_mov_b64 exec, -1')


SITES = []


def warm_site(grp):
    k = len(SITES)
    SITES.append(grp)
    e('s_mov_b64 exec, 0')
    for w in range(1, 4):
        e('s_cmp_eq_u32 s%d, %d' % (sU, w))
        a.raw('    s_cbranch_scc1 @W%d_%d' % (k, w))
    a.raw('    s_branch @W%d_0' % k)
    a.raw('L_wr%d:' % k)
    e('s_mov_b64 exec, -1')


def spin_tail(lbl, sleep=0):
    if sleep:
        e('s_sleep %d' % sleep)
    e('s_sub_u32 s%d, s%d, 1' % (sBud, sBud))
    e('s_cbranch_scc0 %s' % lbl)
    e('s_endpgm')


def allreduce_list(op, r, t, steps=(0, 1, 2, 3, 4, 5)):
    d = {0: 'quad_perm:[1,0,3,2]', 1: 'quad_perm:[2,3,0,1]', 2: 'row_ror:4', 3: 'row_ror:8'}
    out = []
    for s in steps:
        if s < 4:
            out.append('%s_dpp v%d, v%d, v%d %s %s' % (op, r, r, r, d[s], DPPF))
        else:
            out.append('v_mov_b32 v%d, v%d' % (t, r))
            out.append('v_permlane%d_swap_b32 v%d, v%d' % (16 if s == 4 else 32, r, t))
            out.append('%s v%d, v%d, v%d' % (op, r, r, t))
    return out


def build_bt(bt, q, n=4):
    for t in range(n):
        smask(sMt, 0x000F000F000F000F << (4 * t))
        for r in range(4):
            e('v_cndmask_b32 v%d, 0, v%d, %s' % (bt + 4 * t + r, q + r, sp(sMt)))


def score_ops(P, g, D, C, first):
    out = []
    for r in range(4):
        op = 'v_mul_f32_dpp' if first and r == 0 else 'v_fmac_f32_dpp'
        out.append('%s v%d, v%d, v%d quad_perm:[%d,%d,%d,%d] %s' % (op, P[g >> 2], D + r, C + (g & 3), r, r, r, r, DPPF))
    return out


def softmax(P, m, t, stat_soff, fill1, fill2, sw16, exm, tag):
    l = m + 1
    e('v_mov_b32 v%d, 0xff800000' % t)
    e('v_cndmask_b32 v%d, v%d, v%d, %s' % (P[-1], t, P[-1], sp(sMaskV)))
    if len(P) == 1:
        e('v_mov_b32 v%d, v%d' % (m, P[0]))
    else:
        e('v_max3_f32 v%d, v%d, v%d, v%d' % (m, P[0], P[1], P[2]))
        e('v_max3_f32 v%d, v%d, v%d, v%d' % (m, m, P[3], P[4]))
    a.chain(allreduce_list('v_max_f32', m, t), fill1)
    for p in P:
        e('v_sub_f32 v%d, v%d, v%d' % (p, p, m))
    for p in P:
        e('v_exp_f32 v%d, v%d' % (p, p))
    for p in P:
        e('v_cvt_pk_bf16_f32 v%d, 0, v%d' % (p, p))
    if len(P) == 1:
        e('v_mov_b32 v%d, v%d' % (l, P[0]))
    else:
        e('v_add_f32 v%d, v%d, v%d' % (l, P[0], P[1]))
        e('v_add_f32 v%d, v%d, v%d' % (t, P[2], P[3]))
        e('v_add_f32 v%d, v%d, v%d' % (l, l, P[4]))
        e('v_add_f32 v%d, v%d, v%d' % (l, l, t))
    fill = fill1 + fill2
    a.chain(allreduce_list('v_add_f32', l, t), fill)
    e('v_min_u32 v%d, -2, v%d' % (m, m))
    e('v_min_u32 v%d, -2, v%d' % (l, l))
    e('v_mov_b32 v%d, s%d' % (t, sw16))
    e('s_mov_b64 exec, 1')
    if stat_soff is not None:
        store_sel('buffer_store_dwordx2 %s, off, %s, s%d' % (vp(m), srd(SWS), stat_soff), tag, True)
    a.lds('ds_write_b32 v%d, v%d offset:%d' % (t, m, exm))
    e('s_mov_b64 exec, -1')
    for op in fill:
        e(op)


def store_sel(text, tag, count, raw=False, sFo=sFo):
    emit = a.vmem if count else e
    if tag is None:
        emit(text + ' ' + sc('D' if count else 'E'))
        return
    e('s_cmp_eq_u32 s%d, 0' % sFo)
    if raw:
        a.nop(a.needed(text))
        a.raw('    s_cbranch_scc0 L_st_%s' % tag)
        a.pos += 1
        emit(text)
        a.raw('L_str_%s:' % tag)
        RAW.append(['L_st_%s:' % tag, '    %s sc1' % text, '    s_branch L_str_%s' % tag])
        return
    e('s_cbranch_scc0 L_st_%s' % tag)
    emit(text)
    a.label('L_str_%s' % tag)
    OOL.append(('L_st_%s' % tag, [text + ' sc1', 's_branch L_str_%s' % tag]))


def scale_a(c, l16, exm):
    e('v_and_b32 v%d, 0x30, v%d' % (c, l16))
    a.lgwait_all()
    e('s_barrier')
    return a.lds('ds_read_b32 v%d, v%d offset:%d' % (c, c, exm))


def scale_b(c, m):
    return allreduce_list('v_max_f32', c, None, (0, 1)) + ['v_sub_f32 v%d, v%d, v%d' % (c, m, c), 'v_exp_f32 v%d, v%d' % (c, c)]


def wg_publish(O, c, wa, l8, exo, T, soff, tag, lbl, ack=0, sTag=sTag, sFo=sFo):
    if c is not None:
        e('v_mul_f32 v%d, v%d, v%d' % (O, O, c))
        e('v_mul_f32 v%d, v%d, v%d' % (O + 1, O + 1, c))
        e('s_cmp_lg_u32 s%d, 0' % sU)
    a.lds('ds_write_b64 v%d, %s offset:%d' % (wa, vp(O), exo))
    a.lgwait_all()
    e('s_barrier')
    e('s_cbranch_scc1 %s' % lbl)
    for w in range(3):
        a.lds('ds_read_b64 %s, v%d offset:%d' % (vp(T + 2 * w), l8, exo + 512 * (w + 1)))
    e('s_waitcnt lgkmcnt(2)')
    e('v_pk_add_f32 %s, %s, %s' % (vp(O), vp(O), vp(T)))
    a.lgwait_all()
    e('v_pk_add_f32 %s, %s, %s' % (vp(T + 2), vp(T + 2), vp(T + 4)))
    e('v_pk_add_f32 %s, %s, %s' % (vp(O), vp(O), vp(T + 2)))
    e('v_and_or_b32 v%d, v%d, -4, s%d' % (O, O, sTag))
    e('v_and_or_b32 v%d, v%d, -4, s%d' % (O + 1, O + 1, sTag))
    store_sel('buffer_store_dwordx2 %s, v%d, %s, s%d offen' % (vp(O), l8, srd(SWS), soff), tag, False, True, sFo)
    if ack:
        e('s_waitcnt vmcnt(0)')
    a.label(lbl)


def a_ops(A, src, sw, r):
    q = lambda x: 'quad_perm:[%d,%d,%d,%d]' % (x, x, x, x)
    return ['v_mov_b32_dpp v%d, v%d %s row_mask:0xf bank_mask:0x5' % (A, src, q(r)),
            'v_mov_b32_dpp v%d, v%d %s row_mask:0xf bank_mask:0xa' % (A + 1, sw, q(3 - r)),
            'v_mov_b32_dpp v%d, v%d %s row_mask:0xf bank_mask:0x5' % (A + 2, sw, q(3 - r)),
            'v_mov_b32_dpp v%d, v%d %s row_mask:0xf bank_mask:0xa' % (A + 3, src, q(r))]


def mirror(d, s):
    return 'v_mov_b32_dpp v%d, v%d row_half_mirror %s' % (d, s, DPPF)


def tail_a(A, p, lane, M, t):
    return ['v_lshrrev_b32 v%d, 16, v%d' % (t, p), 'v_or_b32 v%d, v%d, v%d' % (t, t, p)] + \
           ['v_and_b32_dpp v%d, v%d, v%d row_newbcast:%d %s' % (A + k, t, M + k, lane, DPPF) for k in range(4)]


def merge(O1, O2):
    e('v_permlane32_swap_b32 v%d, v%d' % (O1, O1 + 2))
    e('v_permlane32_swap_b32 v%d, v%d' % (O1 + 1, O1 + 3))
    if O2 is not None:
        e('v_permlane32_swap_b32 v%d, v%d' % (O2, O2 + 2))
        e('v_permlane32_swap_b32 v%d, v%d' % (O2 + 1, O2 + 3))
        e('v_add_f32 v%d, v%d, v%d' % (O1, O1, O2 + 2))
        e('v_add_f32 v%d, v%d, v%d' % (O1 + 1, O1 + 1, O2 + 3))


def publish2(r, voff, soff):
    e('v_min_u32 v%d, -2, v%d' % (r, r))
    e('v_min_u32 v%d, -2, v%d' % (r + 1, r + 1))
    a.vmem('buffer_store_dwordx2 %s, v%d, %s, s%d offen sc1' % (vp(r), voff, srd(SWS), soff))


def publish_local(r, voff, soff, tag):
    a.vmem('buffer_store_dwordx2 %s, v%d, %s, s%d offen %s' % (vp(r), voff, srd(SWS), soff, args.ypol))


def mfma(D, A, B, first):
    e('v_mfma_f32_16x16x32_bf16 %s, %s, %s, %s' % (D, A, B, '0' if first else D))


def smf(D, A, B, idx):
    e('v_smfmac_f32_16x16x64_bf16 %s, %s, %s, v%d' % (vq(D), vq(A), B, idx))


def mk_masks(M, t):
    rep = 0x0001000100010001
    e('v_mov_b32 v%d, 0xffff' % t)
    e('v_mov_b32 v%d, 0xffff0000' % (t + 1))
    for k in range(4):
        smask(sMt, rep << (2 * k))
        e('v_cndmask_b32 v%d, 0, v%d, %s' % (M + k, t, sp(sMt)))
        smask(sMt, rep << (2 * k + 1))
        e('v_cndmask_b32 v%d, v%d, v%d, %s' % (M + k, M + k, t + 1, sp(sMt)))


def mk_c(C, n, t):
    e('v_mov_b32 v%d, %s' % (t, f32(LOG2E / math.sqrt(128.0))))
    for r in range(n):
        smask(sMt, 0x1111111111111111 << r)
        e('v_cndmask_b32 v%d, 0, v%d, %s' % (C + r, t, sp(sMt)))


def mk_koff(d, lane, t):
    e('v_and_b32 v%d, 3, v%d' % (d, lane))
    e('v_lshlrev_b32 v%d, 4, v%d' % (d, d))
    e('v_bfe_u32 v%d, v%d, 2, 2' % (t, lane))
    e('v_lshl_or_b32 v%d, v%d, 9, v%d' % (d, t, d))
    e('v_lshrrev_b32 v%d, 4, v%d' % (t, lane))
    e('v_lshl_or_b32 v%d, v%d, 6, v%d' % (d, t, d))


def mk_qoff(d, lane, t):
    e('v_and_b32 v%d, 3, v%d' % (d, lane))
    e('v_lshlrev_b32 v%d, 4, v%d' % (d, d))
    e('v_lshrrev_b32 v%d, 4, v%d' % (t, lane))
    e('v_lshl_or_b32 v%d, v%d, 6, v%d' % (d, t, d))


def idx_ops(d, l16):
    return ['v_bfe_u32 v%d, v%d, 4, 2' % (d, l16), 'v_mul_u32_u24 v%d, 0x4444, v%d' % (d, d)]


def tail_soff(dst, t):
    e('s_lshr_b32 s%d, s%d, 1' % (dst, sU))
    e('s_lshl_b32 s%d, s%d, 11' % (dst, dst))
    e('s_and_b32 s%d, s%d, 1' % (t, sU))
    e('s_lshl_b32 s%d, s%d, 8' % (t, t))
    e('s_add_u32 s%d, s%d, s%d' % (dst, dst, t))


if args.ts or args.pad:
    e('s_memrealtime s[84:85]')
e('s_cmp_ge_u32 s2, 256')
e('s_cbranch_scc0 L_go')
e('s_endpgm')
a.label('L_go')
e('s_load_dwordx16 s[4:19], s[0:1], 0')
e('s_load_dwordx8 s[20:27], s[0:1], 64')
e('v_lshrrev_b32 v1, 6, v0')
e('v_and_b32 v0, 63, v0')
e('v_readfirstlane_b32 s%d, v1' % sU)
e('s_mov_b32 s%d, %d' % (sBud, SPIN_BUDGET))
if args.ts:
    e('s_lshl_b32 s%d, s2, 2' % sTS)
    e('s_add_u32 s%d, s%d, s%d' % (sTS, sTS, sU))
    e('s_lshl_b32 s%d, s%d, 9' % (sTS, sTS))
    e('s_add_u32 s%d, s%d, 0x%x' % (sTS, sTS, TSB))
if args.map == 0:
    e('s_cmp_lt_u32 s2, 32')
    e('s_cbranch_scc1 L_service')
elif args.map == 1:
    e('s_and_b32 s%d, s2, 7' % sT0)
    e('s_lshr_b32 s2, s2, 3')
    e('s_sub_u32 s%d, s%d, 1' % (sT0, sT0))
    e('s_cbranch_scc1 L_service')
else:
    e('s_lshr_b32 s%d, s2, 5' % sT0)
    e('s_and_b32 s2, s2, 31')
    e('s_sub_u32 s%d, s%d, 1' % (sT0, sT0))
    e('s_cbranch_scc1 L_service')

vKo, vVo, vLd, vM, vC, vBT, vD = 4, 1, 11, 44, 7, 12, 28
vO1, vO2, vIdx, vMl = 12, 16, 25, 26
PA = [40, 41, 42, 43, 2]
PB = [48, 49, 50, 51, 3]
PS = [20, 21, 22, 23, 24]
vQ1, vQo, vPo = 48, 6, 5
PARK = {0: 32, 4: 16, 1: 20, 5: 24, 2: 36, 6: 44, 3: 8, 7: 0} if args.park else {}
sBM, sMM = 56, 64
vQL = 40
vSc = vMl + 1
NQ = 73
NR = 8
RING = ['v[%d:%d]' % (52 + 4 * i, 55 + 4 * i) for i in range(NR)]
_ka = ['a[%d:%d]' % (4 * i, 4 * i + 3) for i in range(64)]
_kv = ['v[%d:%d]' % (84 + 4 * i, 87 + 4 * i) for i in range(9)]
KS = _ka[:args.X - 8] + _kv[:8] + _ka[args.X - 8:] + _kv[8:]
VSR = ['v[%d:%d]' % (120 + 4 * i, 123 + 4 * i) for i in range(34)]
NLV = 38
EXO, EXM, LVB, LVS = 0, 2048, 4096, 39936
VORD = list(range(NLV)) + [72] + list(range(NLV, 72))


def vslot(i):
    return ('L', i) if i < NLV else ('L', NLV) if i == 72 else VSR[i - NLV]


for x in range(224):
    assert (x * 293) >> 11 == x // 7
if args.map == 0:
    e('s_sub_u32 s%d, s2, 32' % sT0)
    e('s_mul_i32 s%d, s%d, 293' % (sH, sT0))
    e('s_lshr_b32 s%d, s%d, 11' % (sH, sH))
    e('s_mul_i32 s%d, s%d, 7' % (sT1, sH))
    e('s_sub_u32 s%d, s%d, s%d' % (sT0, sT0, sT1))
else:
    e('s_mov_b32 s%d, s2' % sH)
e('s_lshl_b32 s%d, s%d, 21' % (sLds, sH))
e('s_mul_i32 s%d, s%d, %d' % (sT1, sT0, args.ilv * 16384 or PARTB))
e('s_add_u32 s%d, s%d, s%d' % (sLds, sLds, sT1))
e('s_lshl_b32 s%d, s%d, 12' % (sT1, sU))
e('s_add_u32 s%d, s%d, s%d' % (sBase, sLds, sT1))
sBase2 = 44
sBaseV, sTailV = 45, 46
if args.nk == 2:
    e('s_waitcnt lgkmcnt(0)')
    e('s_load_dwordx2 s[50:51], s[14:15], 0')
    e('s_waitcnt lgkmcnt(0)')
if args.nk is not None:
    e('s_andn2_b32 s47, s%d, 4' % sH)
    e('s_lshr_b32 s48, s%d, 1' % sU)
    e('s_lshl2_add_u32 s47, s48, s47')
    e('s_getreg_b32 s48, hwreg(HW_REG_XCC_ID, 2, 1)')
    e('s_xor_b32 s48, s48, s47')
    e('s_xor_b32 s48, s48, %s' % (args.nk if args.nk < 2 else 's50'))
    e('s_and_b32 s48, s48, 1')
    e('s_lshl_b32 s48, s48, 13')
    e('s_lshl_b32 s47, s47, 21')
    e('s_add_u32 s47, s47, s48')
    e('s_and_b32 s48, s%d, 1' % sU)
    e('s_lshl_b32 s49, s48, 12')
    e('s_mul_i32 s%d, s%d, %d' % (sBase, sT0, 18 * 16384))
    e('s_add_u32 s%d, s%d, s49' % (sBase, sBase))
    e('s_add_u32 s%d, s%d, s47' % (sBase, sBase))
    e('s_xor_b32 s%d, s%d, %s' % (sBaseV, sBase, (args.nk ^ args.nv) << 13 if args.nk < 2 else 's51'))
    e('s_lshr_b32 s49, s%d, 2' % sT0)
    e('s_lshl_b32 s49, s49, 14')
    e('s_add_u32 s47, s47, s49')
    e('s_and_b32 s49, s%d, 3' % sT0)
    e('s_lshl_b32 s49, s49, 11')
    e('s_add_u32 s47, s47, s49')
    e('s_lshl_b32 s48, s48, 8')
    e('s_add_u32 s47, s47, s48')
    e('s_add_u32 s47, s47, %d' % (126 * 16384))
    e('s_xor_b32 s%d, s47, %s' % (sTailV, (args.nk ^ args.nv) << 13 if args.nk < 2 else 's51'))
if args.alt:
    e('s_xor_b32 s%d, s%d, 0x2000' % (sT1, sT1))
    e('s_add_u32 s%d, s%d, s%d' % (sBase2, sLds, sT1))
e('v_lshlrev_b32 v%d, 4, v0' % vVo)
if args.kpat:
    e('v_and_b32 v%d, 1, v0' % vKo)
    e('v_lshlrev_b32 v%d, 4, v%d' % (vKo, vKo))
    e('v_bfe_u32 v%d, v0, 1, 1' % vD)
    e('v_lshl_or_b32 v%d, v%d, 10, v%d' % (vKo, vD, vKo))
    e('v_bfe_u32 v%d, v0, 2, 1' % vD)
    e('v_lshl_or_b32 v%d, v%d, 8, v%d' % (vKo, vD, vKo))
    e('v_bfe_u32 v%d, v0, 3, 1' % vD)
    e('v_lshl_or_b32 v%d, v%d, 11, v%d' % (vKo, vD, vKo))
    e('v_lshrrev_b32 v%d, 4, v0' % vD)
    e('v_lshl_or_b32 v%d, v%d, 5, v%d' % (vKo, vD, vKo))
else:
    mk_koff(vKo, 0, vD)
e('s_waitcnt lgkmcnt(0)')
mk_srd(SK, 6, 2 * BATCH)


sMode, sVote = 100, 101
MS = {'on': False, 'list': [tuple(int(y) for y in x.split(':')) for x in args.ms.split(',') if x], 'k': 0, 'pend': None, 'reg': 51, 'ok': True}


def rmode():
    if MS['on'] and args.vfull:
        e('s_cmp_lg_u32 s%d, 0' % sMode)
        e('s_cselect_b64 vcc, -1, 0')
    elif MS['on']:
        e('s_mov_b32 vcc_lo, s%d' % sMode)
        e('s_mov_b32 vcc_hi, 0')


sRep, sRp, sGl, sXb, sGb, sOwn = 52, 53, 54, 55, 46, 47


def ms_hook(n):
    if MS['pend'] and n >= MS['pend'][0] and MS['pend'][2] is None:
        _, nv, thr, reg = MS['pend']
        MS['pend'] = None
        lb = a.newlabel('L_gb')
        e('s_cmp_lt_u32 s%d, s%d' % (sRp, sRep))
        e('s_cbranch_scc0 %s' % lb)
        e('s_waitcnt vmcnt(%d)' % (len(a.vm) - nv))
        e('v_cmp_ne_u32 %s, 0, v%d' % (sp(sMt), reg))
        e('s_and_b32 s%d, s%d, 0xff' % (sMt, sMt))
        e('s_or_b32 s%d, s%d, s%d' % (sMt, sMt, sOwn))
        e('s_bcnt1_i32_b32 s%d, s%d' % (sMt, sMt))
        e('s_lshr_b32 s%d, s%d, 1' % (sMt, sMt))
        e('s_bfm_b64 %s, s%d, 0' % (sp(sMt), sMt))
        e('v_cndmask_b32 v%d, 0, 1, %s' % (reg, sp(sMt)))
        e('s_mov_b64 exec, 15')
        e('buffer_store_byte v%d, v%d, %s, s%d offen offset:%d' % (reg, vPo, srd(SWS), sGate, 224 + MS['k']))
        e('s_mov_b64 exec, -1')
        a.label(lb)
    if MS['pend'] and n >= MS['pend'][0]:
        _, tk, thr, reg = MS['pend']
        MS['pend'] = None
        a.vmwait(tk)
        e('v_cmp_ne_u32 vcc, 0, v%d' % reg)
        if args.gb:
            e('s_lshr_b32 s%d, vcc_lo, 28' % sXb)
            e('s_bcnt1_i32_b32 s%d, s%d' % (sXb, sXb))
            e('s_mul_i32 s%d, s%d, %d' % (sXb, sXb, args.gb))
        if args.msl:
            e('s_and_b32 vcc_lo, vcc_lo, 0x0fffffff')
        e('s_bcnt1_i32_b32 s%d, vcc_lo' % sMode)
        k = MS['k'] - 1
        if args.gb and str(k) in args.gbk:
            lb = a.newlabel('L_gr')
            e('v_lshlrev_b32 v%d, 7, v%d' % (reg, vPo))
            e('s_sub_u32 s%d, s%d, %d' % (sRp, sMode, args.gb0))
            e('s_cmp_lt_u32 s%d, s%d' % (sRp, sRep))
            a.skip_begin('s_cbranch_scc0', lb)
            e('s_mov_b64 exec, 0xffff')
            assert vPo & 1
            e('buffer_store_dwordx2 %s, v%d, %s, s%d offen offset:%d sc1' % (vp(vPo - 1), vPo, srd(SWS), sGl, 128 * k))
            e('s_andn2_b32 exec_lo, 0xff, s%d' % sOwn)
            e('buffer_load_dword v%d, v%d, %s, s%d offen offset:%d sc1' % (reg, reg, srd(SWS), sGb, 128 * k + 12))
            e('s_mov_b64 exec, -1')
            a.skip_end(lb)
            MS['pend'] = (n + args.gbl, len(a.vm), None, reg)
        if args.gb:
            e('s_add_u32 s%d, s%d, s%d' % (sMode, sMode, sXb))
            thr += 2 * args.gb
        e('s_cmp_lt_u32 s%d, %d' % (sMode, thr))
        e('s_cselect_b32 s%d, -1, 0' % sMode)
        MS['on'] = True
        rmode()
    if MS['list'] and n >= MS['list'][0][0] and not MS['pend']:
        pos, thr = MS['list'].pop(0)
        k = MS['k']
        MS['k'] += 1
        assert k < 8 and MS['ok'] and args.msl
        lb = a.newlabel('L_nv')
        if args.msl:
            e('s_cmp_eq_u32 s%d, 1' % sU)
            a.skip_begin('s_cbranch_scc0', lb)
            e('s_mov_b64 exec, 2')
            e('buffer_store_byte v%d, off, %s, s%d offset:%d' % (vPo, srd(SWS), sVote, k))
            e('s_mov_b32 exec_lo, -1')
            a.skip_end(lb)
            e('s_mov_b32 exec_hi, 0')
            tk = a.vmem('buffer_load_ubyte v%d, v%d, %s, s%d offen offset:%d sc1' % (MS['reg'], vPo, srd(SWS), sGate, k))
            e('s_mov_b32 exec_hi, -1')
            MS['pend'] = (n + args.mlag, tk, thr, MS['reg'])
            return
        e('s_cmp_lt_u32 s%d, 256' % sVote)
        a.skip_begin('s_cbranch_scc0', lb)
        e('s_mov_b64 exec, 1')
        e('buffer_store_byte v%d, off, %s, s%d offset:%d sc1' % (vM, srd(SDBG), sVote, k))
        e('s_mov_b64 exec, -1')
        a.skip_end(lb)
        tk = a.vmem('buffer_load_ubyte v%d, v%d, %s, 0 offen offset:%d sc1' % (MS['reg'], vPo, srd(SDBG), 128 + k))
        MS['pend'] = (n + 6, tk, thr, MS['reg'])


def goff(g):
    if args.ilv:
        assert 18 % args.ilv == 0
        return (g // args.ilv * 7 * args.ilv + g % args.ilv) * 16384
    return g * 16384


class Sched:
    def __init__(self):
        self.tok = []
        self.queue = []
        self.lastgrp = None

    def issue(self, kind, b, i, dest, pol):
        g, t = i >> 2, i & 3
        LTS = [int(x) for x in args.lts.split(',') if x]
        if len(self.tok) in LTS:
            kk = LTS.index(len(self.tok))
            e('s_memrealtime s[%d:%d]' % (6 + 2 * kk, 7 + 2 * kk))
        key = (kind, b, g, dest[0] == 'L')
        if self.lastgrp != key:
            if g == 18:
                e('s_add_u32 s%d, s%d, 0x%x' % (sOff, sTail if args.nk is None else 47 if kind == 'K' else sTailV, b * BATCH))
            else:
                e('s_add_u32 s%d, s%d, 0x%x' % (sOff, sBase2 if args.alt and (g // args.alt) & 1 else sBaseV if args.nk is not None and kind == 'V' else sBase, goff(g) + b * BATCH))
            if dest[0] == 'L':
                e('s_add_u32 m0, s%d, 0x%x' % (sLds, (dest[1] - t) * 1024))
            self.lastgrp = key
        s = srd(SK if kind == 'K' else SV)
        vo = vKo if kind == 'K' else vVo
        imm = (t >> 1) * 2048 + (t & 1) * 256 if kind == 'K' else t * 1024
        if args.kpat and kind == 'K':
            imm = (t >> 1) * 512 + (t & 1) * 128
        if kind == 'V' and g == 18:
            e('v_and_b32 v0, 0x300, v%d' % vVo)
            e('v_add_u32 v0, v0, v%d' % vVo)
            vo = 0
        if pol == 'X':
            e('s_mov_b32 exec_lo, 0x1111')
            e('s_mov_b32 exec_hi, 0x1111')
            a.vmem('buffer_load_dword v%d, v%d, %s, s%d offen offset:%d nt' % (base_of(dest), vo, s, sOff, imm))
            e('s_mov_b64 exec, -1')
            pol = ''
        if dest[0] == 'L':
            tk = a.vmem('buffer_load_dwordx4 v%d, %s, s%d offen offset:%d %s lds' % (vo, s, sOff, imm, pol))
        else:
            tk = a.vmem('buffer_load_dwordx4 %s, v%d, %s, s%d offen offset:%d %s' % (dest, vo, s, sOff, imm, pol))
        self.tok.append(tk)
        if str(len(self.tok)) in args.wA.split(','):
            warm_site('a')
        return tk

    def pace(self, d, lo=None, hi=None):
        n = len(self.tok)
        if lo is not None:
            ms_hook(n)
        if lo is not None and MS['on'] and lo != hi:
            a.vmwait(self.tok[n - hi])
            tk = self.tok[n - lo]
            if tk >= a.vm_done:
                lb = a.newlabel('L_pc')
                a.skip_begin('s_cbranch_vccz', lb)
                e('s_waitcnt vmcnt(%d)' % (len(a.vm) - 1 - tk))
                a.skip_end(lb)
            return
        if lo is not None and MS['on']:
            d = lo
        if n >= d:
            a.vmwait(self.tok[n - d])

    def run_item(self, it):
        for tk in it.get('need', []):
            a.vmwait(tk())
        it['fn']()
        it['done'] = True

    def ready(self, it):
        for tk in it.get('need', []):
            v = tk()
            if v is None or v >= a.vm_done:
                return False
        return True

    def run_until(self, it):
        while not it.get('done'):
            self.run_item(self.queue.pop(0))

    def run_budget(self, budget):
        while self.queue and budget > 0 and self.ready(self.queue[0]):
            it = self.queue.pop(0)
            self.run_item(it)
            budget -= it['cost']

    def drain(self):
        while self.queue:
            self.run_item(self.queue.pop(0))


S = Sched()
LT = {}
LOC = {}


def need(kind, b, i):
    return lambda: LT.get((kind, b, i))


def item(fn, cost, needs=()):
    it = {'fn': fn, 'cost': cost, 'need': list(needs)}
    S.queue.append(it)
    return it


def add_k_items(b, P, idxs):
    its = {}
    for i in idxs:
        g, t = i >> 2, i & 3
        D = vD + 4 * (g % 3)
        last = t == 3 or i == NQ - 1

        def fn(i=i, g=g, t=t, D=D, last=last):
            mfma(vq(D), LOC[('K', b, i)], vq(vBT + 4 * t), t == 0)
            if last:
                for op in score_ops(P, g, D, vC, (g & 3) == 0):
                    e(op)
        its[i] = item(fn, 4 + (18 if last else 0), [need('K', b, i)])
    return its


def att_softmax(P, g0, g1, tag):
    f1 = ['v_mov_b32 v%d, 0' % r for r in list(range(vD, vD + 12)) + list(range(vO1, vO1 + 8))] + idx_ops(vIdx, vVo)
    f2 = [mirror(PS[k], P[k]) for k in range(5)]
    f2 += a_ops(vD, P[g0 >> 2], PS[g0 >> 2], g0 & 3) + a_ops(vD + 4, P[g1 >> 2], PS[g1 >> 2], g1 & 3)
    softmax(P, vMl, 0, sStatJ, f1, f2, sEx, EXM, 's' + tag)


def pv_end(tag):
    e('s_lshl_b32 s%d, s%d, 5' % (sT0, sEx))
    e('v_add_u32 v0, s%d, v%d' % (sT0, vPo))
    merge(vO1, vO2)
    wg_publish(vO1, vSc, 0, vPo, EXO, vD, sPubJ, 'o' + tag, 'L_np' + tag)


st_ = {}


def add_v_items(b, P, temps, tag):
    tcount = [0]
    sc = {}

    def sca():
        sc['tk'] = scale_a(vSc, vVo, EXM)

    def scb():
        a.lgwait(sc['tk'])
        for op in scale_b(vSc, vMl):
            e(op)

    def tail_rd():
        k = tcount[0] % (len(temps) // 2)
        tcount[0] += 1
        sc['t'] = (temps[2 * k], temps[2 * k + 1], a.lds('ds_read_b128 %s, v%d offset:%d' % (temps[2 * k], vLd, NLV * 1024)))

    def tail_mm():
        src, A, tk = sc['t']
        for op in tail_a(base_of(A), P[4], 2, vM, 0):
            e(op)
        a.lgwait(tk)
        mfma(vq(vO1), A, src, False)

    for g in range(18):
        if g == 2:
            item(sca, 10)
        if g == 3:
            item(scb, 12)
        A = vD + 4 * (g % 3)
        An = vD + 4 * ((g + 2) % 3)
        if g + 2 < 18:
            nxt = a_ops(An, P[(g + 2) >> 2], PS[(g + 2) >> 2], (g + 2) & 3)
        else:
            nxt = []
        for half in range(2):
            i0 = 4 * g + 2 * half
            if i0 == NLV:
                item(tail_rd, 2, [need('V', b, 72)])
                st_['tmp' + tag] = item(tail_mm, 30)
            O = (vO1, vO2)[half]
            ops = nxt[:len(nxt) // 2] if half == 0 else nxt[len(nxt) // 2:]
            st = {}
            if i0 < NLV:
                def rd(i0=i0, st=st):
                    k = tcount[0] % (len(temps) // 2)
                    tcount[0] += 1
                    a.lds('ds_read_b128 %s, v%d offset:%d' % (temps[2 * k], vLd, i0 * 1024))
                    st['tk'] = a.lds('ds_read_b128 %s, v%d offset:%d' % (temps[2 * k + 1], vLd, i0 * 1024 + 1024))
                    st['src'] = pair(temps[2 * k], temps[2 * k + 1])
                item(rd, 2, [need('V', b, i0), need('V', b, i0 + 1)])

                def fn(A=A, O=O, st=st, ops=ops):
                    for op in ops:
                        e(op)
                    a.lgwait(st['tk'])
                    smf(O, A, st['src'], vIdx)
                item(fn, 30)
            else:
                def fn(A=A, O=O, i0=i0, ops=ops):
                    smf(O, A, pair(VSR[i0 - NLV], VSR[i0 + 1 - NLV]), vIdx)
                    for op in ops:
                        e(op)
                item(fn, 6, [need('V', b, i0), need('V', b, i0 + 1)])

    def pub():
        a.raw('M_pub%s:' % tag)
        pv_end(tag)
        stamp(vD)
    return item(pub, 40)


def q_load(job, land):
    e('s_add_u32 s%d, s%d, 0x%x' % (sT0, sHA, job * 256 + OFF_Q))
    return 'buffer_load_dwordx4 %s, v%d, %s, s%d offen sc1' % (vq(land), vQo, srd(SWS), sT0)


def q_check(job, land, tk, tmp):
    pf = job == 2 and (args.pfn or args.pf0)
    if pf:
        assert args.X // 4 + args.pfn * args.pfi + args.pf0 <= 18
        e('s_add_u32 s%d, s%d, 0x%x' % (sOff, sBase, args.X // 4 * 16384 + BATCH))
        e('s_mov_b32 s%d, %d' % (sT1, args.pfi))
        e('s_mov_b32 m0, 3072')
        e('v_lshlrev_b32 v%d, %d, v%d' % (tmp + 1, args.pfs, vVo))
        S.lastgrp = None
        for k in range(args.pf0):
            a.vmem('buffer_load_dword v%d, %s, s%d offen %s lds' % (tmp + 1, srd(SK), sOff, args.pfpol))
            e('s_add_u32 s%d, s%d, 16384' % (sOff, sOff))
    a.vmwait(tk)
    if job == 2 and args.q2fb:
        e('s_mov_b32 s%d, 0' % sMode)
        MS['on'] = True
    lc = a.newlabel('L_qc')
    lok = a.newlabel('L_qok')
    pf = job == 2 and args.pfn
    a.label(lc)
    e('v_max3_u32 v%d, v%d, v%d, v%d' % (tmp, land, land + 1, land + 2))
    e('v_max_u32 v%d, v%d, v%d' % (tmp, tmp, land + 3))
    e('v_cmp_eq_u32 vcc, -1, v%d' % tmp)
    e('s_cbranch_vccz %s' % lok)
    e(q_load(job, land))
    if pf:
        e('s_cmp_eq_u32 s%d, 0' % sT1)
        e('s_cbranch_scc1 L_nopf')
        e('s_sub_u32 s%d, s%d, 1' % (sT1, sT1))
        if args.pfs == 3:
            e('s_mov_b32 exec_hi, 0')
        for k in range(args.pfn):
            e('buffer_load_dword v%d, %s, s%d offen %s lds' % (tmp + 1, srd(SK), sOff, args.pfpol))
            e('s_add_u32 s%d, s%d, 16384' % (sOff, sOff))
        if args.pfs == 3:
            e('s_mov_b32 exec_hi, -1')
        e('s_waitcnt vmcnt(%d)' % args.pfn)
        e('s_branch %s' % lc)
        a.label('L_nopf')
    e('s_waitcnt vmcnt(0)')
    if job == 2 and args.q2fb:
        e('s_mov_b32 s%d, -1' % sMode)
    spin_tail(lc)
    a.label(lok)
    if job < 2:
        rmode()


def late_setup():
    mk_srd(SV, 8, 2 * BATCH)
    mk_srd(SWS, 26, WS_SIZE)
    mk_srd(SDBG, 24, 256)
    smask(sMaskV, 0x3337333733373337)
    tail_soff(sTail, sT1)
    e('s_add_u32 s%d, s%d, s%d' % (sTail, sTail, sLds))
    if args.ilv:
        e('s_mul_i32 s%d, s%d, %d' % (sT1, sT0, args.ilv * 16384 - 4096))
        e('s_sub_u32 s%d, s%d, s%d' % (sTail, sTail, sT1))
    e('s_add_u32 s%d, s%d, %d' % (sTail, sTail, (126 if args.ilv else 18) * 16384))
    e('s_mul_i32 s%d, s%d, %d' % (sLds, sU, LVS))
    e('s_add_u32 s%d, s%d, %d' % (sLds, sLds, LVB))
    e('s_lshl_b32 s%d, s%d, 4' % (sEx, sU))
    e('v_add_u32 v%d, s%d, v%d' % (vLd, sLds, vVo))
    e('s_mul_i32 s%d, s%d, %d' % (sHA, sH, HEADA))
    if args.gateA >= 0 or args.gateB >= 0:
        if args.map == 1:
            e('s_lshl_b32 s%d, s%d, 8' % (sGate, sT0))
            e('s_lshl_b32 s%d, s%d, 2' % (sGo, sH))
        else:
            e('s_and_b32 s%d, s%d, 7' % (sGate, sH))
            e('s_lshl_b32 s%d, s%d, 8' % (sGate, sGate))
            e('s_lshr_b32 s%d, s%d, 3' % (sGo, sH))
            e('s_lshl2_add_u32 s%d, s%d, s%d' % (sGo, sT0, sGo))
            e('s_lshl_b32 s%d, s%d, 2' % (sGo, sGo))
        e('s_add_u32 s%d, s%d, 0x%x' % (sGate, sGate, GATEB))
        e('s_add_u32 s%d, s%d, s%d' % (sGo, sGo, sU))
        e('s_add_u32 s%d, s%d, s%d' % (sGo, sGo, sGate))
        e('v_mov_b32 v%d, 0' % vD)
        e('s_mov_b64 exec, 1')
        a.vmem('buffer_store_byte v%d, off, %s, s%d' % (vD, srd(SWS), sGo))
        a.vmem('buffer_store_byte v%d, off, %s, s%d offset:128' % (vD, srd(SWS), sGo))
        e('s_mov_b64 exec, -1')
    if args.msl:
        e('s_and_b32 s%d, s%d, 7' % (sGate, sH))
        e('s_lshl_b32 s%d, s%d, 8' % (sGate, sGate))
        e('s_add_u32 s%d, s%d, 0x%x' % (sGate, sGate, GATEB))
        e('s_lshr_b32 s%d, s%d, 3' % (sVote, sH))
        e('s_lshl2_add_u32 s%d, s%d, s%d' % (sVote, sT0, sVote))
        e('s_lshl3_add_u32 s%d, s%d, s%d' % (sVote, sVote, sGate))
        e('v_mov_b32 v%d, 0' % vD)
        e('v_mov_b32 v%d, 0' % (vD + 1))
        e('s_cmp_eq_u32 s%d, 1' % sU)
        e('s_cbranch_scc0 L_nz')
        e('s_mov_b64 exec, 1')
        e('buffer_store_dwordx2 %s, off, %s, s%d' % (vp(vD), srd(SWS), sVote))
        if args.gb:
            e('s_cmp_eq_u32 s%d, 0' % sT0)
            e('s_cbranch_scc0 L_nz1')
            e('s_bitcmp1_b32 s%d, 4' % sH)
            e('s_cselect_b32 s%d, 0, -1' % sRep)
            e('v_mov_b32 v%d, s%d' % (vD + 2, sRep))
            e('v_mov_b32 v%d, s%d' % (vD + 3, sRep))
            e('buffer_store_dwordx2 %s, off, %s, s%d offset:224' % (vp(vD + 2), srd(SWS), sVote))
            a.label('L_nz1')
        e('s_mov_b64 exec, -1')
        e('s_nop 1')
        a.label('L_nz')
        if args.gb:
            e('s_cmp_eq_u32 s%d, 1' % sU)
            e('s_cselect_b32 s%d, %d, 0' % (sRep, args.gbn))
            e('s_and_b32 s%d, s%d, 7' % (sGl, sH))
            e('s_lshl_b32 s%d, 1, s%d' % (sOwn, sGl))
            e('s_lshl_b32 s%d, s%d, 10' % (sGl, sGl))
            e('s_mov_b32 s%d, 0x%x' % (sGb, GBB))
            e('s_add_u32 s%d, s%d, s%d' % (sGl, sGl, sGb))
            e('s_lshr_b32 s%d, s%d, 3' % (sXb, sH))
            e('s_lshl2_add_u32 s%d, s%d, s%d' % (sXb, sXb, sU))
            e('s_lshl3_add_u32 s%d, s%d, s%d' % (sXb, sXb, sT0))
            e('s_cmp_eq_u32 s%d, %d' % (sXb, 2 * 8 + 1))
            e('s_cbranch_scc0 L_nz2')
            e('v_mov_b32 v%d, 0' % (vD + 2))
            e('v_mov_b32 v%d, 0' % (vD + 3))
            e('buffer_store_dwordx4 %s, v%d, %s, s%d offen sc1' % (vq(vD), vVo, srd(SWS), sGl))
            a.label('L_nz2')
    elif args.ms:
        e('s_lshr_b32 s%d, s%d, 3' % (sVote, sH))
        e('s_lshl2_add_u32 s%d, s%d, 1' % (sVote, sVote))
        e('s_xor_b32 s%d, s%d, s%d' % (sVote, sVote, sT0))
        e('s_xor_b32 s%d, s%d, 1' % (sMode, sU))
        e('s_or_b32 s%d, s%d, s%d' % (sMode, sMode, sVote))
        e('s_lshl3_add_u32 s%d, s%d, 128' % (sVote, sH))
        e('s_cmp_eq_u32 s%d, 0' % sMode)
        e('s_cselect_b32 s%d, s%d, -1' % (sVote, sVote))
    mk_qoff(vQo, 0, vD)
    e('s_lshl_b32 s%d, s%d, 9' % (sPub, sT0))
    e('s_add_u32 s%d, s%d, s%d' % (sPub, sPub, sHA))
    e('s_add_u32 s%d, s%d, %d' % (sPub, sPub, OFF_O))
    e('s_lshl_b32 s%d, s%d, 7' % (sStat, sT0))
    e('s_lshl3_add_u32 s%d, s%d, s%d' % (sStat, sU, sStat))
    e('s_add_u32 s%d, s%d, s%d' % (sStat, sStat, sHA))
    e('s_and_b32 s%d, s%d, 7' % (sH, sH))
    e('s_lshl_b32 s%d, s%d, 4' % (sH, sH))
    e('s_getreg_b32 s%d, hwreg(HW_REG_XCC_ID, 0, 4)' % sFo)
    e('s_or_b32 s%d, s%d, 0x80000000' % (sFo, sFo))
    mk_masks(vM, vD)
    mk_c(vC, 4, vD)
    e('v_lshlrev_b32 v%d, 3, v0' % vPo)


GW = 32 if args.map == 1 else 28


def gate_signal(k):
    e('v_mov_b32 v0, -1')
    e('s_mov_b64 exec, 1')
    a.vmem('buffer_store_byte v0, off, %s, s%d offset:%d' % (srd(SWS), sGo, k * 128))
    e('s_mov_b64 exec, -1')


def gate_wait(k, th):
    a.vmwait_all()
    if args.gone:
        e('s_cmp_lg_u32 s%d, 0' % sU)
        e('s_cbranch_scc1 L_gok%d' % k)
    e('s_mov_b32 s%d, 100' % sT1)
    e('v_lshrrev_b32 v%d, 2, v%d' % (vD + 1, vVo))
    e('s_mov_b64 exec, 0x%x' % ((1 << GW) - 1) if GW < 32 else 's_mov_b32 exec_hi, 0')
    a.label('L_gw%d' % k)
    e('buffer_load_dword v0, v%d, %s, s%d offen offset:%d sc1' % (vD + 1, srd(SWS), sGate, k * 128))
    e('s_waitcnt vmcnt(0)')
    e('v_cmp_eq_u32 vcc, -1, v0')
    e('s_bcnt1_i32_b32 s%d, vcc_lo' % sT0)
    e('s_cmp_ge_u32 s%d, %d' % (sT0, GW - th))
    e('s_cbranch_scc1 L_gok%d' % k)
    if args.gsleep:
        e('s_sleep %d' % args.gsleep)
    e('s_sub_u32 s%d, s%d, 1' % (sT1, sT1))
    e('s_cbranch_scc0 L_gw%d' % k)
    a.label('L_gok%d' % k)
    e('s_mov_b64 exec, -1')
    if args.gone:
        e('s_barrier')


def set_job(job):
    e('s_add_u32 s%d, s%d, 0x%x' % (sPubJ, sPub, (job >> 1) * 4096))
    e('s_add_u32 s%d, s%d, 0x%x' % (sStatJ, sStat, job * 32))
    e('s_mov_b32 s%d, %d' % (sTag, 2 - (job & 1)))


def o_fill(r, k):
    e('v_mov_b32 v%d, -1' % r)
    e('v_mov_b32 v%d, -1' % (r + 1))
    e('s_lshl3_add_u32 s%d, s%d, s%d' % (sT0, sEx, sPub))
    if k:
        e('s_add_u32 s%d, s%d, 4096' % (sT0, sT0))
    e('s_mov_b64 exec, 0xffff')
    store_sel('buffer_store_dwordx2 %s, v%d, %s, s%d offen' % (vp(r), vPo, srd(SWS), sT0), 'fill%d' % k, True)
    e('s_mov_b64 exec, -1')
    return len(a.vm) - 1


D_ = args.D
X = args.X
R = NR
XE = args.XE or X
assert X % 4 == 0 and X <= 72 and XE % 4 == 0 and XE <= X
st = {}

seqA = [('K', i) for i in range(NQ)] + [('V', i) for i in VORD]
QF = args.QF if not args.bwtest else 2 * NQ - 1
flag_ld = 'buffer_load_dwordx4 %s, off, %s, s%d sc1' % (vq(vD), srd(SDBG), sH)
for n, (kind, i) in enumerate(seqA):
    dest = KS[i] if kind == 'K' else vslot(i)
    LOC[(kind, 0, i)] = dest
    S.pace(args.DE if n >= 2 * NQ - args.NE else (args.DA or D_), *((args.Elo, args.DE) if n >= 2 * NQ - args.NE else (args.Dlo, args.Dhi)))
    LT[(kind, 0, i)] = S.issue(kind, 0, i, dest, polA)
    if n == D_ - 1:
        late_setup()
        stamp(vD, True)
    if args.bwtest:
        if n in (40, 72, 112):
            stamp(vD)
        if n == 2 * NQ - 1:
            a.vmwait_all()
            stamp(vD)
            for n2, (kind, i) in enumerate(seqA):
                S.pace(D_)
                S.issue(kind, 1, i, KS[i] if kind == 'K' else vslot(i), polB1 if n2 < args.B1n else polA)
                if n2 in (40, 72):
                    stamp(vD)
            a.vmwait_all()
            stamp(vD)
            ct_dump(vD)
            e('s_endpgm')
    if n == QF - (3 * D_ if not args.bwtest else 0):
        st['ftk'] = a.vmem(flag_ld)
    if n == QF - (D_ if not args.bwtest else 0):
        a.vmwait(st['ftk'])
        a.label('L_fc')
        e('v_min3_u32 v%d, v%d, v%d, v%d' % (vD + 4, vD, vD + 1, vD + 2))
        e('v_min_u32 v%d, v%d, v%d' % (vD + 4, vD + 4, vD + 3))
        e('v_cmp_eq_u32 vcc, 0, v%d' % (vD + 4))
        e('s_cbranch_vccz L_fok')
        e(flag_ld)
        e('s_waitcnt vmcnt(0)')
        spin_tail('L_fc')
        a.label('L_fok')
        e('v_max3_u32 v%d, v%d, v%d, v%d' % (vD + 5, vD, vD + 1, vD + 2))
        e('v_max_u32 v%d, v%d, v%d' % (vD + 5, vD + 5, vD + 3))
        e('v_xor_b32 v%d, s%d, v%d' % (vD + 4, sFo, vD + 4))
        e('v_xor_b32 v%d, s%d, v%d' % (vD + 5, sFo, vD + 5))
        e('v_or_b32 v%d, v%d, v%d' % (vD + 4, vD + 4, vD + 5))
        e('v_readfirstlane_b32 s%d, v%d' % (sFo, vD + 4))
        if args.nofast:
            e('s_mov_b32 s%d, 1' % sFo)
        e('s_cmp_eq_u32 s%d, 0' % sFo)
        e('s_cselect_b32 s%d, 0, 1024' % sT0)
        e('v_add_u32 v%d, s%d, v%d' % (vQo, sT0, vQo))
        st['qtk'] = a.vmem(q_load(0, vQL))
        st['filltk'] = o_fill(vD + 6, 0)
        rmode()
    if n == 2 * NQ - 1 - D_:
        assert not MS['pend']
        MS['ok'] = False
        st['q1tk'] = a.vmem(q_load(1, vQ1))
    if n == 2 * NQ - 1 - args.gateA:
        gate_signal(0)
    if n == QF:
        q_check(0, vQL, st['qtk'], vD)
        stamp(vD)
        item(lambda: build_bt(vBT, vQL), 24)
        add_k_items(0, PA, range(NQ))

        def sm():
            a.vmwait(st['filltk'])
            set_job(0)
            att_softmax(PA, 0, 1, '0')
        item(sm, 80)
        st['pub0'] = add_v_items(0, PA, RING[:4], '0')
    S.run_budget(args.budget)

def q1_start():
    q_check(1, vQ1, st['q1tk'], vD)
    if PARK:
        for r in range(0, 4, 2):
            e('v_mov_b64 %s, %s' % (vp(vBT + r), vp(vQ1 + r)))
    else:
        build_bt(vBT, vQ1)
    MS['ok'] = True
    MS['reg'] = vQL


def c_move(d, k0, k):
    return 'v_mov_b32_dpp v%%d, v%%d quad_perm:[%d,%d,%d,%d] %%s' % tuple(k0 if p == k else k0 ^ 1 for p in range(4)) % (d, vC, DPPF)


def add_k_lean(idxs):
    its = {}
    seen = set()
    for i in idxs:
        g, t = i >> 2, i & 3

        its[i] = item(lambda i=i: mfma(vq(vD), LOC[('K', 1, i)], vq(vBT), True), 4, [need('K', 1, i)])

        def fn(i=i, g=g, t=t):
            if st['ck'] != g & 3:
                e(c_move(vC, st['ck'], g & 3))
                st['ck'] = g & 3
            for r in range(4):
                op = 'v_mul_f32_dpp' if (g >> 2, t) not in seen and r == 0 else 'v_fmac_f32_dpp'
                e('%s v%d, v%d, v%d quad_perm:[%d,%d,%d,%d] row_mask:0xf bank_mask:0x%x' % (op, PB[g >> 2], vD + r, vC, r, r, r, r, 1 << t))
            seen.add((g >> 2, t))
        item(fn, 18)
    return its


st['ck'] = 0
item(q1_start, 24, [lambda: st['q1tk']])
seqB1 = [i for i in range(XE) if i not in PARK]
seqB1[args.park:args.park] = sorted(PARK)
assert args.park <= XE - 2 * R
kits = add_k_lean(seqB1[:-R]) if PARK else add_k_items(1, PB, range(XE - R))
ringbusy = {}
lds_done = False
if args.gateA >= 0:
    S.run_until(st['pub0'])
    gate_wait(0, args.thA)
CQ = [i for i in range(XE - R) if i not in PARK]
KEEP = {i: polB1 for i in CQ[:args.B1n]}
rn = 0
for n, i in enumerate(seqB1):
    if i in PARK:
        dest = vq(PARK[i])
    else:
        dest = RING[(rn + 4) % NR]
        rn += 1
    S.pace(args.DB0 if n < args.NB0 else D_, *((args.DB0, args.DB0h or args.DB0) if n < args.NB0 else (args.B1lo or args.Dlo, args.B1hi or args.Dhi)))
    S.run_budget(1 if PARK and MS['ok'] else args.budget)
    if dest in ringbusy:
        S.run_until(ringbusy.pop(dest))
    if n == 4:
        S.run_until(st_['tmp0'])
    if i in PARK:
        S.run_until(st['pub0'])
    if st['pub0'].get('done') and not st.get('p0n'):
        st['p0n'] = 1
        print('pub0 before B1 index', n)
    LOC[('K', 1, i)] = dest
    if n == args.QI:
        st['filltk'] = o_fill(base_of(dest), 1)
    LT[('K', 1, i)] = S.issue('K', 1, i, dest, KEEP.get(i, polB))
    if i in kits:
        ringbusy[dest] = kits[i]
    if n == XE - (args.q2p or D_) + 1:
        assert st['pub0'].get('done') and not MS['pend']
        MS['reg'] = None
        st['q2tk'] = a.vmem(q_load(2, vQL))
    S.run_budget(args.budget)
S.drain()
a.raw('M_j2:')
assert not MS['pend']
assert st['filltk'] < st['q2tk']
if PARK:
    for t in range(4):
        smask(sBM + 2 * t, 0x000F000F000F000F << (4 * t))
        smask(sMM + 2 * t, 0x0003000300030003 << (2 * t))
    e('s_mov_b32 s%d, 0xffff' % sMt)
q_check(2, vQL, st['q2tk'], vD)
stamp(vD)
set_job(2)
e('s_mov_b64 vcc, -1')


def bt_ops(t):
    return ['v_mov_b32_dpp v%d, v%d quad_perm:[0,1,2,3] row_mask:0xf bank_mask:0x%x' % (vBT + 4 * t + r, vQL + r, 1 << t) for r in range(4)]


def z64(r, n):
    return ['v_mov_b64 %s, 0' % vp(r + k) for k in range(0, n, 2)]


for k in range(args.p2d):
    e('v_mov_b32 v0, v0')
ct(0)
if PARK:
    def bt_full(t):
        return ['v_cndmask_b32 v%d, 0, v%d, %s' % (vBT + 4 * t + r, vQL + r, sp(sBM + 2 * t)) for r in range(4)]
    after = {4: bt_full(1), 1: bt_full(2), 5: bt_full(3),
             3: [c_move(vC + k, st['ck'], k) for k in (1, 2, 3, 0)] + ['v_lshl_add_u32 v%d, v%d, 1, s%d' % (vLd, vPo, sLds)],
             7: ['v_lshlrev_b32 v%d, 1, v%d' % (vVo, vPo), 'v_and_b32 v0, 16, v%d' % vVo, 'v_lshlrev_b32 v0, v0, s%d' % sMt] +
                ['v_cndmask_b32 v%d, 0, v0, %s' % (vM + k, sp(sMM + 2 * k)) for k in range(4)] + ['v_mov_b32 v0, 0xff800000']}
    for op in bt_full(0):
        e(op)
    for i in (0, 4, 1, 5, 2, 6, 3, 7):
        assert LT[('K', 1, i)] < a.vm_done
        mfma(vq(vD + 4 * (i >> 2)), KS[i], vq(vBT + 4 * (i & 3)), (i & 3) == 0)
        for k in range(4):
            e('v_accvgpr_write_b32 a%d, v%d' % (base_of(KS[i]) + k, PARK[i] + k))
        for op in after.get(i, []):
            e(op)
    e('s_branch L_p2b')
else:
    a.fence()
    for op in bt_ops(0) + bt_ops(1)[:2]:
        e(op)
    a.raw('    s_branch L_p2')
    a.hist = []

mainlines, a.lines = a.lines, []
q3ld = 'buffer_load_dwordx4 %s, v%d, %s, s%d offen sc1' % (vq(vQL), vQo, srd(SWS), sT0)
a.label('L_q3r')
e(q3ld)
e('s_sub_u32 s%d, s%d, 1' % (sBud, sBud))
e('s_cbranch_scc0 L_q3')
e('s_endpgm')
a.label('L_q3')
e('s_cmp_lg_u32 s%d, s%d' % (sU, sU))
e('s_waitcnt vmcnt(0)')
e('v_max3_u32 v%d, v%d, v%d, v%d' % (vD + 8, vQL, vQL + 1, vQL + 2))
e('v_max_u32 v%d, v%d, v%d' % (vD + 8, vD + 8, vQL + 3))
e('v_cmp_eq_u32 vcc, -1, v%d' % (vD + 8))
for op in bt_ops(0) + bt_ops(1)[:2]:
    e(op)
a.raw('    s_cbranch_vccnz L_q3r')
a.pos += 1
a.raw('@Q3OK')

a.raw('L_p2:')
seqB2 = [('K', i) for i in range(X, NQ - 1)] + [('V', i) for i in VORD]
seqB2.insert(NQ - 1 - X + args.K72, ('K', NQ - 1))
gx = X // 4
SC = 84
AB = [SC, SC + 4, SC + 8]
Oa, Ob, Oc, Od = SC + 12, SC + 16, SC + 20, SC + 24
PSn = [SC + 28 + k for k in range(5)]
nIdx, nM1, nL = SC + 33, SC + 34, SC + 35
sM1, sM2 = sT0, sT1
head = [gx, gx + 1, gx - 2, gx - 1] + list(range(gx + 2, 19))
blk1 = sorted({g >> 2 for g in head})
if len(blk1) < args.P2B1:
    blk1 = [0] + blk1
blk2 = [k for k in range(5) if k not in blk1]
g1 = head + [g for g in range(18) if g >> 2 in blk1 and g not in head]
g2 = [g for g in range(18) if g >> 2 in blk2]
gg = g1 + g2
if args.P2G:
    gg = [int(x) for x in args.P2G.split(',')]
if PARK:
    gg = [0, 1] + [g for g in gg if g > 1]
assert sorted(gg) == list(range(19))
QK = []
for t in range(4):
    QK += [(0, gg[0], t), (1, gg[1], t)]
for gi, g in enumerate(gg[2:]):
    QK += [(gi + 2, g, t) for t in range(4 if g < 18 else 1)]


def scored(ks):
    return not [x for x in QK if x[1] >> 2 in ks] and not [x for x in sq if x[2] in ks]


v1 = [g for g in g1 if g < 18]
v1.sort(key=lambda g: (4 * g < NLV, g >> 2 != 4, g))
v2 = sorted(g2, key=lambda g: (4 * g < NLV, g >> 2 != max(g2) >> 2, g))
vall = v1 + v2
PV = [('t',)] + [(vi, g, h) for vi, g in enumerate(vall) for h in range(2)]
n1 = 1 + 2 * len(v1)
NP2 = [int(x) for x in args.NP2.split(',')]
P2POS = [int(x) for x in args.P2POS.split(',')]
kfree = set()
reserved = set(range(X - 8, NQ)) | set(PARK)
ldq = [NLV] + [4 * g + k for g in vall for k in range(4) if 4 * g + k < NLV]
pref = {}
tempq = []


def p2_load():
    n = NP2.pop(0) if NP2 else 0
    todo = []
    while n > 0:
        kind, i = seqB2[len(todo)]
        if kind == 'K':
            if i not in kfree or i == NQ - 1:
                break
            dest = KS[i]
        else:
            dest = vslot(i)
            if i >= NLV or i not in pref:
                break
        todo.append((kind, i, dest))
        n -= 1
    if not todo:
        return
    sk = a.newlabel('L_sk')
    a.skip_begin(*(('s_cbranch_vccnz', sk + 'o') if args.P2OOL else ('s_cbranch_vccz', sk)))
    main, a.lines, lgd = a.lines, [], a.lg_done
    S.lastgrp = None
    for kind, i, dest in todo:
        seqB2.pop(0)
        if kind == 'V':
            a.lgwait(pref[i][1])
        S.pace(args.DP2 or D_)
        LOC[(kind, 1, i)] = dest
        LT[(kind, 1, i)] = S.issue(kind, 1, i, dest, polB)
    if args.P2OOL:
        RAW2.append([sk + 'o:'] + a.lines + ['    s_branch ' + sk])
    else:
        main.append('\n'.join(a.lines))
    a.lines, a.lg_done = main, lgd
    a.skip_end(sk)


def prefetch_one():
    v = ldq[0]
    if v == NLV:
        r = tempq.pop(0)
        tempq.pop(0)
    else:
        r = tempq.pop(0)
        assert (KS.index(r) & 1) == (v & 1)
    ldq.pop(0)
    if len(a.lg) - a.lg_done >= 14:
        a._lgwait_n(7)
    pref[v] = (r, a.lds('ds_read_b128 %s, v%d offset:%d' % (r, vLd, v * 1024)))


def can_ds():
    return ldq and len(tempq) > (1 if ldq[0] == NLV else 0)


def red63(op, r):
    return allreduce_list(op, r, None, (0, 1, 2, 3)) + \
        ['%s_dpp v%d, v%d, v%d row_bcast:15 row_mask:0xa bank_mask:0xf' % (op, r, r, r),
         '%s_dpp v%d, v%d, v%d row_bcast:31 row_mask:0xc bank_mask:0xf' % (op, r, r, r)]


def pexp(k, sm):
    p = PA[k]
    return ['v_subrev_f32 v%d, s%d, v%d' % (p, sm, p), 'v_exp_f32 v%d, v%d' % (p, p), 'v_cvt_pk_bf16_f32 v%d, 0, v%d' % (p, p),
            mirror(PSn[k], p), ('P', k)]


sq = []
cq = []
fq = bt_ops(1)[2:] + bt_ops(2) + bt_ops(3) + ['v_mov_b32 v0, 0xff800000']
aq = []
flags = set()
anext = [0]
adone = set()
vdone = set()
vpend = []
lgt = {}


def pop(q):
    x = q.pop(0)
    if callable(x):
        x()
    else:
        e(x)
    while q and isinstance(q[0], tuple):
        flags.add(q.pop(0))


def ok(q):
    if not q:
        return False
    if callable(q[0]):
        w = a.lines[-1].split()[0]
        return not w.startswith('v_') or w.startswith('v_smf')
    return a.needed(q[0]) == 0


def refill():
    while anext[0] < len(vall) and not aq:
        vi = anext[0]
        g = vall[vi]
        if ('P', g >> 2) not in flags or ('Z', AB[vi % 3]) not in flags or (vi >= 3 and vi - 3 not in vdone):
            return
        aq.extend(a_ops(AB[vi % 3], PA[g >> 2], PSn[g >> 2], g & 3) + [('A', vi)])
        anext[0] += 1


def slot(order, force=False):
    refill()
    for q in order:
        if q is sq:
            seen = set()
            for k, x in enumerate(sq):
                if x[2] not in seen and a.needed(x[1]) == 0:
                    e(sq.pop(k)[1])
                    return True
                seen.add(x[2])
        elif q == 0:
            a.nop(1)
            return True
        elif ok(q):
            pop(q)
            return True
    if force:
        for q in order:
            if q is sq and sq:
                e(sq.pop(0)[1])
                return True
            if q:
                pop(q)
                return True
        assert False
    return False


def pv_ready(x):
    if x[0] == 't':
        return ('T', 0) in flags
    if QK and x[2] == 0 and ('A', x[0] + 1) not in flags:
        return False
    return {('A', x[0]), ('Z', SC + 32), ('Z', Ob), ('Z', Oc), ('Z', Ob if x[0] < len(v1) else Od)} <= flags


def emit_pv(x):
    if x[0] == 't':
        a.lgwait(pref[NLV][1])
        mfma(vq(Oa), vq(Od), pref[NLV][0], True)
        fq.extend(z64(Od, 4) + [('Z', Od)])
        return
    vi, g, h = x
    i0 = 4 * g + 2 * h
    if i0 < NLV:
        src = pair(pref[i0][0], pref[i0 + 1][0])
        a.lgwait(pref[i0 + 1][1])
    else:
        src = pair(VSR[i0 - NLV], VSR[i0 + 1 - NLV])
    smf(((Oa, Ob) if vi < len(v1) else (Oc, Od))[h], AB[vi % 3], src, nIdx)
    if h:
        vpend.append(vi)


def chain1():
    o = [4] + [k for k in blk1 if k != 4][::-1]
    c = ['v_max3_f32 v%d, v%d, v%d, v%d' % ((nM1,) + tuple(PA[k] for k in (blk1 + blk1)[:3]))] + red63('v_max_f32', nM1)
    c += ['v_readlane_b32 s%d, v%d, 63' % (sM1, nM1)]
    c += pexp(o[0], sM1)
    cq.extend(c)
    f = tail_a(Od, PA[4], 2, vM, 0) + [('T', 0)] + pexp(o[1], sM1)
    f += ['v_add_f32 v%d, v%d, v%d' % (nL, PA[o[0]], PA[o[1]]), 'v_mov_b32 v%d, s%d' % (nM1, sM1)]
    if len(o) > 2:
        f += pexp(o[2], sM1) + ['v_add_f32 v%d, v%d, v%d' % (nL, nL, PA[o[2]])]
    cq.extend(f)


vF1, vR1, vC2, vT2 = 20, 22, 24, 25


def chain2():
    o = [v2[0] >> 2] + [k for k in blk2 if k != v2[0] >> 2]
    m, l = vMl, vMl + 1
    if len(o) > 2:
        c = ['v_max3_f32 v%d, v%d, v%d, v0' % (m, PA[blk2[1]], PA[blk2[2]])] + red63('v_max_f32', m)
    else:
        c = ['v_max3_f32 v%d, v%d, v%d, s%d' % (m, PA[o[0]], PA[o[1]], sM1)] + red63('v_max_f32', m)
    c += ['v_readlane_b32 s%d, v%d, 63' % (sM2, m)]
    c += pexp(o[0], sM2)

    def wr():
        while ('X', 0) not in flags:
            pop(fq)
        e('s_brev_b64 exec, 1')
        lgt['w'] = a.lds('ds_write_b32 v%d, v%d offset:%d' % (vT2, m, EXM))
        e('s_mov_b64 exec, -1')

    def bar():
        ct(4)
        a.lgwait(lgt['w'])
        e('s_barrier')
        ct(5)
        lgt['r'] = a.lds('ds_read_b32 v%d, v%d offset:%d' % (vC2, vC2, EXM))

    def stt():
        ct(6)
        e('s_brev_b64 exec, 1')
        store_sel('buffer_store_dwordx2 %s, off, %s, s%d' % (vp(m), srd(SWS), sStatJ), 'sp', True, True)
        e('s_mov_b64 exec, -1')
    n0 = len(c)
    c += [wr] + pexp(o[1], sM2)
    c += ['v_subrev_f32 v%d, s%d, v%d' % (vF1, sM2, nM1), 'v_add_f32 v%d, v%d, v%d' % (l, PA[o[0]], PA[o[1]]),
          'v_exp_f32 v%d, v%d' % (vF1, vF1), bar, 'v_fmac_f32 v%d, v%d, v%d' % (l, nL, vF1), 'v_min_u32 v%d, -2, v%d' % (m, m)]
    if len(o) > 2:
        c += pexp(o[2], sM2) + ['v_add_f32 v%d, v%d, v%d' % (l, l, PA[o[2]])]
    c += red63('v_add_f32', l) + ['v_min_u32 v%d, -2, v%d' % (l, l), lambda: a.lgwait(lgt['r'])]
    sb = allreduce_list('v_max_f32', vC2, None, (0, 1))
    c += [sb[0], stt, sb[1], 'v_sub_f32 v%d, s%d, v%d' % (vC2, sM2, vC2), 'v_exp_f32 v%d, v%d' % (vC2, vC2), ('W', 0)]
    cq.extend(c)
    lgt['rest'] = len(c) - n0
    fq[:0] = ['v_mov_b32 v%d, s%d' % (vT2, sEx), 'v_and_b32 v%d, 0x30, v%d' % (vC2, vVo), ('X', 0)]


def chain3():
    c = ['v_permlane32_swap_b32 v%d, v%d' % (Oa, Oa + 2), 'v_permlane32_swap_b32 v%d, v%d' % (Oa + 1, Oa + 3),
         'v_permlane32_swap_b32 v%d, v%d' % (Ob, Ob + 2), 'v_permlane32_swap_b32 v%d, v%d' % (Ob + 1, Ob + 3),
         'v_mul_f32 v%d, v%d, v%d' % (vF1, vF1, vC2),
         'v_pk_add_f32 %s, %s, %s' % (vp(vR1), vp(Oa), vp(Ob + 2)),
         'v_lshl_add_u32 v0, v%d, 5, v%d' % (vT2, vPo),
         'v_pk_mul_f32 %s, %s, %s op_sel_hi:[1,0]' % (vp(vR1), vp(vR1), vp(vF1))]
    cq.extend(c)


seen_reg = set()
tnew = None
ilast = None
nm = 0
p2start = len(a.lines)
npv = 0
lastm = None
st2 = 0
left1 = len(g1)
while QK or PV:
    refill()
    vd_ = list(vpend)
    del vpend[:]
    if tnew:
        tempq.append(tnew)
    tnew = None
    if QK and not (lastm == 'q' and npv < n1 - args.P2ND and pv_ready(PV[0])):
        gi, g, t = QK.pop(0)
        D = vD + 4 * (gi % 3)
        if t == 0:
            while [x for x in sq if x[0] <= gi - 3]:
                slot([sq, cq, aq, fq]) or slot([sq], True)
        while fq and isinstance(fq[0], str) and fq[0] in bt_ops(t):
            pop(fq)
        i = 4 * g + t
        if PARK and nm == 7:
            if a.lines[-1].split() == ['s_nop', '0']:
                a.lines.pop()
                a.pos -= 1
            a.raw('    s_cbranch_scc1 L_q3')
            a.pos += 1
        mfma(vq(D), KS[i], vq(vBT + 4 * t), t == 0)
        if PARK and nm == 7:
            assert not fq and len(sq) == 4 and not [x for x in a.lines[p2start:] if x.split()[0][:3] in ('ds_', 'buf')]
            a.raw('L_p2b:')
        lastm = 'q'
        mline, mpos = len(a.lines), a.pos
        kfree.add(i)
        if i not in reserved:
            tnew = KS[i]
        if t == 3 or g == 18:
            sq.extend((gi, op, g >> 2) for op in score_ops(PA, g, D, vC, (g >> 2) not in seen_reg))
            seen_reg.add(g >> 2)
            if g >= 16 and not [x for x in QK if x[1] >= 16]:
                sq.append((gi, 'v_cndmask_b32 v%d, v0, v%d, %s' % (PA[4], PA[4], sp(sMaskV)), 4))
        if ilast is not None and KS[ilast][0] == 'v':
            b = base_of(KS[ilast])
            if b in AB:
                fq.extend(z64(b, 4) + [('Z', b)])
            if b in (Ob, Oc):
                fq.extend(z64(b, 4) + [('Z', b)])
            if b == SC + 32:
                fq.extend(idx_ops(nIdx, vVo) + [('Z', b)])
        ilast = i
        order = [[sq, cq, aq, fq]] * 2
    else:
        while not pv_ready(PV[0]):
            vdone.update(vd_)
            slot([aq, sq, cq, fq]) or slot([sq, cq, aq, fq], True)
            if st2 == 1 and not QK and not sq:
                chain2()
                st2 = 2
        emit_pv(PV.pop(0))
        npv += 1
        lastm = 'p'
        for k in range(2 if npv % 2 and args.P2DS2 else 1):
            if can_ds():
                prefetch_one()
        order = [[aq, sq, cq, fq]] if QK else [[sq, cq, fq], [aq], [aq], [sq, cq, fq]]
        if not QK and ('A', len(v1)) not in flags:
            crit = len(sq) + (12 if st2 < 2 else len(cq) - lgt['rest']) + 2
            hurry = crit > n1 - npv + args.P2H
            order = [[sq, cq], [aq, fq, 0], [aq, fq, 0] if hurry else [aq, fq]] + ([[sq, cq]] if hurry else [])
        elif st2 == 3:
            order = [[cq]]
        elif not QK and PV and ('A', PV[0][0] + 1) not in flags and PV[0][2] == 1:
            order = [[aq], [aq], [aq], [sq, cq, fq]]
    vdone.update(vd_)
    nm += 1
    if nm in P2POS:
        p2_load()
    dsd = False
    if lastm == 'q' and can_ds() and (ldq[0] == NLV or len(ldq) > args.P2DSL + len(QK)):
        prefetch_one()
        dsd = True
        order = order[:1]
    for k, o in enumerate(order):
        if lastm == 'q' and k == 1 and ('v_exp' in a.lines[-1] or nm in P2POS):
            break
        if not slot(o) and lastm == 'q':
            if can_ds() and not dsd and len(a.lg) - a.lg_done < 14:
                prefetch_one()
                dsd = True
                if k == 1:
                    a.lines.insert(mline, a.lines.pop())
                    for p in a.hist:
                        if p.pos >= mpos:
                            p.pos = mpos if p.kind == 'ds' else p.pos + 1
            elif can_ds() and not dsd:
                a._lgwait_n(7)
            elif sq or cq:
                a.nop(1)
        if st2 == 0 and scored(blk1):
            chain1()
            st2 = 1
            print('chain1 at', nm)
        if st2 == 1 and len(blk2) > 2 and 'f' not in flags and ('T', 0) in flags and scored(blk2[:1]):
            flags.add('f')
            cq.append('v_max_f32 v0, s%d, v%d' % (sM1, PA[blk2[0]]))
        if st2 == 1 and not QK and not sq:
            assert len(blk2) == 2 or 'f' in flags
            chain2()
            st2 = 2
            print('chain2 at', nm, 'pv done', npv, 'cq', len(cq))
        if st2 == 2 and ('W', 0) in flags and npv >= n1 + 2 and anext[0] == len(vall) and not aq:
            chain3()
            st2 = 3
            print('chain3 at', nm)
    if nm == 8:
        ct(1)
    if not QK and 'q' not in flags:
        flags.add('q')
        ct(2)
    if npv == n1 and lastm == 'p':
        ct(3)
assert st2 == 3 and not ldq and not sq and not aq and not fq
ct(7)
e('s_cmp_lg_u32 s%d, 0' % sU)
while cq:
    pop(cq)
merge(Oc, Od)
e('v_pk_fma_f32 %s, %s, %s, %s op_sel_hi:[1,0,1]' % (vp(Oc), vp(Oc), vp(vC2), vp(vR1)))
wg_publish(Oc, None, 0, vPo, EXO, vD, sPubJ, 'op', 'L_npp')
ct(8)


def cost(lines):
    tot, segs, cur = 0, [], None
    for ln in lines:
        w = ln.split()
        if w[0].endswith(':'):
            continue
        if w[0].startswith('v_mfma') or w[0].startswith('v_smf'):
            cur = [w[0][2], []]
            segs.append(cur)
        else:
            cur[1].append(w)
    out = []
    for kind, ws in segs:
        u, lead, seenv, pv = 0, 0, False, False
        for w in ws:
            isv = w[0].startswith('v_')
            n = int(w[1]) + 1 if w[0] == 's_nop' else 2 if w[0] == 'v_exp_f32' else 1
            if w[0].startswith('ds_') and pv:
                n += 2
            if kind == 's' and not isv and not seenv:
                lead += n
            else:
                u += n
            seenv |= isv
            pv = isv
        c = max(17, 9 + 4 * u) if kind == 'm' else max(17, 13 + 4 * (u + max(0, lead - 2)))
        out.append(c)
    return out


cc = cost(a.lines[p2start:])
print('P2 model', sum(cc[:-1]), ''.join(str(min(9, (c - 17) // 4)) for c in cc))
stamp(vD)
e('s_cbranch_vccnz L_p2ret')
ct_dump(vD)
e('s_endpgm')
for blk in RAW2:
    for ln in blk:
        a.raw(ln)
p2lines, a.lines = a.lines, mainlines
if args.lay:
    lb = a.lines.pop().split()[1]
    k = p2lines.index(lb + ':')
    a.lines += p2lines[k:]
    if PARK:
        assert p2lines[k + 1].split() == ['s_nop', '0']
        a.lines.pop(a.lines.index(lb + ':') + 1)
    p2lines = p2lines[:k] + ['    s_branch ' + lb]
a.label('L_p2ret')
S.lastgrp = None
MS['reg'] = PA[4]
rmode()

st['q1r'] = a.vmem(q_load(1, vQL))
item(lambda: build_bt(vBT, vQL), 24, [lambda: st['q1r']])
seqB2 = [('K', i) for i in range(XE, X)] + seqB2
for i in range(XE - R, NQ):
    add_k_items(1, PB, [i])
    if i < XE:
        def mv(i=i):
            src = base_of(LOC[('K', 1, i)])
            d = KS[i]
            for k in range(4):
                if d[0] == 'a':
                    e('v_accvgpr_write_b32 a%d, v%d' % (base_of(d) + k, src + k))
                else:
                    e('v_mov_b32 v%d, v%d' % (base_of(d) + k, src + k))
        item(mv, 4)


def sm1():
    set_job(1)
    att_softmax(PB, 0, 1, '1')


item(sm1, 80)
pub1 = add_v_items(1, PB, RING[:4], '1')
seqC = [('K', i) for i in CQ]
if args.Cf0 is not None:
    fa, ca = seqC[args.B1n:], seqC[args.Cf0:args.B1n]
    seqC = seqC[:args.Cf0]
    for k, x in enumerate(fa):
        seqC.append(x)
        if k >= args.Cx0:
            k -= args.Cx0
            for j in range((k + 1) * args.Cx // (len(fa) - args.Cx0) - k * args.Cx // (len(fa) - args.Cx0)):
                seqC.append(ca.pop(0))
    seqC += ca
    farn = []
if args.cskip:
    seqC = seqC[:-args.cskip]
early, seqC = seqC[:args.Ce], seqC[args.Ce:]
args.NC1 = max(0, args.NC1 - args.Ce)
nB2 = len(seqB2)
for n, (kind, i) in enumerate(seqB2 + seqC):
    assert n < nB2 or not early
    dest = KS[i] if kind == 'K' else vslot(i)
    if n < nB2:
        S.pace((args.DEB or args.DE) if n >= nB2 - (args.NEB or args.NE) else D_,
               *((args.B3lo or args.Elo, args.DEB or args.DE) if n >= nB2 - (args.NEB or args.NE) else (args.B2lo or args.Dlo, args.B2hi or args.Dhi)))
    else:
        if n == nB2 and args.gateB >= 0:
            S.drain()
            gate_wait(1, args.thB)
        dc = args.DC0 if n < nB2 + args.NC0 else args.DC if n < nB2 + args.NC1 else args.DC1
        if args.Cf0 is not None:
            dc = args.DC0 if n < nB2 + args.NC0 else args.DC if i in KEEP else args.DC1
            if i not in KEEP:
                if args.Cx:
                    dc = n - farn[-args.DC1] if len(farn) >= args.DC1 else args.DC
                farn.append(n)
        if args.w0 and pub1.get('done') and n < nB2 + args.NC0:
            if not pub1.get('w0'):
                pub1['w0'] = 1
                e('s_cmp_lg_u32 s%d, 0' % sU)
                e('s_cselect_b64 vcc, -1, 0')
            S.pace(dc, dc, args.DC)
        elif args.Cf0 is not None:
            S.pace(dc, dc, (args.DC0h or dc) if n < nB2 + args.NC0 and pub1.get('done') else (args.DC1h or dc) if i not in KEEP else dc)
        else:
            S.pace(dc, (args.DCl or dc) if dc == args.DC else dc, (args.DC1h or dc) if n >= nB2 + args.NC1 else dc)
        S.run_budget(args.budget)
    key = (kind, 1, i)
    tk = S.issue(kind, 1, i, dest, polB if n < nB2 else polC if args.polCf is None or n < nB2 + args.NC1 else args.polCf)
    if key not in LT:
        LOC[key] = dest
        LT[key] = tk
    if n >= args.Cs and (n - args.Cs) % args.Cp == 0:
        for x in early[:args.Cc]:
            S.issue('K', 1, x[1], KS[x[1]], polC)
            if not args.Cn:
                S.tok.pop()
        early = early[args.Cc:]
    if n == nB2 - 1 - args.gateB and args.gateB >= 0:
        gate_signal(1)
    S.run_budget(args.budget)
S.drain()
assert not MS['pend'] and not MS['list']
stamp(vD)
set_job(3)
assert q_load(3, vQL) == q3ld
e(q3ld)
for op in z64(vBT, 16):
    e(op)
if PARK and args.warm:
    e('s_cmp_eq_u32 s%d, s%d' % (sU, sU))
    e('s_branch L_p2')
else:
    e('s_branch L_q3')
mainlines, a.lines = a.lines, []
if args.ts:
    stamp(vD)
    ct(0)
    if not args.quiet:
        a.nop(5)
k = p2lines.index('@Q3OK')
a.lines = mainlines + p2lines[:k] + a.lines + p2lines[k + 1:]

for k in range(args.sh):
    a.raw('    s_endpgm')
a.label('L_service')
if args.bwtest == 1:
    e('s_endpgm')
a.reset_counters()
vL16, vL8, vSI, vOg, vSt, vXo, vEw, vQr, vFr, vFr2, vWw, vWr, vSw = 1, 2, 3, 4, 5, 6, 7, 8, 9, 10, 11, 12, 13
vX0 = 14
vA = 16
vT = 28
vLA = 32
vAc = 96
vX, vX1, vCq, vCf = 112, 114, 116, 118
vMi = 120
TILES = ['a[%d:%d]' % (4 * i, 4 * i + 3) for i in range(64)] + ['v[%d:%d]' % (128 + 4 * i, 131 + 4 * i) for i in range(32)]
TQ, TO, TG = TILES[0:32], TILES[32:64], TILES[64:96]
E1, EO, EOM, E2, E2S, E3, E3S, EQ, EKV, EDN = 0, 2048, 4096, 8192, 10240, 12288, 14336, 15360, 20480, 65536
wpol = args.wpol
t0, t1 = vLA, vLA + 1
vRs, vAd = vLA + 2, vLA + 3

e('v_lshlrev_b32 v%d, 4, v0' % vL16)
if args.x4:
    e('v_and_b32 v%d, 0xf0, v%d' % (vXo, vL16))
    e('v_lshrrev_b32 v%d, 5, v0' % t0)
    e('v_lshl_or_b32 v%d, v%d, 2, v%d' % (vXo, t0, vXo))
    e('v_lshlrev_b32 v%d, 2, v%d' % (vRs, t0))
    e('v_bfe_u32 v%d, v0, 4, 1' % t0)
    e('v_lshl_or_b32 v%d, v%d, 3, v%d' % (vXo, t0, vXo))
    e('v_lshl_or_b32 v%d, v%d, 5, v%d' % (vRs, t0, vRs))
    e('s_lshl_b32 s%d, s%d, 8' % (sT0, sU))
    e('v_add_u32 v%d, s%d, v%d' % (vXo, sT0, vXo))
else:
    e('v_and_b32 v%d, 7, v0' % t0)
    e('v_lshlrev_b32 v%d, 5, v%d' % (vXo, t0))
    e('v_lshrrev_b32 v%d, 5, v0' % t0)
    e('v_lshl_or_b32 v%d, v%d, 4, v%d' % (vXo, t0, vXo))
    e('v_bfe_u32 v%d, v0, 3, 1' % t0)
    e('v_lshl_or_b32 v%d, v%d, 3, v%d' % (vXo, t0, vXo))
    e('v_bfe_u32 v%d, v0, 4, 1' % t0)
    e('v_lshl_or_b32 v%d, v%d, 2, v%d' % (vXo, t0, vXo))
    e('s_lshl_b32 s%d, s%d, 8' % (sT0, sU))
    e('v_add_u32 v%d, s%d, v%d' % (vXo, sT0, vXo))
    e('v_lshlrev_b32 v%d, %d, v%d' % (vRs, 5 if args.tr else 6, t0))
    e('v_lshrrev_b32 v%d, 5, v0' % t0)
    e('v_lshl_or_b32 v%d, v%d, 1, v%d' % (vRs, t0, vRs))
e('v_and_b32 v%d, 0xf0, v%d' % (t1, vL16))
e('v_lshl_or_b32 v%d, v%d, 13, v%d' % (vAd, vRs, t1))
e('s_lshl_b32 s%d, s%d, 20' % (sT0, sU))
e('s_lshl_b32 s%d, s2, 8' % sT1)
e('s_add_u32 s%d, s%d, s%d' % (sT0, sT0, sT1))
e('s_waitcnt lgkmcnt(0)')
mk_srd(SWQ, 10, 512 * 8192)
mk_srd(SX, 4, 2048)


def gtile(n):
    tau, pi, r, k = n & 1, (n >> 1) & 1, (n >> 2) & 3, n >> 4
    if args.tr:
        return 64 * (r & 1) + 16 * pi + 8 * k + 4 * (r >> 1) + tau
    return 16 * r + 8 * tau + 4 * pi + k


sPl, sPh = 0, 1
LAND = [TG[2 * n + 1] for n in range(16)] + [TG[2 * n] for n in range(16)]
LANDG = LAND[:16] + [vq(vLA + 32 + 4 * k) for k in range(8)] + [vq(vAc + 4 * k) for k in range(4)] + [vq(vMi), vq(vMi + 4), vq(vA), vq(vA + 4)]


def turn(tiles, land, n, tmp):
    qd, b, p_ = n >> 4, (n >> 2) & 3, (n >> 1) & 1
    w = []
    for t_ in range(8):
        k = (b - (t_ & 2) - (t_ >> 2)) & 3
        d = tiles[16 * (k >> 1) + 2 * t_ + qd]
        r = base_of(d) + 2 * (k & 1) + p_
        e('v_perm_b32 v%d, v%d, v%d, s%d' % (r if d[0] == 'v' else tmp + t_, base_of(land[n + 1]) + (t_ >> 1), base_of(land[n]) + (t_ >> 1), (sPl, sPh)[t_ & 1]))
        if d[0] == 'a':
            w.append('v_accvgpr_write_b32 a%d, v%d' % (r, tmp + t_))
    for op in w:
        e(op)


def xtile(n):
    tau, pi, r, k = n & 1, (n >> 1) & 1, (n >> 2) & 3, n >> 4
    return 8 * r + 64 * pi + 2 * tau + k if args.x4 else gtile(n)


if 'c' in args.skip:
    e('v_mov_b32 v%d, v%d' % (vAd, vL16))
    e('s_lshl_b32 s%d, s2, 17' % sT0)
    e('s_lshl_b32 s%d, s%d, 12' % (sT1, sU))
    e('s_add_u32 s%d, s%d, s%d' % (sT0, sT0, sT1))
if 'k' in args.skip:
    e('v_mov_b32 v%d, v%d' % (vAd, vL16))
    e('s_lshr_b32 s%d, s2, 3' % sT0)
    e('s_lshl_b32 s%d, s%d, 20' % (sT0, sT0))
    e('s_lshl_b32 s%d, s%d, 18' % (sT1, sU))
    e('s_add_u32 s%d, s%d, s%d' % (sT0, sT0, sT1))
    e('s_and_b32 s%d, s2, 7' % sT1)
    e('s_lshl_b32 s%d, s%d, 10' % (sT1, sT1))
    e('s_add_u32 s%d, s%d, s%d' % (sT0, sT0, sT1))
def fills():
    mk_srd(SWS, 26, WS_SIZE)
    e('v_lshlrev_b32 v%d, 3, v0' % vL8)
    e('s_mul_i32 s%d, s2, %d' % (sHA, HEADA))
    for k in range(4):
        e('v_mov_b32 v%d, -1' % (vT + k))
    e('s_lshl_b32 s%d, s%d, 8' % (sG0, sU))
    e('s_add_u32 s%d, s%d, s%d' % (sG0, sG0, sHA))
    e('s_mov_b64 exec, 0xffff')
    a.vmem('buffer_store_dwordx4 %s, v%d, %s, s%d offen %s' % (vq(vT), vL16, srd(SWS), sG0, sc('B')))
    a.vmem('buffer_store_dwordx4 %s, v%d, %s, s%d offen offset:1024' % (vq(vT), vL16, srd(SWS), sG0))
    a.vmem('buffer_store_dwordx4 %s, v%d, %s, s%d offen offset:2048 %s' % (vq(vT), vL16, srd(SWS), sG0, sc('C')))
    e('s_mov_b64 exec, -1')
    if not (args.zo and args.yb):
        e('s_and_b32 s%d, s2, 16' % sHS)
        e('s_add_u32 s%d, s%d, s2' % (sHS, sHS))
        e('s_lshl_b32 s%d, s%d, 9' % (sHS, sHS))
        e('s_lshl_b32 s%d, s%d, 15' % (sG0, sU))
        e('s_add_u32 s%d, s%d, s%d' % (sG0, sG0, sHS))
        e('v_lshrrev_b32 v%d, 5, v0' % t0)
        e('v_mul_u32_u24 v%d, %d, v%d' % (t0, 8192 - 512, t0))
        e('v_add_u32 v%d, v%d, v%d' % (t0, t0, vL16))
        e('s_add_u32 s%d, s%d, 0x%x' % (sT1, sG0, YB))
    if args.nofyz < 5 and not args.yb:
        a.vmem('buffer_store_dwordx4 %s, v%d, %s, s%d offen %s' % (vq(vT), t0, srd(SWS), sT1, args.fpol))
    for k in range(4 if args.zo else 2 if args.zb else 0, 4 + args.xfill - min(4, args.nofyz)):
        e('s_add_u32 s%d, s%d, 0x%x' % (sT1, sG0, ZB + k * 131072))
        a.vmem('buffer_store_dwordx4 %s, v%d, %s, s%d offen %s' % (vq(vT), t0, srd(SWS), sT1, args.fpol))
    if args.zb:
        assert args.zl == 2
        e('v_and_b32 v%d, 0xf0, v%d' % (t0, vL16))
        e('v_bfe_u32 v%d, v0, 4, 1' % t1)
        e('v_lshl_or_b32 v%d, v%d, 13, v%d' % (t0, t1, t0))
        e('v_lshrrev_b32 v%d, 5, v0' % t1)
        e('v_lshl_or_b32 v%d, v%d, 17, v%d' % (t0, t1, t0))
        e('s_lshl_b32 s%d, s%d, 7' % (sT1, sU))
        e('s_add_u32 s%d, s%d, s2' % (sT1, sT1))
        e('s_lshl_b32 s%d, s%d, 8' % (sT1, sT1))
        e('s_add_u32 s%d, s%d, 0x%x' % (sT1, sT1, ZB))
        if args.z28:
            e('s_cmp_lt_u32 s2, 28')
            e('s_cselect_b32 exec_lo, -1, 0xff')
            e('s_cselect_b32 exec_hi, -1, 0xff')
        a.vmem('buffer_store_dwordx4 %s, v%d, %s, s%d offen %s' % (vq(vT), t0, srd(SWS), sT1, args.fpol))
    if args.zo:
        e('s_add_u32 s%d, s%d, 0x%x' % (sG0, sT1, 2 * 131072))
        a.vmem('buffer_store_dwordx4 %s, v%d, %s, s%d offen %s' % (vq(vT), t0, srd(SWS), sG0, args.fpol))
        if args.z28:
            e('s_mov_b64 exec, -1')
    if args.yb:
        e('s_sub_u32 s%d, s%d, 0x%x' % (sT1, sT1, ZB - YB))
        e('s_mov_b32 exec_hi, 0')
        a.vmem('buffer_store_dwordx4 %s, v%d, %s, s%d offen %s' % (vq(vT), t0, srd(SWS), sT1, args.fpol))
        e('s_mov_b32 exec_hi, -1')


WT = []
for n in range(32):
    if n == args.ffirst:
        fills()
    e('s_add_u32 s%d, s%d, 0x%x' % (sT1, sT0, (n >> 2) * 16384 + (n & 3) * 1024 if 'c' in args.skip else n * 8192 if 'k' in args.skip else xtile(n) * 8192))
    if 't' in args.skip and n >= 8:
        e('s_waitcnt vmcnt(7)')
    wqtk = a.vmem('buffer_load_dwordx4 %s, v%d, %s, s%d offen %s' % (LAND[n] if args.tr else TQ[n], vAd, srd(SWQ), sT1, wpol))
    WT.append(wqtk)
a.vmem('buffer_load_dword v%d, v%d, %s, 0 offen' % (vX0, vXo, srd(SX)))
wqtk = a.vmem('buffer_load_dword v%d, v%d, %s, 0 offen offset:1024' % (vX1, vXo, srd(SX)))
if args.ffirst >= 32:
    fills()
mk_srd(SK, 6, 2 * BATCH)
mk_srd(SV, 8, 2 * BATCH)
mk_srd(SDBG, 24, 256)
mk_srd(SWO, 12, 4096 * 1024)
mk_srd(SGA, 16, 512 * 3584)
mk_srd(SUP, 18, 512 * 3584)
mk_srd(SDN, 20, 1792 * 1024)
mk_srd(SOUT, 22, 2048)
smask(sMaskJ8, 0x00FF00FF00FF00FF)
smask(sMaskV, 0x0001000100010001)
mk_koff(t0, 0, t1)
e('v_and_b32 v%d, 0x300, v%d' % (t1, vL16))
e('v_add_u32 v%d, v%d, v%d' % (t1, t1, vL16))
tail_soff(sT0, sT1)
e('s_lshl_b32 s%d, s2, 21' % sT1)
e('s_add_u32 s%d, s%d, s%d' % (sT0, sT0, sT1))
e('s_lshl_b32 s%d, s%d, 12' % (sKV, sU))
e('s_add_u32 s%d, s%d, %d' % (sKV, sKV, EKV))
for b in range(2):
    e('s_add_u32 s%d, s%d, 0x%x' % (sT1, sT0, 7 * PARTB + b * BATCH))
    for kv in range(2):
        e('s_add_u32 m0, s%d, 0x%x' % (sKV, (b * 2 + kv) * 1024))
        a.vmem('buffer_load_dwordx4 v%d, %s, s%d offen %s lds' % ((t0, t1)[kv], srd((SK, SV)[kv]), sT1, wpol))
if args.tr:
    e('v_mov_b32 v%d, 0x44444444' % vSI)
    e('v_mov_b32 v%d, 0x11114444' % t0)
    e('v_cndmask_b32 v%d, v%d, v%d, %s' % (vSI, t0, vSI, sp(sMaskJ8)))
    e('v_and_b32 v%d, 1, v0' % t0)
    e('v_sub_u32 v%d, 0, v%d' % (t0, t0))
    e('v_and_b32 v%d, 0xaaaaaaaa, v%d' % (t0, t0))
    e('v_or_b32 v%d, v%d, v%d' % (vSI, vSI, t0))
else:
    for op in idx_ops(vSI, vL16):
        e(op)
    for k in range(12):
        e('v_mov_b32 v%d, 0' % (vA + k))
e('v_and_b32 v%d, 0x18, v%d' % (vSt, vL8))
e('v_bfe_u32 v%d, v0, 2, 2' % t0)
e('v_lshl_or_b32 v%d, v%d, 8, v%d' % (vSt, t0, vSt))
e('v_lshrrev_b32 v%d, 5, v0' % t0)
e('v_lshl_or_b32 v%d, v%d, 7, v%d' % (vSt, t0, vSt))
e('v_lshlrev_b32 v%d, 9, v0' % vOg)
e('s_lshl_b32 s%d, s%d, 9' % (sT0, sU))
e('v_add_u32 v%d, s%d, v%d' % (vEw, sT0, vL8))
e('s_and_b32 s%d, s2, 7' % sT0)
e('s_lshl3_add_u32 s%d, s%d, s%d' % (sG3, sU, sT0))
e('s_mul_i32 s%d, s%d, %d' % (sHU, sG3, HEADA))
if args.x4:
    e('s_lshl_b32 s%d, s%d, 3' % (sT0, sU))
    e('s_lshl_b64 %s, 0xff, s%d' % (sp(sQm), sT0))
e('s_lshl_b32 s%d, s%d, 4' % (sT0, sU))
if args.yb:
    e('s_bitcmp1_b32 s%d, 0' % sU)
    e('s_cselect_b32 s%d, 0, -1' % sQm)
    e('s_cselect_b32 s%d, -1, 0' % (sQm + 1))
elif not args.x4:
    e('s_lshl_b64 %s, 0xffff, s%d' % (sp(sQm), sT0))
e('v_lshrrev_b32 v%d, 4, v0' % vSw)
e('v_lshlrev_b32 v%d, 2, v%d' % (vSw, vSw))
e('v_add_u32 v%d, s%d, v%d' % (vSw, sT0, vSw))
e('v_and_b32 v%d, 0x30, v%d' % (vWr, vL16))
e('s_lshl_b32 s%d, s%d, 14' % (sT0, sU))
e('s_add_u32 s%d, s%d, %d' % (sT0, sT0, EDN))
e('v_add_u32 v%d, s%d, v%d' % (vWw, sT0, vL16))
e('v_lshrrev_b32 v%d, 2, v0' % t0)
e('v_lshlrev_b32 v%d, 3, v%d' % (vQr, t0))
e('v_and_b32 v%d, 1, v0' % t0)
e('v_lshl_or_b32 v%d, v%d, 8, v%d' % (vQr, t0, vQr))
e('v_bfe_u32 v%d, v0, 1, 1' % t0)
e('v_lshl_or_b32 v%d, v%d, 7, v%d' % (vQr, t0, vQr))
e('v_and_b32 v%d, 15, v0' % t0)
e('v_lshlrev_b32 v%d, 2, v%d' % (t0, t0))
e('v_lshrrev_b32 v%d, 4, v0' % t1)
e('v_lshl_or_b32 v%d, v%d, 7, v%d' % (t0, t1, t0))
e('v_add_u32 v%d, %d, v%d' % (vFr, E2, t0))
e('v_add_u32 v%d, %d, v%d' % (vFr2, E2 + 1024, t0))
e('s_lshl_b32 s%d, s%d, 8' % (sQa, sU))
e('s_add_u32 s%d, s%d, %d' % (sQa, sQa, EQ))
DQ = [vAc + 4 * k for k in range(4)] + [vLA + 48 + 4 * k for k in range(4)]
DO = DQ[:4] + [vLA + 32 + 4 * k for k in range(4)]
vR = vAc + 2 if args.tr else vAc


def zero_acc(lo, n, D=DQ):
    if args.tr:
        for d in D:
            e('v_mov_b64 %s, 0' % vp(d))
        return
    for k in range(n):
        e('v_mov_b32 v%d, 0' % (vAc + lo + k))


def ones():
    e('v_mov_b32 v%d, 1.0' % (vT if args.tr else vX))
    e('v_mov_b32 v%d, 1.0' % ((vT if args.tr else vX) + 1))
    if args.tr:
        e('s_mov_b64 vcc, 0')
    zero_acc(0, 8)


ones()
vZa, vEy, vL4, vTc = (vA + 8, vA + 9, vA + 10, vA + 11) if args.tr else (None, vLA + 60, vLA + 61, None)


def y_addr():
    e('v_and_b32 v%d, 0x1f0, v%d' % (vEy, vL16))
    e('v_lshrrev_b32 v%d, 5, v0' % vL4)
    e('v_lshl_or_b32 v%d, v%d, 3, v%d' % (vEy, vL4, vEy))
    if args.tr:
        e('v_mul_u32_u24 v%d, %d, v%d' % (vZa, 8192 - 256, vL4))
        e('v_add_u32 v%d, v%d, v%d' % (vZa, vZa, vL8))
    e('s_lshl_b32 s%d, s%d, 9' % (sT1, sU))
    e('v_add_u32 v%d, s%d, v%d' % (vEy, sT1, vEy))
    e('v_lshlrev_b32 v%d, 2, v0' % vL4)


if args.tr:
    y_addr()
    e('s_mov_b32 s%d, 0x05040100' % sPl)
    e('s_mov_b32 s%d, 0x07060302' % sPh)
e('v_and_b32 v%d, 0xf0, v%d' % (t0, vL16))
if args.x4:
    e('v_bfe_u32 v%d, v0, 4, 1' % t1)
    e('v_lshl_or_b32 v%d, v%d, 16, v%d' % (t0, t1, t0))
    e('v_lshrrev_b32 v%d, 5, v0' % t1)
    e('v_lshl_or_b32 v%d, v%d, 11, v%d' % (vAd, t1, t0))
else:
    e('v_lshl_or_b32 v%d, v%d, 10, v%d' % (vAd, vRs, t0))
e('s_lshl_b32 s%d, s%d, 17' % (sG3, sG3))
e('s_lshr_b32 s%d, s2, 3' % sT0)
e('s_lshl_b32 s%d, s%d, 8' % (sT0, sT0))
e('s_add_u32 s%d, s%d, s%d' % (sG3, sG3, sT0))


def wo_loads(lst):
    for it_ in lst:
        if it_ >= 8:
            continue
        for n in range(4 * it_, 4 * it_ + 4):
            e('s_add_u32 s%d, s%d, 0x%x' % (sT1, sG3, gtile(n) * 1024))
            WT.append(a.vmem('buffer_load_dwordx4 %s, v%d, %s, s%d offen %s' % (LAND[n] if args.tr else TO[n], vAd, srd(SWO), sT1, wpol)))


W0 = args.wo0
wo_loads(range(W0))
stamp(vT, True)
sq_(0)
if args.tr:
    assert not W0
    for n in range(0, 32, 2):
        a.vmwait(WT[n + 1])
        turn(TQ, LAND, n, vLA + 8)
        if n == 30 - args.wo1:
            wo_loads(range(2))
a.vmwait(wqtk)
sq_(1)
stamp(vT)
if not args.tr:
    wo_loads(range(W0, W0 + 2))
e('v_and_b32 v%d, 0xffff0000, v%d' % (vX0 + 1, vX0))
e('v_lshlrev_b32 v%d, 16, v%d' % (vX0, vX0))
e('v_and_b32 v%d, 0xffff0000, v%d' % (vX1 + 1, vX1))
e('v_lshlrev_b32 v%d, 16, v%d' % (vX1, vX1))
e('v_mul_u32_u24 v%d, 3584, v%d' % (vRs, vRs))
e('v_and_b32 v%d, 0x70, v%d' % (t1, vL16))
e('v_add_u32 v%d, v%d, v%d' % (vRs, t1, vRs))
e('s_mul_i32 s%d, s%d, %d' % (sG2, sU, 128 * 3584))
e('s_lshl_b32 s%d, s2, 7' % sT1)
e('s_add_u32 s%d, s%d, s%d' % (sG2, sG2, sT1))
e('s_cmp_ge_u32 s2, 28')
e('s_cselect_b32 s%d, 0x40000000, s%d' % (sG2, sG2))
e('s_mov_b32 s%d, 0' % sRet)
e('s_branch L_qstage')


def setx(src, pk=False):
    d = vT if args.tr and pk else vX
    e('v_mov_b32 v%d, v%d' % (d, src))
    e('v_mov_b32 v%d, v%d' % (d + 1, src + 1))
    if args.tr and pk:
        e('s_mov_b64 vcc, 0')


def q_slot():
    e('s_lshl3_add_u32 s%d, s%d, s%d' % (sQs, sJA, sHA))


sQs = sYp if args.tr else sT0


def bound(n):
    a.reset_counters()
    e('s_waitcnt vmcnt(%d)' % n)
    a.vm = list(range(n))


GT = {}


def gu_loads(lst):
    e('s_not_b64 %s, %s' % (sp(sMt), sp(sMaskJ8)))
    for n in lst:
        e('s_add_u32 s%d, s%d, 0x%x' % (sT1, sG2, xtile(n) * 3584))
        e('s_mov_b64 exec, %s' % sp(sMaskJ8))
        a.vmem('buffer_load_dwordx4 %s, v%d, %s, s%d offen %s' % (LANDG[n] if args.tr else TG[n], vRs, srd(SGA), sT1, wpol))
        e('s_mov_b64 exec, %s' % sp(sMt))
        GT[n] = a.vmem('buffer_load_dwordx4 %s, v%d, %s, s%d offen %s' % (LANDG[n] if args.tr else TG[n], vRs, srd(SUP), sT1, wpol))
    e('s_mov_b64 exec, -1')


a.label('L_csq')
e('v_mov_b32 v%d, v%d' % (vCq, vR))
e('v_mov_b32 v%d, v%d' % (vCq + 1, vR + 1))
zero_acc(0, 8)
setx(vX0, True)
e('s_getreg_b32 s%d, hwreg(HW_REG_XCC_ID, 0, 4)' % sFast)
e('s_or_b32 s%d, s%d, 0x80000000' % (sT0, sFast))
e('v_mov_b32 v%d, s%d' % (vMi + 7, sT0))
e('s_and_b32 s%d, s2, 7' % sT0)
e('s_lshr_b32 s%d, s2, 3' % sT1)
e('s_lshl2_add_u32 s%d, s%d, s%d' % (sT0, sT0, sT1))
e('s_lshl_b32 s%d, s%d, 2' % (sT0, sT0))
bound(8 + 4 * W0)
wo_loads(range(W0 + 2, W0 + 4))
e('s_mov_b32 s%d, 0' % sJA)
e('s_mov_b32 s%d, 1' % sRet)
if args.tr:
    q_slot()
e('s_barrier')
e('s_cmp_lg_u32 s%d, 0' % sU)
e('s_cbranch_scc1 L_qstage')
e('s_mov_b64 exec, 1')
e('buffer_store_dword v%d, off, %s, s%d sc1' % (vMi + 7, srd(SDBG), sT0))
e('s_mov_b64 exec, -1')
e('s_branch L_qstage')

a.label('L_i1')
zero_acc(0, 8)
setx(vX1, True)
bound(30)
wo_loads(range(W0 + 4, W0 + 6))
e('s_mov_b32 s%d, 32' % sJA)
e('s_add_u32 s%d, s%d, 1024' % (sQa, sQa))
e('s_mov_b32 s%d, 2' % sRet)
if args.tr:
    q_slot()
e('s_barrier')
e('s_branch L_qstage')

a.label('L_i2')
fl4 = vLA + 8
fl4ld = 'buffer_load_dwordx4 %s, off, %s, s%d sc1' % (vq(fl4), srd(SDBG), sLoc)


def fl4_load():
    e('s_and_b32 s%d, s2, 7' % sLoc)
    e('s_lshl_b32 s%d, s%d, 4' % (sLoc, sLoc))
    return a.vmem(fl4ld)


def dn_loads():
    e('v_bfe_u32 v%d, v0, 4, 1' % t0)
    e('v_lshlrev_b32 v%d, 14, v%d' % (vAd, t0))
    e('v_lshrrev_b32 v%d, 5, v0' % t0)
    e('v_lshl_or_b32 v%d, v%d, 12, v%d' % (vAd, t0, vAd))
    e('v_and_b32 v%d, 0xf0, v%d' % (t0, vL16))
    e('v_or_b32 v%d, v%d, v%d' % (vAd, vAd, t0))
    e('s_lshl_b32 s%d, s2, 16' % sT0)
    e('s_lshl_b32 s%d, s%d, 8' % (sT1, sU))
    e('s_add_u32 s%d, s%d, s%d' % (sT0, sT0, sT1))
    e('s_lshl_b32 s%d, s%d, 14' % (sG0, sU))
    for n in range(16):
        tau, pi, r = n & 1, (n >> 1) & 1, n >> 2
        e('s_add_u32 s%d, s%d, 0x%x' % (sT1, sT0, (32 * pi + 8 * (r >> 1) + 2 * tau + (r & 1)) * 1024))
        e('s_add_u32 m0, s%d, 0x%x' % (sG0, EDN + n * 1024))
        a.vmem('buffer_load_dwordx4 v%d, %s, s%d offen %s lds' % (vAd, srd(SDN), sT1, wpol))


if args.tr:
    a.reset_counters()
    a.vm = list(range(24))
    WT = list(range(24))
    wo_loads(range(6, 8))
    dn_loads()
    ftk = fl4_load()
    for n in range(0, 32, 2):
        a.vmwait(WT[n + 1])
        turn(TO, LAND, n, vLA + 16)
        gu_loads(range(n, n + 2))
    a.vmwait(ftk)
else:
    bound(30)
    wo_loads(range(W0 + 6, 8))
    gu_loads(range(12))
    fl4_load()
    gu_loads(range(12, 32))
    dn_loads()
sq_(2)
if args.wS:
    warm_site('s')
if not args.tr:
    bound(52)
sq_(3)
stamp(vT)
a.label('L_f4')
e('v_min3_u32 v%d, v%d, v%d, v%d' % (vT, fl4, fl4 + 1, fl4 + 2))
e('v_min_u32 v%d, v%d, v%d' % (vT, vT, fl4 + 3))
e('v_cmp_eq_u32 vcc, 0, v%d' % vT)
e('s_cbranch_vccz L_f4ok')
e(fl4ld)
e('s_waitcnt vmcnt(0)')
spin_tail('L_f4')
a.label('L_f4ok')
e('v_max3_u32 v%d, v%d, v%d, v%d' % (vT + 1, fl4, fl4 + 1, fl4 + 2))
e('v_max_u32 v%d, v%d, v%d' % (vT + 1, vT + 1, fl4 + 3))
e('v_xor_b32 v%d, v%d, v%d' % (vT, vT, vT + 1))
e('v_readfirstlane_b32 s%d, v%d' % (sLoc, vT))
if args.nofast:
    e('s_mov_b32 s%d, 1' % sLoc)
e('s_sub_u32 s%d, s%d, 1024' % (sQa, sQa))
e('s_mov_b32 s%d, 0' % sJA)
e('s_mov_b32 s%d, 4' % sRet)
if args.tr:
    for qd in range(2):
        for k in range(8):
            a.lds('ds_read_b128 %s, v%d offset:%d' % (vq(vLA + 4 * k), vWw, (2 * k + qd) * 1024))
        a.lgwait_all()
        for t_ in range(8):
            for r in range(4):
                e('v_perm_b32 v%d, v%d, v%d, s%d' % (vT + r, vLA + 8 * r + 4 + (t_ >> 1), vLA + 8 * r + (t_ >> 1), (sPl, sPh)[t_ & 1]))
            a.lds('ds_write_b128 v%d, %s offset:%d' % (vWw, vq(vT), (2 * t_ + qd) * 1024))
            a.nop(2)
    a.lgwait_all()
    for n in range(0, 16, 2):
        a.vmwait(GT[n + 1])
        turn(TG, LANDG, n, None)
e('s_branch L_own')

a.label('L_i4')
sq_(4)
if args.tr:
    for n in range(16, 32, 2):
        turn(TG, LANDG, n, None)
ones()
stamp(vT)
e('s_branch L_fgemv')

a.label('L_csf')
if args.bwtest == 2:
    e('s_endpgm')
a.reset_counters()
e('v_mov_b32 v%d, v%d' % (vCf, vR))
e('v_mov_b32 v%d, v%d' % (vCf + 1, vR + 1))
setx(vX0)
vMe = vX0
if args.tr:
    smask(sMt, 0x0F0F0F0F0F0F0F0F)
    e('v_cndmask_b32 v%d, 0, -1, %s' % (vMe, sp(sMt)))
    e('v_cndmask_b32 v%d, -1, 0, %s' % (vMe + 1, sp(sMt)))
e('v_lshlrev_b32 v%d, 2, v0' % vT)
e('s_lshr_b32 s%d, s%d, 2' % (sIod, sFast))
if args.RR:
    e('s_cmp_lt_u32 s2, 28')
    e('s_cbranch_scc1 L_flags')
    e('s_lshl2_add_u32 s%d, s2, s%d' % (sG0, sU))
    e('s_lshl_b32 s%d, s%d, 8' % (sT0, sG0))
    e('s_add_u32 s%d, s%d, 0x%x' % (sT0, sT0, RACEB - 112 * 256))
    e('s_mov_b32 s%d, 0' % sVt)
    e('s_mov_b32 exec_hi, 0')
    e('s_waitcnt vmcnt(0)')
    for k in range(2 * args.RR):
        r = k >> 1
        c = (k ^ r) & 1
        e('s_movk_i32 s%d, 1000' % sG1)
        e('s_add_u32 s%d, s%d, 0x%x' % (sG2, sT0, (r >> 1) * 16384 + (r & 1) * 4096 + c * 8192))
        e('buffer_store_dword v%d, v%d, %s, s%d offen sc1' % (vT, vT, srd(SWS), sG2))
        a.label('L_rc%d' % k)
        e('s_getreg_b32 s%d, hwreg(HW_REG_IB_STS, 0, 4)' % sT1)
        e('s_%s_u32 s%d, s%d, 1' % ('add' if c else 'sub', sVt, sVt))
        e('s_sub_u32 s%d, s%d, 1' % (sG1, sG1))
        e('s_cselect_b32 s%d, 0, s%d' % (sT1, sT1))
        e('s_cmp_lg_u32 s%d, 0' % sT1)
        e('s_cbranch_scc1 L_rc%d' % k)
    if args.par == 'dbg':
        e('s_mov_b32 s11, s%d' % sVt)
    e('s_lshr_b32 s%d, s%d, 31' % (sVt, sVt))
    e('s_xor_b32 s%d, s%d, s%d' % (sVt, sVt, sIod))
    e('s_add_u32 s%d, s%d, 1' % (sVt, sVt))
    e('v_mov_b32 v%d, s%d' % (vT + 1, sVt if args.par != 'dbg' else 11))
    e('s_lshl_b32 s%d, s%d, 2' % (sG0, sG0))
    e('s_sub_u32 s%d, s%d, %d' % (sG0, sG0, 448 - 128))
    e('s_mov_b64 exec, 1')
    e('buffer_store_dword v%d, off, %s, s%d sc1' % (vT + 1, srd(SDBG), sG0))
    e('s_mov_b64 exec, -1')
    e('s_waitcnt vmcnt(0)')
    stamp(vT + 2)
    if args.ts and not args.quiet:
        e('s_sub_u32 s%d, s%d, 8' % (sTS, sTS))
a.label('L_flags')
e('buffer_load_dword v%d, v%d, %s, 0 offen sc1' % (vT + 1, vT, srd(SDBG)))
e('s_waitcnt vmcnt(0)')
e('v_cmp_eq_u32 vcc, 0, v%d' % (vT + 1))
e('s_nop 0')
e('s_cmp_eq_u32 vcc_lo, 0')
e('s_cbranch_scc1 L_flagsok')
spin_tail('L_flags', 4)
a.label('L_flagsok')
sq_(5)


def count_votes():
    e('v_cmp_eq_u32 vcc, 2, v%d' % (vT + 1))
    e('s_bcnt1_i32_b32 s%d, vcc_hi' % sT0)
    e('v_cmp_eq_u32 vcc, 1, v%d' % (vT + 1))
    e('s_bcnt1_i32_b32 s%d, vcc_hi' % sT1)
    e('s_cmp_gt_u32 s%d, s%d' % (sT0, sT1))
    e('s_cselect_b32 s%d, 1, 0' % sVt)
    if args.par.startswith('host'):
        e('s_load_dword s%d, s[14:15], 8' % sVt)
        e('s_waitcnt lgkmcnt(0)')
        e('s_lshr_b32 s%d, s%d, 13' % (sVt, sVt))
        if args.par == 'hostx':
            e('s_xor_b32 s%d, s%d, 1' % (sVt, sVt))
    e('s_xor_b32 s%d, s%d, s%d' % (sVt, sVt, sIod))
    e('s_and_b32 s%d, s%d, 1' % (sVt, sVt))
    e('s_lshl_b32 s%d, s%d, 13' % (sFast, sVt))


count_votes()
e('s_mov_b32 s%d, 0' % sIt)
e('s_mov_b32 s%d, 0' % sOutB)
e('s_mov_b32 s%d, 5' % sRet)

a.label('L_loop')
a.reset_counters()
e('s_and_b32 s%d, s%d, 1' % (sT0, sIt))
e('s_lshl_b32 s%d, s%d, 1' % (sT0, sT0))
e('s_lshr_b32 s%d, s%d, 1' % (sT1, sIt))
e('s_or_b32 s%d, s%d, s%d' % (sT0, sT0, sT1))
e('s_add_u32 s%d, s%d, 1' % (sOm, sT1))
e('s_lshl_b32 s%d, s%d, 5' % (sJA, sT0))
e('s_add_u32 s%d, s%d, s%d' % (sG1, sJA, sHU))
e('s_bitcmp1_b32 s%d, 0' % sIt)
e('s_cselect_b32 s%d, 4096, 0' % sG0)
e('s_add_u32 s%d, s%d, %d' % (sG0, sG0, OFF_O))
e('s_add_u32 s%d, s%d, s%d' % (sG0, sG0, sHU))
e('s_lshl_b32 s%d, s%d, 15' % (sYg, sT0))
if args.yb:
    e('s_add_u32 s%d, s%d, 0x%x' % (sYg, sYg, YB))
    e('s_and_b32 s%d, s%d, 2' % (sT1, sU))
    e('s_lshl4_add_u32 s%d, s%d, s2' % (sT1, sT1))
    e('s_lshl_b32 s%d, s%d, 8' % (sT1, sT1))
    e('s_add_u32 s%d, s%d, s%d' % (sYp, sYg, sT1))
    e('s_lshl_b32 s%d, s%d, 11' % (sT1, sU))
    e('s_add_u32 s%d, s%d, s%d' % (sYg, sYg, sT1))
    e('s_add_u32 s%d, s%d, s%d' % (sYg, sYg, sFast))
    if not args.tr:
        y_addr()
else:
    if not args.y1:
        e('s_add_u32 s%d, s%d, s%d' % (sYg, sYg, sFast))
    e('s_add_u32 s%d, s%d, 0x%x' % (sYg, sYg, YB))
    e('s_add_u32 s%d, s%d, s%d' % (sYp, sYg, sHS))
    e('s_xor_b32 s%d, s%d, 8192' % (sVt, sYp))
    e('s_and_b32 s%d, s%d, 2' % (sT1, sU))
    e('s_add_u32 s%d, s%d, s%d' % (sT1, sT1, sU))
    e('s_lshl_b32 s%d, s%d, 12' % (sT1, sT1))
    e('s_add_u32 s%d, s%d, s%d' % (sYg, sYg, sT1))
e('s_lshl2_add_u32 s%d, s%d, s%d' % ((sZg, sU, sT0) if args.zl == 1 else (sZg, sT0, sU)))
e('s_lshl_b32 s%d, s%d, 15' % (sZg, sZg))
if args.zc == 1:
    e('s_bitcmp1_b32 s%d, 0' % sU)
    e('s_cselect_b32 s%d, 8192, 0' % sT1)
    e('s_add_u32 s%d, s%d, s%d' % (sZg, sZg, sT1))
else:
    e('s_add_u32 s%d, s%d, s%d' % (sZg, sZg, sFast))
e('s_add_u32 s%d, s%d, 0x%x' % (sZg, sZg, ZB))
zero_acc(0, 16, DO)
sq_dump(vT)
stamp(vT)
sv = vLA
a.label('L_stats')
e('buffer_load_dwordx2 %s, v%d, %s, s%d offen sc1' % (vp(sv), vSt, srd(SWS), sG1))
e('s_waitcnt vmcnt(0)')
e('v_max_u32 v%d, v%d, v%d' % (vT, sv, sv + 1))
e('v_cmp_eq_u32 vcc, -1, v%d' % vT)
e('s_cbranch_vccz L_statsok')
spin_tail('L_stats', args.ssl)
a.label('L_statsok')
sq_(0)
stamp(vT)
oa = vLA + 16
fF = vLA + 8
Gs = [sG0, sG1, sG2, sG3]


def o_loads(k=0):
    for i in range(4):
        e('buffer_load_dwordx4 %s, v%d, %s, s%d offen offset:%d sc1' % (vq(oa + 16 * k + 4 * i), vL16, srd(SWS), sG0, i * 1024))


def touch(k, r):
    if k not in args.stch:
        return
    e('s_cmp_lg_u32 s%d, 0' % sIt)
    e('s_cbranch_scc1 L_nt' + k)
    e('v_lshlrev_b32 v%d, 3, v%d' % (r, vL16))
    e('s_mov_b32 exec_lo, 0xff00ffff')
    e('s_mov_b32 exec_hi, 0x00ffffff')
    e('buffer_load_dword v%d, v%d, %s, s%d offen sc1' % (r, r, srd(SWS), sHU))
    e('s_mov_b64 exec, -1')
    a.label('L_nt' + k)


e('s_bitcmp1_b32 s%d, 0' % sIt)
e('s_cbranch_scc1 L_noprobe')
e('s_mov_b64 exec, 0x7f')
a.label('L_probe')
e('buffer_load_dword v%d, v%d, %s, s%d offen sc1' % (oa, vOg, srd(SWS), sG0))
e('s_waitcnt vmcnt(0)')
e('v_and_b32 v%d, s%d, v%d' % (oa, sOm, oa))
e('v_cmp_eq_u32 vcc, 0, v%d' % oa)
if args.pall:
    e('s_bcnt1_i32_b32 s%d, vcc_lo' % sT0)
    e('s_cmp_ge_u32 s%d, %d' % (sT0, args.pall))
    e('s_cbranch_scc1 L_probeok')
else:
    e('s_cbranch_vccnz L_probeok')
spin_tail('L_probe', args.psl)
a.label('L_probeok')
e('s_mov_b64 exec, -1')
touch('p', oa)
a.label('L_noprobe')
o_loads()
M_, L_ = vT, vT + 1
e('v_mov_b32 v%d, v%d' % (fF, sv))
a.chain(allreduce_list('v_max_f32', fF, None, (0, 1)), [])
e('v_mov_b32 v%d, v%d' % (M_, fF))
a.chain(allreduce_list('v_max_f32', M_, vT + 2, (2, 3, 5)), [])
e('v_sub_f32 v%d, v%d, v%d' % (L_, sv, M_))
e('v_sub_f32 v%d, v%d, v%d' % (fF, fF, M_))
e('v_exp_f32 v%d, v%d' % (L_, L_))
e('v_exp_f32 v%d, v%d' % (fF, fF))
e('v_mul_f32 v%d, v%d, v%d' % (L_, L_, sv + 1))
if args.ons > 2:
    o_loads(1)
a.chain(allreduce_list('v_add_f32', L_, vT + 2, (0, 1, 2, 3, 5)), [])
e('v_rcp_f32 v%d, v%d' % (L_, L_))
e('v_mul_f32 v%d, v%d, v%d' % (fF, fF, L_))
ac = vLA + 12
od = vLA + 10


def sentinel_check(base, n, t):
    e('v_max3_u32 v%d, v%d, v%d, v%d' % (t, base, base + 1, base + 2))
    k = 3
    while k + 1 < n:
        e('v_max3_u32 v%d, v%d, v%d, v%d' % (t, t, base + k, base + k + 1))
        k += 2
    if k < n:
        e('v_max_u32 v%d, v%d, v%d' % (t, t, base + k))
    e('v_cmp_eq_u32 vcc, -1, v%d' % t)


if args.ons > 1:
    o_loads(args.ons - 1)
a.label('L_ogather')
assert args.ons == 1
ob = oa
ot = vT + 1
for i in range(4):
    e('s_waitcnt vmcnt(%d)' % (3 - i))
    for k in range(4):
        e('%s v%d, v%d, v%d row_newbcast:%d %s' % ('v_mul_f32_dpp' if i == 0 else 'v_fmac_f32_dpp', ac + k, fF, ob + 4 * i + k, 4 * i, DPPF))
    r = ob + 4 * i
    if i == 0:
        e('v_or3_b32 v%d, v%d, v%d, v%d' % (ot, r, r + 1, r + 2))
        e('v_or_b32 v%d, v%d, v%d' % (ot, ot, r + 3))
    elif i < 3:
        e('v_or3_b32 v%d, v%d, v%d, v%d' % (ot, ot, r, r + 1))
        e('v_or3_b32 v%d, v%d, v%d, v%d' % (ot, ot, r + 2, r + 3))
e('v_or3_b32 v%d, v%d, v%d, v%d' % (ot, ot, r, r + 1))
e('v_permlane32_swap_b32 v%d, v%d' % (ac, ac + 2))
e('v_permlane32_swap_b32 v%d, v%d' % (ac + 1, ac + 3))
e('v_or3_b32 v%d, v%d, v%d, v%d' % (ot, ot, r + 2, r + 3))
e('v_add_f32 v%d, v%d, v%d' % (ac, ac, ac + 2))
e('v_and_b32 v%d, s%d, v%d' % (ot, sOm, ot))
e('v_cmp_ne_u32 vcc, 0, v%d' % ot)
e('v_add_f32 v%d, v%d, v%d' % (ac + 1, ac + 1, ac + 3))
ROT = [0, 4, 2, 6, 8, 12, 10, 14]


def rot(m):
    return 'v_mov_b32_dpp v%d, v%d row_ror:%d %s' % (vA + m, vA, 16 - ROT[m], DPPF)


if args.tr:
    e('v_cvt_pk_bf16_f32 v%d, v%d, v%d' % (vA, ac, ac + 1))
    e(rot(1))
    a.raw('    s_cbranch_vccnz L_oagain')
    a.pos += 1
    OOL.append(('L_oagain', lambda: (o_loads(), spin_tail('L_ogather'))))
    a.raw('L_ook:')
else:
    e('v_cvt_pk_bf16_f32 v%d, 0, v%d' % (od, ac))
    e('v_cvt_pk_bf16_f32 v%d, 0, v%d' % (od + 1, ac + 1))
    e('s_cbranch_vccz L_ook')
    o_loads()
    spin_tail('L_ogather')
    a.label('L_ook')
sq_(1)
ct(0)
stamp(vT + 2)
if args.noit1 == 2:
    e('s_cmp_eq_u32 s%d, 1' % sIt)
    e('s_cbranch_scc1 L_next')


def ackwait(n):
    if not args.noack:
        e('s_waitcnt vmcnt(%d)' % (n and n + (1 if args.ts and not args.cts and not args.quiet else 0)))


NPF = 12


def dn_read(c):
    return a.lds('ds_read_b128 %s, v%d offset:%d' % (vq(vLA + 4 * c), vWw, c * 1024))


def gather_y():
    e('s_waitcnt vmcnt(%d)' % ((3 if args.ts and not args.cts and not args.quiet else 2) - bool(args.yb)))
    touch('y', vTc if args.tr else vLA + 63)
    for c in range(NPF):
        dn_read(c)
    zero_acc(0, 8)
    if args.zo:
        e('s_lshl_b32 s%d, s2, 8' % sYp)
        e('s_add_u32 s%d, s%d, s%d' % (sYp, sYp, sZg))
    elif args.zb:
        e('s_lshl_b32 s%d, s2, 8' % sYp)
        e('s_bitcmp1_b32 s%d, 0' % sIt)
        e('s_cselect_b32 s%d, s%d, s%d' % (sYp, sHS, sYp))
        e('s_add_u32 s%d, s%d, s%d' % (sYp, sYp, sZg))
        e('s_xor_b32 s%d, s%d, 8192' % (sVt, sYp))
    if args.z1:
        e('s_andn2_b32 s%d, s%d, 8192' % (sG0, sYp))
    if args.z28:
        assert sG1 % 2 == 0 and args.zo
        e('s_cmp_lt_u32 s2, 28')
        e('s_cselect_b32 s%d, -1, %d' % (sG1, args.z28))
        e('s_cselect_b32 s%d, -1, 0' % (sG1 + 1))
    if args.yb:
        pick_a(vMi if args.tr else vLA + 56, vT)
    if args.yh:
        e('v_and_b32 v%d, 0x300, v%d' % (vLA + 56, vL16))
        e('v_add_u32 v%d, v%d, v%d' % (vLA + 56, vLA + 56, vL16))
    ackwait(args.acky)
    if args.ysl:
        e('s_sleep %d' % args.ysl)
    b = vLA + 48
    if args.yb:
        B = [vMi + 4, vA + 4] if args.tr else [b, b + 4]
        a.label('L_y_ld')
        for i in range(2):
            e('buffer_load_dwordx4 %s, v%d, %s, s%d offen offset:%d %s' % (vq(B[i]), vL16, srd(SWS), sYg, i * 1024, args.lpol))
        for i in range(2):
            e('s_waitcnt vmcnt(%d)' % (1 - i))
            mfma(vq(vT), vq(vMi if args.tr else b + 8), vq(B[i]), i == 0)
        finish_x('y', False)

        def bad():
            e('v_max3_u32 v%d, v%d, v%d, v%d' % (vT + 3, B[0], B[0] + 1, B[0] + 2))
            e('v_max3_u32 v%d, v%d, v%d, v%d' % (vT + 3, vT + 3, B[0] + 3, B[1]))
            e('v_max3_u32 v%d, v%d, v%d, v%d' % (vT + 3, vT + 3, B[1] + 1, B[1] + 2))
            e('v_max_u32 v%d, v%d, v%d' % (vT + 3, vT + 3, B[1] + 3))
            e('v_cmp_eq_u32 vcc, -1, v%d' % (vT + 3))
            e('s_cbranch_vccz L_y_ok')
            spin_tail('L_y_ld')
        OOL.append(('L_y_bad', bad))
        return
    if args.yh:
        a.label('L_y_ld')
        for i in range(2):
            e('buffer_load_dwordx4 %s, v%d, %s, s%d offen offset:%d sc1' % (vq(b + 4 * i), b + 8, srd(SWS), sYg, i * 2048))
        e('s_waitcnt vmcnt(0)')
        e('v_pk_add_f32 %s, %s, %s' % (vp(vT), vp(b), vp(b + 4)))
        e('v_pk_add_f32 %s, %s, %s' % (vp(vT + 2), vp(b + 2), vp(b + 6)))
        finish_x('y')
        OOL.append(('L_y_bad', lambda: (sentinel_check(b, 8, vT + 2), e('s_cbranch_vccz L_y_ok'), spin_tail('L_y_ld'))))
        return
    a.label('L_y_ld')
    for i in range(4):
        e('buffer_load_dwordx4 %s, v%d, %s, s%d offen offset:%d sc1' % (vq(b + 4 * i), vL16, srd(SWS), sYg, i * 1024))
    e('s_waitcnt vmcnt(2)')
    e('v_pk_add_f32 %s, %s, %s' % (vp(vT), vp(b), vp(b + 4)))
    e('v_pk_add_f32 %s, %s, %s' % (vp(vT + 2), vp(b + 2), vp(b + 6)))
    e('s_waitcnt vmcnt(1)')
    e('v_pk_add_f32 %s, %s, %s' % (vp(vT), vp(vT), vp(b + 8)))
    e('v_pk_add_f32 %s, %s, %s' % (vp(vT + 2), vp(vT + 2), vp(b + 10)))
    e('s_waitcnt vmcnt(0)')
    e('v_pk_add_f32 %s, %s, %s' % (vp(vT), vp(vT), vp(b + 12)))
    e('v_pk_add_f32 %s, %s, %s' % (vp(vT + 2), vp(vT + 2), vp(b + 14)))
    finish_x('y')
    OOL.append(('L_y_bad', lambda: (sentinel_check(b, 16, vT + 2), e('s_cbranch_vccz L_y_ok'), spin_tail('L_y_ld'))))


def finish_x(tag, fold=True):
    if fold:
        e('v_permlane32_swap_b32 v%d, v%d' % (vT, vT + 2))
        e('v_permlane32_swap_b32 v%d, v%d' % (vT + 1, vT + 3))
        e('v_add_f32 v%d, v%d, v%d' % (vT, vT, vT + 2))
        e('v_add_f32 v%d, v%d, v%d' % (vT + 1, vT + 1, vT + 3))
    e('v_cmp_u_f32 vcc, v%d, v%d' % (vT, vT + 1))
    e('v_cvt_pk_bf16_f32 v%d, 0, v%d' % (vT, vT))
    e('v_cvt_pk_bf16_f32 v%d, 0, v%d' % (vT + 1, vT + 1))
    if args.tr:
        e('v_pk_add_f32 %s, %s, %s' % (vp(vT), vp(vX), vp(vT)))
        a.raw({'y': 'L_fgemv:', 'z': 'L_qstage:'}[tag])
        e('v_cvt_pk_bf16_f32 v%d, v%d, v%d' % (vA, vT, vT + 1))
        e('v_readfirstlane_b32 s%d, v%d' % (sT1, vT))
        a.raw('    s_cbranch_vccnz L_%s_bad' % tag)
        a.pos += 1
        a.raw('L_%s_ok:' % tag)
        return
    e('v_add_f32 v%d, v%d, v%d' % (vT, vX, vT))
    e('v_add_f32 v%d, v%d, v%d' % (vT + 1, vX + 1, vT + 1))
    e('s_nop 0')
    a.raw('    s_cbranch_vccnz L_%s_bad' % tag)
    a.pos += 1
    a.raw('L_%s_ok:' % tag)
    e('v_cvt_pk_bf16_f32 v%d, 0, v%d' % (vX, vT))
    e('v_cvt_pk_bf16_f32 v%d, 0, v%d' % (vX + 1, vT + 1))


def pick_a(A, t):
    e('v_and_b32 v%d, 16, v%d' % (t, vL16))
    e('s_movk_i32 s%d, 0x3f80' % sT0)
    e('v_lshlrev_b32 v%d, v%d, s%d' % (t, t, sT0))
    for k in range(4):
        smask(sMt, 0x0003000300030003 << (4 * k))
        e('v_cndmask_b32 v%d, 0, v%d, %s' % (A + k, t, sp(sMt)))


def gather_b():
    A = vLA + 32
    pick_a(A, vT)
    if args.zb == 2:
        e('s_lshr_b32 s%d, s2, 3' % sT0)
        for q in range(3):
            e('s_add_u32 s%d, s%d, %d' % (sT1, sT0, q))
            e('s_sub_u32 s%d, s%d, 3' % (Gs[q], sT1))
            e('s_cselect_b32 s%d, s%d, s%d' % (sT1, sT1, Gs[q]))
            e('s_lshl_b32 s%d, s%d, 11' % (sT1, sT1))
            e('s_add_u32 s%d, s%d, s%d' % (Gs[q], sZg, sT1))
        e('s_add_u32 s%d, s%d, 6144' % (Gs[3], sZg))
        at = lambda i: (Gs[i >> 1], (i & 1) * 1024)
    else:
        e('s_add_u32 s%d, s%d, 4096' % (Gs[0], sZg))
        at = lambda i: (Gs[0] if i >> 2 else sZg, (i & 3) * 1024)
    zero_acc(0, 8)
    if args.tr:
        e('s_add_u32 s%d, s%d, 64' % (sJA, sJA))
        q_slot()
    touch('z', vLA + 40)
    ackwait(args.ackz)
    a.label('L_z_ld')
    for i in range(7):
        e('buffer_load_dwordx4 %s, v%d, %s, s%d offen offset:%d %s' % ((vq(vLA + 4 * i), vL16, srd(SWS)) + at(i) + (args.lpol,)))
    for i in range(7):
        e('s_waitcnt vmcnt(%d)' % (6 - i))
        mfma(vq(vT), vq(A), vq(vLA + 4 * i), i == 0)
    finish_x('z', False)
    OOL.append(('L_z_bad', lambda: (sentinel_check(vLA, 28, vT + 2), e('s_cbranch_vccz L_z_ok'), spin_tail('L_z_ld'))))


def gather(tag, yz, nz):
    e('s_lshr_b32 s%d, s2, 3' % sT0)
    for q in range(4):
        e('s_add_u32 s%d, s%d, %d' % (sT1, sT0, q))
        e('s_and_b32 s%d, s%d, 2' % (Gs[q], sT1))
        e('s_and_b32 s%d, s%d, 3' % (sT1, sT1))
        e('s_add_u32 s%d, s%d, s%d' % (sT1, sT1, Gs[q]))
        e('s_lshl_b32 s%d, s%d, 12' % (sT1, sT1))
        e('s_add_u32 s%d, s%d, s%d' % (Gs[q], sZg, sT1))
    zero_acc(0, nz)
    touch('z', vLA + (7 if args.zh else 63))
    pend = sMt

    if args.zh:
        e('v_and_b32 v%d, 0x300, v%d' % (vMi + 7, vL16))
        e('v_add_u32 v%d, v%d, v%d' % (vMi + 7, vMi + 7, vL16))
        for q in range(4):
            for k in range(8, 16):
                e('v_mov_b32 v%d, 0' % (vLA + 16 * q + k))
    ackwait(args.ackz)

    def loads(q):
        if args.zh:
            for i in range(2):
                e('buffer_load_dwordx4 %s, v%d, %s, s%d offen offset:%d sc1' % (vq(vLA + 16 * q + 4 * i), vMi + 7, srd(SWS), Gs[q], i * 2048))
            return
        for i in range(4):
            e('buffer_load_dwordx4 %s, v%d, %s, s%d offen offset:%d sc1' % (vq(vLA + 16 * q + 4 * i), vL16, srd(SWS), Gs[q], i * 1024))

    def red(q):
        b = vLA + 16 * q
        e('v_pk_add_f32 %s, %s, %s' % (vp(b), vp(b), vp(b + 4)))
        e('v_pk_add_f32 %s, %s, %s' % (vp(b + 2), vp(b + 2), vp(b + 6)))
        e('v_pk_add_f32 %s, %s, %s' % (vp(b + 8), vp(b + 8), vp(b + 12)))
        e('v_pk_add_f32 %s, %s, %s' % (vp(b + 10), vp(b + 10), vp(b + 14)))
        e('v_pk_add_f32 %s, %s, %s' % (vp(b), vp(b), vp(b + 8)))
        e('v_pk_add_f32 %s, %s, %s' % (vp(b + 2), vp(b + 2), vp(b + 10)))

    def s02():
        e('v_pk_add_f32 %s, %s, %s' % (vp(vMi), vp(vLA), vp(vLA + 32)))
        e('v_pk_add_f32 %s, %s, %s' % (vp(vMi + 2), vp(vLA + 2), vp(vLA + 34)))

    def fin():
        e('v_pk_add_f32 %s, %s, %s' % (vp(vT), vp(vLA + 16), vp(vLA + 48)))
        e('v_pk_add_f32 %s, %s, %s' % (vp(vT + 2), vp(vLA + 18), vp(vLA + 50)))
        e('v_pk_add_f32 %s, %s, %s' % (vp(vT), vp(vT), vp(vMi)))
        e('v_pk_add_f32 %s, %s, %s' % (vp(vT + 2), vp(vT + 2), vp(vMi + 2)))
    for q in range(4):
        loads(q)
    e('s_mov_b32 s%d, 15' % pend)
    for q in range(4):
        e('s_waitcnt vmcnt(%d)' % (6 - 2 * q if args.zh else 12 - 4 * q))
        red(q)
        if q == 2:
            s02()
    a.raw('L_%s_fin:' % tag)
    fin()
    finish_x(tag)

    def bad():
        e('s_cmp_eq_u32 s%d, 0' % pend)
        e('s_cbranch_scc1 L_%s_ok' % tag)
        for q in range(4):
            b = vLA + 16 * q
            e('v_add_f32 v%d, v%d, v%d' % (vT, b, b + 1))
            e('v_add_f32 v%d, v%d, v%d' % (vT + 1, b + 2, b + 3))
            e('v_cmp_u_f32 vcc, v%d, v%d' % (vT, vT + 1))
            e('s_cbranch_vccnz L_%s_n%d' % (tag, q))
            e('s_bitset0_b32 s%d, %d' % (pend, q))
            a.label('L_%s_n%d' % (tag, q))
        a.label('L_%s_again' % tag)
        for q in range(4):
            lk = 'L_%s_r%d' % (tag, q)
            e('s_bitcmp1_b32 s%d, %d' % (pend, q))
            e('s_cbranch_scc0 %s' % lk)
            loads(q)
            a.label(lk)
        e('s_waitcnt vmcnt(0)')
        for q in range(4):
            lk = 'L_%s_k%d' % (tag, q)
            e('s_bitcmp1_b32 s%d, %d' % (pend, q))
            e('s_cbranch_scc0 %s' % lk)
            sentinel_check(vLA + 16 * q, 16, vT)
            red(q)
            e('s_cbranch_vccnz %s' % lk)
            e('s_bitset0_b32 s%d, %d' % (pend, q))
            a.label(lk)
        s02()
        e('s_cmp_eq_u32 s%d, 0' % pend)
        e('s_cbranch_scc1 L_%s_fin' % tag)
        spin_tail('L_%s_again' % tag)
    OOL.append(('L_%s_bad' % tag, bad))


def resid():
    e('v_cvt_pk_bf16_f32 v%d, 0, v%d' % (vT, vT))
    e('v_cvt_pk_bf16_f32 v%d, 0, v%d' % (vT + 1, vT + 1))
    e('v_add_f32 v%d, v%d, v%d' % (vX, vX, vT))
    e('v_add_f32 v%d, v%d, v%d' % (vX + 1, vX + 1, vT + 1))
    e('v_cvt_pk_bf16_f32 v%d, 0, v%d' % (vX, vX))
    e('v_cvt_pk_bf16_f32 v%d, 0, v%d' % (vX + 1, vX + 1))


RD = [vR + (4 if args.tr else 2) * k for k in range(4)]
SEQL = [(t_, 0) for t_ in range(args.sl)] + [(t_, 1) for t_ in range(4)] + [(t_, 0) for t_ in range(args.sl, 8)] + [(t_, 1) for t_ in range(4, 8)]
SEQO = [(0, 0), (1, 0), (2, 0), (3, 0), (0, 1), (1, 1), (2, 1), (3, 1), (4, 0), (5, 0), (4, 1), (5, 1), (6, 0), (7, 0), (6, 1), (7, 1)]


def gemv32(tiles, E, ES, reads, extra=(), vX=vX, cs=None, ret=None, lbl=None, pre=(), wide=None, vEw=vEw, post=()):
    sC = sT1
    r, t2, d0, d1 = vMi, vMi + 1, vMi + 2, vMi + 3
    side = []
    if ES is not None:
        side = ['v_readfirstlane_b32 s%d, v%d' % (sC, vX),
                'v_subrev_f32 v%d, s%d, v%d' % (d0, sC, vX), 'v_subrev_f32 v%d, s%d, v%d' % (d1, sC, vX + 1),
                'v_mul_f32 v%d, v%d, v%d' % (t2, d0, d0), 'v_add_f32 v%d, v%d, v%d' % (r, d0, d1),
                'v_fmac_f32 v%d, v%d, v%d' % (t2, d1, d1),
                'v_permlane32_swap_b32 v%d, v%d' % (r, t2), 'v_add_f32 v%d, v%d, v%d' % (r, r, t2)]
        side += allreduce_list('v_add_f32', r, None, (0, 1, 2, 3))
        side += ['v_add_f32_dpp v%d, v%d, v%d row_bcast:15 row_mask:0xa bank_mask:0xf' % (r, r, r),
                 'v_writelane_b32 v%d, s%d, 0' % (r, sC)]
    extra = list(extra)
    aset = lambda j: a_ops(vA + 4 * (j % 3), vX + (j >> 2), vT + (j >> 2), j & 3)
    a0, a1 = aset(0), aset(1)
    q = [mirror(vT, vX), a0[0], a0[3]] + side[:1] + [a0[1], a0[2], a1[0], a1[3]]
    if args.tr:
        q = [rot(m) for m in range(2, 6)]
        if ES is not None:
            q = [rot(m) for m in range(1, 4)] + ['v_cvt_pk_bf16_f32 v%d, 0, v%d' % (vX + k, vT + k) for k in range(2)]
    side = side[1:]
    for op in q:
        e(op)
    build = [a1[1], a1[2], mirror(vT + 1, vX + 1)]
    for j in range(2, 8):
        build += aset(j)
    if args.tr:
        build = [rot(m) for m in range(4 if ES is not None else 6, 8)]
        D = DQ if ES is not None else DO
        adds = ['v_add_f32_dpp v%d, v%d, v%d quad_perm:[0,1,2,3] row_mask:0x%x bank_mask:0xf' %
                (vT + (t_ & 1), D[t_], D[t_] + 1, 1 << ((t_ & 2) + (t_ >> 2))) for t_ in range(8)]
    wtk = None
    stk = None
    ndone = 0
    for n2 in range(16):
        j, pi = n2 >> 1, n2 & 1
        if args.tr:
            t_, hh = (SEQL if ES is not None else SEQO)[n2]
            assert hh == 0 or not build
            smf(D[t_], vA + 4 * hh, pair(tiles[16 * hh + 2 * t_], tiles[16 * hh + 2 * t_ + 1]), vSI)
            ndone += hh
            if wtk is not None and stk is None and n2 >= wn + args.lnb:
                a.lgwait(wtk)
                e('s_barrier')
                stk = a.lds('ds_read_b128 %s, v%d offset:%d' % (vq(vMi + 4), vWr, ES))
            lead = a.lines[-1].split()[0].startswith('v_smf')
            did = 0
            while did < 2:
                if side and a.needed(side[0]) == 0:
                    e(side.pop(0))
                elif build and (not did or side):
                    e(build.pop(0))
                elif side and not did and a.needed(side[0]) <= 2:
                    e(side.pop(0))
                elif not did and 8 - len(adds) < ndone and a.needed(adds[0]) <= (2 if lead else 0):
                    if lead and not side:
                        a.nop(2)
                    e(adds.pop(0))
                else:
                    if not did and lead and not side and ndone:
                        a.nop(2)
                    break
                did += 1
        else:
            smf(vAc + 4 * pi, vA + 4 * (j % 3), pair(tiles[2 * n2], tiles[2 * n2 + 1]), vSI)
            nb = 3 if n2 == 0 else 2
            for k in range(nb):
                if build:
                    e(build.pop(0))
                if side and a.needed(side[0]) == 0:
                    e(side.pop(0))
        if ES is not None and not side and wtk is None:
            e('s_mov_b64 exec, %s' % sp(sMaskV))
            wtk = a.lds('ds_write_b32 v%d, v%d offset:%d' % (vSw, r, ES))
            e('s_mov_b64 exec, -1')
            wn = n2
        elif wtk is not None and stk is None and n2 >= wn + 3 and not args.tr:
            a.lgwait(wtk)
            e('s_barrier')
            stk = a.lds('ds_read_b128 %s, v%d offset:%d' % (vq(vMi + 4), vWr, ES))
        if extra and n2 >= 12 and not args.tr:
            extra.pop(0)()
    assert not side and not build
    math_ = []
    nm, rs = vMi, vMi + 2
    if ES is not None:
        assert stk is not None
        c, S_, T_ = vMi + 4, vMi + 5, vMi + 7
        mw, mu, v, ee = vMi + 4, vMi + 6, vMi + 7, vMi + 5
        qs = lambda d, s_: ['v_add_f32_dpp v%d, v%d, v%d quad_perm:[1,0,3,2] %s' % (d, s_, s_, DPPF),
                            'v_add_f32_dpp v%d, v%d, v%d quad_perm:[2,3,0,1] %s' % (d, d, d, DPPF)]
        math_ = ['v_mul_f32 v%d, %s, v%d' % (S_, f32(1.0 / 128), S_),
                 'v_mul_f32 v%d, %s, v%d' % (T_, f32(1.0 / 128), T_),
                 'v_add_f32 v%d, v%d, v%d' % (mw, c, S_),
                 'v_fma_f32 v%d, -v%d, v%d, v%d' % (v, S_, S_, T_)]
        math_ += qs(mu, mw)
        math_ += ['v_mul_f32 v%d, 0.25, v%d' % (mu, mu),
                  'v_sub_f32 v%d, v%d, v%d' % (ee, mw, mu),
                  'v_fmac_f32 v%d, v%d, v%d' % (v, ee, ee),
                  'v_cvt_pk_bf16_f32 v%d, 0, v%d' % (mu, mu),
                  'v_mul_f32 v%d, v%d, v%d' % (nm, mu, cs)]
        math_ += [qs(v, v)[0], 'v_mul_f32 v%d, v%d, v%d' % (nm + 1, mu, cs + 1), qs(v, v)[1]]
        math_ += ['v_mul_f32 v%d, 0.25, v%d' % (v, v),
                  'v_max_f32 v%d, 0, v%d' % (v, v),
                  'v_cvt_pk_bf16_f32 v%d, 0, v%d' % (v, v),
                  'v_add_f32 v%d, %s, v%d' % (v, f32(1e-5), v),
                  'v_cvt_pk_bf16_f32 v%d, 0, v%d' % (v, v),
                  'v_sqrt_f32 v%d, v%d' % (v, v),
                  'v_cvt_pk_bf16_f32 v%d, 0, v%d' % (v, v),
                  'v_rcp_f32 v%d, v%d' % (rs, v),
                  'v_mul_f32 v%d, -v%d, v%d' % (nm, nm, rs),
                  'v_mul_f32 v%d, -v%d, v%d' % (nm + 1, nm + 1, rs)]
        a.lgwait(stk)
    math_[5:5] = list(pre)
    if args.tr:
        for op in adds:
            while math_ and a.needed(op) > 0 and a.needed(math_[0]) == 0:
                e(math_.pop(0))
            e(op)
        wtk = a.lds('ds_write_b64 v%d, %s offset:%d' % (vEw, vp(vT), E))
    else:
        m0 = 'v_permlane32_swap_b32 v%d, v%d' % (vAc, vAc + 2)
        while math_ and a.needed(m0) > 0:
            e(math_.pop(0))
        merge(vAc, vAc + 4)
        a.lds('ds_write_b64 v%d, %s offset:%d' % (vEw, vp(vAc), E))
    for k in range(13):
        if math_:
            e(math_.pop(0))
    if wide:
        e('s_mov_b64 exec, %s' % sp(sQm))
    a.lgwait_all()
    e('s_barrier')
    tks = [a.lds(x) for x in reads]
    for x in extra:
        x()
    if wide:
        add = lambda d, s_: [e('v_pk_add_f32 %s, %s, %s' % (vp(d + k), vp(d + k), vp(s_ + k))) for k in (0, 2)]
        a.lgwait(tks[1])
        add(wide[0], wide[1])
        a.lgwait(tks[2])
        add(wide[0], wide[2])
        a.lgwait(tks[3])
        add(wide[0], wide[3])
        return
    if ret is not None:
        e('s_cmp_eq_u32 s%d, %d' % (sRet, ret))
    for op in math_:
        e(op)
    for op in post:
        e(op)
    a.lgwait(tks[1])
    e('v_pk_add_f32 %s, %s, %s' % (vp(RD[0]), vp(RD[0]), vp(RD[1])))
    a.lgwait(tks[3])
    e('v_pk_add_f32 %s, %s, %s' % (vp(RD[2]), vp(RD[2]), vp(RD[3])))
    e('v_pk_add_f32 %s, %s, %s' % (vp(RD[0]), vp(RD[0]), vp(RD[2])))
    if ES is not None:
        a.raw('    s_cbranch_scc1 %s' % lbl)
        a.pos += 1
        e('v_pk_fma_f32 %s, %s, %s, %s op_sel_hi:[1,0,1]' % (vp(vR), vp(vR), vp(rs), vp(nm)))


def publish4(r, s0, s1):
    for s_ in (s1, s0) if args.far1 else (s0, s1):
        a.vmem('buffer_store_dwordx4 %s, v%d, %s, s%d offen %s' % (vq(r), vL16, srd(SWS), s_, args.ypol))


if args.x4:
    assert E1 == 0
    WD = [vAc, vAc + 4, vLA + 48, vLA + 52]
    gemv32(TO, E1, None, ['ds_read2_b64 %s, v%d offset0:%d offset1:%d' % (vq(WD[w]), vL8, 64 * w, 64 * w + 32) for w in range(4)], (), od, wide=WD)
    publish4(vAc, sYp, sVt)
else:
    gemv32(TO, E1, None, ['ds_read_b64 %s, v%d offset:%d' % (vp(RD[w]), vL8, E1 + 512 * w) for w in range(4)], (), od,
           vEw=vEy if args.yb else vEw)
    ct(1)
    e('s_mov_b64 exec, %s' % sp(sQm))
    if args.yb:
        e('v_cvt_pk_bf16_f32 v%d, v%d, v%d' % (vR, vR, vR + 1))
        e('v_min_u32 v%d, -2, v%d' % (vR, vR))
        a.vmem('buffer_store_dword v%d, v%d, %s, s%d offen %s' % (vR, vL4, srd(SWS), sYp, args.ypol))
    elif args.yh == 2:
        e('s_bitcmp1_b32 s%d, 1' % sU)
        e('s_cselect_b32 s%d, s%d, s%d' % (sT0, sVt, sYp))
        e('s_cselect_b32 s%d, 256, 0' % sT1)
        e('s_sub_u32 s%d, s%d, s%d' % (sT0, sT0, sT1))
        publish_local(vAc, vL8, sT0, 'y')
        e('s_mov_b64 exec, 1')
        e('buffer_load_dword v%d, off, %s, 0' % (vLA + 63, srd(SX)))
    else:
        publish_local(vAc, vL8, sYp, 'y')
        publish_local(vAc, vL8, sVt, 'y')
sq_(2)
ct(2)
e('s_mov_b64 exec, -1')
stamp(vT + 2)

gather_y()
sq_(3)
ct(3)
stamp(vT + 2)
if not args.tr:
    a.raw('L_fgemv:')
ex = [(lambda c=c: dn_read(c)) for c in range(NPF, 16)]
k1 = -2.0 * math.sqrt(2.0 / math.pi) * LOG2E
G_, U_ = vR, vR + 1
t, z = vT + 2, vT + 3
gemv32(TG, E2, E2S, ['ds_read2_b32 %s, v%d offset0:%d offset1:%d' % (vp(RD[i]), (vFr, vFr2)[i >> 1], 128 * (i & 1), 128 * (i & 1) + 16) for i in range(4)],
       ex, vX, vCf, 4, 'L_csf', ['v_mov_b32 v%d, %s' % (t, f32(k1))])
zd = ['v_mov_b64 %s, 0' % vp(d) for d in DQ[:4]]
ct(4)
ct(5)
e('v_cvt_pk_bf16_f32 v%d, 0, v%d' % (G_, G_))
e('v_mul_f32 v%d, v%d, v%d' % (z, G_, G_))
e('v_fmac_f32 v%d, %s, v%d' % (t, f32(k1 * 0.044715), z))
e('v_mul_f32 v%d, v%d, v%d' % (z, t, G_))
e('v_exp_f32 v%d, v%d' % (z, z))
e('v_cvt_pk_bf16_f32 v%d, 0, v%d' % (U_, U_))
e('v_add_f32 v%d, 1.0, v%d' % (z, z))
e('v_rcp_f32 v%d, v%d' % (z, z))
if args.tr:
    e(zd[0])
e('v_mul_f32 v%d, v%d, v%d' % (z, z, G_))
e('v_cvt_pk_bf16_f32 v%d, 0, v%d' % (z, z))
e('v_mul_f32 v%d, v%d, v%d' % (z, z, U_))
if args.tr:
    assert args.z1 and args.zo
    e('s_bitcmp1_b32 s%d, 0' % sIt)
    e(zd[1])
    e('v_mov_b32_dpp v%d, v%d row_ror:8 %s' % (t, z, DPPF))
    e('v_cvt_pk_bf16_f32 v%d, v%d, v%d' % (z, z, t))
    e(zd[2])
    e(zd[3])

    def drot(m):
        r_ = (16 - 2 * (m & 3) + 4 * (m >> 2)) & 15
        if not r_:
            return 'v_and_b32 v%d, v%d, v%d' % (vA + m, z, vMe + (m >> 2))
        return 'v_and_b32_dpp v%d, v%d, v%d row_ror:%d %s' % (vA + m, z, vMe + (m >> 2), r_, DPPF)
    for m in range(6):
        e(drot(m))
    a.lgwait_all()
    tail_ = []
    for k in range(4):
        tail_.append('v_add_f32 v%d, v%d, v%d' % (DQ[k], DQ[k], DQ[k] + 1))
        if k & 1:
            tail_.append('v_cvt_pk_bf16_f32 v%d, v%d, v%d' % (vAc + 2 + (k >> 1), DQ[k - 1], DQ[k]))
            tail_.append('v_min_u32 v%d, -2, v%d' % (vAc + 2 + (k >> 1), vAc + 2 + (k >> 1)))
    for n_, t_ in enumerate((0, 1, 2, 4, 5, 3, 6, 7)):
        e('v_smfmac_f32_16x16x64_bf16 %s, %s, v[%d:%d], v%d abid:1' % (vq(DQ[t_ & 3]), vq(vA + 4 * (t_ >> 2)), vLA + 8 * t_, vLA + 8 * t_ + 7, vSI))
        if n_ < 2:
            e(drot(6 + n_))
        elif n_ >= 3:
            a.nop(2)
            if a.needed(tail_[0]) == 0:
                e(tail_.pop(0))
    for op in tail_:
        e(op)
    publish_local(vAc + 2, vZa, sG0, 'z')
if not args.tr:
    e('v_cvt_pk_bf16_f32 v%d, 0, v%d' % (z, z))
if not args.zb:
    e('s_add_u32 s%d, s%d, s%d' % (sT0, sHS, sZg))
    e('s_xor_b32 s%d, s%d, 8192' % (sVt, sT0))
ct(6)
dset = lambda r: a_ops(vA + 4 * (r % 3), z, t, r)
d0_, d1_ = dset(0), dset(1)
for op in () if args.tr else (mirror(t, z), d0_[0], d0_[3], d0_[1], d0_[2], d1_[0], d1_[3]):
    e(op)
build = [d1_[1], d1_[2]] + dset(2) + dset(3)
for r in range(0 if args.tr else 4):
    for pi in (1, 0) if args.x4 or args.zb and not args.z1 else (0, 1):
        n = (r * 2 + pi) * 2
        smf(vAc + 8 + 4 * pi, vA + 4 * (r % 3), 'v[%d:%d]' % (vLA + 4 * n, vLA + 4 * n + 7), vSI)
        for k in range(2):
            if build:
                e(build.pop(0))
if args.noit1 == 1:
    e('s_cmp_eq_u32 s%d, 1' % sIt)
    e('s_cbranch_scc1 L_next')
if not args.tr:
    e('s_bitcmp1_b32 s%d, 0' % sIt)
if args.tr:
    pass
elif args.z1:
    e('v_lshrrev_b32 v%d, 5, v0' % vT)
    e('v_mul_u32_u24 v%d, %d, v%d' % (vT, 8192 - 256, vT))
    e('v_add_u32 v%d, v%d, v%d' % (vT, vT, vL8))
    merge(vAc + 8, vAc + 12)
    if not args.zo:
        a.raw('    s_cbranch_scc1 L_zodd')
        a.pos += 1
    e('v_cvt_pk_bf16_f32 v%d, v%d, v%d' % (vAc + 10, vAc + 8, vAc + 9))
    for k in (0, 1):
        e('v_min_u32 v%d, -2, v%d' % (vAc + 8 + k, vAc + 10))
    e('v_permlane32_swap_b32 v%d, v%d' % (vAc + 8, vAc + 9))
    if args.z28:
        e('s_mov_b64 exec, %s' % sp(sG1))
    if args.zc == 1:
        e('s_mov_b32 exec_hi, 0')
    publish_local(vAc + 8, vT, sYp if args.zc == 1 else sG0, 'z')
    if args.z28 or args.zc:
        e('s_mov_b64 exec, -1')
elif args.zb:
    a.raw('    s_cbranch_scc1 L_zodd')
    a.pos += 1
    zodd = a.needed('v_permlane32_swap_b32 v%d, v%d' % (vAc + 12, vAc + 14))
    for k in range(4):
        e('v_permlane32_swap_b32 v%d, v%d' % (vAc + 12 + k, vT + k))
    e('s_mov_b32 exec_hi, 0')
    for k in (0, 2):
        e('v_pk_add_f32 %s, %s, %s' % (vp(vAc + 8 + k), vp(vAc + 8 + k), vp(vT + k)))
    for k in (0, 1):
        e('v_cvt_pk_bf16_f32 v%d, v%d, v%d' % (vAc + 8 + k, vAc + 8 + 2 * k, vAc + 9 + 2 * k))
    for k in (0, 1):
        e('v_min_u32 v%d, -2, v%d' % (vAc + 8 + k, vAc + 8 + k))
    publish_local(vAc + 8, vL8, sYp, 'z')
    publish_local(vAc + 8, vL8, sVt, 'z')
    e('s_mov_b32 exec_hi, -1')
elif args.x4:
    for k in range(4):
        e('v_permlane32_swap_b32 v%d, v%d' % (vAc + 12 + k, vT + k))
    e('s_mov_b32 exec_hi, 0')
    for k in (0, 2):
        e('v_pk_add_f32 %s, %s, %s' % (vp(vAc + 8 + k), vp(vAc + 8 + k), vp(vT + k)))
    publish4(vAc + 8, sT0, sVt)
    e('s_mov_b32 exec_hi, -1')
else:
    merge(vAc + 8, vAc + 12)
    publish_local(vAc + 8, vL8, sT0, 'z')
    publish_local(vAc + 8, vL8, sVt, 'z')
sq_(4)
ct(7)
stamp(vT)
if args.zb:
    if args.zo:
        assert args.z1
        if args.ts:
            e('s_bitcmp1_b32 s%d, 0' % sIt)
        e('s_cbranch_scc1 L_out')
    gather_b()
else:
    if args.ts:
        e('s_bitcmp1_b32 s%d, 0' % sIt)
    e('s_cbranch_scc1 L_out')
    gather('z', 1, 8)
sq_(5)
ct(9)
stamp(vT + 2)
if not args.tr:
    e('s_add_u32 s%d, s%d, 64' % (sJA, sJA))
    a.raw('L_qstage:')
a.reset_counters()
if not args.tr:
    q_slot()
qd = vT
gemv32(TQ, E3, E3S, ['ds_read_b64 %s, v%d offset:%d' % (vp(RD[i]), vQr, E3 + 512 * i) for i in range(4)], (), vX, vCq, 0, 'L_csq',
       *([['v_lshlrev_b32 v%d, 2, v0' % (vT + 1)]] if not args.tr else []))
vQa = vL4 if args.tr else vT + 1
e('s_cmp_lg_u32 s%d, 0' % sU)
e('v_cvt_pk_bf16_f32 v%d, v%d, v%d' % (qd, vR, vR + 1))
e('v_min_u32 v%d, -2, v%d' % (qd, qd))
a.raw('    s_cbranch_scc1 L_qn')
e('buffer_store_dword v%d, v%d, %s, s%d offen offset:1024' % (qd, vQa, srd(SWS), sQs))
e('buffer_store_dword v%d, v%d, %s, s%d offen offset:2048 %s' % (qd, vQa, srd(SWS), sQs, sc('F')))
a.label('L_qn')
if args.quiet and not args.sq:
    e('s_memrealtime s[18:19]')
sq_(6)
ct(10)
stamp(vT + 2)
e('v_add_u32 v%d, s%d, v%d' % (vT + 1, sQa, vQa))
a.lds('ds_write_b32 v%d, v%d' % (vT + 1, qd))
a.lgwait_all()
e('s_cmp_eq_u32 s%d, 1' % sRet)
e('s_cbranch_scc1 L_i1')
e('s_cmp_eq_u32 s%d, 2' % sRet)
e('s_cbranch_scc1 L_i2')
a.label('L_own')
a.reset_counters()
oq, obt, ok_, ov, oc, om, op_, oml, oA, oD = vLA, vLA + 4, vLA + 8, vLA + 12, vLA + 16, vLA + 20, vLA + 17, vLA + 18, vLA + 24, vLA + 28
mk_qoff(vT + 2, 0, vT + 3)
e('v_add_u32 v%d, s%d, v%d' % (vT + 2, sQa, vT + 2))
e('v_add_u32 v%d, s%d, v%d' % (vT + 3, sKV, vL16))
a.lds('ds_read_b128 %s, v%d' % (vq(oq), vT + 2))
a.lds('ds_read_b128 %s, v%d' % (vq(ok_), vT + 3))
a.lds('ds_read_b128 %s, v%d offset:1024' % (vq(ov), vT + 3))
mk_c(oc, 1, vT)
mk_masks(om, vT)
a.lgwait_all()
build_bt(obt, oq, 1)
mfma(vq(oD), vq(ok_), vq(obt), True)
for o in score_ops([op_], 0, oD, oc, True):
    e(o)
e('s_lshl3_add_u32 s%d, s%d, s%d' % (sT0, sU, sJA))
e('s_add_u32 s%d, s%d, s%d' % (sT0, sT0, sHA))
e('s_lshl_b32 s%d, s%d, 4' % (sT1, sU))
softmax([op_], oml, vT, None, [], [], sT1, EOM, None)
osc = oc if args.tr else vLA + 32
for o in tail_a(oA, op_, 0, om, vT):
    e(o)
mfma(vq(oD), vq(oA), vq(ov), True)
tk = scale_a(osc, vL16, EOM)
e('s_bitcmp1_b32 s%d, 5' % sJA)
e('s_cselect_b32 s%d, 1, 2' % sOt)
e('s_bitcmp1_b32 s%d, 6' % sJA)
e('s_cselect_b32 s%d, 4096, 0' % sT1)
e('s_add_u32 s%d, s%d, %d' % (sT1, sT1, OFF_O + 7 * 512))
e('s_add_u32 s%d, s%d, s%d' % (sT1, sT1, sHA))
merge(oD, None)
a.lgwait(tk)
for o in scale_b(osc, oml):
    e(o)
wg_publish(oD, osc, vEw, vL8, EO, vLA, sT1, 'own', 'L_ownn', 0, sOt, sLoc)
e('s_waitcnt vmcnt(0)')
e('s_mov_b64 exec, 1')
store_sel('buffer_store_dwordx2 %s, off, %s, s%d offset:896' % (vp(oml), srd(SWS), sT0), 'owns', False, False, sLoc)
e('s_mov_b64 exec, -1')
e('s_cmp_eq_u32 s%d, 4' % sRet)
e('s_cbranch_scc1 L_i4')
e('s_add_u32 s%d, s%d, 1' % (sIt, sIt))
e('s_branch L_loop')

if args.zb and not args.zo:
    a.label('L_zodd')
    if not args.z1:
        a.nop(zodd)
        for O in (vAc + 12, vAc + 8):
            e('v_permlane32_swap_b32 v%d, v%d' % (O, O + 2))
            e('v_permlane32_swap_b32 v%d, v%d' % (O + 1, O + 3))
        e('v_add_f32 v%d, v%d, v%d' % (vAc + 8, vAc + 8, vAc + 14))
        e('v_add_f32 v%d, v%d, v%d' % (vAc + 9, vAc + 9, vAc + 15))
    publish_local(vAc + 8, vL8, sYp, 'z')
    publish_local(vAc + 8, vL8, sVt, 'z')
    sq_(4)
    stamp(vT)
    a.raw('L_out:')
else:
    a.label('L_out')
a.reset_counters()
if args.zo == 2:
    e('s_lshr_b32 s%d, s2, 1' % sT0)
    e('s_sub_u32 s%d, s%d, %d' % (sT0, sT0, 4 * args.osv))
    e('s_cmp_eq_u32 s%d, s%d' % (sT0, sU))
    e('s_cbranch_scc0 L_outn')
    oA = vLA + 16
    pick_a(oA, vT)
    e('v_and_b32 v%d, 0x380, v%d' % (vLA + 20, vL16))
    e('v_add_u32 v%d, v%d, v%d' % (vLA + 20, vLA + 20, vL16))
    for op in z64(vLA + 12, 4):
        e(op)
    e('s_and_b32 s%d, s2, 1' % sT1)
    e('s_lshl_b32 s%d, s%d, 7' % (sT0, sT1))
    e('s_add_u32 s%d, s%d, s%d' % (sT0, sT0, sZg))
    e('s_lshl_b32 s%d, s%d, 3' % (sT1, sT1))
    e('s_lshl_b64 %s, %s, s%d' % (sp(sMt), sp(sMaskJ8), sT1))
    e('s_add_u32 s%d, s%d, 4096' % (sT1, sT0))
    ackwait(args.acko)
    a.label('L_o_ld')
    for i in range(4):
        if i == 3:
            e('s_mov_b32 exec_hi, 0')
        e('buffer_load_dwordx4 %s, v%d, %s, s%d offen offset:%d %s' % (vq(vLA + 4 * i), vLA + 20, srd(SWS), (sT0, sT1)[i >> 1], (i & 1) * 2048, args.lpolo or args.lpol))
    e('s_mov_b32 exec_hi, -1')
    for i in range(4):
        e('s_waitcnt vmcnt(%d)' % (3 - i))
        mfma(vq(vT), vq(oA), vq(vLA + 4 * i), i == 0)
    for k in range(2):
        e('v_add_f32_dpp v%d, v%d, v%d row_ror:8 %s' % (vT + k, vT + k, vT + k, DPPF))
    e('v_cmp_u_f32 vcc, v%d, v%d' % (vT, vT + 1))
    OOL.append(('L_o_bad', lambda: (sentinel_check(vLA, 16, vT + 2), e('s_cbranch_vccz L_o_ok'), spin_tail('L_o_ld'))))
elif args.zo:
    e('v_and_b32 v%d, 31, v0' % t0)
    e('v_lshlrev_b32 v%d, 8, v%d' % (t0, t0))
    e('v_lshrrev_b32 v%d, 5, v0' % t1)
    e('v_lshl_or_b32 v%d, v%d, 3, v%d' % (t0, t1, t0))
    e('v_mov_b32 v%d, 0' % t1)
    e('s_and_b32 s%d, s2, 15' % sT0)
    e('s_lshr_b32 s%d, s2, 4' % sT1)
    e('s_lshl2_add_u32 s%d, s%d, s%d' % (sT0, sT0, sT1))
    e('s_lshl2_add_u32 s%d, s%d, s%d' % (sT0, sT0, sZg))
    e('s_lshl_b32 s%d, 1, s2' % sMt)
    e('s_mov_b32 s%d, s%d' % (sMt + 1, sMt))
    a.label('L_outw')
    e('s_mov_b32 exec_lo, 0x0fffffff')
    e('s_mov_b32 exec_hi, 0x0fffffff')
    ackwait(args.acko)
    e('buffer_load_dword v%d, v%d, %s, s%d offen sc1' % (t1, t0, srd(SWS), sT0))
    e('s_mov_b64 exec, -1')
    e('s_waitcnt vmcnt(0)')
    e('v_lshlrev_b32 v%d, 16, v%d' % (vT, t1))
    e('v_and_b32 v%d, 0xffff0000, v%d' % (vT + 1, t1))
    e('v_cmp_eq_u32 vcc, -1, v%d' % t1)
    OOL.append(('L_outr', lambda: spin_tail('L_outw')))
else:
    e('v_and_b32 v%d, 31, v0' % t0)
    e('v_and_b32 v%d, 16, v0' % t1)
    e('v_add_lshl_u32 v%d, v%d, v%d, 9' % (t0, t0, t1))
    e('v_lshrrev_b32 v%d, 5, v0' % t1)
    e('v_lshl_or_b32 v%d, v%d, 3, v%d' % (t0, t1, t0))
    e('s_lshl_b32 s%d, s2, 4' % sT0)
    e('s_add_u32 s%d, s%d, s%d' % (sT0, sT0, sZg))
    ackwait(args.acko)
    a.label('L_outw')
    e('buffer_load_dwordx2 %s, v%d, %s, s%d offen sc1' % (vp(vT), t0, srd(SWS), sT0))
    e('s_waitcnt vmcnt(0)')
    e('v_max_u32 v%d, v%d, v%d' % (t1, vT, vT + 1))
    e('v_cmp_eq_u32 vcc, -1, v%d' % t1)
    e('s_cbranch_vccz L_outok')
    spin_tail('L_outw')
    a.label('L_outok')
sq_(5)
ra = allreduce_list('v_add_f32', vT, vT + 2, (0, 1, 2, 3, 4))
rb = allreduce_list('v_add_f32', vT + 1, vT + 3, (0, 1, 2, 3, 4))
for k, (x, y) in enumerate(zip(ra, rb)):
    if args.zo == 2:
        break
    if args.zo and k == 2:
        a.raw('    s_cbranch_vccnz L_outr')
        a.pos += 1
    e(x)
    e(y)
e('v_cvt_pk_bf16_f32 v%d, 0, v%d' % (vT, vT))
e('v_cvt_pk_bf16_f32 v%d, 0, v%d' % (vT + 1, vT + 1))
e('v_add_f32 v%d, v%d, v%d' % (vT, vX, vT))
e('v_add_f32 v%d, v%d, v%d' % (vT + 1, vX + 1, vT + 1))
e('v_cvt_pk_bf16_f32 v%d, v%d, v%d' % (vT, vT, vT + 1))
if args.zo == 2:
    a.raw('    s_cbranch_vccnz L_o_bad')
    a.pos += 1
    a.raw('L_o_ok:')
if not args.zo:
    e('s_lshl_b32 s%d, 1, s2' % sMt)
    e('s_mov_b32 s%d, s%d' % (sMt + 1, sMt))
e('s_mov_b64 exec, %s' % sp(sMt))
e('buffer_store_dword v%d, v%d, %s, s%d offen %s' % (vT, vXo, srd(SOUT), sOutB, args.opol))
e('s_mov_b64 exec, -1')
if args.zo == 2:
    a.label('L_outn')
stamp(vLA)
ct(8)
e('s_cmp_eq_u32 s%d, 3' % sIt)
e('s_cbranch_scc0 L_next')
sq_dump(vLA)
ct_dump(vLA)
if args.pad:
    a.label('L_pad')
    e('s_memrealtime s[82:83]')
    e('s_waitcnt lgkmcnt(0)')
    e('s_sub_u32 s82, s82, s84')
    e('s_cmp_lt_u32 s82, %d' % (args.pad * 100))
    e('s_cbranch_scc1 L_pad')
if args.icprobe:
    e('s_branch L_ic0')
e('s_endpgm')
a.label('L_next')
if args.quiet and not args.sq:
    e('s_mov_b32 s16, s18')
if not args.novote:
    e('v_lshlrev_b32 v%d, 2, v0' % vT)
    e('buffer_load_dword v%d, v%d, %s, 0 offen sc1' % (vT + 1, vT, srd(SDBG)))
    e('s_waitcnt vmcnt(0)')
    count_votes()
setx(vX1)
e('s_add_u32 s%d, s%d, 2048' % (sKV, sKV))
e('s_mov_b32 s%d, 1024' % sOutB)
e('s_add_u32 s%d, s%d, 1024' % (sQa, sQa))
e('s_mov_b32 s%d, 32' % sJA)
e('s_branch L_own')

for lbl, ops in OOL:
    a.label(lbl)
    if callable(ops):
        e('s_nop 1')
        ops()
        continue
    for op in ops:
        e(op)

for blk in RAW:
    for ln in blk:
        a.raw(ln)
for k in range(args.icprobe):
    a.raw('    s_endpgm\n.p2align 11\nL_ic%d:\n    s_branch L_ic%d' % (k, k + 1))
if args.icprobe:
    a.raw('L_ic%d:' % args.icprobe)

hdr = open('cdna_kernels/%s.s.ref' % NAME).read().split('\n')
head = []
for ln in hdr:
    if ln.startswith('; @launch'):
        head.append('; @launch grid=(256,1,1) block=(256,1,1) lds=163840')
    elif ln.startswith('.p2align 8') and args.al:
        head += ['.p2align 12', ln]
    elif ln.startswith(NAME + '_kernel:'):
        head.append(ln)
        break
    else:
        head.append(ln)
tail = '''.section .rodata,"a"
.p2align 6
.amdhsa_kernel %s_kernel
  .amdhsa_next_free_vgpr 512
  .amdhsa_next_free_sgpr 102
  .amdhsa_accum_offset 256
  .amdhsa_group_segment_fixed_size 0
  .amdhsa_kernarg_size 96
  .amdhsa_user_sgpr_count 2
  .amdhsa_user_sgpr_kernarg_segment_ptr 1
  .amdhsa_system_sgpr_workgroup_id_x 1
.end_amdhsa_kernel
''' % NAME
if SITES:
    import warm
    a.lines = warm.place('\n'.join(a.lines).split('\n'), head, tail, SITES, 0 if args.al else 0xc00, args.wR)
open(args.o, 'w').write('\n'.join(head) + '\n' + a.text() + 's_endpgm\n' + tail + ('; TSB=%d\n' % (TSB + (args.wsoff << 20)) if args.ts else ''))
print('wrote', args.o, len(a.lines), 'lines')
```

```python
import re, subprocess, os, tempfile
LL = 'bin/'


def is_ins(l):
    t = l.strip()
    return t and not t.endswith(':') and not t.startswith(';') and not t.startswith('.')


def sizes(lines, head, tail):
    d = tempfile.mkdtemp()
    src = [re.sub(r'@W(\d+)_\d+', r'L_wr\1', l) for l in lines]
    open(d + '/x.s', 'w').write('\n'.join(head) + '\n' + '\n'.join(src) + '\ns_endpgm\n' + tail)
    subprocess.check_call([LL + 'clang', '-x', 'assembler', '-target', 'amdgcn-amd-amdhsa', '-mcpu=gfx950', '-c', d + '/x.s', '-o', d + '/x.o'])
    o = subprocess.check_output([LL + 'llvm-objdump', '-d', d + '/x.o'], text=True)
    sz = [4 * len(m.group(1).split()) for m in re.finditer(r'// [0-9A-F]+: ((?:[0-9A-F]{8} ?)+)', o)]
    ins = [l for l in lines if is_ins(l)]
    assert len(sz) == len(ins) + 1, (len(sz), len(ins))
    it = iter(sz)
    return [next(it) if is_ins(l) else 0 for l in lines]


def window(L):
    return range(L, min(L + 17, (L // 64 + 1) * 64))


WIDE = set('''v_mov_b32 v_mov_b64 v_add_f32 v_sub_f32 v_subrev_f32 v_mul_f32 v_max_f32 v_fmac_f32 v_exp_f32 v_rcp_f32 v_sqrt_f32 v_min_u32 v_max_u32
v_and_b32 v_or_b32 v_xor_b32 v_lshlrev_b32 v_lshrrev_b32 v_add_u32 v_sub_u32 v_cmp_eq_u32 v_cmp_ne_u32 v_cmp_u_f32'''.split())


def weights(L, hot):
    w, on, slot = [0.0] * len(L), False, []

    def close():
        k = L[slot[0]][0].split()[0] if slot else ''
        f = 0.1 if k.startswith('v_mfma') and len(slot) <= 3 else 0.3 if k.startswith('v_smf') and len(slot) <= 4 else 1
        for i in slot:
            w[i] *= f
    for i, x in enumerate(L):
        t = x[0].strip()
        if t.endswith(':'):
            for r0, r1 in hot:
                on = True if t[:-1] == r0 else False if t[:-1] == r1 else on
        if is_ins(t):
            if t.startswith('v_mfma') or t.startswith('v_smf'):
                close()
                slot = []
            slot.append(i)
            w[i] = 1.0 if on else 0.04
    close()
    return w


def settle(L, i0, p0, hot, tgt):
    w = weights(L, hot)
    cur = {p0 % 32: (0.0, None)}
    for i in range(i0, len(L)):
        t = L[i][0].split()
        if L[i][0].startswith(';@PAD'):
            opt = [(k, 0.002 * k) for k in range(0, 32, 4)]
        elif L[i][0].startswith(';@FILL'):
            k, n = i + 1, 0
            while not L[k][0].split()[0].startswith(t[1]):
                u = L[k][0].split()
                n += 0 if not is_ins(L[k][0]) else int(u[1]) + 1 if u[0] == 's_nop' else 1
                k += 1
            opt = [(0, 0), (4, 0.15 if n < 2 else 1.2)]
        elif len(L[i]) > 2:
            opt = [(4, 0), (8, 0.01)]
        else:
            opt = [(L[i][1], 0)]
        nxt = {}
        for p, (c, h) in cur.items():
            for s, d in opt:
                c2 = c + d
                if s == 8 and p == 28 and t[0] not in ('s_nop', ';@PAD'):
                    c2 += w[i]
                if t and t[0].endswith(':') and re.sub(r'_\d+o?:$|:$', '', t[0]) in tgt and p > 16:
                    c2 += 4
                q = (p + s) % 32
                if q not in nxt or c2 < nxt[q][0]:
                    nxt[q] = (c2, (h, i, s) if len(opt) > 1 else h)
        cur = nxt
    c, h = min(cur.values(), key=lambda x: x[0])
    while h:
        h, i, s = h
        L[i][1] = s
    return c


def place(lines, head, tail, sites, base, ranges, hot=None, tgt=()):
    sz = sizes(lines, head, tail)
    L = [[l, s] for l, s in zip(lines, sz)]
    if hot:
        L2, prev = [], ''
        for x in L:
            t = x[0].split()
            if x[1] == 4 and (t[0] in WIDE or t[0] == 's_nop' and t[1] != '0'):
                x.append(1)
            if t and t[0].endswith(':') and prev in ('s_branch', 's_endpgm'):
                L2.append([';@PAD', 0])
            prev = t[0] if t else prev
            L2.append(x)
        w = weights(L2, hot)
        L = []
        for x, y in zip(L2, w):
            L.append(x)
            if y > 0.05 and x[0].split()[0].startswith('v_smf'):
                L.append([';@FILL v_', 0])
        settle(L, 0, base, hot, tgt)

    def addrs():
        out, lab, p = [], {}, base
        for l, s in (x[:2] for x in L):
            out.append(p)
            if l.startswith(';@AL'):
                p += (int(l.split()[1]) - p) % int(l.split()[2])
            if l.strip().endswith(':'):
                lab[l.strip()[:-1]] = p
            p += s
        lab['begin'], lab['end'] = base, p
        return out, lab

    def run(pres, a0, a1):
        for x in range(a0 // 64, (a1 - 1) // 64 + 1):
            if x not in pres:
                pres.update(window(x))

    W = {'a': [], 's': []}
    for grp in 'as':
        ks = [k for k, g in enumerate(sites) if g == grp]
        if not ks:
            continue
        while True:
            ad, lab = addrs()
            last = 'L_wr%d' % ks[-1]
            pres = set()
            if grp == 'a':
                run(pres, base, lab[last] + 8)
                rg = [x.split(':') for x in ranges.split(',')] if ranges else [(last, 'L_service')]
            else:
                run(pres, lab['L_service'], lab['L_csq'])
                run(pres, lab['L_qstage'], lab['L_own'])
                run(pres, lab['L_csq'], lab[last] + 8)
                rg = [(last, 'end')]
            for w in W[grp]:
                assert lab[w] // 64 not in pres, w
                pres.update(window(lab[w] // 64))

            def at(x):
                m = re.match(r'(\w+)([+-]\d+)?$', x)
                return lab[m.group(1)] + 64 * int(m.group(2) or 0)
            todo = [x for r0, r1 in rg for x in range(at(r0) // 64, (at(r1) - 1) // 64 + 1) if x not in pres]
            if not todo:
                break
            line = min(todo)
            best = None
            prev = None
            skip = None
            for i, (l, s) in enumerate(x[:2] for x in L):
                t = l.split()
                if t and t[0] == '%s:' % skip:
                    skip = None
                if not s or not is_ins(l):
                    continue
                if ad[i] // 64 == line:
                    j = i
                    if prev[0] in ('s_branch', 's_endpgm'):
                        c = 0
                        while not L[j - 1][1]:
                            j -= 1
                    elif skip:
                        c = 1
                    elif t[0] == 's_nop':
                        c = 2
                    elif t[0] in ('s_waitcnt', 's_barrier'):
                        c = 3
                    elif prev[0].startswith('v_smf') and t[0].startswith('v_'):
                        c = 4
                    elif prev[0].startswith('v_mfma') or prev[0].startswith('v_smf'):
                        c = 5
                    else:
                        c = 6
                    if best is None or c < best[0]:
                        best = (c, j)
                if t[0] == 's_cbranch_vccz' and t[1].startswith('L_sk'):
                    skip = t[1]
                prev = t
            c, j = best
            name = 'L_w%s%d' % (grp, len(W[grp]))
            new = [[name + ':', 0], ['    %s @N%s%d' % ('s_branch' if c == 0 else 's_cbranch_execz', grp, len(W[grp])), 4]]
            if c == 2:
                n = int(L[j][0].split()[1])
                if n:
                    L[j] = ['    s_nop %d' % (n - 1), 4] + [1] * (n > 1)
                else:
                    del L[j]
            if hot and c == 0:
                new.append([';@PAD', 0])
            L[j:j] = new
            if hot:
                cst = settle(L, j + 2, ad[j] + 4, hot, tgt)
            W[grp].append(name)
            print('warm', name, '%d:%d' % (line // 64, line % 64), 'kind', c)
    out = []
    ad, lab = addrs()
    if hot:
        w = weights(L, hot)
        print('straddling', round(sum(w[i] for i, x in enumerate(L) if x[1] == 8 and ad[i] % 32 == 28 and 's_nop' not in x[0]), 1), 'end', hex(lab['end']))
    for i, (l, s) in enumerate(x[:2] for x in L):
        if l.startswith(';@PAD'):
            out += ['    s_endpgm'] * (s // 4)
            continue
        if l.startswith(';@FILL'):
            out += ['    s_nop 0'] * (s // 4)
            continue
        if len(L[i]) > 2 and s == 8:
            t = l.split(None, 1)
            if t[0] == 's_nop':
                out.append('    s_nop 0')
                l = '    s_nop %d' % (int(t[1]) - 1)
            else:
                l = '    %s_e64 %s' % (t[0], t[1])
        if l.startswith(';@AL'):
            n = (ad[i + 1] - ad[i]) // 4
            t = l.split()
            if len(t) > 3 and n:
                out.append('    s_nop 0' if n == 1 else '    s_branch ' + t[3])
                n -= 1
            out += ['    s_endpgm'] * n
            continue
        m = re.search(r'@W(\d+)_(\d+)', l)
        if m:
            k, w = int(m.group(1)), int(m.group(2))
            g = sites[k]
            n = 4 * [x for x, y in enumerate(sites) if y == g].index(k) + w
            l = l.replace(m.group(0), W[g][n] if n < len(W[g]) else 'L_wr%d' % k)
        m = re.search(r'@N(.)(\d+)', l)
        if m:
            g, n = m.group(1), int(m.group(2))
            ks = [x for x, y in enumerate(sites) if y == g]
            n2 = n + 4 * len(ks)
            l = l.replace(m.group(0), W[g][n2] if n2 < len(W[g]) else 'L_wr%d' % ks[n // 4 % len(ks)])
        out.append(l)
    return out
```

```python
import sys, re, math, struct, argparse
sys.path.insert(0, 'gen')
from asmlib import Asm

NAME = 'interleave_layers__mha_block_cached__glu_gated_geglu__decode'

ap = argparse.ArgumentParser()
ap.add_argument('-o', default='cdna_kernels/%s.s' % NAME)
ap.add_argument('--D', type=int, default=8)
ap.add_argument('--DE', type=int, default=8)
ap.add_argument('--NE', type=int, default=24)
ap.add_argument('--DC0', type=int, default=8)
ap.add_argument('--NC0', type=int, default=8)
ap.add_argument('--DC', type=int, default=8)
ap.add_argument('--X', type=int, default=68)
ap.add_argument('--QF', type=int, default=126)
ap.add_argument('--budget', type=int, default=200)
ap.add_argument('--pol', default='nt')
ap.add_argument('--polA', default=None)
ap.add_argument('--polB', default=None)
ap.add_argument('--polC', default=None)
ap.add_argument('--polB1', default=None)
ap.add_argument('--DA', type=int, default=None)
ap.add_argument('--ms', default='')
ap.add_argument('--Dlo', type=int, default=5)
ap.add_argument('--Dhi', type=int, default=8)
ap.add_argument('--Elo', type=int, default=6)
ap.add_argument('--DB0h', type=int, default=None)
ap.add_argument('--q2fb', action='store_true')
ap.add_argument('--ons', type=int, default=3)
ap.add_argument('--qns', type=int, default=3)
ap.add_argument('--qsl', type=int, default=1)
ap.add_argument('--b1ts', action='store_true')
ap.add_argument('--lts', default='')
ap.add_argument('--nofyz', type=int, default=0)
ap.add_argument('--par', default='race')
ap.add_argument('--RR', type=int, default=1)
ap.add_argument('--novote', type=int, default=0)
ap.add_argument('--QI', type=int, default=44)
ap.add_argument('--stch', default='pyz')
ap.add_argument('--XE', type=int, default=None)
ap.add_argument('--sq', action='store_true')
ap.add_argument('--Cm', type=int, default=0)
ap.add_argument('--polM', default='')
ap.add_argument('--polCf', default=None)
ap.add_argument('--B1t', type=int, default=0)
ap.add_argument('--B1tp', default='sc1')
ap.add_argument('--B1tl', type=int, default=0)
ap.add_argument('--DC1h', type=int, default=None)
ap.add_argument('--DCl', type=int, default=None)
ap.add_argument('--wsoff', type=int, default=0)
ap.add_argument('--ypol', default='sc1')
ap.add_argument('--fpol', default='sc1')
ap.add_argument('--ilv', type=int, default=0)
ap.add_argument('--zl', type=int, default=0)
ap.add_argument('--yoff', type=int, default=0)
ap.add_argument('--goff', type=int, default=0)
ap.add_argument('--ysl', type=int, default=0)
ap.add_argument('--y1', type=int, default=0)
ap.add_argument('--Ce', type=int, default=0)
ap.add_argument('--Cs', type=int, default=0)
ap.add_argument('--Cp', type=int, default=2)
ap.add_argument('--Cc', type=int, default=1)
ap.add_argument('--Cn', type=int, default=0)
ap.add_argument('--w0', type=int, default=0)
ap.add_argument('--vfull', type=int, default=0)
ap.add_argument('--xfill', type=int, default=0)
ap.add_argument('--wo0', type=int, default=0)
ap.add_argument('--p2d', type=int, default=0)
ap.add_argument('--cskip', type=int, default=0)
ap.add_argument('--park', type=int, default=0)
ap.add_argument('--warm', type=int, default=1)
ap.add_argument('--zh', type=int, default=0)
ap.add_argument('--zb', type=int, default=0)
ap.add_argument('--yh', type=int, default=0)
ap.add_argument('--yb', type=int, default=0)
ap.add_argument('--z1', type=int, default=0)
ap.add_argument('--zo', type=int, default=0)
ap.add_argument('--osv', type=int, default=0)
ap.add_argument('--z28', type=int, default=0)
ap.add_argument('--lpol', default='sc1')
ap.add_argument('--lpolo', default=None)
ap.add_argument('--opol', default='sc1')
ap.add_argument('--zc', type=int, default=0)
ap.add_argument('--kpat', type=int, default=0)
ap.add_argument('--ssl', type=int, default=2)
ap.add_argument('--psl', type=int, default=2)
ap.add_argument('--pall', type=int, default=0)
ap.add_argument('--tr', type=int, default=0)
ap.add_argument('--lnb', type=int, default=4)
ap.add_argument('--sl', type=int, default=7)
ap.add_argument('--hot', default='')
ap.add_argument('--tgt', default='L_p2b,L_q3,L_q3r,L_sk,L_ook,L_ogather,L_oagain,L_noprobe,L_out')
ap.add_argument('--alk', default='')
ap.add_argument('--o2', type=int, default=0)
ap.add_argument('--ob', type=int, default=0)
ap.add_argument('--zsl', type=int, default=0)
ap.add_argument('--osl', type=int, default=0)
ap.add_argument('--sqb', type=int, default=0)
ap.add_argument('--P2QD', default='')
ap.add_argument('--hm', type=int, default=0)
ap.add_argument('--hn', type=int, default=8)
ap.add_argument('--hs', type=int, default=1)
ap.add_argument('--hp', type=int, default=2)
ap.add_argument('--hl', type=int, default=7)
ap.add_argument('--hpol', default='')
ap.add_argument('--wo1', type=int, default=4)
ap.add_argument('--noit1', type=int, default=0)
ap.add_argument('--DC0h', type=int, default=None)
ap.add_argument('--Cx', type=int, default=0)
ap.add_argument('--Cx0', type=int, default=0)
ap.add_argument('--Cf0', type=int, default=None)
ap.add_argument('--x4', type=int, default=0)
ap.add_argument('--far1', type=int, default=0)
ap.add_argument('--B2lo', type=int, default=None)
ap.add_argument('--B2hi', type=int, default=None)
ap.add_argument('--B3lo', type=int, default=None)
ap.add_argument('--gb', type=int, default=0)
ap.add_argument('--gb0', type=int, default=13)
ap.add_argument('--gbn', type=int, default=3)
ap.add_argument('--gbl', type=int, default=8)
ap.add_argument('--gbk', default='0123456')
ap.add_argument('--gd', default='')
ap.add_argument('--wS', type=int, default=0)
ap.add_argument('--wA', default='')
ap.add_argument('--wR', default='')
ap.add_argument('--al', type=int, default=0)
ap.add_argument('--sh', type=int, default=0)
ap.add_argument('--lay', type=int, default=1)
ap.add_argument('--tch', default='')
ap.add_argument('--tchm', default='0xfffff')
ap.add_argument('--tchp', default='sc1')
ap.add_argument('--quiet', action='store_true')
ap.add_argument('--ffirst', type=int, default=99)
ap.add_argument('--noof', type=int, default=0)
ap.add_argument('--plain', default='')
ap.add_argument('--B1pat', default='')
ap.add_argument('--acky', type=int, default=0)
ap.add_argument('--ackz', type=int, default=0)
ap.add_argument('--acko', type=int, default=0)
ap.add_argument('--nk', type=int, default=None)
ap.add_argument('--nv', type=int, default=0)
ap.add_argument('--alt', type=int, default=0)
ap.add_argument('--pfn', type=int, default=0)
ap.add_argument('--pfi', type=int, default=2)
ap.add_argument('--pf0', type=int, default=0)
ap.add_argument('--K72', type=int, default=2)
ap.add_argument('--q2p', type=int, default=None)
ap.add_argument('--pfpol', default='')
ap.add_argument('--pfs', type=int, default=2)
ap.add_argument('--DP2', type=int, default=None)
ap.add_argument('--B1lo', type=int, default=None)
ap.add_argument('--B1hi', type=int, default=None)
ap.add_argument('--sf', type=int, default=0)
ap.add_argument('--cts', action='store_true')
ap.add_argument('--Cfirst', action='store_true')
ap.add_argument('--msl', action='store_true')
ap.add_argument('--mlag', type=int, default=6)
ap.add_argument('--B1n', type=int, default=99)
ap.add_argument('--NC1', type=int, default=99)
ap.add_argument('--DC1', type=int, default=4)
ap.add_argument('--wpol', default='nt')
ap.add_argument('--nofast', action='store_true')
ap.add_argument('--skip', default='')
ap.add_argument('--bwtest', type=int, default=0)
ap.add_argument('--DB0', type=int, default=8)
ap.add_argument('--NB0', type=int, default=8)
ap.add_argument('--gateA', type=int, default=-1)
ap.add_argument('--gateB', type=int, default=-1)
ap.add_argument('--thA', type=int, default=0)
ap.add_argument('--thB', type=int, default=0)
ap.add_argument('--gsleep', type=int, default=1)
ap.add_argument('--gone', type=int, default=1)
ap.add_argument('--NEB', type=int, default=None)
ap.add_argument('--DEB', type=int, default=None)
ap.add_argument('--NP2', default='6,3,3,3,3')
ap.add_argument('--P2POS', default='9,30,55,80,100')
ap.add_argument('--P2ND', type=int, default=9)
ap.add_argument('--P2B1', type=int, default=2)
ap.add_argument('--P2H', type=int, default=0)
ap.add_argument('--P2G', default='')
ap.add_argument('--P2DS2', type=int, default=1)
ap.add_argument('--P2DSL', type=int, default=30)
ap.add_argument('--P2OOL', type=int, default=1)
ap.add_argument('--Cmix', action='store_true')
ap.add_argument('--icprobe', type=int, default=0)
ap.add_argument('--noack', action='store_true')
ap.add_argument('--map', type=int, default=2)
ap.add_argument('--ts', action='store_true')
ap.add_argument('--pad', type=int, default=0)
args = ap.parse_args()
polA = args.pol if args.polA is None else args.polA
polB = args.pol if args.polB is None else args.polB
polC = args.pol if args.polC is None else args.polC
polB1 = polB if args.polB1 is None else args.polB1


def sc(c):
    return '' if c in args.plain else 'sc1'


def f32(x):
    return '0x%08x' % struct.unpack('<I', struct.pack('<f', x))[0]


OFF_Q, OFF_O = 1024, 3072
HEADA = 11264
YB = 32 * HEADA
ZB = YB + 4 * 32768
if args.zl:
    ZB = (ZB + 131071) // 131072 * 131072
RACEB = ZB + (4 + args.xfill) * 131072
assert YB % 16384 == 0
WS_USED = RACEB + 2 * 16384
if args.yoff:
    YB = WS_USED = (WS_USED + 16383) // 16384 * 16384 + (args.yoff - 1) * 32768
    WS_USED += 131072
WS_USED += args.goff * 131072
GATEB = WS_USED
WS_USED += 2048
GBB = WS_USED
WS_USED += 8192 if args.gb else 0
TSB = WS_USED
WS_SIZE = TSB + (256 * 4 * 64 * 8 if args.ts else 0)
BATCH = 0x4000000
PARTB = 299008
LOG2E = 1.4426950408889634
SPIN_BUDGET = 400000

sU = 3
SK, SV, SWS, SDBG = 28, 32, 36, 40
SWQ, SWO, SGA, SUP, SDN, SX, SOUT = 44, 48, 52, 56, 60, 64, 68
sBud = 72
sT0, sT1 = 73, 74
sMaskJ8 = 76
sMaskV = 78
sMt = 80
sTS = 75
sTm = 82
sHA = 89
sBase, sOff, sLds, sPubJ, sStatJ, sPub, sStat, sH, sTail, sGate, sGo, sFo, sEx = 86, 87, 88, 90, 91, 92, 93, 94, 95, 96, 97, 98, 99
sIt, sJA, sYp, sYg, sRet, sQa, sG0, sG1, sG2, sG3, sKV, sOutB, sFast = 86, 87, 88, 90, 91, 92, 95, 96, 97, 98, 99, 100, 101
sHU, sZg = 93, 94
sHS, sVt, sIod = 0, 1, 27
sOt, sOm, sLoc = 6, 7, 8
sTag = 45
sQm = 4


def srd(i):
    return 's[%d:%d]' % (i, i + 3)


def sp(i):
    return 's[%d:%d]' % (i, i + 1)


def vq(i):
    return 'v[%d:%d]' % (i, i + 3)


def vp(i):
    return 'v[%d:%d]' % (i, i + 1)


def base_of(q):
    return int(q[2:].split(':')[0])


def pair(q0, q1):
    assert q0[0] == q1[0] and base_of(q1) == base_of(q0) + 4, (q0, q1)
    return '%s[%d:%d]' % (q0[0], base_of(q0), base_of(q0) + 7)


DPPF = 'row_mask:0xf bank_mask:0xf'
OOL = []
RAW = []
RAW2 = []
a = Asm()
e = a.e
_vmem = a.vmem


def vmem_dbg(text):
    drop = {'q': srd(SWQ), 'o': srd(SWO), 'g': srd(SGA), 'G': srd(SUP), 'd': srd(SDN)}
    sk = args.skip.replace('g', 'gG')
    for k, v in drop.items():
        if k in sk and v in text:
            text = text.replace(v, srd(SX))
    if 'store' in text and 'sc1' in text and srd(SWS) in text:
        small = any(l.strip() in ('s_mov_b64 exec, 15', 's_mov_b32 exec_hi, 0') for l in a.lines[-8:]) and not any(l.strip() == 's_mov_b64 exec, -1' for l in a.lines[-3:])
        svc = 'L_service:' in a.lines
        if 'f' in sk or ('s' in sk and small) or ('r' in sk and not small and not svc) or ('y' in sk and not small and svc):
            e('s_nop 0')
            return len(a.vm) - 1
        if 'p' in sk:
            text = text.replace('sc1', '')
        if 'n' in sk:
            text = text.replace('sc1', 'sc1 nt')
    return _vmem(text)


if args.skip:
    assert args.bwtest or args.ts
    a.vmem = vmem_dbg


def mk_srd(s, ptr, size):
    if s == SWS and args.wsoff:
        e('s_add_u32 s%d, s%d, 0x%x' % (s, ptr, args.wsoff << 20))
        e('s_addc_u32 s%d, s%d, 0' % (s + 1, ptr + 1))
    else:
        e('s_mov_b32 s%d, s%d' % (s, ptr))
        e('s_mov_b32 s%d, s%d' % (s + 1, ptr + 1))
    e('s_mov_b32 s%d, 0x%x' % (s + 2, size))
    e('s_mov_b32 s%d, 0x00020000' % (s + 3))


def smask(s, val):
    e('s_mov_b32 s%d, 0x%08x' % (s, val & 0xffffffff))
    e('s_mov_b32 s%d, 0x%08x' % (s + 1, val >> 32))


QSK = [0]


def stamp(tmp, entry=False):
    if args.quiet:
        if not entry and not args.lts and 'L_service:' not in a.lines and QSK[0] < 9:
            e('s_memrealtime s[%d:%d]' % (6 + 2 * QSK[0], 7 + 2 * QSK[0]))
            QSK[0] += 1
        return
    if not args.ts or (args.cts and not entry):
        return
    a.lgwait_all()
    e('s_memrealtime %s' % sp(sTm))
    if not entry:
        e('s_getreg_b32 s%d, hwreg(HW_REG_XCC_ID, 0, 4)' % (sTm + 2))
    e('s_waitcnt lgkmcnt(0)')
    e('v_mov_b32 v%d, s%d' % (tmp, sTm))
    e('v_mov_b32 v%d, s%d' % (tmp + 1, sTm + 2))
    e('s_mov_b64 exec, 1')
    a.vmem('buffer_store_dwordx2 %s, off, %s, s%d' % (vp(tmp), srd(SWS), sTS))
    e('s_mov_b64 exec, -1')
    e('s_add_u32 s%d, s%d, 8' % (sTS, sTS))


def ct(k):
    if args.cts:
        e('s_memtime s[%d:%d]' % (6 + 2 * k, 7 + 2 * k))


def sq_(k):
    if args.sqb:
        e('s_mov_b32 s%d, s%d' % (10 + 2 * k, sBud))
    elif args.sq:
        e('s_memrealtime s[%d:%d]' % (10 + 2 * k, 11 + 2 * k))


def sq_dump(tmp):
    if not args.sq:
        return
    e('s_waitcnt lgkmcnt(0)')
    e('s_mov_b64 exec, 1')
    for k in range(7):
        e('v_mov_b32 v%d, s%d' % (tmp, 10 + 2 * k))
        e('buffer_store_dword v%d, off, %s, s%d offset:%d' % (tmp, srd(SWS), sTS, k * 8))
        e('s_nop 1')
    e('s_add_u32 s%d, s%d, 64' % (sTS, sTS))
    e('s_mov_b64 exec, -1')


def ct_dump(tmp):
    if not (args.cts or args.b1ts or args.lts or args.quiet):
        return
    if args.quiet:
        e('s_memrealtime s[24:25]')
    e('s_waitcnt lgkmcnt(0)')
    e('s_and_b32 s%d, s%d, 0xfffffe00' % (sTS, sTS))
    e('s_mov_b64 exec, 1')
    if args.quiet:
        e('v_mov_b32 v%d, s84' % tmp)
        e('buffer_store_dword v%d, off, %s, s%d offset:4' % (tmp, srd(SWS), sTS))
        e('s_waitcnt vmcnt(0)')
    for k in range(11):
        e('v_mov_b32 v%d, s%d' % (tmp, 6 + 2 * k))
        e('buffer_store_dword v%d, off, %s, s%d offset:%d' % (tmp, srd(SWS), sTS, (40 + k) * 8))
        e('s_waitcnt vmcnt(0)')
    e('s_mov_b64 exec, -1')


SITES = []


def warm_site(grp):
    k = len(SITES)
    SITES.append(grp)
    e('s_mov_b64 exec, 0')
    for w in range(1, 4):
        e('s_cmp_eq_u32 s%d, %d' % (sU, w))
        a.raw('    s_cbranch_scc1 @W%d_%d' % (k, w))
    a.raw('    s_branch @W%d_0' % k)
    a.raw('L_wr%d:' % k)
    e('s_mov_b64 exec, -1')


def spin_tail(lbl, sleep=0):
    if sleep:
        e('s_sleep %d' % sleep)
    e('s_sub_u32 s%d, s%d, 1' % (sBud, sBud))
    e('s_cbranch_scc0 %s' % lbl)
    e('s_endpgm')


def allreduce_list(op, r, t, steps=(0, 1, 2, 3, 4, 5)):
    d = {0: 'quad_perm:[1,0,3,2]', 1: 'quad_perm:[2,3,0,1]', 2: 'row_ror:4', 3: 'row_ror:8'}
    out = []
    for s in steps:
        if s < 4:
            out.append('%s_dpp v%d, v%d, v%d %s %s' % (op, r, r, r, d[s], DPPF))
        else:
            out.append('v_mov_b32 v%d, v%d' % (t, r))
            out.append('v_permlane%d_swap_b32 v%d, v%d' % (16 if s == 4 else 32, r, t))
            out.append('%s v%d, v%d, v%d' % (op, r, r, t))
    return out


def build_bt(bt, q, n=4):
    for t in range(n):
        smask(sMt, 0x000F000F000F000F << (4 * t))
        for r in range(4):
            e('v_cndmask_b32 v%d, 0, v%d, %s' % (bt + 4 * t + r, q + r, sp(sMt)))


def score_ops(P, g, D, C, first):
    out = []
    for r in range(4):
        op = 'v_mul_f32_dpp' if first and r == 0 else 'v_fmac_f32_dpp'
        out.append('%s v%d, v%d, v%d quad_perm:[%d,%d,%d,%d] %s' % (op, P[g >> 2], D + r, C + (g & 3), r, r, r, r, DPPF))
    return out


def softmax(P, m, t, stat_soff, fill1, fill2, sw16, exm, tag):
    l = m + 1
    e('v_mov_b32 v%d, 0xff800000' % t)
    e('v_cndmask_b32 v%d, v%d, v%d, %s' % (P[-1], t, P[-1], sp(sMaskV)))
    if len(P) == 1:
        e('v_mov_b32 v%d, v%d' % (m, P[0]))
    else:
        e('v_max3_f32 v%d, v%d, v%d, v%d' % (m, P[0], P[1], P[2]))
        e('v_max3_f32 v%d, v%d, v%d, v%d' % (m, m, P[3], P[4]))
    a.chain(allreduce_list('v_max_f32', m, t), fill1)
    for p in P:
        e('v_sub_f32 v%d, v%d, v%d' % (p, p, m))
    for p in P:
        e('v_exp_f32 v%d, v%d' % (p, p))
    for p in P:
        e('v_cvt_pk_bf16_f32 v%d, 0, v%d' % (p, p))
    if len(P) == 1:
        e('v_mov_b32 v%d, v%d' % (l, P[0]))
    else:
        e('v_add_f32 v%d, v%d, v%d' % (l, P[0], P[1]))
        e('v_add_f32 v%d, v%d, v%d' % (t, P[2], P[3]))
        e('v_add_f32 v%d, v%d, v%d' % (l, l, P[4]))
        e('v_add_f32 v%d, v%d, v%d' % (l, l, t))
    fill = fill1 + fill2
    a.chain(allreduce_list('v_add_f32', l, t), fill)
    e('v_min_u32 v%d, -2, v%d' % (m, m))
    e('v_min_u32 v%d, -2, v%d' % (l, l))
    e('v_mov_b32 v%d, s%d' % (t, sw16))
    e('s_mov_b64 exec, 1')
    if stat_soff is not None:
        store_sel('buffer_store_dwordx2 %s, off, %s, s%d' % (vp(m), srd(SWS), stat_soff), tag, True)
    a.lds('ds_write_b32 v%d, v%d offset:%d' % (t, m, exm))
    e('s_mov_b64 exec, -1')
    for op in fill:
        e(op)


def store_sel(text, tag, count, raw=False, sFo=sFo):
    emit = a.vmem if count else e
    if tag is None:
        emit(text + ' ' + sc('D' if count else 'E'))
        return
    e('s_cmp_eq_u32 s%d, 0' % sFo)
    if raw:
        a.nop(a.needed(text))
        a.raw('    s_cbranch_scc0 L_st_%s' % tag)
        a.pos += 1
        emit(text)
        a.raw('L_str_%s:' % tag)
        RAW.append(['L_st_%s:' % tag, '    %s sc1' % text, '    s_branch L_str_%s' % tag])
        return
    e('s_cbranch_scc0 L_st_%s' % tag)
    emit(text)
    a.label('L_str_%s' % tag)
    OOL.append(('L_st_%s' % tag, [text + ' sc1', 's_branch L_str_%s' % tag]))


def scale_a(c, l16, exm):
    e('v_and_b32 v%d, 0x30, v%d' % (c, l16))
    a.lgwait_all()
    e('s_barrier')
    return a.lds('ds_read_b32 v%d, v%d offset:%d' % (c, c, exm))


def scale_b(c, m):
    return allreduce_list('v_max_f32', c, None, (0, 1)) + ['v_sub_f32 v%d, v%d, v%d' % (c, m, c), 'v_exp_f32 v%d, v%d' % (c, c)]


def wg_publish(O, c, wa, l8, exo, T, soff, tag, lbl, ack=0, sTag=sTag, sFo=sFo):
    if c is not None:
        e('v_mul_f32 v%d, v%d, v%d' % (O, O, c))
        e('v_mul_f32 v%d, v%d, v%d' % (O + 1, O + 1, c))
        e('s_cmp_lg_u32 s%d, 0' % sU)
    a.lds('ds_write_b64 v%d, %s offset:%d' % (wa, vp(O), exo))
    ta = T + 6
    if args.ob:
        e('v_lshrrev_b32 v%d, 8, v%d' % (T, l8))
        e('v_and_b32 v%d, 0xf8, v%d' % (T + 1, l8))
        e('v_lshl_or_b32 v%d, v%d, 2, v%d' % (ta, T, T + 1))
    a.lgwait_all()
    e('s_barrier')
    e('s_cbranch_scc1 %s' % lbl)
    for w in range(3):
        a.lds('ds_read_b64 %s, v%d offset:%d' % (vp(T + 2 * w), l8, exo + 512 * (w + 1)))
    e('s_waitcnt lgkmcnt(2)')
    e('v_pk_add_f32 %s, %s, %s' % (vp(O), vp(O), vp(T)))
    a.lgwait_all()
    e('v_pk_add_f32 %s, %s, %s' % (vp(T + 2), vp(T + 2), vp(T + 4)))
    e('v_pk_add_f32 %s, %s, %s' % (vp(O), vp(O), vp(T + 2)))
    if args.ob:
        e('v_cvt_pk_bf16_f32 v%d, v%d, v%d' % (O, O, O + 1))
        e('v_min_u32 v%d, -2, v%d' % (O, O))
        store_sel('buffer_store_dword v%d, v%d, %s, s%d offen' % (O, ta, srd(SWS), soff), tag, False, True, sFo)
    else:
        e('v_and_or_b32 v%d, v%d, -4, s%d' % (O, O, sTag))
        e('v_and_or_b32 v%d, v%d, -4, s%d' % (O + 1, O + 1, sTag))
        store_sel('buffer_store_dwordx2 %s, v%d, %s, s%d offen' % (vp(O), l8, srd(SWS), soff), tag, False, True, sFo)
    if ack:
        e('s_waitcnt vmcnt(0)')
    a.label(lbl)


def a_ops(A, src, sw, r):
    q = lambda x: 'quad_perm:[%d,%d,%d,%d]' % (x, x, x, x)
    return ['v_mov_b32_dpp v%d, v%d %s row_mask:0xf bank_mask:0x5' % (A, src, q(r)),
            'v_mov_b32_dpp v%d, v%d %s row_mask:0xf bank_mask:0xa' % (A + 1, sw, q(3 - r)),
            'v_mov_b32_dpp v%d, v%d %s row_mask:0xf bank_mask:0x5' % (A + 2, sw, q(3 - r)),
            'v_mov_b32_dpp v%d, v%d %s row_mask:0xf bank_mask:0xa' % (A + 3, src, q(r))]


def mirror(d, s):
    return 'v_mov_b32_dpp v%d, v%d row_half_mirror %s' % (d, s, DPPF)


def tail_a(A, p, lane, M, t):
    return ['v_lshrrev_b32 v%d, 16, v%d' % (t, p), 'v_or_b32 v%d, v%d, v%d' % (t, t, p)] + \
           ['v_and_b32_dpp v%d, v%d, v%d row_newbcast:%d %s' % (A + k, t, M + k, lane, DPPF) for k in range(4)]


def merge(O1, O2):
    e('v_permlane32_swap_b32 v%d, v%d' % (O1, O1 + 2))
    e('v_permlane32_swap_b32 v%d, v%d' % (O1 + 1, O1 + 3))
    if O2 is not None:
        e('v_permlane32_swap_b32 v%d, v%d' % (O2, O2 + 2))
        e('v_permlane32_swap_b32 v%d, v%d' % (O2 + 1, O2 + 3))
        e('v_add_f32 v%d, v%d, v%d' % (O1, O1, O2 + 2))
        e('v_add_f32 v%d, v%d, v%d' % (O1 + 1, O1 + 1, O2 + 3))


def publish2(r, voff, soff):
    e('v_min_u32 v%d, -2, v%d' % (r, r))
    e('v_min_u32 v%d, -2, v%d' % (r + 1, r + 1))
    a.vmem('buffer_store_dwordx2 %s, v%d, %s, s%d offen sc1' % (vp(r), voff, srd(SWS), soff))


def publish_local(r, voff, soff, tag):
    a.vmem('buffer_store_dwordx2 %s, v%d, %s, s%d offen %s' % (vp(r), voff, srd(SWS), soff, args.ypol))


def mfma(D, A, B, first):
    e('v_mfma_f32_16x16x32_bf16 %s, %s, %s, %s' % (D, A, B, '0' if first else D))


def smf(D, A, B, idx):
    e('v_smfmac_f32_16x16x64_bf16 %s, %s, %s, v%d' % (vq(D), vq(A), B, idx))


def mk_masks(M, t):
    rep = 0x0001000100010001
    e('v_mov_b32 v%d, 0xffff' % t)
    e('v_mov_b32 v%d, 0xffff0000' % (t + 1))
    for k in range(4):
        smask(sMt, rep << (2 * k))
        e('v_cndmask_b32 v%d, 0, v%d, %s' % (M + k, t, sp(sMt)))
        smask(sMt, rep << (2 * k + 1))
        e('v_cndmask_b32 v%d, v%d, v%d, %s' % (M + k, M + k, t + 1, sp(sMt)))


def mk_c(C, n, t):
    e('v_mov_b32 v%d, %s' % (t, f32(LOG2E / math.sqrt(128.0))))
    for r in range(n):
        smask(sMt, 0x1111111111111111 << r)
        e('v_cndmask_b32 v%d, 0, v%d, %s' % (C + r, t, sp(sMt)))


def mk_koff(d, lane, t):
    e('v_and_b32 v%d, 3, v%d' % (d, lane))
    e('v_lshlrev_b32 v%d, 4, v%d' % (d, d))
    e('v_bfe_u32 v%d, v%d, 2, 2' % (t, lane))
    e('v_lshl_or_b32 v%d, v%d, 9, v%d' % (d, t, d))
    e('v_lshrrev_b32 v%d, 4, v%d' % (t, lane))
    e('v_lshl_or_b32 v%d, v%d, 6, v%d' % (d, t, d))


def mk_qoff(d, lane, t):
    e('v_and_b32 v%d, 3, v%d' % (d, lane))
    e('v_lshlrev_b32 v%d, 4, v%d' % (d, d))
    e('v_lshrrev_b32 v%d, 4, v%d' % (t, lane))
    e('v_lshl_or_b32 v%d, v%d, 6, v%d' % (d, t, d))


def idx_ops(d, l16):
    return ['v_bfe_u32 v%d, v%d, 4, 2' % (d, l16), 'v_mul_u32_u24 v%d, 0x4444, v%d' % (d, d)]


def tail_soff(dst, t):
    e('s_lshr_b32 s%d, s%d, 1' % (dst, sU))
    e('s_lshl_b32 s%d, s%d, 11' % (dst, dst))
    e('s_and_b32 s%d, s%d, 1' % (t, sU))
    e('s_lshl_b32 s%d, s%d, 8' % (t, t))
    e('s_add_u32 s%d, s%d, s%d' % (dst, dst, t))


if args.ts or args.pad:
    e('s_memrealtime s[84:85]')
e('s_cmp_ge_u32 s2, 256')
e('s_cbranch_scc0 L_go')
e('s_endpgm')
a.label('L_go')
e('s_load_dwordx16 s[4:19], s[0:1], 0')
e('s_load_dwordx8 s[20:27], s[0:1], 64')
e('v_lshrrev_b32 v1, 6, v0')
e('v_and_b32 v0, 63, v0')
e('v_readfirstlane_b32 s%d, v1' % sU)
e('s_mov_b32 s%d, %d' % (sBud, SPIN_BUDGET))
if args.ts:
    e('s_lshl_b32 s%d, s2, 2' % sTS)
    e('s_add_u32 s%d, s%d, s%d' % (sTS, sTS, sU))
    e('s_lshl_b32 s%d, s%d, 9' % (sTS, sTS))
    e('s_add_u32 s%d, s%d, 0x%x' % (sTS, sTS, TSB))
if args.map == 0:
    e('s_cmp_lt_u32 s2, 32')
    e('s_cbranch_scc1 L_service')
elif args.map == 1:
    e('s_and_b32 s%d, s2, 7' % sT0)
    e('s_lshr_b32 s2, s2, 3')
    e('s_sub_u32 s%d, s%d, 1' % (sT0, sT0))
    e('s_cbranch_scc1 L_service')
else:
    e('s_lshr_b32 s%d, s2, 5' % sT0)
    e('s_and_b32 s2, s2, 31')
    e('s_sub_u32 s%d, s%d, 1' % (sT0, sT0))
    e('s_cbranch_scc1 L_service')

vKo, vVo, vLd, vM, vC, vBT, vD = 4, 1, 11, 44, 7, 12, 28
vO1, vO2, vIdx, vMl = 12, 16, 25, 26
PA = [40, 41, 42, 43, 2]
PB = [48, 49, 50, 51, 3]
PS = [20, 21, 22, 23, 24]
vQ1, vQo, vPo = 48, 6, 5
PARK = {0: 32, 4: 16, 1: 20, 5: 24, 2: 36, 6: 44, 3: 8, 7: 0} if args.park else {}
sBM, sMM = 56, 64
vQL = 40
vSc = vMl + 1
NQ = 73
NR = 8
RING = ['v[%d:%d]' % (52 + 4 * i, 55 + 4 * i) for i in range(NR)]
_ka = ['a[%d:%d]' % (4 * i, 4 * i + 3) for i in range(64)]
_kv = ['v[%d:%d]' % (84 + 4 * i, 87 + 4 * i) for i in range(9)]
KS = _ka[:args.X - 8] + _kv[:8] + _ka[args.X - 8:] + _kv[8:]
VSR = ['v[%d:%d]' % (120 + 4 * i, 123 + 4 * i) for i in range(34)]
NLV = 38
EXO, EXM, LVB, LVS = 0, 2048, 4096, 39936
VORD = list(range(NLV)) + [72] + list(range(NLV, 72))


def vslot(i):
    return ('L', i) if i < NLV else ('L', NLV) if i == 72 else VSR[i - NLV]


for x in range(224):
    assert (x * 293) >> 11 == x // 7
if args.map == 0:
    e('s_sub_u32 s%d, s2, 32' % sT0)
    e('s_mul_i32 s%d, s%d, 293' % (sH, sT0))
    e('s_lshr_b32 s%d, s%d, 11' % (sH, sH))
    e('s_mul_i32 s%d, s%d, 7' % (sT1, sH))
    e('s_sub_u32 s%d, s%d, s%d' % (sT0, sT0, sT1))
else:
    e('s_mov_b32 s%d, s2' % sH)
e('s_lshl_b32 s%d, s%d, 21' % (sLds, sH))
e('s_mul_i32 s%d, s%d, %d' % (sT1, sT0, args.ilv * 16384 or PARTB))
e('s_add_u32 s%d, s%d, s%d' % (sLds, sLds, sT1))
e('s_lshl_b32 s%d, s%d, 12' % (sT1, sU))
e('s_add_u32 s%d, s%d, s%d' % (sBase, sLds, sT1))
sBase2 = 44
sBaseV, sTailV = 45, 46
if args.nk == 2:
    e('s_waitcnt lgkmcnt(0)')
    e('s_load_dwordx2 s[50:51], s[14:15], 0')
    e('s_waitcnt lgkmcnt(0)')
if args.nk is not None:
    e('s_andn2_b32 s47, s%d, 4' % sH)
    e('s_lshr_b32 s48, s%d, 1' % sU)
    e('s_lshl2_add_u32 s47, s48, s47')
    e('s_getreg_b32 s48, hwreg(HW_REG_XCC_ID, 2, 1)')
    e('s_xor_b32 s48, s48, s47')
    e('s_xor_b32 s48, s48, %s' % (args.nk if args.nk < 2 else 's50'))
    e('s_and_b32 s48, s48, 1')
    e('s_lshl_b32 s48, s48, 13')
    e('s_lshl_b32 s47, s47, 21')
    e('s_add_u32 s47, s47, s48')
    e('s_and_b32 s48, s%d, 1' % sU)
    e('s_lshl_b32 s49, s48, 12')
    e('s_mul_i32 s%d, s%d, %d' % (sBase, sT0, 18 * 16384))
    e('s_add_u32 s%d, s%d, s49' % (sBase, sBase))
    e('s_add_u32 s%d, s%d, s47' % (sBase, sBase))
    e('s_xor_b32 s%d, s%d, %s' % (sBaseV, sBase, (args.nk ^ args.nv) << 13 if args.nk < 2 else 's51'))
    e('s_lshr_b32 s49, s%d, 2' % sT0)
    e('s_lshl_b32 s49, s49, 14')
    e('s_add_u32 s47, s47, s49')
    e('s_and_b32 s49, s%d, 3' % sT0)
    e('s_lshl_b32 s49, s49, 11')
    e('s_add_u32 s47, s47, s49')
    e('s_lshl_b32 s48, s48, 8')
    e('s_add_u32 s47, s47, s48')
    e('s_add_u32 s47, s47, %d' % (126 * 16384))
    e('s_xor_b32 s%d, s47, %s' % (sTailV, (args.nk ^ args.nv) << 13 if args.nk < 2 else 's51'))
if args.alt:
    e('s_xor_b32 s%d, s%d, 0x2000' % (sT1, sT1))
    e('s_add_u32 s%d, s%d, s%d' % (sBase2, sLds, sT1))
e('v_lshlrev_b32 v%d, 4, v0' % vVo)
if args.kpat:
    e('v_and_b32 v%d, 1, v0' % vKo)
    e('v_lshlrev_b32 v%d, 4, v%d' % (vKo, vKo))
    e('v_bfe_u32 v%d, v0, 1, 1' % vD)
    e('v_lshl_or_b32 v%d, v%d, 10, v%d' % (vKo, vD, vKo))
    e('v_bfe_u32 v%d, v0, 2, 1' % vD)
    e('v_lshl_or_b32 v%d, v%d, 8, v%d' % (vKo, vD, vKo))
    e('v_bfe_u32 v%d, v0, 3, 1' % vD)
    e('v_lshl_or_b32 v%d, v%d, 11, v%d' % (vKo, vD, vKo))
    e('v_lshrrev_b32 v%d, 4, v0' % vD)
    e('v_lshl_or_b32 v%d, v%d, 5, v%d' % (vKo, vD, vKo))
else:
    mk_koff(vKo, 0, vD)
e('s_waitcnt lgkmcnt(0)')
mk_srd(SK, 6, 2 * BATCH)


sMode, sVote = 100, 101
MS = {'on': False, 'list': [tuple(int(y) for y in x.split(':')) for x in args.ms.split(',') if x], 'k': 0, 'pend': None, 'reg': 51, 'ok': True}


def rmode():
    if MS['on'] and args.vfull:
        e('s_cmp_lg_u32 s%d, 0' % sMode)
        e('s_cselect_b64 vcc, -1, 0')
    elif MS['on']:
        e('s_mov_b32 vcc_lo, s%d' % sMode)
        e('s_mov_b32 vcc_hi, 0')


sRep, sRp, sGl, sXb, sGb, sOwn = 52, 53, 54, 55, 46, 47


def ms_hook(n):
    if args.hm and n >= args.hm and not MS.get('hm'):
        MS['hm'] = 1
        lb = a.newlabel('L_hm')
        e('s_cmp_eq_u32 s%d, 1' % sU)
        a.skip_begin('s_cbranch_scc0', lb)
        e('s_mov_b64 exec, 1')
        e('buffer_store_byte v%d, off, %s, s%d' % (vPo, srd(SWS), sVote))
        e('s_mov_b64 exec, -1')
        a.skip_end(lb)
    if MS['pend'] and n >= MS['pend'][0] and MS['pend'][2] is None:
        _, nv, thr, reg = MS['pend']
        MS['pend'] = None
        lb = a.newlabel('L_gb')
        e('s_cmp_lt_u32 s%d, s%d' % (sRp, sRep))
        e('s_cbranch_scc0 %s' % lb)
        e('s_waitcnt vmcnt(%d)' % (len(a.vm) - nv))
        e('v_cmp_ne_u32 %s, 0, v%d' % (sp(sMt), reg))
        e('s_and_b32 s%d, s%d, 0xff' % (sMt, sMt))
        e('s_or_b32 s%d, s%d, s%d' % (sMt, sMt, sOwn))
        e('s_bcnt1_i32_b32 s%d, s%d' % (sMt, sMt))
        e('s_lshr_b32 s%d, s%d, 1' % (sMt, sMt))
        e('s_bfm_b64 %s, s%d, 0' % (sp(sMt), sMt))
        e('v_cndmask_b32 v%d, 0, 1, %s' % (reg, sp(sMt)))
        e('s_mov_b64 exec, 15')
        e('buffer_store_byte v%d, v%d, %s, s%d offen offset:%d' % (reg, vPo, srd(SWS), sGate, 224 + MS['k']))
        e('s_mov_b64 exec, -1')
        a.label(lb)
    if MS['pend'] and n >= MS['pend'][0]:
        _, tk, thr, reg = MS['pend']
        MS['pend'] = None
        a.vmwait(tk)
        e('v_cmp_ne_u32 vcc, 0, v%d' % reg)
        if args.gb:
            e('s_lshr_b32 s%d, vcc_lo, 28' % sXb)
            e('s_bcnt1_i32_b32 s%d, s%d' % (sXb, sXb))
            e('s_mul_i32 s%d, s%d, %d' % (sXb, sXb, args.gb))
        if args.msl:
            e('s_and_b32 vcc_lo, vcc_lo, 0x0fffffff')
        e('s_bcnt1_i32_b32 s%d, vcc_lo' % sMode)
        k = MS['k'] - 1
        if args.gb and str(k) in args.gbk:
            lb = a.newlabel('L_gr')
            e('v_lshlrev_b32 v%d, 7, v%d' % (reg, vPo))
            e('s_sub_u32 s%d, s%d, %d' % (sRp, sMode, args.gb0))
            e('s_cmp_lt_u32 s%d, s%d' % (sRp, sRep))
            a.skip_begin('s_cbranch_scc0', lb)
            e('s_mov_b64 exec, 0xffff')
            assert vPo & 1
            e('buffer_store_dwordx2 %s, v%d, %s, s%d offen offset:%d sc1' % (vp(vPo - 1), vPo, srd(SWS), sGl, 128 * k))
            e('s_andn2_b32 exec_lo, 0xff, s%d' % sOwn)
            e('buffer_load_dword v%d, v%d, %s, s%d offen offset:%d sc1' % (reg, reg, srd(SWS), sGb, 128 * k + 12))
            e('s_mov_b64 exec, -1')
            a.skip_end(lb)
            MS['pend'] = (n + args.gbl, len(a.vm), None, reg)
        for x in args.gd.split(','):
            if x and int(x.split(':')[0]) == k:
                lb = a.newlabel('L_gd')
                e('s_cmp_le_u32 s%d, %d' % (sXb, args.gb * int(x.split(':')[1])))
                a.skip_begin('s_cbranch_scc0', lb)
                e('s_waitcnt vmcnt(%s)' % x.split(':')[2])
                a.skip_end(lb)
        if args.gb:
            e('s_add_u32 s%d, s%d, s%d' % (sMode, sMode, sXb))
            thr += 2 * args.gb
        e('s_cmp_lt_u32 s%d, %d' % (sMode, thr))
        e('s_cselect_b32 s%d, -1, 0' % sMode)
        MS['on'] = True
        rmode()
    if MS['list'] and n >= MS['list'][0][0] and not MS['pend']:
        pos, thr = MS['list'].pop(0)
        k = MS['k']
        MS['k'] += 1
        assert k < 8 and MS['ok'] and args.msl
        lb = a.newlabel('L_nv')
        if args.msl:
            e('s_cmp_eq_u32 s%d, 1' % sU)
            a.skip_begin('s_cbranch_scc0', lb)
            e('s_mov_b64 exec, 2')
            e('buffer_store_byte v%d, off, %s, s%d offset:%d' % (vPo, srd(SWS), sVote, k))
            e('s_mov_b32 exec_lo, -1')
            a.skip_end(lb)
            e('s_mov_b32 exec_hi, 0')
            tk = a.vmem('buffer_load_ubyte v%d, v%d, %s, s%d offen offset:%d sc1' % (MS['reg'], vPo, srd(SWS), sGate, k))
            e('s_mov_b32 exec_hi, -1')
            MS['pend'] = (n + args.mlag, tk, thr, MS['reg'])
            return
        e('s_cmp_lt_u32 s%d, 256' % sVote)
        a.skip_begin('s_cbranch_scc0', lb)
        e('s_mov_b64 exec, 1')
        e('buffer_store_byte v%d, off, %s, s%d offset:%d sc1' % (vM, srd(SDBG), sVote, k))
        e('s_mov_b64 exec, -1')
        a.skip_end(lb)
        tk = a.vmem('buffer_load_ubyte v%d, v%d, %s, 0 offen offset:%d sc1' % (MS['reg'], vPo, srd(SDBG), 128 + k))
        MS['pend'] = (n + 6, tk, thr, MS['reg'])


def goff(g):
    if args.ilv:
        assert 18 % args.ilv == 0
        return (g // args.ilv * 7 * args.ilv + g % args.ilv) * 16384
    return g * 16384


class Sched:
    def __init__(self):
        self.tok = []
        self.queue = []
        self.lastgrp = None

    def issue(self, kind, b, i, dest, pol):
        g, t = i >> 2, i & 3
        LTS = [int(x) for x in args.lts.split(',') if x]
        if len(self.tok) in LTS:
            kk = LTS.index(len(self.tok))
            e('s_memrealtime s[%d:%d]' % (6 + 2 * kk, 7 + 2 * kk))
        key = (kind, b, g, dest[0] == 'L')
        if self.lastgrp != key:
            if g == 18:
                e('s_add_u32 s%d, s%d, 0x%x' % (sOff, sTail if args.nk is None else 47 if kind == 'K' else sTailV, b * BATCH))
            else:
                e('s_add_u32 s%d, s%d, 0x%x' % (sOff, sBase2 if args.alt and (g // args.alt) & 1 else sBaseV if args.nk is not None and kind == 'V' else sBase, goff(g) + b * BATCH))
            if dest[0] == 'L':
                e('s_add_u32 m0, s%d, 0x%x' % (sLds, (dest[1] - t) * 1024))
            self.lastgrp = key
        s = srd(SK if kind == 'K' else SV)
        vo = vKo if kind == 'K' else vVo
        imm = (t >> 1) * 2048 + (t & 1) * 256 if kind == 'K' else t * 1024
        if args.kpat and kind == 'K':
            imm = (t >> 1) * 512 + (t & 1) * 128
        if kind == 'V' and g == 18:
            e('v_and_b32 v0, 0x300, v%d' % vVo)
            e('v_add_u32 v0, v0, v%d' % vVo)
            vo = 0
        if pol == 'X':
            e('s_mov_b32 exec_lo, 0x1111')
            e('s_mov_b32 exec_hi, 0x1111')
            a.vmem('buffer_load_dword v%d, v%d, %s, s%d offen offset:%d nt' % (base_of(dest), vo, s, sOff, imm))
            e('s_mov_b64 exec, -1')
            pol = ''
        if dest[0] == 'L':
            tk = a.vmem('buffer_load_dwordx4 v%d, %s, s%d offen offset:%d %s lds' % (vo, s, sOff, imm, pol))
        else:
            tk = a.vmem('buffer_load_dwordx4 %s, v%d, %s, s%d offen offset:%d %s' % (dest, vo, s, sOff, imm, pol))
        self.tok.append(tk)
        if str(len(self.tok)) in args.wA.split(','):
            warm_site('a')
        return tk

    def pace(self, d, lo=None, hi=None):
        n = len(self.tok)
        if lo is not None:
            ms_hook(n)
        if lo is not None and MS['on'] and lo != hi:
            a.vmwait(self.tok[n - hi])
            tk = self.tok[n - lo]
            if tk >= a.vm_done:
                lb = a.newlabel('L_pc')
                a.skip_begin('s_cbranch_vccz', lb)
                e('s_waitcnt vmcnt(%d)' % (len(a.vm) - 1 - tk))
                a.skip_end(lb)
            return
        if lo is not None and MS['on']:
            d = lo
        if n >= d:
            a.vmwait(self.tok[n - d])

    def run_item(self, it):
        for tk in it.get('need', []):
            a.vmwait(tk())
        it['fn']()
        it['done'] = True

    def ready(self, it):
        for tk in it.get('need', []):
            v = tk()
            if v is None or v >= a.vm_done:
                return False
        return True

    def run_until(self, it):
        while not it.get('done'):
            self.run_item(self.queue.pop(0))

    def run_budget(self, budget):
        while self.queue and budget > 0 and self.ready(self.queue[0]):
            it = self.queue.pop(0)
            self.run_item(it)
            budget -= it['cost']

    def drain(self):
        while self.queue:
            self.run_item(self.queue.pop(0))


S = Sched()
LT = {}
LOC = {}


def need(kind, b, i):
    return lambda: LT.get((kind, b, i))


def item(fn, cost, needs=()):
    it = {'fn': fn, 'cost': cost, 'need': list(needs)}
    S.queue.append(it)
    return it


def add_k_items(b, P, idxs):
    its = {}
    for i in idxs:
        g, t = i >> 2, i & 3
        D = vD + 4 * (g % 3)
        last = t == 3 or i == NQ - 1

        def fn(i=i, g=g, t=t, D=D, last=last):
            mfma(vq(D), LOC[('K', b, i)], vq(vBT + 4 * t), t == 0)
            if last:
                for op in score_ops(P, g, D, vC, (g & 3) == 0):
                    e(op)
        its[i] = item(fn, 4 + (18 if last else 0), [need('K', b, i)])
    return its


def att_softmax(P, g0, g1, tag):
    f1 = ['v_mov_b32 v%d, 0' % r for r in list(range(vD, vD + 12)) + list(range(vO1, vO1 + 8))] + idx_ops(vIdx, vVo)
    f2 = [mirror(PS[k], P[k]) for k in range(5)]
    f2 += a_ops(vD, P[g0 >> 2], PS[g0 >> 2], g0 & 3) + a_ops(vD + 4, P[g1 >> 2], PS[g1 >> 2], g1 & 3)
    softmax(P, vMl, 0, sStatJ, f1, f2, sEx, EXM, 's' + tag)


def pv_end(tag):
    e('s_lshl_b32 s%d, s%d, 5' % (sT0, sEx))
    e('v_add_u32 v0, s%d, v%d' % (sT0, vPo))
    merge(vO1, vO2)
    wg_publish(vO1, vSc, 0, vPo, EXO, vD, sPubJ, 'o' + tag, 'L_np' + tag)


st_ = {}


def add_v_items(b, P, temps, tag):
    tcount = [0]
    sc = {}

    def sca():
        sc['tk'] = scale_a(vSc, vVo, EXM)

    def scb():
        a.lgwait(sc['tk'])
        for op in scale_b(vSc, vMl):
            e(op)

    def tail_rd():
        k = tcount[0] % (len(temps) // 2)
        tcount[0] += 1
        sc['t'] = (temps[2 * k], temps[2 * k + 1], a.lds('ds_read_b128 %s, v%d offset:%d' % (temps[2 * k], vLd, NLV * 1024)))

    def tail_mm():
        src, A, tk = sc['t']
        for op in tail_a(base_of(A), P[4], 2, vM, 0):
            e(op)
        a.lgwait(tk)
        mfma(vq(vO1), A, src, False)

    for g in range(18):
        if g == 2:
            item(sca, 10)
        if g == 3:
            item(scb, 12)
        A = vD + 4 * (g % 3)
        An = vD + 4 * ((g + 2) % 3)
        if g + 2 < 18:
            nxt = a_ops(An, P[(g + 2) >> 2], PS[(g + 2) >> 2], (g + 2) & 3)
        else:
            nxt = []
        for half in range(2):
            i0 = 4 * g + 2 * half
            if i0 == NLV:
                item(tail_rd, 2, [need('V', b, 72)])
                st_['tmp' + tag] = item(tail_mm, 30)
            O = (vO1, vO2)[half]
            ops = nxt[:len(nxt) // 2] if half == 0 else nxt[len(nxt) // 2:]
            st = {}
            if i0 < NLV:
                def rd(i0=i0, st=st):
                    k = tcount[0] % (len(temps) // 2)
                    tcount[0] += 1
                    a.lds('ds_read_b128 %s, v%d offset:%d' % (temps[2 * k], vLd, i0 * 1024))
                    st['tk'] = a.lds('ds_read_b128 %s, v%d offset:%d' % (temps[2 * k + 1], vLd, i0 * 1024 + 1024))
                    st['src'] = pair(temps[2 * k], temps[2 * k + 1])
                item(rd, 2, [need('V', b, i0), need('V', b, i0 + 1)])

                def fn(A=A, O=O, st=st, ops=ops):
                    for op in ops:
                        e(op)
                    a.lgwait(st['tk'])
                    smf(O, A, st['src'], vIdx)
                item(fn, 30)
            else:
                def fn(A=A, O=O, i0=i0, ops=ops):
                    smf(O, A, pair(VSR[i0 - NLV], VSR[i0 + 1 - NLV]), vIdx)
                    for op in ops:
                        e(op)
                item(fn, 6, [need('V', b, i0), need('V', b, i0 + 1)])

    def pub():
        a.raw('M_pub%s:' % tag)
        pv_end(tag)
        stamp(vD)
    return item(pub, 40)


def q_load(job, land):
    e('s_add_u32 s%d, s%d, 0x%x' % (sT0, sHA, job * 256 + OFF_Q))
    return 'buffer_load_dwordx4 %s, v%d, %s, s%d offen sc1' % (vq(land), vQo, srd(SWS), sT0)


def q_check(job, land, tk, tmp):
    pf = job == 2 and (args.pfn or args.pf0)
    if pf:
        assert args.X // 4 + args.pfn * args.pfi + args.pf0 <= 18
        e('s_add_u32 s%d, s%d, 0x%x' % (sOff, sBase, args.X // 4 * 16384 + BATCH))
        e('s_mov_b32 s%d, %d' % (sT1, args.pfi))
        e('s_mov_b32 m0, 3072')
        e('v_lshlrev_b32 v%d, %d, v%d' % (tmp + 1, args.pfs, vVo))
        S.lastgrp = None
        for k in range(args.pf0):
            a.vmem('buffer_load_dword v%d, %s, s%d offen %s lds' % (tmp + 1, srd(SK), sOff, args.pfpol))
            e('s_add_u32 s%d, s%d, 16384' % (sOff, sOff))
    a.vmwait(tk)
    if job == 2 and args.q2fb:
        e('s_mov_b32 s%d, 0' % sMode)
        MS['on'] = True
    lc = a.newlabel('L_qc')
    lok = a.newlabel('L_qok')
    pf = job == 2 and args.pfn
    a.label(lc)
    e('v_max3_u32 v%d, v%d, v%d, v%d' % (tmp, land, land + 1, land + 2))
    e('v_max_u32 v%d, v%d, v%d' % (tmp, tmp, land + 3))
    e('v_cmp_eq_u32 vcc, -1, v%d' % tmp)
    e('s_cbranch_vccz %s' % lok)
    e(q_load(job, land))
    if pf:
        e('s_cmp_eq_u32 s%d, 0' % sT1)
        e('s_cbranch_scc1 L_nopf')
        e('s_sub_u32 s%d, s%d, 1' % (sT1, sT1))
        if args.pfs == 3:
            e('s_mov_b32 exec_hi, 0')
        for k in range(args.pfn):
            e('buffer_load_dword v%d, %s, s%d offen %s lds' % (tmp + 1, srd(SK), sOff, args.pfpol))
            e('s_add_u32 s%d, s%d, 16384' % (sOff, sOff))
        if args.pfs == 3:
            e('s_mov_b32 exec_hi, -1')
        e('s_waitcnt vmcnt(%d)' % args.pfn)
        e('s_branch %s' % lc)
        a.label('L_nopf')
    e('s_waitcnt vmcnt(0)')
    if job == 2 and args.q2fb:
        e('s_mov_b32 s%d, -1' % sMode)
    spin_tail(lc)
    a.label(lok)
    if job < 2:
        rmode()


def late_setup():
    mk_srd(SV, 8, 2 * BATCH)
    mk_srd(SWS, 26, WS_SIZE)
    mk_srd(SDBG, 24, 256)
    smask(sMaskV, 0x3337333733373337)
    tail_soff(sTail, sT1)
    e('s_add_u32 s%d, s%d, s%d' % (sTail, sTail, sLds))
    if args.ilv:
        e('s_mul_i32 s%d, s%d, %d' % (sT1, sT0, args.ilv * 16384 - 4096))
        e('s_sub_u32 s%d, s%d, s%d' % (sTail, sTail, sT1))
    e('s_add_u32 s%d, s%d, %d' % (sTail, sTail, (126 if args.ilv else 18) * 16384))
    e('s_mul_i32 s%d, s%d, %d' % (sLds, sU, LVS))
    e('s_add_u32 s%d, s%d, %d' % (sLds, sLds, LVB))
    e('s_lshl_b32 s%d, s%d, 4' % (sEx, sU))
    e('v_add_u32 v%d, s%d, v%d' % (vLd, sLds, vVo))
    e('s_mul_i32 s%d, s%d, %d' % (sHA, sH, HEADA))
    if args.gateA >= 0 or args.gateB >= 0:
        if args.map == 1:
            e('s_lshl_b32 s%d, s%d, 8' % (sGate, sT0))
            e('s_lshl_b32 s%d, s%d, 2' % (sGo, sH))
        else:
            e('s_and_b32 s%d, s%d, 7' % (sGate, sH))
            e('s_lshl_b32 s%d, s%d, 8' % (sGate, sGate))
            e('s_lshr_b32 s%d, s%d, 3' % (sGo, sH))
            e('s_lshl2_add_u32 s%d, s%d, s%d' % (sGo, sT0, sGo))
            e('s_lshl_b32 s%d, s%d, 2' % (sGo, sGo))
        e('s_add_u32 s%d, s%d, 0x%x' % (sGate, sGate, GATEB))
        e('s_add_u32 s%d, s%d, s%d' % (sGo, sGo, sU))
        e('s_add_u32 s%d, s%d, s%d' % (sGo, sGo, sGate))
        e('v_mov_b32 v%d, 0' % vD)
        e('s_mov_b64 exec, 1')
        a.vmem('buffer_store_byte v%d, off, %s, s%d' % (vD, srd(SWS), sGo))
        a.vmem('buffer_store_byte v%d, off, %s, s%d offset:128' % (vD, srd(SWS), sGo))
        e('s_mov_b64 exec, -1')
    if args.msl:
        e('s_and_b32 s%d, s%d, 7' % (sGate, sH))
        e('s_lshl_b32 s%d, s%d, 8' % (sGate, sGate))
        e('s_add_u32 s%d, s%d, 0x%x' % (sGate, sGate, GATEB))
        e('s_lshr_b32 s%d, s%d, 3' % (sVote, sH))
        e('s_lshl2_add_u32 s%d, s%d, s%d' % (sVote, sT0, sVote))
        e('s_lshl3_add_u32 s%d, s%d, s%d' % (sVote, sVote, sGate))
        e('v_mov_b32 v%d, 0' % vD)
        e('v_mov_b32 v%d, 0' % (vD + 1))
        e('s_cmp_eq_u32 s%d, 1' % sU)
        e('s_cbranch_scc0 L_nz')
        e('s_mov_b64 exec, 1')
        e('buffer_store_dwordx2 %s, off, %s, s%d' % (vp(vD), srd(SWS), sVote))
        if args.gb:
            e('s_cmp_eq_u32 s%d, 0' % sT0)
            e('s_cbranch_scc0 L_nz1')
            e('s_bitcmp1_b32 s%d, 4' % sH)
            e('s_cselect_b32 s%d, 0, -1' % sRep)
            e('v_mov_b32 v%d, s%d' % (vD + 2, sRep))
            e('v_mov_b32 v%d, s%d' % (vD + 3, sRep))
            e('buffer_store_dwordx2 %s, off, %s, s%d offset:224' % (vp(vD + 2), srd(SWS), sVote))
            a.label('L_nz1')
        e('s_mov_b64 exec, -1')
        e('s_nop 1')
        a.label('L_nz')
        if args.gb:
            e('s_cmp_eq_u32 s%d, 1' % sU)
            e('s_cselect_b32 s%d, %d, 0' % (sRep, args.gbn))
            e('s_and_b32 s%d, s%d, 7' % (sGl, sH))
            e('s_lshl_b32 s%d, 1, s%d' % (sOwn, sGl))
            e('s_lshl_b32 s%d, s%d, 10' % (sGl, sGl))
            e('s_mov_b32 s%d, 0x%x' % (sGb, GBB))
            e('s_add_u32 s%d, s%d, s%d' % (sGl, sGl, sGb))
            e('s_lshr_b32 s%d, s%d, 3' % (sXb, sH))
            e('s_lshl2_add_u32 s%d, s%d, s%d' % (sXb, sXb, sU))
            e('s_lshl3_add_u32 s%d, s%d, s%d' % (sXb, sXb, sT0))
            e('s_cmp_eq_u32 s%d, %d' % (sXb, 2 * 8 + 1))
            e('s_cbranch_scc0 L_nz2')
            e('v_mov_b32 v%d, 0' % (vD + 2))
            e('v_mov_b32 v%d, 0' % (vD + 3))
            e('buffer_store_dwordx4 %s, v%d, %s, s%d offen sc1' % (vq(vD), vVo, srd(SWS), sGl))
            a.label('L_nz2')
    elif args.ms:
        e('s_lshr_b32 s%d, s%d, 3' % (sVote, sH))
        e('s_lshl2_add_u32 s%d, s%d, 1' % (sVote, sVote))
        e('s_xor_b32 s%d, s%d, s%d' % (sVote, sVote, sT0))
        e('s_xor_b32 s%d, s%d, 1' % (sMode, sU))
        e('s_or_b32 s%d, s%d, s%d' % (sMode, sMode, sVote))
        e('s_lshl3_add_u32 s%d, s%d, 128' % (sVote, sH))
        e('s_cmp_eq_u32 s%d, 0' % sMode)
        e('s_cselect_b32 s%d, s%d, -1' % (sVote, sVote))
    mk_qoff(vQo, 0, vD)
    e('s_lshl_b32 s%d, s%d, 9' % (sPub, sT0))
    e('s_add_u32 s%d, s%d, s%d' % (sPub, sPub, sHA))
    e('s_add_u32 s%d, s%d, %d' % (sPub, sPub, OFF_O))
    e('s_lshl_b32 s%d, s%d, 7' % (sStat, sT0))
    e('s_lshl3_add_u32 s%d, s%d, s%d' % (sStat, sU, sStat))
    e('s_add_u32 s%d, s%d, s%d' % (sStat, sStat, sHA))
    e('s_and_b32 s%d, s%d, 7' % (sH, sH))
    e('s_lshl_b32 s%d, s%d, 4' % (sH, sH))
    e('s_getreg_b32 s%d, hwreg(HW_REG_XCC_ID, 0, 4)' % sFo)
    e('s_or_b32 s%d, s%d, 0x80000000' % (sFo, sFo))
    mk_masks(vM, vD)
    mk_c(vC, 4, vD)
    e('v_lshlrev_b32 v%d, 3, v0' % vPo)


GW = 32 if args.map == 1 else 28


def gate_signal(k):
    e('v_mov_b32 v0, -1')
    e('s_mov_b64 exec, 1')
    a.vmem('buffer_store_byte v0, off, %s, s%d offset:%d' % (srd(SWS), sGo, k * 128))
    e('s_mov_b64 exec, -1')


def gate_wait(k, th):
    a.vmwait_all()
    if args.gone:
        e('s_cmp_lg_u32 s%d, 0' % sU)
        e('s_cbranch_scc1 L_gok%d' % k)
    e('s_mov_b32 s%d, 100' % sT1)
    e('v_lshrrev_b32 v%d, 2, v%d' % (vD + 1, vVo))
    e('s_mov_b64 exec, 0x%x' % ((1 << GW) - 1) if GW < 32 else 's_mov_b32 exec_hi, 0')
    a.label('L_gw%d' % k)
    e('buffer_load_dword v0, v%d, %s, s%d offen offset:%d sc1' % (vD + 1, srd(SWS), sGate, k * 128))
    e('s_waitcnt vmcnt(0)')
    e('v_cmp_eq_u32 vcc, -1, v0')
    e('s_bcnt1_i32_b32 s%d, vcc_lo' % sT0)
    e('s_cmp_ge_u32 s%d, %d' % (sT0, GW - th))
    e('s_cbranch_scc1 L_gok%d' % k)
    if args.gsleep:
        e('s_sleep %d' % args.gsleep)
    e('s_sub_u32 s%d, s%d, 1' % (sT1, sT1))
    e('s_cbranch_scc0 L_gw%d' % k)
    a.label('L_gok%d' % k)
    e('s_mov_b64 exec, -1')
    if args.gone:
        e('s_barrier')


def set_job(job):
    e('s_add_u32 s%d, s%d, 0x%x' % (sPubJ, sPub, (job >> 1) * 4096 + (job & 1) * 256 * args.ob))
    e('s_add_u32 s%d, s%d, 0x%x' % (sStatJ, sStat, job * 32))
    if not args.ob:
        e('s_mov_b32 s%d, %d' % (sTag, 2 - (job & 1)))


def o_fill(r, k):
    e('v_mov_b32 v%d, -1' % r)
    e('v_mov_b32 v%d, -1' % (r + 1))
    e('s_lshl3_add_u32 s%d, s%d, s%d' % (sT0, sEx, sPub))
    if k:
        e('s_add_u32 s%d, s%d, 4096' % (sT0, sT0))
    e('s_mov_b64 exec, 0xffff')
    store_sel('buffer_store_dwordx2 %s, v%d, %s, s%d offen' % (vp(r), vPo, srd(SWS), sT0), 'fill%d' % k, True)
    e('s_mov_b64 exec, -1')
    return len(a.vm) - 1


D_ = args.D
X = args.X
R = NR
XE = args.XE or X
assert X % 4 == 0 and X <= 72 and XE % 4 == 0 and XE <= X
st = {}

seqA = [('K', i) for i in range(NQ)] + [('V', i) for i in VORD]
QF = args.QF if not args.bwtest else 2 * NQ - 1
flag_ld = 'buffer_load_dwordx4 %s, off, %s, s%d sc1' % (vq(vD), srd(SDBG), sH)
for n, (kind, i) in enumerate(seqA):
    dest = KS[i] if kind == 'K' else vslot(i)
    LOC[(kind, 0, i)] = dest
    S.pace(args.DE if n >= 2 * NQ - args.NE else (args.DA or D_), *((args.Elo, args.DE) if n >= 2 * NQ - args.NE else (args.Dlo, args.Dhi)))
    LT[(kind, 0, i)] = S.issue(kind, 0, i, dest, polA)
    if n == D_ - 1:
        late_setup()
        stamp(vD, True)
    if args.bwtest:
        if n in (40, 72, 112):
            stamp(vD)
        if n == 2 * NQ - 1:
            a.vmwait_all()
            stamp(vD)
            for n2, (kind, i) in enumerate(seqA):
                S.pace(D_)
                S.issue(kind, 1, i, KS[i] if kind == 'K' else vslot(i), polB1 if n2 < args.B1n else polA)
                if n2 in (40, 72):
                    stamp(vD)
            a.vmwait_all()
            stamp(vD)
            ct_dump(vD)
            e('s_endpgm')
    if n == QF - (3 * D_ if not args.bwtest else 0):
        st['ftk'] = a.vmem(flag_ld)
    if n == QF - (D_ if not args.bwtest else 0):
        a.vmwait(st['ftk'])
        a.label('L_fc')
        e('v_min3_u32 v%d, v%d, v%d, v%d' % (vD + 4, vD, vD + 1, vD + 2))
        e('v_min_u32 v%d, v%d, v%d' % (vD + 4, vD + 4, vD + 3))
        e('v_cmp_eq_u32 vcc, 0, v%d' % (vD + 4))
        e('s_cbranch_vccz L_fok')
        e(flag_ld)
        e('s_waitcnt vmcnt(0)')
        spin_tail('L_fc')
        a.label('L_fok')
        e('v_max3_u32 v%d, v%d, v%d, v%d' % (vD + 5, vD, vD + 1, vD + 2))
        e('v_max_u32 v%d, v%d, v%d' % (vD + 5, vD + 5, vD + 3))
        e('v_xor_b32 v%d, s%d, v%d' % (vD + 4, sFo, vD + 4))
        e('v_xor_b32 v%d, s%d, v%d' % (vD + 5, sFo, vD + 5))
        e('v_or_b32 v%d, v%d, v%d' % (vD + 4, vD + 4, vD + 5))
        e('v_readfirstlane_b32 s%d, v%d' % (sFo, vD + 4))
        if args.nofast:
            e('s_mov_b32 s%d, 1' % sFo)
        e('s_cmp_eq_u32 s%d, 0' % sFo)
        e('s_cselect_b32 s%d, 0, 1024' % sT0)
        e('v_add_u32 v%d, s%d, v%d' % (vQo, sT0, vQo))
        st['qtk'] = a.vmem(q_load(0, vQL))
        st['filltk'] = o_fill(vD + 6, 0)
        rmode()
    if n == 2 * NQ - 1 - D_:
        assert not MS['pend']
        MS['ok'] = False
        st['q1tk'] = a.vmem(q_load(1, vQ1))
    if n == 2 * NQ - 1 - args.gateA:
        gate_signal(0)
    if n == QF:
        q_check(0, vQL, st['qtk'], vD)
        stamp(vD)
        item(lambda: build_bt(vBT, vQL), 24)
        add_k_items(0, PA, range(NQ))

        def sm():
            a.vmwait(st['filltk'])
            set_job(0)
            att_softmax(PA, 0, 1, '0')
        item(sm, 80)
        st['pub0'] = add_v_items(0, PA, RING[:4], '0')
    S.run_budget(args.budget)

def q1_start():
    q_check(1, vQ1, st['q1tk'], vD)
    if PARK:
        for r in range(0, 4, 2):
            e('v_mov_b64 %s, %s' % (vp(vBT + r), vp(vQ1 + r)))
    else:
        build_bt(vBT, vQ1)
    MS['ok'] = True
    MS['reg'] = vQL


def c_move(d, k0, k):
    return 'v_mov_b32_dpp v%%d, v%%d quad_perm:[%d,%d,%d,%d] %%s' % tuple(k0 if p == k else k0 ^ 1 for p in range(4)) % (d, vC, DPPF)


def add_k_lean(idxs):
    its = {}
    seen = set()
    for i in idxs:
        g, t = i >> 2, i & 3

        its[i] = item(lambda i=i: mfma(vq(vD), LOC[('K', 1, i)], vq(vBT), True), 4, [need('K', 1, i)])

        def fn(i=i, g=g, t=t):
            if st['ck'] != g & 3:
                e(c_move(vC, st['ck'], g & 3))
                st['ck'] = g & 3
            for r in range(4):
                op = 'v_mul_f32_dpp' if (g >> 2, t) not in seen and r == 0 else 'v_fmac_f32_dpp'
                e('%s v%d, v%d, v%d quad_perm:[%d,%d,%d,%d] row_mask:0xf bank_mask:0x%x' % (op, PB[g >> 2], vD + r, vC, r, r, r, r, 1 << t))
            seen.add((g >> 2, t))
        item(fn, 18)
    return its


st['ck'] = 0
item(q1_start, 24, [lambda: st['q1tk']])
seqB1 = [i for i in range(XE) if i not in PARK]
seqB1[args.park:args.park] = sorted(PARK)
assert args.park <= XE - 2 * R
kits = add_k_lean(seqB1[:-R]) if PARK else add_k_items(1, PB, range(XE - R))
ringbusy = {}
lds_done = False
if args.gateA >= 0:
    S.run_until(st['pub0'])
    gate_wait(0, args.thA)
CQ = [i for i in range(XE - R) if i not in PARK]
KEEP = {i: polB1 for i in CQ[:args.B1n]}
rn = 0
for n, i in enumerate(seqB1):
    if i in PARK:
        dest = vq(PARK[i])
    else:
        dest = RING[(rn + 4) % NR]
        rn += 1
    S.pace(args.DB0 if n < args.NB0 else D_, *((args.DB0, args.DB0h or args.DB0) if n < args.NB0 else (args.B1lo or args.Dlo, args.B1hi or args.Dhi)))
    S.run_budget(1 if PARK and MS['ok'] else args.budget)
    if dest in ringbusy:
        S.run_until(ringbusy.pop(dest))
    if n == 4:
        S.run_until(st_['tmp0'])
    if i in PARK:
        S.run_until(st['pub0'])
    if st['pub0'].get('done') and not st.get('p0n'):
        st['p0n'] = 1
        print('pub0 before B1 index', n)
    LOC[('K', 1, i)] = dest
    if n == args.QI:
        st['filltk'] = o_fill(base_of(dest), 1)
    LT[('K', 1, i)] = S.issue('K', 1, i, dest, KEEP.get(i, polB))
    if i in kits:
        ringbusy[dest] = kits[i]
    if n == XE - (args.q2p or D_) + 1:
        assert st['pub0'].get('done') and not MS['pend']
        MS['reg'] = None
        st['q2tk'] = a.vmem(q_load(2, vQL))
    S.run_budget(args.budget)
S.drain()
a.raw('M_j2:')
assert not MS['pend']
assert st['filltk'] < st['q2tk']
if PARK:
    for t in range(4):
        smask(sBM + 2 * t, 0x000F000F000F000F << (4 * t))
        smask(sMM + 2 * t, 0x0003000300030003 << (2 * t))
    e('s_mov_b32 s%d, 0xffff' % sMt)
q_check(2, vQL, st['q2tk'], vD)
stamp(vD)
set_job(2)
e('s_mov_b64 vcc, -1')


def bt_ops(t):
    return ['v_mov_b32_dpp v%d, v%d quad_perm:[0,1,2,3] row_mask:0xf bank_mask:0x%x' % (vBT + 4 * t + r, vQL + r, 1 << t) for r in range(4)]


def z64(r, n):
    return ['v_mov_b64 %s, 0' % vp(r + k) for k in range(0, n, 2)]


for k in range(args.p2d):
    e('v_mov_b32 v0, v0')
ct(0)
if PARK:
    def bt_full(t):
        return ['v_cndmask_b32 v%d, 0, v%d, %s' % (vBT + 4 * t + r, vQL + r, sp(sBM + 2 * t)) for r in range(4)]
    after = {4: bt_full(1), 1: bt_full(2), 5: bt_full(3),
             3: [c_move(vC + k, st['ck'], k) for k in (1, 2, 3, 0)] + ['v_lshl_add_u32 v%d, v%d, 1, s%d' % (vLd, vPo, sLds)],
             7: ['v_lshlrev_b32 v%d, 1, v%d' % (vVo, vPo), 'v_and_b32 v0, 16, v%d' % vVo, 'v_lshlrev_b32 v0, v0, s%d' % sMt] +
                ['v_cndmask_b32 v%d, 0, v0, %s' % (vM + k, sp(sMM + 2 * k)) for k in range(4)] + ['v_mov_b32 v0, 0xff800000']}
    for op in bt_full(0):
        e(op)
    for i in (0, 4, 1, 5, 2, 6, 3, 7):
        assert LT[('K', 1, i)] < a.vm_done
        mfma(vq(vD + 4 * (i >> 2)), KS[i], vq(vBT + 4 * (i & 3)), (i & 3) == 0)
        for k in range(4):
            e('v_accvgpr_write_b32 a%d, v%d' % (base_of(KS[i]) + k, PARK[i] + k))
        for op in after.get(i, []):
            e(op)
    e('s_branch L_p2b')
else:
    a.fence()
    for op in bt_ops(0) + bt_ops(1)[:2]:
        e(op)
    a.raw('    s_branch L_p2')
    a.hist = []

mainlines, a.lines = a.lines, []
q3ld = 'buffer_load_dwordx4 %s, v%d, %s, s%d offen sc1' % (vq(vQL), vQo, srd(SWS), sT0)
a.label('L_q3r')
e(q3ld)
e('s_sub_u32 s%d, s%d, 1' % (sBud, sBud))
e('s_cbranch_scc0 L_q3')
e('s_endpgm')
a.label('L_q3')
e('s_cmp_lg_u32 s%d, s%d' % (sU, sU))
e('s_waitcnt vmcnt(0)')
e('v_max3_u32 v%d, v%d, v%d, v%d' % (vD + 8, vQL, vQL + 1, vQL + 2))
e('v_max_u32 v%d, v%d, v%d' % (vD + 8, vD + 8, vQL + 3))
e('v_cmp_eq_u32 vcc, -1, v%d' % (vD + 8))
for op in bt_ops(0) + bt_ops(1)[:2]:
    e(op)
a.raw('    s_cbranch_vccnz L_q3r')
a.pos += 1
a.raw('@Q3OK')

a.raw('L_p2:')
seqB2 = [('K', i) for i in range(X, NQ - 1)] + [('V', i) for i in VORD]
seqB2.insert(NQ - 1 - X + args.K72, ('K', NQ - 1))
gx = X // 4
SC = 84
AB = [SC, SC + 4, SC + 8]
Oa, Ob, Oc, Od = SC + 12, SC + 16, SC + 20, SC + 24
PSn = [SC + 28 + k for k in range(5)]
nIdx, nM1, nL = SC + 33, SC + 34, SC + 35
sM1, sM2 = sT0, sT1
head = [gx, gx + 1, gx - 2, gx - 1] + list(range(gx + 2, 19))
blk1 = sorted({g >> 2 for g in head})
if len(blk1) < args.P2B1:
    blk1 = [0] + blk1
blk2 = [k for k in range(5) if k not in blk1]
g1 = head + [g for g in range(18) if g >> 2 in blk1 and g not in head]
g2 = [g for g in range(18) if g >> 2 in blk2]
gg = g1 + g2
if args.P2G:
    gg = [int(x) for x in args.P2G.split(',')]
if PARK:
    gg = [0, 1] + [g for g in gg if g > 1]
assert sorted(gg) == list(range(19))
QK = []
for t in range(4):
    QK += [(0, gg[0], t), (1, gg[1], t)]
for gi, g in enumerate(gg[2:]):
    QK += [(gi + 2, g, t) for t in range(4 if g < 18 else 1)]


def scored(ks):
    return not [x for x in QK if x[1] >> 2 in ks] and not [x for x in sq if x[2] in ks]


v1 = [g for g in g1 if g < 18]
v1.sort(key=lambda g: (4 * g < NLV, g >> 2 != 4, g))
v2 = sorted(g2, key=lambda g: (4 * g < NLV, g >> 2 != max(g2) >> 2, g))
vall = v1 + v2
PV = [('t',)] + [(vi, g, h) for vi, g in enumerate(vall) for h in range(2)]
n1 = 1 + 2 * len(v1)
NP2 = [int(x) for x in args.NP2.split(',')]
P2POS = [int(x) for x in args.P2POS.split(',')]
kfree = set()
reserved = set(range(X - 8, NQ)) | set(PARK)
ldq = [NLV] + [4 * g + k for g in vall for k in range(4) if 4 * g + k < NLV]
pref = {}
tempq = []


def p2_load():
    n = NP2.pop(0) if NP2 else 0
    todo = []
    while n > 0:
        kind, i = seqB2[len(todo)]
        if kind == 'K':
            if i not in kfree or i == NQ - 1:
                break
            dest = KS[i]
        else:
            dest = vslot(i)
            if i >= NLV or i not in pref:
                break
        todo.append((kind, i, dest))
        n -= 1
    if not todo:
        return
    sk = a.newlabel('L_sk')
    a.skip_begin(*(('s_cbranch_vccnz', sk + 'o') if args.P2OOL else ('s_cbranch_vccz', sk)))
    main, a.lines, lgd = a.lines, [], a.lg_done
    S.lastgrp = None
    for kind, i, dest in todo:
        seqB2.pop(0)
        if kind == 'V':
            a.lgwait(pref[i][1])
        S.pace(args.DP2 or D_)
        LOC[(kind, 1, i)] = dest
        LT[(kind, 1, i)] = S.issue(kind, 1, i, dest, polB)
    if args.P2OOL:
        RAW2.append([sk + 'o:'] + a.lines + ['    s_branch ' + sk])
    else:
        main.append('\n'.join(a.lines))
    a.lines, a.lg_done = main, lgd
    a.skip_end(sk)


def prefetch_one():
    v = ldq[0]
    if v == NLV:
        r = tempq.pop(0)
        tempq.pop(0)
    else:
        r = tempq.pop(0)
        assert (KS.index(r) & 1) == (v & 1)
    ldq.pop(0)
    if len(a.lg) - a.lg_done >= 14:
        a._lgwait_n(7)
    pref[v] = (r, a.lds('ds_read_b128 %s, v%d offset:%d' % (r, vLd, v * 1024)))


def can_ds():
    return ldq and len(tempq) > (1 if ldq[0] == NLV else 0)


def red63(op, r):
    return allreduce_list(op, r, None, (0, 1, 2, 3)) + \
        ['%s_dpp v%d, v%d, v%d row_bcast:15 row_mask:0xa bank_mask:0xf' % (op, r, r, r),
         '%s_dpp v%d, v%d, v%d row_bcast:31 row_mask:0xc bank_mask:0xf' % (op, r, r, r)]


def pexp(k, sm):
    p = PA[k]
    return ['v_subrev_f32 v%d, s%d, v%d' % (p, sm, p), 'v_exp_f32 v%d, v%d' % (p, p), 'v_cvt_pk_bf16_f32 v%d, 0, v%d' % (p, p),
            mirror(PSn[k], p), ('P', k)]


sq = []
cq = []
fq = bt_ops(1)[2:] + bt_ops(2) + bt_ops(3) + ['v_mov_b32 v0, 0xff800000']
aq = []
flags = set()
anext = [0]
adone = set()
vdone = set()
vpend = []
lgt = {}


def pop(q):
    x = q.pop(0)
    if callable(x):
        x()
    else:
        e(x)
    while q and isinstance(q[0], tuple):
        flags.add(q.pop(0))


def ok(q):
    if not q:
        return False
    if callable(q[0]):
        w = a.lines[-1].split()[0]
        return not w.startswith('v_') or w.startswith('v_smf')
    return a.needed(q[0]) == 0


def refill():
    while anext[0] < len(vall) and not aq:
        vi = anext[0]
        g = vall[vi]
        if ('P', g >> 2) not in flags or ('Z', AB[vi % 3]) not in flags or (vi >= 3 and vi - 3 not in vdone):
            return
        aq.extend(a_ops(AB[vi % 3], PA[g >> 2], PSn[g >> 2], g & 3) + [('A', vi)])
        anext[0] += 1


def slot(order, force=False):
    refill()
    for q in order:
        if q is sq:
            seen = set()
            for k, x in enumerate(sq):
                if x[2] not in seen and a.needed(x[1]) == 0:
                    e(sq.pop(k)[1])
                    return True
                seen.add(x[2])
        elif q == 0:
            a.nop(1)
            return True
        elif ok(q):
            pop(q)
            return True
    if force:
        for q in order:
            if q is sq and sq:
                e(sq.pop(0)[1])
                return True
            if q:
                pop(q)
                return True
        assert False
    return False


def pv_ready(x):
    if x[0] == 't':
        return ('T', 0) in flags
    if QK and x[2] == 0 and ('A', x[0] + 1) not in flags:
        return False
    return {('A', x[0]), ('Z', SC + 32), ('Z', Ob), ('Z', Oc), ('Z', Ob if x[0] < len(v1) else Od)} <= flags


def emit_pv(x):
    if x[0] == 't':
        a.lgwait(pref[NLV][1])
        mfma(vq(Oa), vq(Od), pref[NLV][0], True)
        fq.extend(z64(Od, 4) + [('Z', Od)])
        return
    vi, g, h = x
    i0 = 4 * g + 2 * h
    if i0 < NLV:
        src = pair(pref[i0][0], pref[i0 + 1][0])
        a.lgwait(pref[i0 + 1][1])
    else:
        src = pair(VSR[i0 - NLV], VSR[i0 + 1 - NLV])
    smf(((Oa, Ob) if vi < len(v1) else (Oc, Od))[h], AB[vi % 3], src, nIdx)
    if h:
        vpend.append(vi)


def chain1():
    o = [4] + [k for k in blk1 if k != 4][::-1]
    c = ['v_max3_f32 v%d, v%d, v%d, v%d' % ((nM1,) + tuple(PA[k] for k in (blk1 + blk1)[:3]))] + red63('v_max_f32', nM1)
    c += ['v_readlane_b32 s%d, v%d, 63' % (sM1, nM1)]
    c += pexp(o[0], sM1)
    cq.extend(c)
    f = tail_a(Od, PA[4], 2, vM, 0) + [('T', 0)] + pexp(o[1], sM1)
    f += ['v_add_f32 v%d, v%d, v%d' % (nL, PA[o[0]], PA[o[1]]), 'v_mov_b32 v%d, s%d' % (nM1, sM1)]
    if len(o) > 2:
        f += pexp(o[2], sM1) + ['v_add_f32 v%d, v%d, v%d' % (nL, nL, PA[o[2]])]
    cq.extend(f)


vF1, vR1, vC2, vT2 = 20, 22, 24, 25


def chain2():
    o = [v2[0] >> 2] + [k for k in blk2 if k != v2[0] >> 2]
    m, l = vMl, vMl + 1
    if len(o) > 2:
        c = ['v_max3_f32 v%d, v%d, v%d, v0' % (m, PA[blk2[1]], PA[blk2[2]])] + red63('v_max_f32', m)
    else:
        c = ['v_max3_f32 v%d, v%d, v%d, s%d' % (m, PA[o[0]], PA[o[1]], sM1)] + red63('v_max_f32', m)
    c += ['v_readlane_b32 s%d, v%d, 63' % (sM2, m)]
    c += pexp(o[0], sM2)

    def wr():
        while ('X', 0) not in flags:
            pop(fq)
        e('s_brev_b64 exec, 1')
        lgt['w'] = a.lds('ds_write_b32 v%d, v%d offset:%d' % (vT2, m, EXM))
        e('s_mov_b64 exec, -1')

    def bar():
        ct(4)
        a.lgwait(lgt['w'])
        e('s_barrier')
        ct(5)
        lgt['r'] = a.lds('ds_read_b32 v%d, v%d offset:%d' % (vC2, vC2, EXM))

    def stt():
        ct(6)
        e('s_brev_b64 exec, 1')
        store_sel('buffer_store_dwordx2 %s, off, %s, s%d' % (vp(m), srd(SWS), sStatJ), 'sp', True, True)
        e('s_mov_b64 exec, -1')
    n0 = len(c)
    c += [wr] + pexp(o[1], sM2)
    c += ['v_subrev_f32 v%d, s%d, v%d' % (vF1, sM2, nM1), 'v_add_f32 v%d, v%d, v%d' % (l, PA[o[0]], PA[o[1]]),
          'v_exp_f32 v%d, v%d' % (vF1, vF1), bar, 'v_fmac_f32 v%d, v%d, v%d' % (l, nL, vF1), 'v_min_u32 v%d, -2, v%d' % (m, m)]
    if len(o) > 2:
        c += pexp(o[2], sM2) + ['v_add_f32 v%d, v%d, v%d' % (l, l, PA[o[2]])]
    c += red63('v_add_f32', l) + ['v_min_u32 v%d, -2, v%d' % (l, l), lambda: a.lgwait(lgt['r'])]
    sb = allreduce_list('v_max_f32', vC2, None, (0, 1))
    c += [sb[0], stt, sb[1], 'v_sub_f32 v%d, s%d, v%d' % (vC2, sM2, vC2), 'v_exp_f32 v%d, v%d' % (vC2, vC2), ('W', 0)]
    cq.extend(c)
    lgt['rest'] = len(c) - n0
    fq[:0] = ['v_mov_b32 v%d, s%d' % (vT2, sEx), 'v_and_b32 v%d, 0x30, v%d' % (vC2, vVo), ('X', 0)]


def chain3():
    c = ['v_permlane32_swap_b32 v%d, v%d' % (Oa, Oa + 2), 'v_permlane32_swap_b32 v%d, v%d' % (Oa + 1, Oa + 3),
         'v_permlane32_swap_b32 v%d, v%d' % (Ob, Ob + 2), 'v_permlane32_swap_b32 v%d, v%d' % (Ob + 1, Ob + 3),
         'v_mul_f32 v%d, v%d, v%d' % (vF1, vF1, vC2),
         'v_pk_add_f32 %s, %s, %s' % (vp(vR1), vp(Oa), vp(Ob + 2)),
         'v_lshl_add_u32 v0, v%d, 5, v%d' % (vT2, vPo),
         'v_pk_mul_f32 %s, %s, %s op_sel_hi:[1,0]' % (vp(vR1), vp(vR1), vp(vF1))]
    cq.extend(c)


seen_reg = set()
tnew = None
ilast = None
nm = 0
p2start = len(a.lines)
npv = 0
lastm = None
st2 = 0
left1 = len(g1)
while QK or PV:
    refill()
    vd_ = list(vpend)
    del vpend[:]
    if tnew:
        tempq.append(tnew)
    tnew = None
    if QK and not (lastm == 'q' and npv < n1 - args.P2ND and pv_ready(PV[0])):
        gi, g, t = QK.pop(0)
        D = vD + 4 * (gi % 3)
        if t == 0:
            while [x for x in sq if x[0] <= gi - 3]:
                slot([sq, cq, aq, fq]) or slot([sq], True)
        while fq and isinstance(fq[0], str) and fq[0] in bt_ops(t):
            pop(fq)
        i = 4 * g + t
        if PARK and nm == 7:
            if a.lines[-1].split() == ['s_nop', '0']:
                a.lines.pop()
                a.pos -= 1
            a.raw('    s_cbranch_scc1 L_q3')
            a.pos += 1
        mfma(vq(D), KS[i], vq(vBT + 4 * t), t == 0)
        if PARK and nm == 7:
            assert not fq and len(sq) == 4 and not [x for x in a.lines[p2start:] if x.split()[0][:3] in ('ds_', 'buf')]
            a.raw('L_p2b:')
        lastm = 'q'
        mline, mpos = len(a.lines), a.pos
        kfree.add(i)
        if i not in reserved:
            tnew = KS[i]
        if t == 3 or g == 18:
            sq.extend((gi, op, g >> 2) for op in score_ops(PA, g, D, vC, (g >> 2) not in seen_reg))
            seen_reg.add(g >> 2)
            if g >= 16 and not [x for x in QK if x[1] >= 16]:
                sq.append((gi, 'v_cndmask_b32 v%d, v0, v%d, %s' % (PA[4], PA[4], sp(sMaskV)), 4))
        if ilast is not None and KS[ilast][0] == 'v':
            b = base_of(KS[ilast])
            if b in AB:
                fq.extend(z64(b, 4) + [('Z', b)])
            if b in (Ob, Oc):
                fq.extend(z64(b, 4) + [('Z', b)])
            if b == SC + 32:
                fq.extend(idx_ops(nIdx, vVo) + [('Z', b)])
        ilast = i
        order = [[sq, cq, aq, fq]] * 2
    else:
        while not pv_ready(PV[0]):
            vdone.update(vd_)
            slot([aq, sq, cq, fq]) or slot([sq, cq, aq, fq], True)
            if st2 == 1 and not QK and not sq:
                chain2()
                st2 = 2
        emit_pv(PV.pop(0))
        npv += 1
        lastm = 'p'
        for k in range(2 if npv % 2 and args.P2DS2 else 1):
            if can_ds():
                prefetch_one()
        order = [[aq, sq, cq, fq]] if QK else [[sq, cq, fq], [aq], [aq], [sq, cq, fq]]
        if not QK and ('A', len(v1)) not in flags:
            crit = len(sq) + (12 if st2 < 2 else len(cq) - lgt['rest']) + 2
            hurry = crit > n1 - npv + args.P2H
            order = [[sq, cq], [aq, fq, 0], [aq, fq, 0] if hurry else [aq, fq]] + ([[sq, cq]] if hurry else [])
        elif st2 == 3:
            order = [[cq]]
        elif not QK and PV and ('A', PV[0][0] + 1) not in flags and PV[0][2] == 1:
            order = [[aq], [aq], [aq], [sq, cq, fq]]
    vdone.update(vd_)
    nm += 1
    if nm in P2POS:
        p2_load()
    dsd = False
    if lastm == 'q' and can_ds() and (ldq[0] == NLV or len(ldq) > args.P2DSL + len(QK)):
        prefetch_one()
        dsd = True
        order = order[:1]
    if args.P2QD and lastm == 'q' and can_ds() and not dsd and nm not in P2POS:
        q0, qs, qk = (int(x) for x in args.P2QD.split(':'))
        if nm >= q0 and nm - lgt.get('qd', -99) >= qs:
            prefetch_one()
            dsd = True
            order = order[:qk]
    if dsd:
        lgt['qd'] = nm
    for k, o in enumerate(order):
        if lastm == 'q' and k == 1 and ('v_exp' in a.lines[-1] or nm in P2POS):
            break
        if not slot(o) and lastm == 'q':
            if can_ds() and not dsd and len(a.lg) - a.lg_done < 14:
                prefetch_one()
                dsd = True
                lgt['qd'] = nm
                if k == 1:
                    a.lines.insert(mline, a.lines.pop())
                    for p in a.hist:
                        if p.pos >= mpos:
                            p.pos = mpos if p.kind == 'ds' else p.pos + 1
            elif can_ds() and not dsd:
                a._lgwait_n(7)
            elif sq or cq:
                a.nop(1)
        if st2 == 0 and scored(blk1):
            chain1()
            st2 = 1
            print('chain1 at', nm)
        if st2 == 1 and len(blk2) > 2 and 'f' not in flags and ('T', 0) in flags and scored(blk2[:1]):
            flags.add('f')
            cq.append('v_max_f32 v0, s%d, v%d' % (sM1, PA[blk2[0]]))
        if st2 == 1 and not QK and not sq:
            assert len(blk2) == 2 or 'f' in flags
            chain2()
            st2 = 2
            print('chain2 at', nm, 'pv done', npv, 'cq', len(cq))
        if st2 == 2 and ('W', 0) in flags and npv >= n1 + 2 and anext[0] == len(vall) and not aq:
            chain3()
            st2 = 3
            print('chain3 at', nm)
    if nm == 8:
        ct(1)
    if not QK and 'q' not in flags:
        flags.add('q')
        ct(2)
    if npv == n1 and lastm == 'p':
        ct(3)
assert st2 == 3 and not ldq and not sq and not aq and not fq
ct(7)
e('s_cmp_lg_u32 s%d, 0' % sU)
while cq:
    pop(cq)
merge(Oc, Od)
e('v_pk_fma_f32 %s, %s, %s, %s op_sel_hi:[1,0,1]' % (vp(Oc), vp(Oc), vp(vC2), vp(vR1)))
wg_publish(Oc, None, 0, vPo, EXO, vD, sPubJ, 'op', 'L_npp')
ct(8)


def cost(lines):
    tot, segs, cur = 0, [], None
    for ln in lines:
        w = ln.split()
        if w[0].endswith(':'):
            continue
        if w[0].startswith('v_mfma') or w[0].startswith('v_smf'):
            cur = [w[0][2], []]
            segs.append(cur)
        else:
            cur[1].append(w)
    out = []
    for kind, ws in segs:
        u, lead, seenv, pv = 0, 0, False, False
        for w in ws:
            isv = w[0].startswith('v_')
            n = int(w[1]) + 1 if w[0] == 's_nop' else 2 if w[0] == 'v_exp_f32' else 1
            if w[0].startswith('ds_') and pv:
                n += 2
            if kind == 's' and not isv and not seenv:
                lead += n
            else:
                u += n
            seenv |= isv
            pv = isv
        c = max(17, 9 + 4 * u) if kind == 'm' else max(17, 13 + 4 * (u + max(0, lead - 2)))
        out.append(c)
    return out


cc = cost(a.lines[p2start:])
print('P2 model', sum(cc[:-1]), ''.join(str(min(9, (c - 17) // 4)) for c in cc))
stamp(vD)
e('s_cbranch_vccnz L_p2ret')
ct_dump(vD)
e('s_endpgm')
for blk in RAW2:
    for ln in blk:
        a.raw(ln)
p2lines, a.lines = a.lines, mainlines
if args.lay:
    lb = a.lines.pop().split()[1]
    k = p2lines.index(lb + ':')
    a.lines += p2lines[k:]
    if PARK:
        assert p2lines[k + 1].split() == ['s_nop', '0']
        a.lines.pop(a.lines.index(lb + ':') + 1)
    p2lines = p2lines[:k] + ['    s_branch ' + lb]
a.label('L_p2ret')
S.lastgrp = None
MS['reg'] = PA[4]
rmode()

st['q1r'] = a.vmem(q_load(1, vQL))
item(lambda: build_bt(vBT, vQL), 24, [lambda: st['q1r']])
seqB2 = [('K', i) for i in range(XE, X)] + seqB2
for i in range(XE - R, NQ):
    add_k_items(1, PB, [i])
    if i < XE:
        def mv(i=i):
            src = base_of(LOC[('K', 1, i)])
            d = KS[i]
            for k in range(4):
                if d[0] == 'a':
                    e('v_accvgpr_write_b32 a%d, v%d' % (base_of(d) + k, src + k))
                else:
                    e('v_mov_b32 v%d, v%d' % (base_of(d) + k, src + k))
        item(mv, 4)


def sm1():
    set_job(1)
    att_softmax(PB, 0, 1, '1')


item(sm1, 80)
pub1 = add_v_items(1, PB, RING[:4], '1')
seqC = [('K', i) for i in CQ]
if args.Cf0 is not None:
    fa, ca = seqC[args.B1n:], seqC[args.Cf0:args.B1n]
    seqC = seqC[:args.Cf0]
    for k, x in enumerate(fa):
        seqC.append(x)
        if k >= args.Cx0:
            k -= args.Cx0
            for j in range((k + 1) * args.Cx // (len(fa) - args.Cx0) - k * args.Cx // (len(fa) - args.Cx0)):
                seqC.append(ca.pop(0))
    seqC += ca
    farn = []
if args.cskip:
    seqC = seqC[:-args.cskip]
early, seqC = seqC[:args.Ce], seqC[args.Ce:]
args.NC1 = max(0, args.NC1 - args.Ce)
nB2 = len(seqB2)
for n, (kind, i) in enumerate(seqB2 + seqC):
    assert n < nB2 or not early
    if n == nB2 - 1:
        a.raw('M_e1:')
    dest = KS[i] if kind == 'K' else vslot(i)
    if n < nB2:
        S.pace((args.DEB or args.DE) if n >= nB2 - (args.NEB or args.NE) else D_,
               *((args.B3lo or args.Elo, args.DEB or args.DE) if n >= nB2 - (args.NEB or args.NE) else (args.B2lo or args.Dlo, args.B2hi or args.Dhi)))
    else:
        if n == nB2 and args.gateB >= 0:
            S.drain()
            gate_wait(1, args.thB)
        dc = args.DC0 if n < nB2 + args.NC0 else args.DC if n < nB2 + args.NC1 else args.DC1
        if args.Cf0 is not None:
            dc = args.DC0 if n < nB2 + args.NC0 else args.DC if i in KEEP else args.DC1
            if i not in KEEP:
                if args.Cx:
                    dc = n - farn[-args.DC1] if len(farn) >= args.DC1 else args.DC
                farn.append(n)
        if args.w0 and pub1.get('done') and n < nB2 + args.NC0:
            if not pub1.get('w0'):
                pub1['w0'] = 1
                e('s_cmp_lg_u32 s%d, 0' % sU)
                e('s_cselect_b64 vcc, -1, 0')
            S.pace(dc, dc, args.DC)
        elif args.Cf0 is not None:
            S.pace(dc, dc, (args.DC0h or dc) if n < nB2 + args.NC0 and pub1.get('done') else (args.DC1h or dc) if i not in KEEP else dc)
        else:
            S.pace(dc, (args.DCl or dc) if dc == args.DC else dc, (args.DC1h or dc) if n >= nB2 + args.NC1 else dc)
        S.run_budget(args.budget)
    key = (kind, 1, i)
    tk = S.issue(kind, 1, i, dest, polB if n < nB2 else polC if args.polCf is None or n < nB2 + args.NC1 else args.polCf)
    if key not in LT:
        LOC[key] = dest
        LT[key] = tk
    if n >= args.Cs and (n - args.Cs) % args.Cp == 0:
        for x in early[:args.Cc]:
            S.issue('K', 1, x[1], KS[x[1]], polC)
            if not args.Cn:
                S.tok.pop()
        early = early[args.Cc:]
    if n == nB2 - 1 - args.gateB and args.gateB >= 0:
        gate_signal(1)
    S.run_budget(args.budget)
S.drain()
assert not MS['pend'] and not MS['list']
stamp(vD)
set_job(3)
assert q_load(3, vQL) == q3ld
e(q3ld)
for op in z64(vBT, 16):
    e(op)
if PARK and args.warm:
    e('s_cmp_eq_u32 s%d, s%d' % (sU, sU))
    e('s_branch L_p2')
else:
    e('s_branch L_q3')
mainlines, a.lines = a.lines, []
if args.ts:
    stamp(vD)
    ct(0)
    if not args.quiet:
        a.nop(5)
k = p2lines.index('@Q3OK')
a.lines = mainlines + p2lines[:k] + a.lines + p2lines[k + 1:]

for k in range(args.sh):
    a.raw('    s_endpgm')
a.label('L_service')
if args.bwtest == 1:
    e('s_endpgm')
a.reset_counters()
vL16, vL8, vSI, vOg, vSt, vXo, vEw, vQr, vFr, vFr2, vWw, vWr, vSw = 1, 2, 3, 4, 5, 6, 7, 8, 9, 10, 11, 12, 13
vX0 = 14
vA = 16
vT = 28
vLA = 32
vAc = 96
vX, vX1, vCq, vCf = 112, 114, 116, 118
vMi = 120
TILES = ['a[%d:%d]' % (4 * i, 4 * i + 3) for i in range(64)] + ['v[%d:%d]' % (128 + 4 * i, 131 + 4 * i) for i in range(32)]
TQ, TO, TG = TILES[0:32], TILES[32:64], TILES[64:96]
E1, EO, EOM, E2, E2S, E3, E3S, EQ, EKV, EDN = 0, 2048, 4096, 8192, 10240, 12288, 14336, 15360, 20480, 65536
wpol = args.wpol
t0, t1 = vLA, vLA + 1
vRs, vAd = vLA + 2, vLA + 3

e('v_lshlrev_b32 v%d, 4, v0' % vL16)
if args.x4:
    e('v_and_b32 v%d, 0xf0, v%d' % (vXo, vL16))
    e('v_lshrrev_b32 v%d, 5, v0' % t0)
    e('v_lshl_or_b32 v%d, v%d, 2, v%d' % (vXo, t0, vXo))
    e('v_lshlrev_b32 v%d, 2, v%d' % (vRs, t0))
    e('v_bfe_u32 v%d, v0, 4, 1' % t0)
    e('v_lshl_or_b32 v%d, v%d, 3, v%d' % (vXo, t0, vXo))
    e('v_lshl_or_b32 v%d, v%d, 5, v%d' % (vRs, t0, vRs))
    e('s_lshl_b32 s%d, s%d, 8' % (sT0, sU))
    e('v_add_u32 v%d, s%d, v%d' % (vXo, sT0, vXo))
else:
    e('v_and_b32 v%d, 7, v0' % t0)
    e('v_lshlrev_b32 v%d, 5, v%d' % (vXo, t0))
    e('v_lshrrev_b32 v%d, 5, v0' % t0)
    e('v_lshl_or_b32 v%d, v%d, 4, v%d' % (vXo, t0, vXo))
    e('v_bfe_u32 v%d, v0, 3, 1' % t0)
    e('v_lshl_or_b32 v%d, v%d, 3, v%d' % (vXo, t0, vXo))
    e('v_bfe_u32 v%d, v0, 4, 1' % t0)
    e('v_lshl_or_b32 v%d, v%d, 2, v%d' % (vXo, t0, vXo))
    e('s_lshl_b32 s%d, s%d, 8' % (sT0, sU))
    e('v_add_u32 v%d, s%d, v%d' % (vXo, sT0, vXo))
    e('v_lshlrev_b32 v%d, %d, v%d' % (vRs, 5 if args.tr else 6, t0))
    e('v_lshrrev_b32 v%d, 5, v0' % t0)
    e('v_lshl_or_b32 v%d, v%d, 1, v%d' % (vRs, t0, vRs))
e('v_and_b32 v%d, 0xf0, v%d' % (t1, vL16))
e('v_lshl_or_b32 v%d, v%d, 13, v%d' % (vAd, vRs, t1))
e('s_lshl_b32 s%d, s%d, 20' % (sT0, sU))
e('s_lshl_b32 s%d, s2, 8' % sT1)
e('s_add_u32 s%d, s%d, s%d' % (sT0, sT0, sT1))
e('s_waitcnt lgkmcnt(0)')
mk_srd(SWQ, 10, 512 * 8192)
mk_srd(SX, 4, 2048)


def gtile(n):
    tau, pi, r, k = n & 1, (n >> 1) & 1, (n >> 2) & 3, n >> 4
    if args.tr:
        return 64 * (r & 1) + 16 * pi + 8 * k + 4 * (r >> 1) + tau
    return 16 * r + 8 * tau + 4 * pi + k


sPl, sPh = 0, 1
LAND = [TG[2 * n + 1] for n in range(16)] + [TG[2 * n] for n in range(16)]
LANDG = LAND[:16] + [vq(vLA + 32 + 4 * k) for k in range(8)] + [vq(vAc + 4 * k) for k in range(4)] + [vq(vMi), vq(vMi + 4), vq(vA), vq(vA + 4)]


def turn(tiles, land, n, tmp):
    qd, b, p_ = n >> 4, (n >> 2) & 3, (n >> 1) & 1
    w = []
    for t_ in range(8):
        k = (b - (t_ & 2) - (t_ >> 2)) & 3
        d = tiles[16 * (k >> 1) + 2 * t_ + qd]
        r = base_of(d) + 2 * (k & 1) + p_
        e('v_perm_b32 v%d, v%d, v%d, s%d' % (r if d[0] == 'v' else tmp + t_, base_of(land[n + 1]) + (t_ >> 1), base_of(land[n]) + (t_ >> 1), (sPl, sPh)[t_ & 1]))
        if d[0] == 'a':
            w.append('v_accvgpr_write_b32 a%d, v%d' % (r, tmp + t_))
    for op in w:
        e(op)


def xtile(n):
    tau, pi, r, k = n & 1, (n >> 1) & 1, (n >> 2) & 3, n >> 4
    return 8 * r + 64 * pi + 2 * tau + k if args.x4 else gtile(n)


if 'c' in args.skip:
    e('v_mov_b32 v%d, v%d' % (vAd, vL16))
    e('s_lshl_b32 s%d, s2, 17' % sT0)
    e('s_lshl_b32 s%d, s%d, 12' % (sT1, sU))
    e('s_add_u32 s%d, s%d, s%d' % (sT0, sT0, sT1))
if 'k' in args.skip:
    e('v_mov_b32 v%d, v%d' % (vAd, vL16))
    e('s_lshr_b32 s%d, s2, 3' % sT0)
    e('s_lshl_b32 s%d, s%d, 20' % (sT0, sT0))
    e('s_lshl_b32 s%d, s%d, 18' % (sT1, sU))
    e('s_add_u32 s%d, s%d, s%d' % (sT0, sT0, sT1))
    e('s_and_b32 s%d, s2, 7' % sT1)
    e('s_lshl_b32 s%d, s%d, 10' % (sT1, sT1))
    e('s_add_u32 s%d, s%d, s%d' % (sT0, sT0, sT1))
def fills():
    mk_srd(SWS, 26, WS_SIZE)
    e('v_lshlrev_b32 v%d, 3, v0' % vL8)
    e('s_mul_i32 s%d, s2, %d' % (sHA, HEADA))
    for k in range(4):
        e('v_mov_b32 v%d, -1' % (vT + k))
    e('s_lshl_b32 s%d, s%d, 8' % (sG0, sU))
    e('s_add_u32 s%d, s%d, s%d' % (sG0, sG0, sHA))
    e('s_mov_b64 exec, 0xffff')
    a.vmem('buffer_store_dwordx4 %s, v%d, %s, s%d offen %s' % (vq(vT), vL16, srd(SWS), sG0, sc('B')))
    a.vmem('buffer_store_dwordx4 %s, v%d, %s, s%d offen offset:1024' % (vq(vT), vL16, srd(SWS), sG0))
    a.vmem('buffer_store_dwordx4 %s, v%d, %s, s%d offen offset:2048 %s' % (vq(vT), vL16, srd(SWS), sG0, sc('C')))
    e('s_mov_b64 exec, -1')
    if not (args.zo and args.yb):
        e('s_and_b32 s%d, s2, 16' % sHS)
        e('s_add_u32 s%d, s%d, s2' % (sHS, sHS))
        e('s_lshl_b32 s%d, s%d, 9' % (sHS, sHS))
        e('s_lshl_b32 s%d, s%d, 15' % (sG0, sU))
        e('s_add_u32 s%d, s%d, s%d' % (sG0, sG0, sHS))
        e('v_lshrrev_b32 v%d, 5, v0' % t0)
        e('v_mul_u32_u24 v%d, %d, v%d' % (t0, 8192 - 512, t0))
        e('v_add_u32 v%d, v%d, v%d' % (t0, t0, vL16))
        e('s_add_u32 s%d, s%d, 0x%x' % (sT1, sG0, YB))
    if args.nofyz < 5 and not args.yb:
        a.vmem('buffer_store_dwordx4 %s, v%d, %s, s%d offen %s' % (vq(vT), t0, srd(SWS), sT1, args.fpol))
    for k in range(4 if args.zo else 2 if args.zb else 0, 4 + args.xfill - min(4, args.nofyz)):
        e('s_add_u32 s%d, s%d, 0x%x' % (sT1, sG0, ZB + k * 131072))
        a.vmem('buffer_store_dwordx4 %s, v%d, %s, s%d offen %s' % (vq(vT), t0, srd(SWS), sT1, args.fpol))
    if args.zb:
        assert args.zl == 2
        e('v_and_b32 v%d, 0xf0, v%d' % (t0, vL16))
        e('v_bfe_u32 v%d, v0, 4, 1' % t1)
        e('v_lshl_or_b32 v%d, v%d, 13, v%d' % (t0, t1, t0))
        e('v_lshrrev_b32 v%d, 5, v0' % t1)
        e('v_lshl_or_b32 v%d, v%d, 17, v%d' % (t0, t1, t0))
        e('s_lshl_b32 s%d, s%d, 7' % (sT1, sU))
        e('s_add_u32 s%d, s%d, s2' % (sT1, sT1))
        e('s_lshl_b32 s%d, s%d, 8' % (sT1, sT1))
        e('s_add_u32 s%d, s%d, 0x%x' % (sT1, sT1, ZB))
        if args.z28:
            e('s_cmp_lt_u32 s2, 28')
            e('s_cselect_b32 exec_lo, -1, 0xff')
            e('s_cselect_b32 exec_hi, -1, 0xff')
        a.vmem('buffer_store_dwordx4 %s, v%d, %s, s%d offen %s' % (vq(vT), t0, srd(SWS), sT1, args.fpol))
    if args.zo:
        e('s_add_u32 s%d, s%d, 0x%x' % (sG0, sT1, 2 * 131072))
        a.vmem('buffer_store_dwordx4 %s, v%d, %s, s%d offen %s' % (vq(vT), t0, srd(SWS), sG0, args.fpol))
        if args.z28:
            e('s_mov_b64 exec, -1')
    if args.yb:
        e('s_sub_u32 s%d, s%d, 0x%x' % (sT1, sT1, ZB - YB))
        e('s_mov_b32 exec_hi, 0')
        a.vmem('buffer_store_dwordx4 %s, v%d, %s, s%d offen %s' % (vq(vT), t0, srd(SWS), sT1, args.fpol))
        e('s_mov_b32 exec_hi, -1')


WT = []
for n in range(32):
    if n == args.ffirst:
        fills()
    e('s_add_u32 s%d, s%d, 0x%x' % (sT1, sT0, (n >> 2) * 16384 + (n & 3) * 1024 if 'c' in args.skip else n * 8192 if 'k' in args.skip else xtile(n) * 8192))
    if 't' in args.skip and n >= 8:
        e('s_waitcnt vmcnt(7)')
    wqtk = a.vmem('buffer_load_dwordx4 %s, v%d, %s, s%d offen %s' % (LAND[n] if args.tr else TQ[n], vAd, srd(SWQ), sT1, wpol))
    WT.append(wqtk)
a.vmem('buffer_load_dword v%d, v%d, %s, 0 offen' % (vX0, vXo, srd(SX)))
wqtk = a.vmem('buffer_load_dword v%d, v%d, %s, 0 offen offset:1024' % (vX1, vXo, srd(SX)))
if args.ffirst >= 32:
    fills()
mk_srd(SK, 6, 2 * BATCH)
mk_srd(SV, 8, 2 * BATCH)
mk_srd(SDBG, 24, 256)
mk_srd(SWO, 12, 4096 * 1024)
mk_srd(SGA, 16, 512 * 3584)
mk_srd(SUP, 18, 512 * 3584)
mk_srd(SDN, 20, 1792 * 1024)
mk_srd(SOUT, 22, 2048)
smask(sMaskJ8, 0x00FF00FF00FF00FF)
smask(sMaskV, 0x0001000100010001)
mk_koff(t0, 0, t1)
e('v_and_b32 v%d, 0x300, v%d' % (t1, vL16))
e('v_add_u32 v%d, v%d, v%d' % (t1, t1, vL16))
tail_soff(sT0, sT1)
e('s_lshl_b32 s%d, s2, 21' % sT1)
e('s_add_u32 s%d, s%d, s%d' % (sT0, sT0, sT1))
e('s_lshl_b32 s%d, s%d, 12' % (sKV, sU))
e('s_add_u32 s%d, s%d, %d' % (sKV, sKV, EKV))
for b in range(2):
    e('s_add_u32 s%d, s%d, 0x%x' % (sT1, sT0, 7 * PARTB + b * BATCH))
    for kv in range(2):
        e('s_add_u32 m0, s%d, 0x%x' % (sKV, (b * 2 + kv) * 1024))
        a.vmem('buffer_load_dwordx4 v%d, %s, s%d offen %s lds' % ((t0, t1)[kv], srd((SK, SV)[kv]), sT1, wpol))
if args.tr:
    e('v_mov_b32 v%d, 0x44444444' % vSI)
    e('v_mov_b32 v%d, 0x11114444' % t0)
    e('v_cndmask_b32 v%d, v%d, v%d, %s' % (vSI, t0, vSI, sp(sMaskJ8)))
    e('v_and_b32 v%d, 1, v0' % t0)
    e('v_sub_u32 v%d, 0, v%d' % (t0, t0))
    e('v_and_b32 v%d, 0xaaaaaaaa, v%d' % (t0, t0))
    e('v_or_b32 v%d, v%d, v%d' % (vSI, vSI, t0))
else:
    for op in idx_ops(vSI, vL16):
        e(op)
    for k in range(12):
        e('v_mov_b32 v%d, 0' % (vA + k))
e('v_and_b32 v%d, 0x18, v%d' % (vSt, vL8))
e('v_bfe_u32 v%d, v0, 2, %d' % (t0, 2 - args.ob))
e('v_lshl_or_b32 v%d, v%d, %d, v%d' % (vSt, t0, 8 + args.ob, vSt))
e('v_lshrrev_b32 v%d, %d, v0' % (t0, 5 - args.ob))
e('v_lshl_or_b32 v%d, v%d, 7, v%d' % (vSt, t0, vSt))
e('v_lshlrev_b32 v%d, 9, v0' % vOg)
e('s_lshl_b32 s%d, s%d, 9' % (sT0, sU))
e('v_add_u32 v%d, s%d, v%d' % (vEw, sT0, vL8))
e('s_and_b32 s%d, s2, 7' % sT0)
e('s_lshl3_add_u32 s%d, s%d, s%d' % (sG3, sU, sT0))
e('s_mul_i32 s%d, s%d, %d' % (sHU, sG3, HEADA))
if args.x4:
    e('s_lshl_b32 s%d, s%d, 3' % (sT0, sU))
    e('s_lshl_b64 %s, 0xff, s%d' % (sp(sQm), sT0))
e('s_lshl_b32 s%d, s%d, 4' % (sT0, sU))
if args.yb:
    e('s_bitcmp1_b32 s%d, 0' % sU)
    e('s_cselect_b32 s%d, 0, -1' % sQm)
    e('s_cselect_b32 s%d, -1, 0' % (sQm + 1))
elif not args.x4:
    e('s_lshl_b64 %s, 0xffff, s%d' % (sp(sQm), sT0))
e('v_lshrrev_b32 v%d, 4, v0' % vSw)
e('v_lshlrev_b32 v%d, 2, v%d' % (vSw, vSw))
e('v_add_u32 v%d, s%d, v%d' % (vSw, sT0, vSw))
e('v_and_b32 v%d, 0x30, v%d' % (vWr, vL16))
e('s_lshl_b32 s%d, s%d, 14' % (sT0, sU))
e('s_add_u32 s%d, s%d, %d' % (sT0, sT0, EDN))
e('v_add_u32 v%d, s%d, v%d' % (vWw, sT0, vL16))
e('v_lshrrev_b32 v%d, 2, v0' % t0)
e('v_lshlrev_b32 v%d, 3, v%d' % (vQr, t0))
e('v_and_b32 v%d, 1, v0' % t0)
e('v_lshl_or_b32 v%d, v%d, 8, v%d' % (vQr, t0, vQr))
e('v_bfe_u32 v%d, v0, 1, 1' % t0)
e('v_lshl_or_b32 v%d, v%d, 7, v%d' % (vQr, t0, vQr))
e('v_and_b32 v%d, 15, v0' % t0)
e('v_lshlrev_b32 v%d, 2, v%d' % (t0, t0))
e('v_lshrrev_b32 v%d, 4, v0' % t1)
e('v_lshl_or_b32 v%d, v%d, 7, v%d' % (t0, t1, t0))
e('v_add_u32 v%d, %d, v%d' % (vFr, E2, t0))
e('v_add_u32 v%d, %d, v%d' % (vFr2, E2 + 1024, t0))
e('s_lshl_b32 s%d, s%d, 8' % (sQa, sU))
e('s_add_u32 s%d, s%d, %d' % (sQa, sQa, EQ))
DQ = [vAc + 4 * k for k in range(4)] + [vLA + 48 + 4 * k for k in range(4)]
DO = DQ[:4] + [vLA + 32 + 4 * k for k in range(4)]
vR = vAc + 2 if args.tr else vAc


def zero_acc(lo, n, D=DQ):
    if args.tr:
        for d in D:
            e('v_mov_b64 %s, 0' % vp(d))
        return
    for k in range(n):
        e('v_mov_b32 v%d, 0' % (vAc + lo + k))


def ones():
    e('v_mov_b32 v%d, 1.0' % (vT if args.tr else vX))
    e('v_mov_b32 v%d, 1.0' % ((vT if args.tr else vX) + 1))
    if args.tr:
        e('s_mov_b64 vcc, 0')
    zero_acc(0, 8)


ones()
vZa, vEy, vL4, vTc = (vA + 8, vA + 9, vA + 10, vA + 11) if args.tr else (None, vLA + 60, vLA + 61, None)


def y_addr():
    e('v_and_b32 v%d, 0x1f0, v%d' % (vEy, vL16))
    e('v_lshrrev_b32 v%d, 5, v0' % vL4)
    e('v_lshl_or_b32 v%d, v%d, 3, v%d' % (vEy, vL4, vEy))
    if args.tr:
        e('v_mul_u32_u24 v%d, %d, v%d' % (vZa, 8192 - 256, vL4))
        e('v_add_u32 v%d, v%d, v%d' % (vZa, vZa, vL8))
    e('s_lshl_b32 s%d, s%d, 9' % (sT1, sU))
    e('v_add_u32 v%d, s%d, v%d' % (vEy, sT1, vEy))
    e('v_lshlrev_b32 v%d, 2, v0' % vL4)


if args.tr:
    y_addr()
    e('s_mov_b32 s%d, 0x05040100' % sPl)
    e('s_mov_b32 s%d, 0x07060302' % sPh)
e('v_and_b32 v%d, 0xf0, v%d' % (t0, vL16))
if args.x4:
    e('v_bfe_u32 v%d, v0, 4, 1' % t1)
    e('v_lshl_or_b32 v%d, v%d, 16, v%d' % (t0, t1, t0))
    e('v_lshrrev_b32 v%d, 5, v0' % t1)
    e('v_lshl_or_b32 v%d, v%d, 11, v%d' % (vAd, t1, t0))
else:
    e('v_lshl_or_b32 v%d, v%d, 10, v%d' % (vAd, vRs, t0))
e('s_lshl_b32 s%d, s%d, 17' % (sG3, sG3))
e('s_lshr_b32 s%d, s2, 3' % sT0)
e('s_lshl_b32 s%d, s%d, 8' % (sT0, sT0))
e('s_add_u32 s%d, s%d, s%d' % (sG3, sG3, sT0))


def wo_loads(lst):
    for it_ in lst:
        if it_ >= 8:
            continue
        for n in range(4 * it_, 4 * it_ + 4):
            e('s_add_u32 s%d, s%d, 0x%x' % (sT1, sG3, gtile(n) * 1024))
            WT.append(a.vmem('buffer_load_dwordx4 %s, v%d, %s, s%d offen %s' % (LAND[n] if args.tr else TO[n], vAd, srd(SWO), sT1, wpol)))


W0 = args.wo0
wo_loads(range(W0))
stamp(vT, True)
sq_(0)
if args.tr:
    assert not W0
    for n in range(0, 32, 2):
        a.vmwait(WT[n + 1])
        turn(TQ, LAND, n, vLA + 8)
        if n == 30 - args.wo1:
            wo_loads(range(2))
a.vmwait(wqtk)
sq_(1)
stamp(vT)
if not args.tr:
    wo_loads(range(W0, W0 + 2))
e('v_and_b32 v%d, 0xffff0000, v%d' % (vX0 + 1, vX0))
e('v_lshlrev_b32 v%d, 16, v%d' % (vX0, vX0))
e('v_and_b32 v%d, 0xffff0000, v%d' % (vX1 + 1, vX1))
e('v_lshlrev_b32 v%d, 16, v%d' % (vX1, vX1))
e('v_mul_u32_u24 v%d, 3584, v%d' % (vRs, vRs))
e('v_and_b32 v%d, 0x70, v%d' % (t1, vL16))
e('v_add_u32 v%d, v%d, v%d' % (vRs, t1, vRs))
e('s_mul_i32 s%d, s%d, %d' % (sG2, sU, 128 * 3584))
e('s_lshl_b32 s%d, s2, 7' % sT1)
e('s_add_u32 s%d, s%d, s%d' % (sG2, sG2, sT1))
e('s_cmp_ge_u32 s2, 28')
e('s_cselect_b32 s%d, 0x40000000, s%d' % (sG2, sG2))
e('s_mov_b32 s%d, 0' % sRet)
e('s_branch L_qstage')


def setx(src, pk=False):
    d = vT if args.tr and pk else vX
    e('v_mov_b32 v%d, v%d' % (d, src))
    e('v_mov_b32 v%d, v%d' % (d + 1, src + 1))
    if args.tr and pk:
        e('s_mov_b64 vcc, 0')


def q_slot():
    e('s_lshl3_add_u32 s%d, s%d, s%d' % (sQs, sJA, sHA))


sQs = sYp if args.tr else sT0


def bound(n):
    a.reset_counters()
    e('s_waitcnt vmcnt(%d)' % n)
    a.vm = list(range(n))


GT = {}


def gu_loads(lst):
    e('s_not_b64 %s, %s' % (sp(sMt), sp(sMaskJ8)))
    for n in lst:
        e('s_add_u32 s%d, s%d, 0x%x' % (sT1, sG2, xtile(n) * 3584))
        e('s_mov_b64 exec, %s' % sp(sMaskJ8))
        a.vmem('buffer_load_dwordx4 %s, v%d, %s, s%d offen %s' % (LANDG[n] if args.tr else TG[n], vRs, srd(SGA), sT1, wpol))
        e('s_mov_b64 exec, %s' % sp(sMt))
        GT[n] = a.vmem('buffer_load_dwordx4 %s, v%d, %s, s%d offen %s' % (LANDG[n] if args.tr else TG[n], vRs, srd(SUP), sT1, wpol))
    e('s_mov_b64 exec, -1')


a.label('L_csq')
e('v_mov_b32 v%d, v%d' % (vCq, vR))
e('v_mov_b32 v%d, v%d' % (vCq + 1, vR + 1))
zero_acc(0, 8)
setx(vX0, True)
e('s_getreg_b32 s%d, hwreg(HW_REG_XCC_ID, 0, 4)' % sFast)
e('s_or_b32 s%d, s%d, 0x80000000' % (sT0, sFast))
e('v_mov_b32 v%d, s%d' % (vMi + 7, sT0))
e('s_and_b32 s%d, s2, 7' % sT0)
e('s_lshr_b32 s%d, s2, 3' % sT1)
e('s_lshl2_add_u32 s%d, s%d, s%d' % (sT0, sT0, sT1))
e('s_lshl_b32 s%d, s%d, 2' % (sT0, sT0))
bound(8 + 4 * W0)
wo_loads(range(W0 + 2, W0 + 4))
e('s_mov_b32 s%d, 0' % sJA)
e('s_mov_b32 s%d, 1' % sRet)
if args.tr:
    q_slot()
e('s_barrier')
e('s_cmp_lg_u32 s%d, 0' % sU)
e('s_cbranch_scc1 L_qstage')
e('s_mov_b64 exec, 1')
e('buffer_store_dword v%d, off, %s, s%d sc1' % (vMi + 7, srd(SDBG), sT0))
e('s_mov_b64 exec, -1')
e('s_branch L_qstage')

a.label('L_i1')
zero_acc(0, 8)
setx(vX1, True)
bound(30)
wo_loads(range(W0 + 4, W0 + 6))
e('s_mov_b32 s%d, 32' % sJA)
e('s_add_u32 s%d, s%d, 1024' % (sQa, sQa))
e('s_mov_b32 s%d, 2' % sRet)
if args.tr:
    q_slot()
e('s_barrier')
e('s_branch L_qstage')

a.label('L_i2')
fl4 = vLA + 8
fl4ld = 'buffer_load_dwordx4 %s, off, %s, s%d sc1' % (vq(fl4), srd(SDBG), sLoc)


def fl4_load():
    e('s_and_b32 s%d, s2, 7' % sLoc)
    e('s_lshl_b32 s%d, s%d, 4' % (sLoc, sLoc))
    return a.vmem(fl4ld)


def dn_loads():
    e('v_bfe_u32 v%d, v0, 4, 1' % t0)
    e('v_lshlrev_b32 v%d, 14, v%d' % (vAd, t0))
    e('v_lshrrev_b32 v%d, 5, v0' % t0)
    e('v_lshl_or_b32 v%d, v%d, 12, v%d' % (vAd, t0, vAd))
    e('v_and_b32 v%d, 0xf0, v%d' % (t0, vL16))
    e('v_or_b32 v%d, v%d, v%d' % (vAd, vAd, t0))
    e('s_lshl_b32 s%d, s2, 16' % sT0)
    e('s_lshl_b32 s%d, s%d, 8' % (sT1, sU))
    e('s_add_u32 s%d, s%d, s%d' % (sT0, sT0, sT1))
    e('s_lshl_b32 s%d, s%d, 14' % (sG0, sU))
    for n in range(16):
        tau, pi, r = n & 1, (n >> 1) & 1, n >> 2
        e('s_add_u32 s%d, s%d, 0x%x' % (sT1, sT0, (32 * pi + 8 * (r >> 1) + 2 * tau + (r & 1)) * 1024))
        e('s_add_u32 m0, s%d, 0x%x' % (sG0, EDN + n * 1024))
        a.vmem('buffer_load_dwordx4 v%d, %s, s%d offen %s lds' % (vAd, srd(SDN), sT1, wpol))


if args.tr:
    a.reset_counters()
    a.vm = list(range(24))
    WT = list(range(24))
    wo_loads(range(6, 8))
    dn_loads()
    ftk = fl4_load()
    for n in range(0, 32, 2):
        a.vmwait(WT[n + 1])
        turn(TO, LAND, n, vLA + 16)
        gu_loads(range(n, n + 2))
    a.vmwait(ftk)
else:
    bound(30)
    wo_loads(range(W0 + 6, 8))
    gu_loads(range(12))
    fl4_load()
    gu_loads(range(12, 32))
    dn_loads()
sq_(2)
if args.wS:
    warm_site('s')
if not args.tr:
    bound(52)
sq_(3)
stamp(vT)
a.label('L_f4')
e('v_min3_u32 v%d, v%d, v%d, v%d' % (vT, fl4, fl4 + 1, fl4 + 2))
e('v_min_u32 v%d, v%d, v%d' % (vT, vT, fl4 + 3))
e('v_cmp_eq_u32 vcc, 0, v%d' % vT)
e('s_cbranch_vccz L_f4ok')
e(fl4ld)
e('s_waitcnt vmcnt(0)')
spin_tail('L_f4')
a.label('L_f4ok')
e('v_max3_u32 v%d, v%d, v%d, v%d' % (vT + 1, fl4, fl4 + 1, fl4 + 2))
e('v_max_u32 v%d, v%d, v%d' % (vT + 1, vT + 1, fl4 + 3))
e('v_xor_b32 v%d, v%d, v%d' % (vT, vT, vT + 1))
e('v_readfirstlane_b32 s%d, v%d' % (sLoc, vT))
if args.nofast:
    e('s_mov_b32 s%d, 1' % sLoc)
e('s_sub_u32 s%d, s%d, 1024' % (sQa, sQa))
e('s_mov_b32 s%d, 0' % sJA)
e('s_mov_b32 s%d, 4' % sRet)
if args.tr:
    for qd in range(2):
        for k in range(8):
            a.lds('ds_read_b128 %s, v%d offset:%d' % (vq(vLA + 4 * k), vWw, (2 * k + qd) * 1024))
        a.lgwait_all()
        for t_ in range(8):
            for r in range(4):
                e('v_perm_b32 v%d, v%d, v%d, s%d' % (vT + r, vLA + 8 * r + 4 + (t_ >> 1), vLA + 8 * r + (t_ >> 1), (sPl, sPh)[t_ & 1]))
            a.lds('ds_write_b128 v%d, %s offset:%d' % (vWw, vq(vT), (2 * t_ + qd) * 1024))
            a.nop(2)
    a.lgwait_all()
    for n in range(0, 16, 2):
        a.vmwait(GT[n + 1])
        turn(TG, LANDG, n, None)
e('s_branch L_own')

a.label('L_i4')
sq_(4)
if args.tr:
    for n in range(16, 32, 2):
        turn(TG, LANDG, n, None)
ones()
stamp(vT)
e('s_branch L_fgemv')

a.label('L_csf')
if args.bwtest == 2:
    e('s_endpgm')
a.reset_counters()
e('v_mov_b32 v%d, v%d' % (vCf, vR))
e('v_mov_b32 v%d, v%d' % (vCf + 1, vR + 1))
setx(vX0)
vMe = vX0
if args.tr:
    smask(sMt, 0x0F0F0F0F0F0F0F0F)
    e('v_cndmask_b32 v%d, 0, -1, %s' % (vMe, sp(sMt)))
    e('v_cndmask_b32 v%d, -1, 0, %s' % (vMe + 1, sp(sMt)))
e('v_lshlrev_b32 v%d, 2, v0' % vT)
e('s_lshr_b32 s%d, s%d, 2' % (sIod, sFast))
if args.RR:
    e('s_cmp_lt_u32 s2, 28')
    e('s_cbranch_scc1 L_flags')
    e('s_lshl2_add_u32 s%d, s2, s%d' % (sG0, sU))
    e('s_lshl_b32 s%d, s%d, 8' % (sT0, sG0))
    e('s_add_u32 s%d, s%d, 0x%x' % (sT0, sT0, RACEB - 112 * 256))
    e('s_mov_b32 s%d, 0' % sVt)
    e('s_mov_b32 exec_hi, 0')
    e('s_waitcnt vmcnt(0)')
    for k in range(2 * args.RR):
        r = k >> 1
        c = (k ^ r) & 1
        e('s_movk_i32 s%d, 1000' % sG1)
        e('s_add_u32 s%d, s%d, 0x%x' % (sG2, sT0, (r >> 1) * 16384 + (r & 1) * 4096 + c * 8192))
        e('buffer_store_dword v%d, v%d, %s, s%d offen sc1' % (vT, vT, srd(SWS), sG2))
        a.label('L_rc%d' % k)
        e('s_getreg_b32 s%d, hwreg(HW_REG_IB_STS, 0, 4)' % sT1)
        e('s_%s_u32 s%d, s%d, 1' % ('add' if c else 'sub', sVt, sVt))
        e('s_sub_u32 s%d, s%d, 1' % (sG1, sG1))
        e('s_cselect_b32 s%d, 0, s%d' % (sT1, sT1))
        e('s_cmp_lg_u32 s%d, 0' % sT1)
        e('s_cbranch_scc1 L_rc%d' % k)
    if args.par == 'dbg':
        e('s_mov_b32 s11, s%d' % sVt)
    e('s_lshr_b32 s%d, s%d, 31' % (sVt, sVt))
    e('s_xor_b32 s%d, s%d, s%d' % (sVt, sVt, sIod))
    e('s_add_u32 s%d, s%d, 1' % (sVt, sVt))
    e('v_mov_b32 v%d, s%d' % (vT + 1, sVt if args.par != 'dbg' else 11))
    e('s_lshl_b32 s%d, s%d, 2' % (sG0, sG0))
    e('s_sub_u32 s%d, s%d, %d' % (sG0, sG0, 448 - 128))
    e('s_mov_b64 exec, 1')
    e('buffer_store_dword v%d, off, %s, s%d sc1' % (vT + 1, srd(SDBG), sG0))
    e('s_mov_b64 exec, -1')
    e('s_waitcnt vmcnt(0)')
    stamp(vT + 2)
    if args.ts and not args.quiet:
        e('s_sub_u32 s%d, s%d, 8' % (sTS, sTS))
a.label('L_flags')
e('buffer_load_dword v%d, v%d, %s, 0 offen sc1' % (vT + 1, vT, srd(SDBG)))
e('s_waitcnt vmcnt(0)')
e('v_cmp_eq_u32 vcc, 0, v%d' % (vT + 1))
e('s_nop 0')
e('s_cmp_eq_u32 vcc_lo, 0')
e('s_cbranch_scc1 L_flagsok')
spin_tail('L_flags', 4)
a.label('L_flagsok')
sq_(5)


def count_votes():
    e('v_cmp_eq_u32 vcc, 2, v%d' % (vT + 1))
    e('s_bcnt1_i32_b32 s%d, vcc_hi' % sT0)
    e('v_cmp_eq_u32 vcc, 1, v%d' % (vT + 1))
    e('s_bcnt1_i32_b32 s%d, vcc_hi' % sT1)
    e('s_cmp_gt_u32 s%d, s%d' % (sT0, sT1))
    e('s_cselect_b32 s%d, 1, 0' % sVt)
    if args.par.startswith('host'):
        e('s_load_dword s%d, s[14:15], 8' % sVt)
        e('s_waitcnt lgkmcnt(0)')
        e('s_lshr_b32 s%d, s%d, 13' % (sVt, sVt))
        if args.par == 'hostx':
            e('s_xor_b32 s%d, s%d, 1' % (sVt, sVt))
    e('s_xor_b32 s%d, s%d, s%d' % (sVt, sVt, sIod))
    e('s_and_b32 s%d, s%d, 1' % (sVt, sVt))
    e('s_lshl_b32 s%d, s%d, 13' % (sFast, sVt))


count_votes()
e('s_mov_b32 s%d, 0' % sIt)
e('s_mov_b32 s%d, 0' % sOutB)
e('s_mov_b32 s%d, 5' % sRet)

a.label('L_loop')
a.reset_counters()
e('s_and_b32 s%d, s%d, 1' % (sT0, sIt))
e('s_lshl_b32 s%d, s%d, 1' % (sT0, sT0))
e('s_lshr_b32 s%d, s%d, 1' % (sT1, sIt))
e('s_or_b32 s%d, s%d, s%d' % (sT0, sT0, sT1))
e(('s_lshl_b32 s%d, s%d, 8' if args.ob else 's_add_u32 s%d, s%d, 1') % (sOm, sT1))
e('s_lshl_b32 s%d, s%d, 5' % (sJA, sT0))
e('s_add_u32 s%d, s%d, s%d' % (sG1, sJA, sHU))
e('s_bitcmp1_b32 s%d, 0' % sIt)
e('s_cselect_b32 s%d, 4096, 0' % sG0)
e('s_add_u32 s%d, s%d, %d' % (sG0, sG0, OFF_O))
if args.ob:
    e('s_add_u32 s%d, s%d, s%d' % (sG0, sG0, sOm))
e('s_add_u32 s%d, s%d, s%d' % (sG0, sG0, sHU))
e('s_lshl_b32 s%d, s%d, 15' % (sYg, sT0))
if args.yb:
    e('s_add_u32 s%d, s%d, 0x%x' % (sYg, sYg, YB))
    e('s_and_b32 s%d, s%d, 2' % (sT1, sU))
    e('s_lshl4_add_u32 s%d, s%d, s2' % (sT1, sT1))
    e('s_lshl_b32 s%d, s%d, 8' % (sT1, sT1))
    e('s_add_u32 s%d, s%d, s%d' % (sYp, sYg, sT1))
    e('s_lshl_b32 s%d, s%d, 11' % (sT1, sU))
    e('s_add_u32 s%d, s%d, s%d' % (sYg, sYg, sT1))
    e('s_add_u32 s%d, s%d, s%d' % (sYg, sYg, sFast))
    if not args.tr:
        y_addr()
else:
    if not args.y1:
        e('s_add_u32 s%d, s%d, s%d' % (sYg, sYg, sFast))
    e('s_add_u32 s%d, s%d, 0x%x' % (sYg, sYg, YB))
    e('s_add_u32 s%d, s%d, s%d' % (sYp, sYg, sHS))
    e('s_xor_b32 s%d, s%d, 8192' % (sVt, sYp))
    e('s_and_b32 s%d, s%d, 2' % (sT1, sU))
    e('s_add_u32 s%d, s%d, s%d' % (sT1, sT1, sU))
    e('s_lshl_b32 s%d, s%d, 12' % (sT1, sT1))
    e('s_add_u32 s%d, s%d, s%d' % (sYg, sYg, sT1))
e('s_lshl2_add_u32 s%d, s%d, s%d' % ((sZg, sU, sT0) if args.zl == 1 else (sZg, sT0, sU)))
e('s_lshl_b32 s%d, s%d, 15' % (sZg, sZg))
if args.zc == 1:
    e('s_bitcmp1_b32 s%d, 0' % sU)
    e('s_cselect_b32 s%d, 8192, 0' % sT1)
    e('s_add_u32 s%d, s%d, s%d' % (sZg, sZg, sT1))
else:
    e('s_add_u32 s%d, s%d, s%d' % (sZg, sZg, sFast))
e('s_add_u32 s%d, s%d, 0x%x' % (sZg, sZg, ZB))
zero_acc(0, 16, DO)
oA_, vHm, vOa = vLA + 24, vLA + 4, vLA + 5
if args.ob:
    for op in z64(oA_, 8):
        e(op)
    e('v_and_b32 v%d, 16, v%d' % (vHm, vL16))
    e('s_mov_b32 s%d, 0xffff' % sT0)
    e('v_lshlrev_b32 v%d, v%d, s%d' % (vHm, vHm, sT0))
    e('v_and_b32 v%d, 0x300, v%d' % (vOa, vL16))
    e('v_add_u32 v%d, v%d, v%d' % (vOa, vOa, vL16))
    smask(sMt, 0xCCCCCCCCCCCCCCCC)
    for i in range(2):
        e('buffer_load_dwordx4 %s, v%d, %s, s%d offen offset:%d sc1' % (vq(vLA + 16 + 4 * i), vOa, srd(SWS), sG0, i * 2048))
sq_dump(vT)
stamp(vT)
sv = vLA
a.label('L_stats')
e('buffer_load_dwordx2 %s, v%d, %s, s%d offen sc1' % (vp(sv), vSt, srd(SWS), sG1))
e('s_waitcnt vmcnt(0)')
e('v_max_u32 v%d, v%d, v%d' % (vT, sv, sv + 1))
e('v_cmp_eq_u32 vcc, -1, v%d' % vT)
e('s_cbranch_vccz L_statsok')
spin_tail('L_stats', args.ssl)
a.label('L_statsok')
sq_(0)
stamp(vT)
oa = vLA + 16
fF = vLA + 8
Gs = [sG0, sG1, sG2, sG3]


def o_loads(k=0):
    if args.ob:
        for i in range(2):
            e('buffer_load_dwordx4 %s, v%d, %s, s%d offen offset:%d sc1' % (vq(oa + 32 * k + 4 * i), vOa, srd(SWS), sG0, i * 2048))
        return
    for i in range(4):
        e('buffer_load_dwordx4 %s, v%d, %s, s%d offen offset:%d sc1' % (vq(oa + 16 * k + 4 * i), vL16, srd(SWS), sG0, i * 1024))


def touch(k, r):
    if k not in args.stch:
        return
    e('s_cmp_lg_u32 s%d, 0' % sIt)
    e('s_cbranch_scc1 L_nt' + k)
    e('v_lshlrev_b32 v%d, 3, v%d' % (r, vL16))
    e('s_mov_b32 exec_lo, 0xff00ffff')
    e('s_mov_b32 exec_hi, 0x00ffffff')
    e('buffer_load_dword v%d, v%d, %s, s%d offen sc1' % (r, r, srd(SWS), sHU))
    e('s_mov_b64 exec, -1')
    a.label('L_nt' + k)


e('s_bitcmp1_b32 s%d, 0' % sIt)
e('s_cbranch_scc1 L_noprobe')
if args.hm:
    e('s_cmp_lg_u32 s%d, 2' % sIt)
    e('s_cbranch_scc1 L_nohelp')
    e('s_and_b32 s%d, s2, 7' % sG3)
    e('s_lshl_b32 s%d, s%d, 8' % (sG2, sG3))
    e('s_add_u32 s%d, s%d, 0x%x' % (sG2, sG2, GATEB))
    a.label('L_help')
    e('s_mov_b64 exec, 0x7f')
    e('buffer_load_dword v%d, v%d, %s, s%d offen sc1' % (oa, vOg, srd(SWS), sG0))
    e('s_mov_b32 exec_lo, 0x0fffffff')
    e('buffer_load_ubyte v%d, v%d, %s, s%d offen sc1' % (vT, vL8, srd(SWS), sG2))
    e('s_waitcnt vmcnt(0)')
    e('v_cmp_ne_u32 %s, 0, v%d' % (sp(sMt), vT))
    e('s_mov_b64 exec, 0x7f')
    e('v_and_b32 v%d, s%d, v%d' % (oa, sOm, oa))
    e('v_cmp_eq_u32 vcc, 0, v%d' % oa)
    e('s_cbranch_vccnz L_probeok')
    e('s_bcnt1_i32_b32 s%d, s%d' % (sT0, sMt))
    e('s_cmp_le_u32 s%d, %d' % (sT0, args.hn))
    e('s_cbranch_scc1 L_dohelp')
    spin_tail('L_help', args.psl)
    a.label('L_dohelp')
    e('s_mov_b64 exec, -1')
    e('s_lshr_b32 s%d, s2, 3' % sT0)
    e('s_lshl2_add_u32 s%d, s%d, s%d' % (sT0, sU, sT0))
    e('s_and_b32 s%d, s%d, %d' % (sT1, sT0, (16 >> args.hs) - 1))
    e('s_lshr_b32 s%d, s%d, %d' % (sT0, sT0, 4 - args.hs))
    e('v_mbcnt_lo_u32_b32 v%d, s%d, 0' % (vT, sMt))
    e('v_cmp_eq_u32 vcc, s%d, v%d' % (sT1, vT))
    e('s_and_b32 s%d, vcc_lo, s%d' % (sMt, sMt))
    e('s_cbranch_scc0 L_nohelp')
    e('s_ff1_i32_b32 s%d, s%d' % (sMt, sMt))
    e('s_and_b32 s%d, s%d, 3' % (sT1, sMt))
    e('s_lshl3_add_u32 s%d, s%d, s%d' % (sG3, sT1, sG3))
    e('s_lshl_b32 s%d, s%d, 21' % (sG3, sG3))
    e('s_lshr_b32 s%d, s%d, 2' % (sMt, sMt))
    e('s_mul_i32 s%d, s%d, %d' % (sMt, sMt, PARTB))
    e('s_add_u32 s%d, s%d, s%d' % (sG3, sG3, sMt))
    e('s_lshl_b32 s%d, s%d, %d' % (sT0, sT0, 6 + args.hl))
    e('s_sub_u32 s%d, 0x20000, s%d' % (sT0, sT0))
    e('s_add_u32 s%d, s%d, s%d' % (sG3, sG3, sT0))
    e('v_lshlrev_b32 v%d, %d, v0' % (vT, args.hl))
    e('v_add_u32 v%d, s%d, v%d' % (vT, sG3, vT))
    for k in range(args.hp):
        e('s_mov_b32 s%d, 0x%x' % (sT0, BATCH + 10 * 16384 - (64 << args.hl) * (1 + (k << args.hs))))
        e('buffer_load_dword v%d, v%d, %s, s%d offen %s' % (vT + 1, vT, srd(SV), sT0, args.hpol))
    a.label('L_nohelp')
e('s_mov_b64 exec, 0x7f')
a.label('L_probe')
e('buffer_load_dword v%d, v%d, %s, s%d offen sc1' % (oa, vOg, srd(SWS), sG0))
e('s_waitcnt vmcnt(0)')
if args.ob:
    assert not args.hm
    e('v_cmp_ne_u32 vcc, -1, v%d' % oa)
else:
    e('v_and_b32 v%d, s%d, v%d' % (oa, sOm, oa))
    e('v_cmp_eq_u32 vcc, 0, v%d' % oa)
if args.pall:
    e('s_bcnt1_i32_b32 s%d, vcc_lo' % sT0)
    e('s_cmp_ge_u32 s%d, %d' % (sT0, args.pall))
    e('s_cbranch_scc1 L_probeok')
else:
    e('s_cbranch_vccnz L_probeok')
spin_tail('L_probe', args.psl)
a.label('L_probeok')
e('s_mov_b64 exec, -1')
touch('p', oa)
a.label('L_noprobe')
o_loads()
M_, L_ = vT, vT + 1
e('v_mov_b32 v%d, v%d' % (fF, sv))
a.chain(allreduce_list('v_max_f32', fF, None, (0, 1)), [])
e('v_mov_b32 v%d, v%d' % (M_, fF))
a.chain(allreduce_list('v_max_f32', M_, vT + 2, (2, 3 + args.ob, 5)), [])
e('v_sub_f32 v%d, v%d, v%d' % (L_, sv, M_))
e('v_sub_f32 v%d, v%d, v%d' % (fF, fF, M_))
e('v_exp_f32 v%d, v%d' % (L_, L_))
e('v_exp_f32 v%d, v%d' % (fF, fF))
e('v_mul_f32 v%d, v%d, v%d' % (L_, L_, sv + 1))
if args.ons > 2 or args.o2 == 2:
    o_loads(1)
a.chain(allreduce_list('v_add_f32', L_, vT + 2, (0, 1, 2, 3 + args.ob, 5)), [])
e('v_rcp_f32 v%d, v%d' % (L_, L_))
e('v_mul_f32 v%d, v%d, v%d' % (fF, fF, L_))
if args.ob:
    e('v_cvt_pk_bf16_f32 v%d, 0, v%d' % (vT, fF))
    e('v_sub_f32 v%d, v%d, v%d' % (vT, fF, vT))
    e('v_cndmask_b32 v%d, v%d, v%d, %s' % (fF, fF, vT, sp(sMt)))
    e('v_cvt_pk_bf16_f32 v%d, v%d, v%d' % (fF, fF, fF))
    e('v_and_b32 v%d, v%d, v%d' % (fF, fF, vHm))
    if args.o2 == 1:
        o_loads(1)
    for i in range(2):
        for k in range(4):
            e('v_mov_b32_dpp v%d, v%d %s row_mask:0xf bank_mask:0x%x' % (oA_ + 4 * i + k, fF, 'quad_perm:[0,1,2,3]' if k & 1 == i else 'row_ror:4', 1 << k))
ac = vLA + 12
od = vLA + 10


def sentinel_check(base, n, t):
    e('v_max3_u32 v%d, v%d, v%d, v%d' % (t, base, base + 1, base + 2))
    k = 3
    while k + 1 < n:
        e('v_max3_u32 v%d, v%d, v%d, v%d' % (t, t, base + k, base + k + 1))
        k += 2
    if k < n:
        e('v_max_u32 v%d, v%d, v%d' % (t, t, base + k))
    e('v_cmp_eq_u32 vcc, -1, v%d' % t)


if args.ons > 1:
    o_loads(args.ons - 1)
a.label('L_ogather')
assert args.ons == 1
ob = oa
ot = vT + 1
for i in range(2 * args.ob):
    e('s_waitcnt vmcnt(%d)' % (1 - i + 2 * bool(args.o2)))
    mfma(vq(ac), vq(oA_ + 4 * i), vq(oa + 4 * i), i == 0)
for i in range(0 if args.ob else 4):
    e('s_waitcnt vmcnt(%d)' % (3 - i))
    for k in range(4):
        e('%s v%d, v%d, v%d row_newbcast:%d %s' % ('v_mul_f32_dpp' if i == 0 else 'v_fmac_f32_dpp', ac + k, fF, ob + 4 * i + k, 4 * i, DPPF))
    r = ob + 4 * i
    if i == 0:
        e('v_or3_b32 v%d, v%d, v%d, v%d' % (ot, r, r + 1, r + 2))
        e('v_or_b32 v%d, v%d, v%d' % (ot, ot, r + 3))
    elif i < 3:
        e('v_or3_b32 v%d, v%d, v%d, v%d' % (ot, ot, r, r + 1))
        e('v_or3_b32 v%d, v%d, v%d, v%d' % (ot, ot, r + 2, r + 3))
if args.ob:
    sentinel_check(oa, 8, ot)
    e('v_pk_add_f32 %s, %s, %s' % (vp(ac), vp(ac), vp(ac + 2)))
else:
    e('v_or3_b32 v%d, v%d, v%d, v%d' % (ot, ot, r, r + 1))
    e('v_permlane32_swap_b32 v%d, v%d' % (ac, ac + 2))
    e('v_permlane32_swap_b32 v%d, v%d' % (ac + 1, ac + 3))
    e('v_or3_b32 v%d, v%d, v%d, v%d' % (ot, ot, r + 2, r + 3))
    e('v_add_f32 v%d, v%d, v%d' % (ac, ac, ac + 2))
    e('v_and_b32 v%d, s%d, v%d' % (ot, sOm, ot))
    e('v_cmp_ne_u32 vcc, 0, v%d' % ot)
    e('v_add_f32 v%d, v%d, v%d' % (ac + 1, ac + 1, ac + 3))
ROT = [0, 4, 2, 6, 8, 12, 10, 14]


def rot(m):
    return 'v_mov_b32_dpp v%d, v%d row_ror:%d %s' % (vA + m, vA, 16 - ROT[m], DPPF)


if args.tr:
    e('v_cvt_pk_bf16_f32 v%d, v%d, v%d' % (vA, ac, ac + 1))
    e(rot(1))
    a.raw('    s_cbranch_vccnz L_oagain')
    a.pos += 1

    def oagain():
        o_loads()
        if args.o2:
            for i in range(2):
                e('s_waitcnt vmcnt(%d)' % (3 - i))
                mfma(vq(ac), vq(oA_ + 4 * i), vq(oa + 32 + 4 * i), i == 0)
            sentinel_check(oa + 32, 8, ot)
            e('v_pk_add_f32 %s, %s, %s' % (vp(ac), vp(ac), vp(ac + 2)))
            e('v_cvt_pk_bf16_f32 v%d, v%d, v%d' % (vA, ac, ac + 1))
            e(rot(1))
            a.raw('    s_cbranch_vccz L_ook')
            a.pos += 1
            o_loads(1)
        spin_tail('L_ogather')
    OOL.append(('L_oagain', oagain))
    a.raw('L_ook:')
else:
    e('v_cvt_pk_bf16_f32 v%d, 0, v%d' % (od, ac))
    e('v_cvt_pk_bf16_f32 v%d, 0, v%d' % (od + 1, ac + 1))
    e('s_cbranch_vccz L_ook')
    o_loads()
    spin_tail('L_ogather')
    a.label('L_ook')
sq_(1)
ct(0)
stamp(vT + 2)
if args.noit1 == 2:
    e('s_cmp_eq_u32 s%d, 1' % sIt)
    e('s_cbranch_scc1 L_next')


def ackwait(n):
    if not args.noack:
        e('s_waitcnt vmcnt(%d)' % (n and n + (1 if args.ts and not args.cts and not args.quiet else 0)))


NPF = 12


def dn_read(c):
    return a.lds('ds_read_b128 %s, v%d offset:%d' % (vq(vLA + 4 * c), vWw, c * 1024))


def gather_y():
    e('s_waitcnt vmcnt(%d)' % ((3 if args.ts and not args.cts and not args.quiet else 2) - bool(args.yb)))
    touch('y', vTc if args.tr else vLA + 63)
    for c in range(NPF):
        dn_read(c)
    zero_acc(0, 8)
    if args.zo:
        e('s_lshl_b32 s%d, s2, 8' % sYp)
        e('s_add_u32 s%d, s%d, s%d' % (sYp, sYp, sZg))
    elif args.zb:
        e('s_lshl_b32 s%d, s2, 8' % sYp)
        e('s_bitcmp1_b32 s%d, 0' % sIt)
        e('s_cselect_b32 s%d, s%d, s%d' % (sYp, sHS, sYp))
        e('s_add_u32 s%d, s%d, s%d' % (sYp, sYp, sZg))
        e('s_xor_b32 s%d, s%d, 8192' % (sVt, sYp))
    if args.z1:
        e('s_andn2_b32 s%d, s%d, 8192' % (sG0, sYp))
    if args.z28:
        assert sG1 % 2 == 0 and args.zo
        e('s_cmp_lt_u32 s2, 28')
        e('s_cselect_b32 s%d, -1, %d' % (sG1, args.z28))
        e('s_cselect_b32 s%d, -1, 0' % (sG1 + 1))
    if args.yb:
        pick_a(vMi if args.tr else vLA + 56, vT)
    if args.yh:
        e('v_and_b32 v%d, 0x300, v%d' % (vLA + 56, vL16))
        e('v_add_u32 v%d, v%d, v%d' % (vLA + 56, vLA + 56, vL16))
    ackwait(args.acky)
    if args.ysl > 0:
        e('s_sleep %d' % args.ysl)
    if args.ysl < 0:
        a._lgwait_n(-1 - args.ysl)
    b = vLA + 48
    if args.yb:
        B = [vMi + 4, vA + 4] if args.tr else [b, b + 4]
        a.label('L_y_ld')
        for i in range(2):
            e('buffer_load_dwordx4 %s, v%d, %s, s%d offen offset:%d %s' % (vq(B[i]), vL16, srd(SWS), sYg, i * 1024, args.lpol))
        for i in range(2):
            e('s_waitcnt vmcnt(%d)' % (1 - i))
            mfma(vq(vT), vq(vMi if args.tr else b + 8), vq(B[i]), i == 0)
        finish_x('y', False)

        def bad():
            e('v_max3_u32 v%d, v%d, v%d, v%d' % (vT + 3, B[0], B[0] + 1, B[0] + 2))
            e('v_max3_u32 v%d, v%d, v%d, v%d' % (vT + 3, vT + 3, B[0] + 3, B[1]))
            e('v_max3_u32 v%d, v%d, v%d, v%d' % (vT + 3, vT + 3, B[1] + 1, B[1] + 2))
            e('v_max_u32 v%d, v%d, v%d' % (vT + 3, vT + 3, B[1] + 3))
            e('v_cmp_eq_u32 vcc, -1, v%d' % (vT + 3))
            e('s_cbranch_vccz L_y_ok')
            spin_tail('L_y_ld')
        OOL.append(('L_y_bad', bad))
        return
    if args.yh:
        a.label('L_y_ld')
        for i in range(2):
            e('buffer_load_dwordx4 %s, v%d, %s, s%d offen offset:%d sc1' % (vq(b + 4 * i), b + 8, srd(SWS), sYg, i * 2048))
        e('s_waitcnt vmcnt(0)')
        e('v_pk_add_f32 %s, %s, %s' % (vp(vT), vp(b), vp(b + 4)))
        e('v_pk_add_f32 %s, %s, %s' % (vp(vT + 2), vp(b + 2), vp(b + 6)))
        finish_x('y')
        OOL.append(('L_y_bad', lambda: (sentinel_check(b, 8, vT + 2), e('s_cbranch_vccz L_y_ok'), spin_tail('L_y_ld'))))
        return
    a.label('L_y_ld')
    for i in range(4):
        e('buffer_load_dwordx4 %s, v%d, %s, s%d offen offset:%d sc1' % (vq(b + 4 * i), vL16, srd(SWS), sYg, i * 1024))
    e('s_waitcnt vmcnt(2)')
    e('v_pk_add_f32 %s, %s, %s' % (vp(vT), vp(b), vp(b + 4)))
    e('v_pk_add_f32 %s, %s, %s' % (vp(vT + 2), vp(b + 2), vp(b + 6)))
    e('s_waitcnt vmcnt(1)')
    e('v_pk_add_f32 %s, %s, %s' % (vp(vT), vp(vT), vp(b + 8)))
    e('v_pk_add_f32 %s, %s, %s' % (vp(vT + 2), vp(vT + 2), vp(b + 10)))
    e('s_waitcnt vmcnt(0)')
    e('v_pk_add_f32 %s, %s, %s' % (vp(vT), vp(vT), vp(b + 12)))
    e('v_pk_add_f32 %s, %s, %s' % (vp(vT + 2), vp(vT + 2), vp(b + 14)))
    finish_x('y')
    OOL.append(('L_y_bad', lambda: (sentinel_check(b, 16, vT + 2), e('s_cbranch_vccz L_y_ok'), spin_tail('L_y_ld'))))


def finish_x(tag, fold=True):
    if fold:
        e('v_permlane32_swap_b32 v%d, v%d' % (vT, vT + 2))
        e('v_permlane32_swap_b32 v%d, v%d' % (vT + 1, vT + 3))
        e('v_add_f32 v%d, v%d, v%d' % (vT, vT, vT + 2))
        e('v_add_f32 v%d, v%d, v%d' % (vT + 1, vT + 1, vT + 3))
    e('v_cmp_u_f32 vcc, v%d, v%d' % (vT, vT + 1))
    e('v_cvt_pk_bf16_f32 v%d, 0, v%d' % (vT, vT))
    e('v_cvt_pk_bf16_f32 v%d, 0, v%d' % (vT + 1, vT + 1))
    if args.tr:
        e('v_pk_add_f32 %s, %s, %s' % (vp(vT), vp(vX), vp(vT)))
        a.raw({'y': 'L_fgemv:', 'z': 'L_qstage:'}[tag])
        e('v_cvt_pk_bf16_f32 v%d, v%d, v%d' % (vA, vT, vT + 1))
        e('v_readfirstlane_b32 s%d, v%d' % (sT1, vT))
        a.raw('    s_cbranch_vccnz L_%s_bad' % tag)
        a.pos += 1
        a.raw('L_%s_ok:' % tag)
        return
    e('v_add_f32 v%d, v%d, v%d' % (vT, vX, vT))
    e('v_add_f32 v%d, v%d, v%d' % (vT + 1, vX + 1, vT + 1))
    e('s_nop 0')
    a.raw('    s_cbranch_vccnz L_%s_bad' % tag)
    a.pos += 1
    a.raw('L_%s_ok:' % tag)
    e('v_cvt_pk_bf16_f32 v%d, 0, v%d' % (vX, vT))
    e('v_cvt_pk_bf16_f32 v%d, 0, v%d' % (vX + 1, vT + 1))


def pick_a(A, t):
    e('v_and_b32 v%d, 16, v%d' % (t, vL16))
    e('s_movk_i32 s%d, 0x3f80' % sT0)
    e('v_lshlrev_b32 v%d, v%d, s%d' % (t, t, sT0))
    for k in range(4):
        smask(sMt, 0x0003000300030003 << (4 * k))
        e('v_cndmask_b32 v%d, 0, v%d, %s' % (A + k, t, sp(sMt)))


def gather_b():
    A = vLA + 32
    pick_a(A, vT)
    if args.zb == 2:
        e('s_lshr_b32 s%d, s2, 3' % sT0)
        for q in range(3):
            e('s_add_u32 s%d, s%d, %d' % (sT1, sT0, q))
            e('s_sub_u32 s%d, s%d, 3' % (Gs[q], sT1))
            e('s_cselect_b32 s%d, s%d, s%d' % (sT1, sT1, Gs[q]))
            e('s_lshl_b32 s%d, s%d, 11' % (sT1, sT1))
            e('s_add_u32 s%d, s%d, s%d' % (Gs[q], sZg, sT1))
        e('s_add_u32 s%d, s%d, 6144' % (Gs[3], sZg))
        at = lambda i: (Gs[i >> 1], (i & 1) * 1024)
    else:
        e('s_add_u32 s%d, s%d, 4096' % (Gs[0], sZg))
        at = lambda i: (Gs[0] if i >> 2 else sZg, (i & 3) * 1024)
    zero_acc(0, 8)
    if args.tr:
        e('s_add_u32 s%d, s%d, 64' % (sJA, sJA))
        q_slot()
    touch('z', vLA + 40)
    ackwait(args.ackz)
    if args.zsl:
        e('s_sleep %d' % args.zsl)
    a.label('L_z_ld')
    for i in range(7):
        e('buffer_load_dwordx4 %s, v%d, %s, s%d offen offset:%d %s' % ((vq(vLA + 4 * i), vL16, srd(SWS)) + at(i) + (args.lpol,)))
    for i in range(7):
        e('s_waitcnt vmcnt(%d)' % (6 - i))
        mfma(vq(vT), vq(A), vq(vLA + 4 * i), i == 0)
    finish_x('z', False)
    OOL.append(('L_z_bad', lambda: (sentinel_check(vLA, 28, vT + 2), e('s_cbranch_vccz L_z_ok'), spin_tail('L_z_ld'))))


def gather(tag, yz, nz):
    e('s_lshr_b32 s%d, s2, 3' % sT0)
    for q in range(4):
        e('s_add_u32 s%d, s%d, %d' % (sT1, sT0, q))
        e('s_and_b32 s%d, s%d, 2' % (Gs[q], sT1))
        e('s_and_b32 s%d, s%d, 3' % (sT1, sT1))
        e('s_add_u32 s%d, s%d, s%d' % (sT1, sT1, Gs[q]))
        e('s_lshl_b32 s%d, s%d, 12' % (sT1, sT1))
        e('s_add_u32 s%d, s%d, s%d' % (Gs[q], sZg, sT1))
    zero_acc(0, nz)
    touch('z', vLA + (7 if args.zh else 63))
    pend = sMt

    if args.zh:
        e('v_and_b32 v%d, 0x300, v%d' % (vMi + 7, vL16))
        e('v_add_u32 v%d, v%d, v%d' % (vMi + 7, vMi + 7, vL16))
        for q in range(4):
            for k in range(8, 16):
                e('v_mov_b32 v%d, 0' % (vLA + 16 * q + k))
    ackwait(args.ackz)

    def loads(q):
        if args.zh:
            for i in range(2):
                e('buffer_load_dwordx4 %s, v%d, %s, s%d offen offset:%d sc1' % (vq(vLA + 16 * q + 4 * i), vMi + 7, srd(SWS), Gs[q], i * 2048))
            return
        for i in range(4):
            e('buffer_load_dwordx4 %s, v%d, %s, s%d offen offset:%d sc1' % (vq(vLA + 16 * q + 4 * i), vL16, srd(SWS), Gs[q], i * 1024))

    def red(q):
        b = vLA + 16 * q
        e('v_pk_add_f32 %s, %s, %s' % (vp(b), vp(b), vp(b + 4)))
        e('v_pk_add_f32 %s, %s, %s' % (vp(b + 2), vp(b + 2), vp(b + 6)))
        e('v_pk_add_f32 %s, %s, %s' % (vp(b + 8), vp(b + 8), vp(b + 12)))
        e('v_pk_add_f32 %s, %s, %s' % (vp(b + 10), vp(b + 10), vp(b + 14)))
        e('v_pk_add_f32 %s, %s, %s' % (vp(b), vp(b), vp(b + 8)))
        e('v_pk_add_f32 %s, %s, %s' % (vp(b + 2), vp(b + 2), vp(b + 10)))

    def s02():
        e('v_pk_add_f32 %s, %s, %s' % (vp(vMi), vp(vLA), vp(vLA + 32)))
        e('v_pk_add_f32 %s, %s, %s' % (vp(vMi + 2), vp(vLA + 2), vp(vLA + 34)))

    def fin():
        e('v_pk_add_f32 %s, %s, %s' % (vp(vT), vp(vLA + 16), vp(vLA + 48)))
        e('v_pk_add_f32 %s, %s, %s' % (vp(vT + 2), vp(vLA + 18), vp(vLA + 50)))
        e('v_pk_add_f32 %s, %s, %s' % (vp(vT), vp(vT), vp(vMi)))
        e('v_pk_add_f32 %s, %s, %s' % (vp(vT + 2), vp(vT + 2), vp(vMi + 2)))
    for q in range(4):
        loads(q)
    e('s_mov_b32 s%d, 15' % pend)
    for q in range(4):
        e('s_waitcnt vmcnt(%d)' % (6 - 2 * q if args.zh else 12 - 4 * q))
        red(q)
        if q == 2:
            s02()
    a.raw('L_%s_fin:' % tag)
    fin()
    finish_x(tag)

    def bad():
        e('s_cmp_eq_u32 s%d, 0' % pend)
        e('s_cbranch_scc1 L_%s_ok' % tag)
        for q in range(4):
            b = vLA + 16 * q
            e('v_add_f32 v%d, v%d, v%d' % (vT, b, b + 1))
            e('v_add_f32 v%d, v%d, v%d' % (vT + 1, b + 2, b + 3))
            e('v_cmp_u_f32 vcc, v%d, v%d' % (vT, vT + 1))
            e('s_cbranch_vccnz L_%s_n%d' % (tag, q))
            e('s_bitset0_b32 s%d, %d' % (pend, q))
            a.label('L_%s_n%d' % (tag, q))
        a.label('L_%s_again' % tag)
        for q in range(4):
            lk = 'L_%s_r%d' % (tag, q)
            e('s_bitcmp1_b32 s%d, %d' % (pend, q))
            e('s_cbranch_scc0 %s' % lk)
            loads(q)
            a.label(lk)
        e('s_waitcnt vmcnt(0)')
        for q in range(4):
            lk = 'L_%s_k%d' % (tag, q)
            e('s_bitcmp1_b32 s%d, %d' % (pend, q))
            e('s_cbranch_scc0 %s' % lk)
            sentinel_check(vLA + 16 * q, 16, vT)
            red(q)
            e('s_cbranch_vccnz %s' % lk)
            e('s_bitset0_b32 s%d, %d' % (pend, q))
            a.label(lk)
        s02()
        e('s_cmp_eq_u32 s%d, 0' % pend)
        e('s_cbranch_scc1 L_%s_fin' % tag)
        spin_tail('L_%s_again' % tag)
    OOL.append(('L_%s_bad' % tag, bad))


def resid():
    e('v_cvt_pk_bf16_f32 v%d, 0, v%d' % (vT, vT))
    e('v_cvt_pk_bf16_f32 v%d, 0, v%d' % (vT + 1, vT + 1))
    e('v_add_f32 v%d, v%d, v%d' % (vX, vX, vT))
    e('v_add_f32 v%d, v%d, v%d' % (vX + 1, vX + 1, vT + 1))
    e('v_cvt_pk_bf16_f32 v%d, 0, v%d' % (vX, vX))
    e('v_cvt_pk_bf16_f32 v%d, 0, v%d' % (vX + 1, vX + 1))


RD = [vR + (4 if args.tr else 2) * k for k in range(4)]
SEQL = [(t_, 0) for t_ in range(args.sl)] + [(t_, 1) for t_ in range(4)] + [(t_, 0) for t_ in range(args.sl, 8)] + [(t_, 1) for t_ in range(4, 8)]
SEQO = [(0, 0), (1, 0), (2, 0), (3, 0), (0, 1), (1, 1), (2, 1), (3, 1), (4, 0), (5, 0), (4, 1), (5, 1), (6, 0), (7, 0), (6, 1), (7, 1)]


def gemv32(tiles, E, ES, reads, extra=(), vX=vX, cs=None, ret=None, lbl=None, pre=(), wide=None, vEw=vEw, post=()):
    sC = sT1
    r, t2, d0, d1 = vMi, vMi + 1, vMi + 2, vMi + 3
    side = []
    if ES is not None:
        side = ['v_readfirstlane_b32 s%d, v%d' % (sC, vX),
                'v_subrev_f32 v%d, s%d, v%d' % (d0, sC, vX), 'v_subrev_f32 v%d, s%d, v%d' % (d1, sC, vX + 1),
                'v_mul_f32 v%d, v%d, v%d' % (t2, d0, d0), 'v_add_f32 v%d, v%d, v%d' % (r, d0, d1),
                'v_fmac_f32 v%d, v%d, v%d' % (t2, d1, d1),
                'v_permlane32_swap_b32 v%d, v%d' % (r, t2), 'v_add_f32 v%d, v%d, v%d' % (r, r, t2)]
        side += allreduce_list('v_add_f32', r, None, (0, 1, 2, 3))
        side += ['v_add_f32_dpp v%d, v%d, v%d row_bcast:15 row_mask:0xa bank_mask:0xf' % (r, r, r),
                 'v_writelane_b32 v%d, s%d, 0' % (r, sC)]
    extra = list(extra)
    aset = lambda j: a_ops(vA + 4 * (j % 3), vX + (j >> 2), vT + (j >> 2), j & 3)
    a0, a1 = aset(0), aset(1)
    q = [mirror(vT, vX), a0[0], a0[3]] + side[:1] + [a0[1], a0[2], a1[0], a1[3]]
    if args.tr:
        q = [rot(m) for m in range(2, 6)]
        if ES is not None:
            q = [rot(m) for m in range(1, 4)] + ['v_cvt_pk_bf16_f32 v%d, 0, v%d' % (vX + k, vT + k) for k in range(2)]
    side = side[1:]
    for op in q:
        e(op)
    build = [a1[1], a1[2], mirror(vT + 1, vX + 1)]
    for j in range(2, 8):
        build += aset(j)
    if args.tr:
        build = [rot(m) for m in range(4 if ES is not None else 6, 8)]
        D = DQ if ES is not None else DO
        adds = ['v_add_f32_dpp v%d, v%d, v%d quad_perm:[0,1,2,3] row_mask:0x%x bank_mask:0xf' %
                (vT + (t_ & 1), D[t_], D[t_] + 1, 1 << ((t_ & 2) + (t_ >> 2))) for t_ in range(8)]
    wtk = None
    stk = None
    ndone = 0
    for n2 in range(16):
        j, pi = n2 >> 1, n2 & 1
        if args.tr:
            t_, hh = (SEQL if ES is not None else SEQO)[n2]
            assert hh == 0 or not build
            smf(D[t_], vA + 4 * hh, pair(tiles[16 * hh + 2 * t_], tiles[16 * hh + 2 * t_ + 1]), vSI)
            ndone += hh
            if wtk is not None and stk is None and n2 >= wn + args.lnb:
                a.lgwait(wtk)
                e('s_barrier')
                stk = a.lds('ds_read_b128 %s, v%d offset:%d' % (vq(vMi + 4), vWr, ES))
            lead = a.lines[-1].split()[0].startswith('v_smf')
            did = 0
            while did < 2:
                if side and a.needed(side[0]) == 0:
                    e(side.pop(0))
                elif build and (not did or side):
                    e(build.pop(0))
                elif side and not did and a.needed(side[0]) <= 2:
                    e(side.pop(0))
                elif not did and 8 - len(adds) < ndone and a.needed(adds[0]) <= (2 if lead else 0):
                    if lead and not side:
                        a.nop(2)
                    e(adds.pop(0))
                else:
                    if not did and lead and not side and ndone:
                        a.nop(2)
                    break
                did += 1
        else:
            smf(vAc + 4 * pi, vA + 4 * (j % 3), pair(tiles[2 * n2], tiles[2 * n2 + 1]), vSI)
            nb = 3 if n2 == 0 else 2
            for k in range(nb):
                if build:
                    e(build.pop(0))
                if side and a.needed(side[0]) == 0:
                    e(side.pop(0))
        if ES is not None and not side and wtk is None:
            e('s_mov_b64 exec, %s' % sp(sMaskV))
            wtk = a.lds('ds_write_b32 v%d, v%d offset:%d' % (vSw, r, ES))
            e('s_mov_b64 exec, -1')
            wn = n2
        elif wtk is not None and stk is None and n2 >= wn + 3 and not args.tr:
            a.lgwait(wtk)
            e('s_barrier')
            stk = a.lds('ds_read_b128 %s, v%d offset:%d' % (vq(vMi + 4), vWr, ES))
        if extra and n2 >= 12 and not args.tr:
            extra.pop(0)()
    assert not side and not build
    math_ = []
    nm, rs = vMi, vMi + 2
    if ES is not None:
        assert stk is not None
        c, S_, T_ = vMi + 4, vMi + 5, vMi + 7
        mw, mu, v, ee = vMi + 4, vMi + 6, vMi + 7, vMi + 5
        qs = lambda d, s_: ['v_add_f32_dpp v%d, v%d, v%d quad_perm:[1,0,3,2] %s' % (d, s_, s_, DPPF),
                            'v_add_f32_dpp v%d, v%d, v%d quad_perm:[2,3,0,1] %s' % (d, d, d, DPPF)]
        math_ = ['v_mul_f32 v%d, %s, v%d' % (S_, f32(1.0 / 128), S_),
                 'v_mul_f32 v%d, %s, v%d' % (T_, f32(1.0 / 128), T_),
                 'v_add_f32 v%d, v%d, v%d' % (mw, c, S_),
                 'v_fma_f32 v%d, -v%d, v%d, v%d' % (v, S_, S_, T_)]
        math_ += qs(mu, mw)
        math_ += ['v_mul_f32 v%d, 0.25, v%d' % (mu, mu),
                  'v_sub_f32 v%d, v%d, v%d' % (ee, mw, mu),
                  'v_fmac_f32 v%d, v%d, v%d' % (v, ee, ee),
                  'v_cvt_pk_bf16_f32 v%d, 0, v%d' % (mu, mu),
                  'v_mul_f32 v%d, v%d, v%d' % (nm, mu, cs)]
        math_ += [qs(v, v)[0], 'v_mul_f32 v%d, v%d, v%d' % (nm + 1, mu, cs + 1), qs(v, v)[1]]
        math_ += ['v_mul_f32 v%d, 0.25, v%d' % (v, v),
                  'v_max_f32 v%d, 0, v%d' % (v, v),
                  'v_cvt_pk_bf16_f32 v%d, 0, v%d' % (v, v),
                  'v_add_f32 v%d, %s, v%d' % (v, f32(1e-5), v),
                  'v_cvt_pk_bf16_f32 v%d, 0, v%d' % (v, v),
                  'v_sqrt_f32 v%d, v%d' % (v, v),
                  'v_cvt_pk_bf16_f32 v%d, 0, v%d' % (v, v),
                  'v_rcp_f32 v%d, v%d' % (rs, v),
                  'v_mul_f32 v%d, -v%d, v%d' % (nm, nm, rs),
                  'v_mul_f32 v%d, -v%d, v%d' % (nm + 1, nm + 1, rs)]
        a.lgwait(stk)
    math_[5:5] = list(pre)
    if args.tr:
        for op in adds:
            while math_ and a.needed(op) > 0 and a.needed(math_[0]) == 0:
                e(math_.pop(0))
            e(op)
        wtk = a.lds('ds_write_b64 v%d, %s offset:%d' % (vEw, vp(vT), E))
    else:
        m0 = 'v_permlane32_swap_b32 v%d, v%d' % (vAc, vAc + 2)
        while math_ and a.needed(m0) > 0:
            e(math_.pop(0))
        merge(vAc, vAc + 4)
        a.lds('ds_write_b64 v%d, %s offset:%d' % (vEw, vp(vAc), E))
    for k in range(13):
        if math_:
            e(math_.pop(0))
    if wide:
        e('s_mov_b64 exec, %s' % sp(sQm))
    a.lgwait_all()
    e('s_barrier')
    tks = [a.lds(x) for x in reads]
    for x in extra:
        x()
    if wide:
        add = lambda d, s_: [e('v_pk_add_f32 %s, %s, %s' % (vp(d + k), vp(d + k), vp(s_ + k))) for k in (0, 2)]
        a.lgwait(tks[1])
        add(wide[0], wide[1])
        a.lgwait(tks[2])
        add(wide[0], wide[2])
        a.lgwait(tks[3])
        add(wide[0], wide[3])
        return
    if ret is not None:
        e('s_cmp_eq_u32 s%d, %d' % (sRet, ret))
    for op in math_:
        e(op)
    for op in post:
        e(op)
    a.lgwait(tks[1])
    e('v_pk_add_f32 %s, %s, %s' % (vp(RD[0]), vp(RD[0]), vp(RD[1])))
    a.lgwait(tks[3])
    e('v_pk_add_f32 %s, %s, %s' % (vp(RD[2]), vp(RD[2]), vp(RD[3])))
    e('v_pk_add_f32 %s, %s, %s' % (vp(RD[0]), vp(RD[0]), vp(RD[2])))
    if ES is not None:
        a.raw('    s_cbranch_scc1 %s' % lbl)
        a.pos += 1
        e('v_pk_fma_f32 %s, %s, %s, %s op_sel_hi:[1,0,1]' % (vp(vR), vp(vR), vp(rs), vp(nm)))


def publish4(r, s0, s1):
    for s_ in (s1, s0) if args.far1 else (s0, s1):
        a.vmem('buffer_store_dwordx4 %s, v%d, %s, s%d offen %s' % (vq(r), vL16, srd(SWS), s_, args.ypol))


if args.x4:
    assert E1 == 0
    WD = [vAc, vAc + 4, vLA + 48, vLA + 52]
    gemv32(TO, E1, None, ['ds_read2_b64 %s, v%d offset0:%d offset1:%d' % (vq(WD[w]), vL8, 64 * w, 64 * w + 32) for w in range(4)], (), od, wide=WD)
    publish4(vAc, sYp, sVt)
else:
    gemv32(TO, E1, None, ['ds_read_b64 %s, v%d offset:%d' % (vp(RD[w]), vL8, E1 + 512 * w) for w in range(4)], (), od,
           vEw=vEy if args.yb else vEw)
    ct(1)
    e('s_mov_b64 exec, %s' % sp(sQm))
    if args.yb:
        e('v_cvt_pk_bf16_f32 v%d, v%d, v%d' % (vR, vR, vR + 1))
        e('v_min_u32 v%d, -2, v%d' % (vR, vR))
        a.vmem('buffer_store_dword v%d, v%d, %s, s%d offen %s' % (vR, vL4, srd(SWS), sYp, args.ypol))
    elif args.yh == 2:
        e('s_bitcmp1_b32 s%d, 1' % sU)
        e('s_cselect_b32 s%d, s%d, s%d' % (sT0, sVt, sYp))
        e('s_cselect_b32 s%d, 256, 0' % sT1)
        e('s_sub_u32 s%d, s%d, s%d' % (sT0, sT0, sT1))
        publish_local(vAc, vL8, sT0, 'y')
        e('s_mov_b64 exec, 1')
        e('buffer_load_dword v%d, off, %s, 0' % (vLA + 63, srd(SX)))
    else:
        publish_local(vAc, vL8, sYp, 'y')
        publish_local(vAc, vL8, sVt, 'y')
sq_(2)
ct(2)
e('s_mov_b64 exec, -1')
stamp(vT + 2)

gather_y()
sq_(3)
ct(3)
stamp(vT + 2)
if not args.tr:
    a.raw('L_fgemv:')
ex = [(lambda c=c: dn_read(c)) for c in range(NPF, 16)]
k1 = -2.0 * math.sqrt(2.0 / math.pi) * LOG2E
G_, U_ = vR, vR + 1
t, z = vT + 2, vT + 3
gemv32(TG, E2, E2S, ['ds_read2_b32 %s, v%d offset0:%d offset1:%d' % (vp(RD[i]), (vFr, vFr2)[i >> 1], 128 * (i & 1), 128 * (i & 1) + 16) for i in range(4)],
       ex, vX, vCf, 4, 'L_csf', ['v_mov_b32 v%d, %s' % (t, f32(k1))])
zd = ['v_mov_b64 %s, 0' % vp(d) for d in DQ[:4]]
ct(4)
ct(5)
e('v_cvt_pk_bf16_f32 v%d, 0, v%d' % (G_, G_))
e('v_mul_f32 v%d, v%d, v%d' % (z, G_, G_))
e('v_fmac_f32 v%d, %s, v%d' % (t, f32(k1 * 0.044715), z))
e('v_mul_f32 v%d, v%d, v%d' % (z, t, G_))
e('v_exp_f32 v%d, v%d' % (z, z))
e('v_cvt_pk_bf16_f32 v%d, 0, v%d' % (U_, U_))
e('v_add_f32 v%d, 1.0, v%d' % (z, z))
e('v_rcp_f32 v%d, v%d' % (z, z))
if args.tr:
    e(zd[0])
e('v_mul_f32 v%d, v%d, v%d' % (z, z, G_))
e('v_cvt_pk_bf16_f32 v%d, 0, v%d' % (z, z))
e('v_mul_f32 v%d, v%d, v%d' % (z, z, U_))
if args.tr:
    assert args.z1 and args.zo
    e('s_bitcmp1_b32 s%d, 0' % sIt)
    e(zd[1])
    e('v_mov_b32_dpp v%d, v%d row_ror:8 %s' % (t, z, DPPF))
    e('v_cvt_pk_bf16_f32 v%d, v%d, v%d' % (z, z, t))
    e(zd[2])
    e(zd[3])

    def drot(m):
        r_ = (16 - 2 * (m & 3) + 4 * (m >> 2)) & 15
        if not r_:
            return 'v_and_b32 v%d, v%d, v%d' % (vA + m, z, vMe + (m >> 2))
        return 'v_and_b32_dpp v%d, v%d, v%d row_ror:%d %s' % (vA + m, z, vMe + (m >> 2), r_, DPPF)
    for m in range(6):
        e(drot(m))
    a.lgwait_all()
    tail_ = []
    for k in range(4):
        tail_.append('v_add_f32 v%d, v%d, v%d' % (DQ[k], DQ[k], DQ[k] + 1))
        if k & 1:
            tail_.append('v_cvt_pk_bf16_f32 v%d, v%d, v%d' % (vAc + 2 + (k >> 1), DQ[k - 1], DQ[k]))
            tail_.append('v_min_u32 v%d, -2, v%d' % (vAc + 2 + (k >> 1), vAc + 2 + (k >> 1)))
    for n_, t_ in enumerate((0, 1, 2, 4, 5, 3, 6, 7)):
        e('v_smfmac_f32_16x16x64_bf16 %s, %s, v[%d:%d], v%d abid:1' % (vq(DQ[t_ & 3]), vq(vA + 4 * (t_ >> 2)), vLA + 8 * t_, vLA + 8 * t_ + 7, vSI))
        if n_ < 2:
            e(drot(6 + n_))
        elif n_ >= 3:
            a.nop(2)
            if a.needed(tail_[0]) == 0:
                e(tail_.pop(0))
    for op in tail_:
        e(op)
    publish_local(vAc + 2, vZa, sG0, 'z')
if not args.tr:
    e('v_cvt_pk_bf16_f32 v%d, 0, v%d' % (z, z))
if not args.zb:
    e('s_add_u32 s%d, s%d, s%d' % (sT0, sHS, sZg))
    e('s_xor_b32 s%d, s%d, 8192' % (sVt, sT0))
ct(6)
dset = lambda r: a_ops(vA + 4 * (r % 3), z, t, r)
d0_, d1_ = dset(0), dset(1)
for op in () if args.tr else (mirror(t, z), d0_[0], d0_[3], d0_[1], d0_[2], d1_[0], d1_[3]):
    e(op)
build = [d1_[1], d1_[2]] + dset(2) + dset(3)
for r in range(0 if args.tr else 4):
    for pi in (1, 0) if args.x4 or args.zb and not args.z1 else (0, 1):
        n = (r * 2 + pi) * 2
        smf(vAc + 8 + 4 * pi, vA + 4 * (r % 3), 'v[%d:%d]' % (vLA + 4 * n, vLA + 4 * n + 7), vSI)
        for k in range(2):
            if build:
                e(build.pop(0))
if args.noit1 == 1:
    e('s_cmp_eq_u32 s%d, 1' % sIt)
    e('s_cbranch_scc1 L_next')
if not args.tr:
    e('s_bitcmp1_b32 s%d, 0' % sIt)
if args.tr:
    pass
elif args.z1:
    e('v_lshrrev_b32 v%d, 5, v0' % vT)
    e('v_mul_u32_u24 v%d, %d, v%d' % (vT, 8192 - 256, vT))
    e('v_add_u32 v%d, v%d, v%d' % (vT, vT, vL8))
    merge(vAc + 8, vAc + 12)
    if not args.zo:
        a.raw('    s_cbranch_scc1 L_zodd')
        a.pos += 1
    e('v_cvt_pk_bf16_f32 v%d, v%d, v%d' % (vAc + 10, vAc + 8, vAc + 9))
    for k in (0, 1):
        e('v_min_u32 v%d, -2, v%d' % (vAc + 8 + k, vAc + 10))
    e('v_permlane32_swap_b32 v%d, v%d' % (vAc + 8, vAc + 9))
    if args.z28:
        e('s_mov_b64 exec, %s' % sp(sG1))
    if args.zc == 1:
        e('s_mov_b32 exec_hi, 0')
    publish_local(vAc + 8, vT, sYp if args.zc == 1 else sG0, 'z')
    if args.z28 or args.zc:
        e('s_mov_b64 exec, -1')
elif args.zb:
    a.raw('    s_cbranch_scc1 L_zodd')
    a.pos += 1
    zodd = a.needed('v_permlane32_swap_b32 v%d, v%d' % (vAc + 12, vAc + 14))
    for k in range(4):
        e('v_permlane32_swap_b32 v%d, v%d' % (vAc + 12 + k, vT + k))
    e('s_mov_b32 exec_hi, 0')
    for k in (0, 2):
        e('v_pk_add_f32 %s, %s, %s' % (vp(vAc + 8 + k), vp(vAc + 8 + k), vp(vT + k)))
    for k in (0, 1):
        e('v_cvt_pk_bf16_f32 v%d, v%d, v%d' % (vAc + 8 + k, vAc + 8 + 2 * k, vAc + 9 + 2 * k))
    for k in (0, 1):
        e('v_min_u32 v%d, -2, v%d' % (vAc + 8 + k, vAc + 8 + k))
    publish_local(vAc + 8, vL8, sYp, 'z')
    publish_local(vAc + 8, vL8, sVt, 'z')
    e('s_mov_b32 exec_hi, -1')
elif args.x4:
    for k in range(4):
        e('v_permlane32_swap_b32 v%d, v%d' % (vAc + 12 + k, vT + k))
    e('s_mov_b32 exec_hi, 0')
    for k in (0, 2):
        e('v_pk_add_f32 %s, %s, %s' % (vp(vAc + 8 + k), vp(vAc + 8 + k), vp(vT + k)))
    publish4(vAc + 8, sT0, sVt)
    e('s_mov_b32 exec_hi, -1')
else:
    merge(vAc + 8, vAc + 12)
    publish_local(vAc + 8, vL8, sT0, 'z')
    publish_local(vAc + 8, vL8, sVt, 'z')
sq_(4)
ct(7)
stamp(vT)
if args.zb:
    if args.zo:
        assert args.z1
        if args.ts:
            e('s_bitcmp1_b32 s%d, 0' % sIt)
        e('s_cbranch_scc1 L_out')
    gather_b()
else:
    if args.ts:
        e('s_bitcmp1_b32 s%d, 0' % sIt)
    e('s_cbranch_scc1 L_out')
    gather('z', 1, 8)
sq_(5)
ct(9)
stamp(vT + 2)
if not args.tr:
    e('s_add_u32 s%d, s%d, 64' % (sJA, sJA))
    a.raw('L_qstage:')
a.reset_counters()
if not args.tr:
    q_slot()
qd = vT
gemv32(TQ, E3, E3S, ['ds_read_b64 %s, v%d offset:%d' % (vp(RD[i]), vQr, E3 + 512 * i) for i in range(4)], (), vX, vCq, 0, 'L_csq',
       *([['v_lshlrev_b32 v%d, 2, v0' % (vT + 1)]] if not args.tr else []))
vQa = vL4 if args.tr else vT + 1
e('s_cmp_lg_u32 s%d, 0' % sU)
e('v_cvt_pk_bf16_f32 v%d, v%d, v%d' % (qd, vR, vR + 1))
e('v_min_u32 v%d, -2, v%d' % (qd, qd))
a.raw('    s_cbranch_scc1 L_qn')
e('buffer_store_dword v%d, v%d, %s, s%d offen offset:1024' % (qd, vQa, srd(SWS), sQs))
e('buffer_store_dword v%d, v%d, %s, s%d offen offset:2048 %s' % (qd, vQa, srd(SWS), sQs, sc('F')))
a.label('L_qn')
if args.quiet and not args.sq:
    e('s_memrealtime s[18:19]')
sq_(6)
ct(10)
stamp(vT + 2)
e('v_add_u32 v%d, s%d, v%d' % (vT + 1, sQa, vQa))
a.lds('ds_write_b32 v%d, v%d' % (vT + 1, qd))
a.lgwait_all()
e('s_cmp_eq_u32 s%d, 1' % sRet)
e('s_cbranch_scc1 L_i1')
e('s_cmp_eq_u32 s%d, 2' % sRet)
e('s_cbranch_scc1 L_i2')
a.label('L_own')
a.reset_counters()
oq, obt, ok_, ov, oc, om, op_, oml, oA, oD = vLA, vLA + 4, vLA + 8, vLA + 12, vLA + 16, vLA + 20, vLA + 17, vLA + 18, vLA + 24, vLA + 28
mk_qoff(vT + 2, 0, vT + 3)
e('v_add_u32 v%d, s%d, v%d' % (vT + 2, sQa, vT + 2))
e('v_add_u32 v%d, s%d, v%d' % (vT + 3, sKV, vL16))
a.lds('ds_read_b128 %s, v%d' % (vq(oq), vT + 2))
a.lds('ds_read_b128 %s, v%d' % (vq(ok_), vT + 3))
a.lds('ds_read_b128 %s, v%d offset:1024' % (vq(ov), vT + 3))
mk_c(oc, 1, vT)
mk_masks(om, vT)
a.lgwait_all()
build_bt(obt, oq, 1)
mfma(vq(oD), vq(ok_), vq(obt), True)
for o in score_ops([op_], 0, oD, oc, True):
    e(o)
e('s_lshl3_add_u32 s%d, s%d, s%d' % (sT0, sU, sJA))
e('s_add_u32 s%d, s%d, s%d' % (sT0, sT0, sHA))
e('s_lshl_b32 s%d, s%d, 4' % (sT1, sU))
softmax([op_], oml, vT, None, [], [], sT1, EOM, None)
osc = oc if args.tr else vLA + 32
for o in tail_a(oA, op_, 0, om, vT):
    e(o)
mfma(vq(oD), vq(oA), vq(ov), True)
tk = scale_a(osc, vL16, EOM)
e('s_bitcmp1_b32 s%d, 5' % sJA)
e(('s_cselect_b32 s%d, 256, 0' if args.ob else 's_cselect_b32 s%d, 1, 2') % sOt)
e('s_bitcmp1_b32 s%d, 6' % sJA)
e('s_cselect_b32 s%d, 4096, 0' % sT1)
e('s_add_u32 s%d, s%d, %d' % (sT1, sT1, OFF_O + 7 * 512))
if args.ob:
    e('s_add_u32 s%d, s%d, s%d' % (sT1, sT1, sOt))
e('s_add_u32 s%d, s%d, s%d' % (sT1, sT1, sHA))
merge(oD, None)
a.lgwait(tk)
for o in scale_b(osc, oml):
    e(o)
wg_publish(oD, osc, vEw, vL8, EO, vLA, sT1, 'own', 'L_ownn', 0, sOt, sLoc)
e('s_waitcnt vmcnt(0)')
e('s_mov_b64 exec, 1')
store_sel('buffer_store_dwordx2 %s, off, %s, s%d offset:896' % (vp(oml), srd(SWS), sT0), 'owns', False, False, sLoc)
e('s_mov_b64 exec, -1')
e('s_cmp_eq_u32 s%d, 4' % sRet)
e('s_cbranch_scc1 L_i4')
e('s_add_u32 s%d, s%d, 1' % (sIt, sIt))
e('s_branch L_loop')

if args.zb and not args.zo:
    a.label('L_zodd')
    if not args.z1:
        a.nop(zodd)
        for O in (vAc + 12, vAc + 8):
            e('v_permlane32_swap_b32 v%d, v%d' % (O, O + 2))
            e('v_permlane32_swap_b32 v%d, v%d' % (O + 1, O + 3))
        e('v_add_f32 v%d, v%d, v%d' % (vAc + 8, vAc + 8, vAc + 14))
        e('v_add_f32 v%d, v%d, v%d' % (vAc + 9, vAc + 9, vAc + 15))
    publish_local(vAc + 8, vL8, sYp, 'z')
    publish_local(vAc + 8, vL8, sVt, 'z')
    sq_(4)
    stamp(vT)
    a.raw('L_out:')
else:
    a.label('L_out')
a.reset_counters()
if args.zo == 2:
    e('s_lshr_b32 s%d, s2, 1' % sT0)
    e('s_sub_u32 s%d, s%d, %d' % (sT0, sT0, 4 * args.osv))
    e('s_cmp_eq_u32 s%d, s%d' % (sT0, sU))
    e('s_cbranch_scc0 L_outn')
    oA = vLA + 16
    pick_a(oA, vT)
    e('v_and_b32 v%d, 0x380, v%d' % (vLA + 20, vL16))
    e('v_add_u32 v%d, v%d, v%d' % (vLA + 20, vLA + 20, vL16))
    for op in z64(vLA + 12, 4):
        e(op)
    e('s_and_b32 s%d, s2, 1' % sT1)
    e('s_lshl_b32 s%d, s%d, 7' % (sT0, sT1))
    e('s_add_u32 s%d, s%d, s%d' % (sT0, sT0, sZg))
    e('s_lshl_b32 s%d, s%d, 3' % (sT1, sT1))
    e('s_lshl_b64 %s, %s, s%d' % (sp(sMt), sp(sMaskJ8), sT1))
    e('s_add_u32 s%d, s%d, 4096' % (sT1, sT0))
    ackwait(args.acko)
    if args.osl:
        e('s_sleep %d' % args.osl)
    a.label('L_o_ld')
    for i in range(4):
        if i == 3:
            e('s_mov_b32 exec_hi, 0')
        e('buffer_load_dwordx4 %s, v%d, %s, s%d offen offset:%d %s' % (vq(vLA + 4 * i), vLA + 20, srd(SWS), (sT0, sT1)[i >> 1], (i & 1) * 2048, args.lpolo or args.lpol))
    e('s_mov_b32 exec_hi, -1')
    for i in range(4):
        e('s_waitcnt vmcnt(%d)' % (3 - i))
        mfma(vq(vT), vq(oA), vq(vLA + 4 * i), i == 0)
    for k in range(2):
        e('v_add_f32_dpp v%d, v%d, v%d row_ror:8 %s' % (vT + k, vT + k, vT + k, DPPF))
    e('v_cmp_u_f32 vcc, v%d, v%d' % (vT, vT + 1))
    OOL.append(('L_o_bad', lambda: (sentinel_check(vLA, 16, vT + 2), e('s_cbranch_vccz L_o_ok'), spin_tail('L_o_ld'))))
elif args.zo:
    e('v_and_b32 v%d, 31, v0' % t0)
    e('v_lshlrev_b32 v%d, 8, v%d' % (t0, t0))
    e('v_lshrrev_b32 v%d, 5, v0' % t1)
    e('v_lshl_or_b32 v%d, v%d, 3, v%d' % (t0, t1, t0))
    e('v_mov_b32 v%d, 0' % t1)
    e('s_and_b32 s%d, s2, 15' % sT0)
    e('s_lshr_b32 s%d, s2, 4' % sT1)
    e('s_lshl2_add_u32 s%d, s%d, s%d' % (sT0, sT0, sT1))
    e('s_lshl2_add_u32 s%d, s%d, s%d' % (sT0, sT0, sZg))
    e('s_lshl_b32 s%d, 1, s2' % sMt)
    e('s_mov_b32 s%d, s%d' % (sMt + 1, sMt))
    a.label('L_outw')
    e('s_mov_b32 exec_lo, 0x0fffffff')
    e('s_mov_b32 exec_hi, 0x0fffffff')
    ackwait(args.acko)
    e('buffer_load_dword v%d, v%d, %s, s%d offen sc1' % (t1, t0, srd(SWS), sT0))
    e('s_mov_b64 exec, -1')
    e('s_waitcnt vmcnt(0)')
    e('v_lshlrev_b32 v%d, 16, v%d' % (vT, t1))
    e('v_and_b32 v%d, 0xffff0000, v%d' % (vT + 1, t1))
    e('v_cmp_eq_u32 vcc, -1, v%d' % t1)
    OOL.append(('L_outr', lambda: spin_tail('L_outw')))
else:
    e('v_and_b32 v%d, 31, v0' % t0)
    e('v_and_b32 v%d, 16, v0' % t1)
    e('v_add_lshl_u32 v%d, v%d, v%d, 9' % (t0, t0, t1))
    e('v_lshrrev_b32 v%d, 5, v0' % t1)
    e('v_lshl_or_b32 v%d, v%d, 3, v%d' % (t0, t1, t0))
    e('s_lshl_b32 s%d, s2, 4' % sT0)
    e('s_add_u32 s%d, s%d, s%d' % (sT0, sT0, sZg))
    ackwait(args.acko)
    a.label('L_outw')
    e('buffer_load_dwordx2 %s, v%d, %s, s%d offen sc1' % (vp(vT), t0, srd(SWS), sT0))
    e('s_waitcnt vmcnt(0)')
    e('v_max_u32 v%d, v%d, v%d' % (t1, vT, vT + 1))
    e('v_cmp_eq_u32 vcc, -1, v%d' % t1)
    e('s_cbranch_vccz L_outok')
    spin_tail('L_outw')
    a.label('L_outok')
sq_(5)
ra = allreduce_list('v_add_f32', vT, vT + 2, (0, 1, 2, 3, 4))
rb = allreduce_list('v_add_f32', vT + 1, vT + 3, (0, 1, 2, 3, 4))
for k, (x, y) in enumerate(zip(ra, rb)):
    if args.zo == 2:
        break
    if args.zo and k == 2:
        a.raw('    s_cbranch_vccnz L_outr')
        a.pos += 1
    e(x)
    e(y)
e('v_cvt_pk_bf16_f32 v%d, 0, v%d' % (vT, vT))
e('v_cvt_pk_bf16_f32 v%d, 0, v%d' % (vT + 1, vT + 1))
e('v_add_f32 v%d, v%d, v%d' % (vT, vX, vT))
e('v_add_f32 v%d, v%d, v%d' % (vT + 1, vX + 1, vT + 1))
e('v_cvt_pk_bf16_f32 v%d, v%d, v%d' % (vT, vT, vT + 1))
if args.zo == 2:
    a.raw('    s_cbranch_vccnz L_o_bad')
    a.pos += 1
    a.raw('L_o_ok:')
if not args.zo:
    e('s_lshl_b32 s%d, 1, s2' % sMt)
    e('s_mov_b32 s%d, s%d' % (sMt + 1, sMt))
e('s_mov_b64 exec, %s' % sp(sMt))
e('buffer_store_dword v%d, v%d, %s, s%d offen %s' % (vT, vXo, srd(SOUT), sOutB, args.opol))
e('s_mov_b64 exec, -1')
if args.zo == 2:
    a.label('L_outn')
stamp(vLA)
ct(8)
e('s_cmp_eq_u32 s%d, 3' % sIt)
e('s_cbranch_scc0 L_next')
sq_dump(vLA)
ct_dump(vLA)
if args.pad:
    a.label('L_pad')
    e('s_memrealtime s[82:83]')
    e('s_waitcnt lgkmcnt(0)')
    e('s_sub_u32 s82, s82, s84')
    e('s_cmp_lt_u32 s82, %d' % (args.pad * 100))
    e('s_cbranch_scc1 L_pad')
if args.icprobe:
    e('s_branch L_ic0')
e('s_endpgm')
a.label('L_next')
if args.quiet and not args.sq:
    e('s_mov_b32 s16, s18')
if not args.novote:
    e('v_lshlrev_b32 v%d, 2, v0' % vT)
    e('buffer_load_dword v%d, v%d, %s, 0 offen sc1' % (vT + 1, vT, srd(SDBG)))
    e('s_waitcnt vmcnt(0)')
    count_votes()
setx(vX1)
e('s_add_u32 s%d, s%d, 2048' % (sKV, sKV))
e('s_mov_b32 s%d, 1024' % sOutB)
e('s_add_u32 s%d, s%d, 1024' % (sQa, sQa))
e('s_mov_b32 s%d, 32' % sJA)
e('s_branch L_own')

for lbl, ops in OOL:
    a.label(lbl)
    if callable(ops):
        e('s_nop 1')
        ops()
        continue
    for op in ops:
        e(op)

for blk in RAW:
    for ln in blk:
        a.raw(ln)
for k in range(args.icprobe):
    a.raw('    s_endpgm\n.p2align 11\nL_ic%d:\n    s_branch L_ic%d' % (k, k + 1))
if args.icprobe:
    a.raw('L_ic%d:' % args.icprobe)

hdr = open('cdna_kernels/%s.s.ref' % NAME).read().split('\n')
head = []
for ln in hdr:
    if ln.startswith('; @launch'):
        head.append('; @launch grid=(256,1,1) block=(256,1,1) lds=163840')
    elif ln.startswith('.p2align 8') and args.al:
        head += ['.p2align 12', ln]
    elif ln.startswith(NAME + '_kernel:'):
        head.append(ln)
        break
    else:
        head.append(ln)
tail = '''.section .rodata,"a"
.p2align 6
.amdhsa_kernel %s_kernel
  .amdhsa_next_free_vgpr 512
  .amdhsa_next_free_sgpr 102
  .amdhsa_accum_offset 256
  .amdhsa_group_segment_fixed_size 0
  .amdhsa_kernarg_size 96
  .amdhsa_user_sgpr_count 2
  .amdhsa_user_sgpr_kernarg_segment_ptr 1
  .amdhsa_system_sgpr_workgroup_id_x 1
.end_amdhsa_kernel
''' % NAME
if args.alk:
    AL = {x.split(':')[0]: x.split(':')[1:] for x in args.alk.split(',')}
    o_, prev = [], ''
    for ln in '\n'.join(a.lines).split('\n'):
        k = re.sub(r'_\d+$', '', ln[2:-1]) if ln.endswith(':') else None
        if k in AL:
            o_.append(';@AL %s %s %s' % (AL[k][0], AL[k][1], '' if prev in ('s_branch', 's_endpgm') else ln[:-1]))
        o_.append(ln)
        prev = ln.split()[0] if ln.strip() else prev
    a.lines = o_
if SITES:
    import warm
    a.lines = warm.place('\n'.join(a.lines).split('\n'), head, tail, SITES, 0 if args.al else 0xc00, args.wR,
                         [x.split(':') for x in args.hot.split(',') if x], args.tgt.split(','))
open(args.o, 'w').write('\n'.join(head) + '\n' + a.text() + 's_endpgm\n' + tail + ('; TSB=%d\n' % (TSB + (args.wsoff << 20)) if args.ts else ''))
print('wrote', args.o, len(a.lines), 'lines')
```

```python
import re, subprocess, os, tempfile
LL = 'bin/'


NOFILL = 0
FIRST = 0
ROT = 0


def is_ins(l):
    t = l.strip()
    return t and not t.endswith(':') and not t.startswith(';') and not t.startswith('.')


def sizes(lines, head, tail):
    d = tempfile.mkdtemp()
    src = [re.sub(r'@W(\d+)_\d+', r'L_wr\1', l) for l in lines]
    open(d + '/x.s', 'w').write('\n'.join(head) + '\n' + '\n'.join(src) + '\ns_endpgm\n' + tail)
    subprocess.check_call([LL + 'clang', '-x', 'assembler', '-target', 'amdgcn-amd-amdhsa', '-mcpu=gfx950', '-c', d + '/x.s', '-o', d + '/x.o'])
    o = subprocess.check_output([LL + 'llvm-objdump', '-d', d + '/x.o'], text=True)
    sz = [4 * len(m.group(1).split()) for m in re.finditer(r'// [0-9A-F]+: ((?:[0-9A-F]{8} ?)+)', o)]
    ins = [l for l in lines if is_ins(l)]
    assert len(sz) == len(ins) + 1, (len(sz), len(ins))
    it = iter(sz)
    return [next(it) if is_ins(l) else 0 for l in lines]


def window(L):
    return range(L, min(L + 17, (L // 64 + 1) * 64))


WIDE = set('''v_mov_b32 v_mov_b64 v_add_f32 v_sub_f32 v_subrev_f32 v_mul_f32 v_max_f32 v_fmac_f32 v_exp_f32 v_rcp_f32 v_sqrt_f32 v_min_u32 v_max_u32
v_and_b32 v_or_b32 v_xor_b32 v_lshlrev_b32 v_lshrrev_b32 v_add_u32 v_sub_u32 v_cmp_eq_u32 v_cmp_ne_u32 v_cmp_u_f32'''.split())


def weights(L, hot):
    w, on, slot = [0.0] * len(L), False, []

    def close():
        k = L[slot[0]][0].split()[0] if slot else ''
        f = 0.1 if k.startswith('v_mfma') and len(slot) <= 3 else 0.3 if k.startswith('v_smf') and len(slot) <= 4 else 1
        for i in slot:
            w[i] *= f
    for i, x in enumerate(L):
        t = x[0].strip()
        if t.endswith(':'):
            for r0, r1 in hot:
                on = True if t[:-1] == r0 else False if t[:-1] == r1 else on
        if is_ins(t):
            if t.startswith('v_mfma') or t.startswith('v_smf'):
                close()
                slot = []
            slot.append(i)
            w[i] = 1.0 if on else 0.04
    close()
    return w


def settle(L, i0, p0, hot, tgt):
    w = weights(L, hot)
    cur = {p0 % 32: (0.0, None)}
    for i in range(i0, len(L)):
        t = L[i][0].split()
        if L[i][0].startswith(';@PAD'):
            opt = [(k, 0.002 * k) for k in range(0, 32, 4)]
        elif L[i][0].startswith(';@FILL'):
            k, n = i + 1, 0
            while not L[k][0].split()[0].startswith(t[1]):
                u = L[k][0].split()
                n += 0 if not is_ins(L[k][0]) else int(u[1]) + 1 if u[0] == 's_nop' else 1
                k += 1
            opt = [(0, 0), (4, 0.15 if n < 2 else 1.2)]
        elif len(L[i]) > 2:
            opt = [(4, 0), (8, 0.01)]
        else:
            opt = [(L[i][1], 0)]
        nxt = {}
        for p, (c, h) in cur.items():
            for s, d in opt:
                c2 = c + d
                if s == 8 and p == 28 and t[0] not in ('s_nop', ';@PAD'):
                    c2 += w[i]
                if t and t[0].endswith(':') and re.sub(r'_\d+o?:$|:$', '', t[0]) in tgt and p > 16:
                    c2 += 4
                q = (p + s) % 32
                if q not in nxt or c2 < nxt[q][0]:
                    nxt[q] = (c2, (h, i, s) if len(opt) > 1 else h)
        cur = nxt
    c, h = min(cur.values(), key=lambda x: x[0])
    while h:
        h, i, s = h
        L[i][1] = s
    return c


def place(lines, head, tail, sites, base, ranges, hot=None, tgt=()):
    sz = sizes(lines, head, tail)
    L = [[l, s] for l, s in zip(lines, sz)]
    if hot:
        L2, prev = [], ''
        for x in L:
            t = x[0].split()
            if x[1] == 4 and (t[0] in WIDE or t[0] == 's_nop' and t[1] != '0'):
                x.append(1)
            if t and t[0].endswith(':') and prev in ('s_branch', 's_endpgm'):
                L2.append([';@PAD', 0])
            prev = t[0] if t else prev
            L2.append(x)
        w = weights(L2, hot)
        L = []
        for x, y in zip(L2, w):
            L.append(x)
            if y > 0.05 and x[0].split()[0].startswith('v_smf'):
                if not NOFILL:
                    L.append([';@FILL v_', 0])
        settle(L, 0, base, hot, tgt)

    def addrs():
        out, lab, p = [], {}, base
        for l, s in (x[:2] for x in L):
            out.append(p)
            if l.startswith(';@AL'):
                p += (int(l.split()[1]) - p) % int(l.split()[2])
            if l.strip().endswith(':'):
                lab[l.strip()[:-1]] = p
            p += s
        lab['begin'], lab['end'] = base, p
        return out, lab

    def run(pres, a0, a1):
        for x in range(a0 // 64, (a1 - 1) // 64 + 1):
            if x not in pres:
                pres.update(window(x))

    W = {'a': [], 's': []}
    for grp in 'as':
        ks = [k for k, g in enumerate(sites) if g == grp]
        if not ks:
            continue
        while True:
            ad, lab = addrs()
            last = 'L_wr%d' % ks[-1]
            pres = set()
            if grp == 'a':
                run(pres, base, lab['L_wr%d' % ks[0] if FIRST else last] + 8)
                rg = [x.split(':') for x in ranges.split(',')] if ranges else [(last, 'L_service')]
            else:
                run(pres, lab['L_service'], lab['L_csq'])
                run(pres, lab['L_qstage'], lab['L_own'])
                run(pres, lab['L_csq'], lab[last] + 8)
                rg = [(last, 'end')]
            for w in W[grp]:
                assert lab[w] // 64 not in pres, w
                pres.update(window(lab[w] // 64))

            def at(x):
                m = re.match(r'(\w+)([+-]\d+)?$', x)
                return lab[m.group(1)] + 64 * int(m.group(2) or 0)
            todo = [x for r0, r1 in rg for x in range(at(r0) // 64, (at(r1) - 1) // 64 + 1) if x not in pres]
            if not todo:
                break
            line = min(todo)
            best = None
            prev = None
            skip = None
            for i, (l, s) in enumerate(x[:2] for x in L):
                t = l.split()
                if t and t[0] == '%s:' % skip:
                    skip = None
                if not s or not is_ins(l):
                    continue
                if ad[i] // 64 == line:
                    j = i
                    if prev[0] in ('s_branch', 's_endpgm'):
                        c = 0
                        while not L[j - 1][1]:
                            j -= 1
                    elif skip:
                        c = 1
                    elif t[0] == 's_nop':
                        c = 2
                    elif t[0] in ('s_waitcnt', 's_barrier'):
                        c = 3
                    elif prev[0].startswith('v_smf') and t[0].startswith('v_'):
                        c = 4
                    elif prev[0].startswith('v_mfma') or prev[0].startswith('v_smf'):
                        c = 5
                    else:
                        c = 6
                    if best is None or c < best[0]:
                        best = (c, j)
                if t[0] == 's_cbranch_vccz' and t[1].startswith('L_sk'):
                    skip = t[1]
                prev = t
            c, j = best
            name = 'L_w%s%d' % (grp, len(W[grp]))
            new = [[name + ':', 0], ['    %s @N%s%d' % ('s_branch' if c == 0 else 's_cbranch_execz', grp, len(W[grp])), 4]]
            if c == 2:
                n = int(L[j][0].split()[1])
                if n:
                    L[j] = ['    s_nop %d' % (n - 1), 4] + [1] * (n > 1)
                else:
                    del L[j]
            if hot and c == 0:
                new.append([';@PAD', 0])
            L[j:j] = new
            if hot:
                cst = settle(L, j + 2, ad[j] + 4, hot, tgt)
            W[grp].append(name)
            print('warm', name, '%d:%d' % (line // 64, line % 64), 'kind', c)
    out = []
    ad, lab = addrs()
    if hot:
        w = weights(L, hot)
        print('straddling', round(sum(w[i] for i, x in enumerate(L) if x[1] == 8 and ad[i] % 32 == 28 and 's_nop' not in x[0]), 1), 'end', hex(lab['end']))
    for i, (l, s) in enumerate(x[:2] for x in L):
        if l.startswith(';@PAD'):
            out += ['    s_endpgm'] * (s // 4)
            continue
        if l.startswith(';@FILL'):
            out += ['    s_nop 0'] * (s // 4)
            continue
        if len(L[i]) > 2 and s == 8:
            t = l.split(None, 1)
            if t[0] == 's_nop':
                out.append('    s_nop 0')
                l = '    s_nop %d' % (int(t[1]) - 1)
            else:
                l = '    %s_e64 %s' % (t[0], t[1])
        if l.startswith(';@AL'):
            n = (ad[i + 1] - ad[i]) // 4
            t = l.split()
            if len(t) > 3 and n:
                out.append('    s_nop 0' if n == 1 else '    s_branch ' + t[3])
                n -= 1
            out += ['    s_endpgm'] * n
            continue
        m = re.search(r'@W(\d+)_(\d+)', l)
        if m:
            k, w = int(m.group(1)), int(m.group(2))
            g = sites[k]
            n = 4 * [x for x, y in enumerate(sites) if y == g].index(k) + w
            l = l.replace(m.group(0), W[g][n] if n < len(W[g]) else 'L_wret' if ROT and g == 'a' else 'L_wr%d' % k)
        m = re.search(r'@N(.)(\d+)', l)
        if m:
            g, n = m.group(1), int(m.group(2))
            ks = [x for x, y in enumerate(sites) if y == g]
            n2 = n + 4 * len(ks)
            l = l.replace(m.group(0), W[g][n2] if n2 < len(W[g]) else 'L_wret' if ROT and g == 'a' else 'L_wr%d' % ks[n // 4 % len(ks)])
        out.append(l)
    return out
```

```python
import os
import sys, re, math, struct, argparse
sys.path.insert(0, 'gen')
from asmlib import Asm

NAME = 'interleave_layers__mha_block_cached__glu_gated_geglu__decode'

ap = argparse.ArgumentParser()
ap.add_argument('-o', default='cdna_kernels/%s.s' % NAME)
ap.add_argument('--D', type=int, default=8)
ap.add_argument('--DE', type=int, default=8)
ap.add_argument('--NE', type=int, default=24)
ap.add_argument('--DC0', type=int, default=8)
ap.add_argument('--NC0', type=int, default=8)
ap.add_argument('--DC', type=int, default=8)
ap.add_argument('--X', type=int, default=68)
ap.add_argument('--QF', type=int, default=126)
ap.add_argument('--budget', type=int, default=200)
ap.add_argument('--pol', default='nt')
ap.add_argument('--polA', default=None)
ap.add_argument('--polB', default=None)
ap.add_argument('--polC', default=None)
ap.add_argument('--polB1', default=None)
ap.add_argument('--DA', type=int, default=None)
ap.add_argument('--ms', default='')
ap.add_argument('--Dlo', type=int, default=5)
ap.add_argument('--Dhi', type=int, default=8)
ap.add_argument('--Elo', type=int, default=6)
ap.add_argument('--DB0h', type=int, default=None)
ap.add_argument('--q2fb', action='store_true')
ap.add_argument('--ons', type=int, default=3)
ap.add_argument('--qns', type=int, default=3)
ap.add_argument('--qsl', type=int, default=1)
ap.add_argument('--b1ts', action='store_true')
ap.add_argument('--lts', default='')
ap.add_argument('--nofyz', type=int, default=0)
ap.add_argument('--par', default='race')
ap.add_argument('--RR', type=int, default=1)
ap.add_argument('--novote', type=int, default=0)
ap.add_argument('--QI', type=int, default=44)
ap.add_argument('--stch', default='pyz')
ap.add_argument('--XE', type=int, default=None)
ap.add_argument('--sq', action='store_true')
ap.add_argument('--Cm', type=int, default=0)
ap.add_argument('--polM', default='')
ap.add_argument('--polCf', default=None)
ap.add_argument('--B1t', type=int, default=0)
ap.add_argument('--B1tp', default='sc1')
ap.add_argument('--B1tl', type=int, default=0)
ap.add_argument('--DC1h', type=int, default=None)
ap.add_argument('--DCl', type=int, default=None)
ap.add_argument('--wsoff', type=int, default=0)
ap.add_argument('--ypol', default='sc1')
ap.add_argument('--fpol', default='sc1')
ap.add_argument('--ilv', type=int, default=0)
ap.add_argument('--zl', type=int, default=0)
ap.add_argument('--yoff', type=int, default=0)
ap.add_argument('--goff', type=int, default=0)
ap.add_argument('--ysl', type=int, default=0)
ap.add_argument('--y1', type=int, default=0)
ap.add_argument('--Ce', type=int, default=0)
ap.add_argument('--Cs', type=int, default=0)
ap.add_argument('--Cp', type=int, default=2)
ap.add_argument('--Cc', type=int, default=1)
ap.add_argument('--Cn', type=int, default=0)
ap.add_argument('--w0', type=int, default=0)
ap.add_argument('--vfull', type=int, default=0)
ap.add_argument('--xfill', type=int, default=0)
ap.add_argument('--wo0', type=int, default=0)
ap.add_argument('--p2d', type=int, default=0)
ap.add_argument('--cskip', type=int, default=0)
ap.add_argument('--park', type=int, default=0)
ap.add_argument('--warm', type=int, default=1)
ap.add_argument('--zh', type=int, default=0)
ap.add_argument('--zb', type=int, default=0)
ap.add_argument('--yh', type=int, default=0)
ap.add_argument('--yb', type=int, default=0)
ap.add_argument('--z1', type=int, default=0)
ap.add_argument('--zo', type=int, default=0)
ap.add_argument('--osv', type=int, default=0)
ap.add_argument('--z28', type=int, default=0)
ap.add_argument('--lpol', default='sc1')
ap.add_argument('--lpolo', default=None)
ap.add_argument('--opol', default='sc1')
ap.add_argument('--zc', type=int, default=0)
ap.add_argument('--kpat', type=int, default=0)
ap.add_argument('--ssl', type=int, default=2)
ap.add_argument('--psl', type=int, default=2)
ap.add_argument('--pall', type=int, default=0)
ap.add_argument('--tr', type=int, default=0)
ap.add_argument('--lnb', type=int, default=4)
ap.add_argument('--sl', type=int, default=7)
ap.add_argument('--hot', default='')
ap.add_argument('--tgt', default='L_p2b,L_q3,L_q3r,L_sk,L_ook,L_ogather,L_oagain,L_noprobe,L_out')
ap.add_argument('--alk', default='')
ap.add_argument('--shd', default='')
ap.add_argument('--ets', type=int, default=0)
ap.add_argument('--q3d', type=int, default=0)
ap.add_argument('--nofill', type=int, default=0)
ap.add_argument('--D0', type=int, default=0)
ap.add_argument('--wD', type=int, default=0)
ap.add_argument('--wF', type=int, default=0)
ap.add_argument('--wX', type=int, default=0)
ap.add_argument('--mkat', type=int, default=0)
ap.add_argument('--shn', type=int, default=1)
ap.add_argument('--o2', type=int, default=0)
ap.add_argument('--ob', type=int, default=0)
ap.add_argument('--zsl', type=int, default=0)
ap.add_argument('--osl', type=int, default=0)
ap.add_argument('--sqb', type=int, default=0)
ap.add_argument('--P2QD', default='')
ap.add_argument('--hm', type=int, default=0)
ap.add_argument('--hn', type=int, default=8)
ap.add_argument('--hs', type=int, default=1)
ap.add_argument('--hp', type=int, default=2)
ap.add_argument('--hl', type=int, default=7)
ap.add_argument('--hpol', default='')
ap.add_argument('--wo1', type=int, default=4)
ap.add_argument('--noit1', type=int, default=0)
ap.add_argument('--DC0h', type=int, default=None)
ap.add_argument('--Cx', type=int, default=0)
ap.add_argument('--Cx0', type=int, default=0)
ap.add_argument('--Cf0', type=int, default=None)
ap.add_argument('--x4', type=int, default=0)
ap.add_argument('--far1', type=int, default=0)
ap.add_argument('--B2lo', type=int, default=None)
ap.add_argument('--B2hi', type=int, default=None)
ap.add_argument('--B3lo', type=int, default=None)
ap.add_argument('--gb', type=int, default=0)
ap.add_argument('--gb0', type=int, default=13)
ap.add_argument('--gbn', type=int, default=3)
ap.add_argument('--gbl', type=int, default=8)
ap.add_argument('--gbk', default='0123456')
ap.add_argument('--gd', default='')
ap.add_argument('--wS', type=int, default=0)
ap.add_argument('--wA', default='')
ap.add_argument('--wR', default='')
ap.add_argument('--al', type=int, default=0)
ap.add_argument('--sh', type=int, default=0)
ap.add_argument('--lay', type=int, default=1)
ap.add_argument('--tch', default='')
ap.add_argument('--tchm', default='0xfffff')
ap.add_argument('--tchp', default='sc1')
ap.add_argument('--quiet', action='store_true')
ap.add_argument('--ffirst', type=int, default=99)
ap.add_argument('--noof', type=int, default=0)
ap.add_argument('--plain', default='')
ap.add_argument('--B1pat', default='')
ap.add_argument('--acky', type=int, default=0)
ap.add_argument('--ackz', type=int, default=0)
ap.add_argument('--acko', type=int, default=0)
ap.add_argument('--nk', type=int, default=None)
ap.add_argument('--nv', type=int, default=0)
ap.add_argument('--alt', type=int, default=0)
ap.add_argument('--pfn', type=int, default=0)
ap.add_argument('--pfi', type=int, default=2)
ap.add_argument('--pf0', type=int, default=0)
ap.add_argument('--K72', type=int, default=2)
ap.add_argument('--q2p', type=int, default=None)
ap.add_argument('--pfpol', default='')
ap.add_argument('--pfs', type=int, default=2)
ap.add_argument('--DP2', type=int, default=None)
ap.add_argument('--B1lo', type=int, default=None)
ap.add_argument('--B1hi', type=int, default=None)
ap.add_argument('--sf', type=int, default=0)
ap.add_argument('--cts', action='store_true')
ap.add_argument('--Cfirst', action='store_true')
ap.add_argument('--msl', action='store_true')
ap.add_argument('--mlag', type=int, default=6)
ap.add_argument('--B1n', type=int, default=99)
ap.add_argument('--NC1', type=int, default=99)
ap.add_argument('--DC1', type=int, default=4)
ap.add_argument('--wpol', default='nt')
ap.add_argument('--nofast', action='store_true')
ap.add_argument('--skip', default='')
ap.add_argument('--bwtest', type=int, default=0)
ap.add_argument('--DB0', type=int, default=8)
ap.add_argument('--NB0', type=int, default=8)
ap.add_argument('--gateA', type=int, default=-1)
ap.add_argument('--gateB', type=int, default=-1)
ap.add_argument('--thA', type=int, default=0)
ap.add_argument('--thB', type=int, default=0)
ap.add_argument('--gsleep', type=int, default=1)
ap.add_argument('--gone', type=int, default=1)
ap.add_argument('--NEB', type=int, default=None)
ap.add_argument('--DEB', type=int, default=None)
ap.add_argument('--NP2', default='6,3,3,3,3')
ap.add_argument('--P2POS', default='9,30,55,80,100')
ap.add_argument('--P2ND', type=int, default=9)
ap.add_argument('--P2B1', type=int, default=2)
ap.add_argument('--P2H', type=int, default=0)
ap.add_argument('--P2G', default='')
ap.add_argument('--P2DS2', type=int, default=1)
ap.add_argument('--P2DSL', type=int, default=30)
ap.add_argument('--P2OOL', type=int, default=1)
ap.add_argument('--Cmix', action='store_true')
ap.add_argument('--icprobe', type=int, default=0)
ap.add_argument('--noack', action='store_true')
ap.add_argument('--map', type=int, default=2)
ap.add_argument('--ts', action='store_true')
ap.add_argument('--pad', type=int, default=0)
args = ap.parse_args()
polA = args.pol if args.polA is None else args.polA
polB = args.pol if args.polB is None else args.polB
polC = args.pol if args.polC is None else args.polC
polB1 = polB if args.polB1 is None else args.polB1


def sc(c):
    return '' if c in args.plain else 'sc1'


def f32(x):
    return '0x%08x' % struct.unpack('<I', struct.pack('<f', x))[0]


OFF_Q, OFF_O = 1024, 3072
HEADA = 11264
YB = 32 * HEADA
ZB = YB + 4 * 32768
if args.zl:
    ZB = (ZB + 131071) // 131072 * 131072
RACEB = ZB + (4 + args.xfill) * 131072
assert YB % 16384 == 0
WS_USED = RACEB + 2 * 16384
if args.yoff:
    YB = WS_USED = (WS_USED + 16383) // 16384 * 16384 + (args.yoff - 1) * 32768
    WS_USED += 131072
WS_USED += args.goff * 131072
GATEB = WS_USED
WS_USED += 2048
GBB = WS_USED
WS_USED += 8192 if args.gb else 0
TSB = WS_USED
WS_SIZE = TSB + (256 * 4 * 64 * 8 if args.ts else 0)
BATCH = 0x4000000
PARTB = 299008
LOG2E = 1.4426950408889634
SPIN_BUDGET = 400000

sU = 3
SK, SV, SWS, SDBG = 28, 32, 36, 40
SWQ, SWO, SGA, SUP, SDN, SX, SOUT = 44, 48, 52, 56, 60, 64, 68
sBud = 72
sT0, sT1 = 73, 74
sMaskJ8 = 76
sMaskV = 78
sMt = 80
sTS = 75
sTm = 82
sHA = 89
sBase, sOff, sLds, sPubJ, sStatJ, sPub, sStat, sH, sTail, sGate, sGo, sFo, sEx = 86, 87, 88, 90, 91, 92, 93, 94, 95, 96, 97, 98, 99
sIt, sJA, sYp, sYg, sRet, sQa, sG0, sG1, sG2, sG3, sKV, sOutB, sFast = 86, 87, 88, 90, 91, 92, 95, 96, 97, 98, 99, 100, 101
sHU, sZg = 93, 94
sHS, sVt, sIod = 0, 1, 27
sOt, sOm, sLoc = 6, 7, 8
sTag = 45
sQm = 4


def srd(i):
    return 's[%d:%d]' % (i, i + 3)


def sp(i):
    return 's[%d:%d]' % (i, i + 1)


def vq(i):
    return 'v[%d:%d]' % (i, i + 3)


def vp(i):
    return 'v[%d:%d]' % (i, i + 1)


def base_of(q):
    return int(q[2:].split(':')[0])


def pair(q0, q1):
    assert q0[0] == q1[0] and base_of(q1) == base_of(q0) + 4, (q0, q1)
    return '%s[%d:%d]' % (q0[0], base_of(q0), base_of(q0) + 7)


DPPF = 'row_mask:0xf bank_mask:0xf'
OOL = []
RAW = []
RAW2 = []
a = Asm()
e = a.e
_vmem = a.vmem


def vmem_dbg(text):
    drop = {'q': srd(SWQ), 'o': srd(SWO), 'g': srd(SGA), 'G': srd(SUP), 'd': srd(SDN)}
    sk = args.skip.replace('g', 'gG')
    for k, v in drop.items():
        if k in sk and v in text:
            text = text.replace(v, srd(SX))
    if 'store' in text and 'sc1' in text and srd(SWS) in text:
        small = any(l.strip() in ('s_mov_b64 exec, 15', 's_mov_b32 exec_hi, 0') for l in a.lines[-8:]) and not any(l.strip() == 's_mov_b64 exec, -1' for l in a.lines[-3:])
        svc = 'L_service:' in a.lines
        if 'f' in sk or ('s' in sk and small) or ('r' in sk and not small and not svc) or ('y' in sk and not small and svc):
            e('s_nop 0')
            return len(a.vm) - 1
        if 'p' in sk:
            text = text.replace('sc1', '')
        if 'n' in sk:
            text = text.replace('sc1', 'sc1 nt')
    return _vmem(text)


if args.skip:
    assert args.bwtest or args.ts
    a.vmem = vmem_dbg


def mk_srd(s, ptr, size):
    if s == SWS and args.wsoff:
        e('s_add_u32 s%d, s%d, 0x%x' % (s, ptr, args.wsoff << 20))
        e('s_addc_u32 s%d, s%d, 0' % (s + 1, ptr + 1))
    else:
        e('s_mov_b32 s%d, s%d' % (s, ptr))
        e('s_mov_b32 s%d, s%d' % (s + 1, ptr + 1))
    e('s_mov_b32 s%d, 0x%x' % (s + 2, size))
    e('s_mov_b32 s%d, 0x00020000' % (s + 3))


def smask(s, val):
    e('s_mov_b32 s%d, 0x%08x' % (s, val & 0xffffffff))
    e('s_mov_b32 s%d, 0x%08x' % (s + 1, val >> 32))


QSK = [0]


def stamp(tmp, entry=False):
    if args.quiet:
        if not entry and not args.lts and 'L_service:' not in a.lines and QSK[0] < 9:
            e('s_memrealtime s[%d:%d]' % (6 + 2 * QSK[0], 7 + 2 * QSK[0]))
            QSK[0] += 1
        return
    if not args.ts or (args.cts and not entry):
        return
    a.lgwait_all()
    e('s_memrealtime %s' % sp(sTm))
    if not entry:
        e('s_getreg_b32 s%d, hwreg(HW_REG_XCC_ID, 0, 4)' % (sTm + 2))
    e('s_waitcnt lgkmcnt(0)')
    e('v_mov_b32 v%d, s%d' % (tmp, sTm))
    e('v_mov_b32 v%d, s%d' % (tmp + 1, sTm + 2))
    e('s_mov_b64 exec, 1')
    a.vmem('buffer_store_dwordx2 %s, off, %s, s%d' % (vp(tmp), srd(SWS), sTS))
    e('s_mov_b64 exec, -1')
    e('s_add_u32 s%d, s%d, 8' % (sTS, sTS))


def ct(k):
    if args.cts:
        e('s_memtime s[%d:%d]' % (6 + 2 * k, 7 + 2 * k))


def sq_(k):
    if args.sqb:
        e('s_mov_b32 s%d, s%d' % (10 + 2 * k, sBud))
    elif args.sq:
        e('s_memrealtime s[%d:%d]' % (10 + 2 * k, 11 + 2 * k))


def sq_dump(tmp):
    if not args.sq:
        return
    e('s_waitcnt lgkmcnt(0)')
    e('s_mov_b64 exec, 1')
    for k in range(7):
        e('v_mov_b32 v%d, s%d' % (tmp, 10 + 2 * k))
        e('buffer_store_dword v%d, off, %s, s%d offset:%d' % (tmp, srd(SWS), sTS, k * 8))
        e('s_nop 1')
    e('s_add_u32 s%d, s%d, 64' % (sTS, sTS))
    e('s_mov_b64 exec, -1')


def ct_dump(tmp):
    if not (args.cts or args.b1ts or args.lts or args.quiet):
        return
    if args.quiet:
        e('s_memrealtime s[24:25]')
    e('s_waitcnt lgkmcnt(0)')
    e('s_and_b32 s%d, s%d, 0xfffffe00' % (sTS, sTS))
    e('s_mov_b64 exec, 1')
    if args.quiet:
        e('v_mov_b32 v%d, s84' % tmp)
        e('buffer_store_dword v%d, off, %s, s%d offset:4' % (tmp, srd(SWS), sTS))
        e('s_waitcnt vmcnt(0)')
    for k in range(11):
        e('v_mov_b32 v%d, s%d' % (tmp, 6 + 2 * k))
        e('buffer_store_dword v%d, off, %s, s%d offset:%d' % (tmp, srd(SWS), sTS, (40 + k) * 8))
        e('s_waitcnt vmcnt(0)')
    e('s_mov_b64 exec, -1')


SITES = []


def warm_site(grp):
    k = len(SITES)
    SITES.append(grp)
    if args.wX and grp == 'a':
        ns = len(args.wA.split(','))
        if k == 0:
            e('s_mov_b32 s48, 0')
            e('s_cmp_ge_u32 s%d, %d' % (sT0, ns))
            e('s_cselect_b32 s49, %d, 0' % (ns - args.wX + 1))
            e('s_sub_u32 s49, s%d, s49' % sT0)
            e('s_lshl2_add_u32 s49, s49, s%d' % sU)
            e('s_mov_b64 exec, 0')
            a.raw('L_wdisp:')
            for g in range(1, ns):
                a.raw('    s_cmp_ge_u32 s49, %d' % (4 * (ns - g)))
                a.raw('    s_cbranch_scc1 L_wd%d' % (ns - g))
            for g in range(ns):
                a.raw('L_wd%d:' % g)
                for w in range(1, 4):
                    a.raw('    s_cmp_eq_u32 s%d, %d' % (sU, w))
                    a.raw('    s_cbranch_scc1 @W%d_%d' % (g, w))
                a.raw('    s_branch @W%d_0' % g)
            a.raw('L_wret:')
            a.raw('    s_add_u32 s49, s49, 4')
            a.raw('    s_cmp_ge_u32 s49, %d' % (4 * ns))
            a.raw('    s_cselect_b32 s49, s%d, s49' % sU)
            a.raw('    s_add_u32 s48, s48, 1')
            for g in range(1, ns):
                a.raw('    s_cmp_eq_u32 s48, %d' % (g + 1))
                a.raw('    s_cbranch_scc1 L_wr%d' % g)
        else:
            e('s_mov_b64 exec, 0')
            a.raw('    s_branch L_wdisp')
        a.raw('L_wr%d:' % k)
        e('s_mov_b64 exec, -1')
        return
    e('s_mov_b64 exec, 0')
    for w in range(1, 4):
        e('s_cmp_eq_u32 s%d, %d' % (sU, w))
        a.raw('    s_cbranch_scc1 @W%d_%d' % (k, w))
    a.raw('    s_branch @W%d_0' % k)
    a.raw('L_wr%d:' % k)
    e('s_mov_b64 exec, -1')


def spin_tail(lbl, sleep=0):
    if sleep:
        e('s_sleep %d' % sleep)
    e('s_sub_u32 s%d, s%d, 1' % (sBud, sBud))
    e('s_cbranch_scc0 %s' % lbl)
    e('s_endpgm')


def allreduce_list(op, r, t, steps=(0, 1, 2, 3, 4, 5)):
    d = {0: 'quad_perm:[1,0,3,2]', 1: 'quad_perm:[2,3,0,1]', 2: 'row_ror:4', 3: 'row_ror:8'}
    out = []
    for s in steps:
        if s < 4:
            out.append('%s_dpp v%d, v%d, v%d %s %s' % (op, r, r, r, d[s], DPPF))
        else:
            out.append('v_mov_b32 v%d, v%d' % (t, r))
            out.append('v_permlane%d_swap_b32 v%d, v%d' % (16 if s == 4 else 32, r, t))
            out.append('%s v%d, v%d, v%d' % (op, r, r, t))
    return out


def build_bt(bt, q, n=4):
    for t in range(n):
        smask(sMt, 0x000F000F000F000F << (4 * t))
        for r in range(4):
            e('v_cndmask_b32 v%d, 0, v%d, %s' % (bt + 4 * t + r, q + r, sp(sMt)))


def score_ops(P, g, D, C, first):
    out = []
    for r in range(4):
        op = 'v_mul_f32_dpp' if first and r == 0 else 'v_fmac_f32_dpp'
        out.append('%s v%d, v%d, v%d quad_perm:[%d,%d,%d,%d] %s' % (op, P[g >> 2], D + r, C + (g & 3), r, r, r, r, DPPF))
    return out


def softmax(P, m, t, stat_soff, fill1, fill2, sw16, exm, tag):
    l = m + 1
    e('v_mov_b32 v%d, 0xff800000' % t)
    e('v_cndmask_b32 v%d, v%d, v%d, %s' % (P[-1], t, P[-1], sp(sMaskV)))
    if len(P) == 1:
        e('v_mov_b32 v%d, v%d' % (m, P[0]))
    else:
        e('v_max3_f32 v%d, v%d, v%d, v%d' % (m, P[0], P[1], P[2]))
        e('v_max3_f32 v%d, v%d, v%d, v%d' % (m, m, P[3], P[4]))
    a.chain(allreduce_list('v_max_f32', m, t), fill1)
    for p in P:
        e('v_sub_f32 v%d, v%d, v%d' % (p, p, m))
    for p in P:
        e('v_exp_f32 v%d, v%d' % (p, p))
    for p in P:
        e('v_cvt_pk_bf16_f32 v%d, 0, v%d' % (p, p))
    if len(P) == 1:
        e('v_mov_b32 v%d, v%d' % (l, P[0]))
    else:
        e('v_add_f32 v%d, v%d, v%d' % (l, P[0], P[1]))
        e('v_add_f32 v%d, v%d, v%d' % (t, P[2], P[3]))
        e('v_add_f32 v%d, v%d, v%d' % (l, l, P[4]))
        e('v_add_f32 v%d, v%d, v%d' % (l, l, t))
    fill = fill1 + fill2
    a.chain(allreduce_list('v_add_f32', l, t), fill)
    e('v_min_u32 v%d, -2, v%d' % (m, m))
    e('v_min_u32 v%d, -2, v%d' % (l, l))
    e('v_mov_b32 v%d, s%d' % (t, sw16))
    e('s_mov_b64 exec, 1')
    if stat_soff is not None:
        store_sel('buffer_store_dwordx2 %s, off, %s, s%d' % (vp(m), srd(SWS), stat_soff), tag, True)
    a.lds('ds_write_b32 v%d, v%d offset:%d' % (t, m, exm))
    e('s_mov_b64 exec, -1')
    for op in fill:
        e(op)


def store_sel(text, tag, count, raw=False, sFo=sFo):
    emit = a.vmem if count else e
    if tag is None:
        emit(text + ' ' + sc('D' if count else 'E'))
        return
    e('s_cmp_eq_u32 s%d, 0' % sFo)
    if raw:
        a.nop(a.needed(text))
        a.raw('    s_cbranch_scc0 L_st_%s' % tag)
        a.pos += 1
        emit(text)
        a.raw('L_str_%s:' % tag)
        RAW.append(['L_st_%s:' % tag, '    %s sc1' % text, '    s_branch L_str_%s' % tag])
        return
    e('s_cbranch_scc0 L_st_%s' % tag)
    emit(text)
    a.label('L_str_%s' % tag)
    OOL.append(('L_st_%s' % tag, [text + ' sc1', 's_branch L_str_%s' % tag]))


def scale_a(c, l16, exm):
    e('v_and_b32 v%d, 0x30, v%d' % (c, l16))
    a.lgwait_all()
    e('s_barrier')
    return a.lds('ds_read_b32 v%d, v%d offset:%d' % (c, c, exm))


def scale_b(c, m):
    return allreduce_list('v_max_f32', c, None, (0, 1)) + ['v_sub_f32 v%d, v%d, v%d' % (c, m, c), 'v_exp_f32 v%d, v%d' % (c, c)]


def wg_publish(O, c, wa, l8, exo, T, soff, tag, lbl, ack=0, sTag=sTag, sFo=sFo):
    if c is not None:
        e('v_mul_f32 v%d, v%d, v%d' % (O, O, c))
        e('v_mul_f32 v%d, v%d, v%d' % (O + 1, O + 1, c))
        e('s_cmp_lg_u32 s%d, 0' % sU)
    a.lds('ds_write_b64 v%d, %s offset:%d' % (wa, vp(O), exo))
    ta = T + 6
    if args.ob:
        e('v_lshrrev_b32 v%d, 8, v%d' % (T, l8))
        e('v_and_b32 v%d, 0xf8, v%d' % (T + 1, l8))
        e('v_lshl_or_b32 v%d, v%d, 2, v%d' % (ta, T, T + 1))
    a.lgwait_all()
    e('s_barrier')
    e('s_cbranch_scc1 %s' % lbl)
    for w in range(3):
        a.lds('ds_read_b64 %s, v%d offset:%d' % (vp(T + 2 * w), l8, exo + 512 * (w + 1)))
    e('s_waitcnt lgkmcnt(2)')
    e('v_pk_add_f32 %s, %s, %s' % (vp(O), vp(O), vp(T)))
    a.lgwait_all()
    e('v_pk_add_f32 %s, %s, %s' % (vp(T + 2), vp(T + 2), vp(T + 4)))
    e('v_pk_add_f32 %s, %s, %s' % (vp(O), vp(O), vp(T + 2)))
    if args.ob:
        e('v_cvt_pk_bf16_f32 v%d, v%d, v%d' % (O, O, O + 1))
        e('v_min_u32 v%d, -2, v%d' % (O, O))
        store_sel('buffer_store_dword v%d, v%d, %s, s%d offen' % (O, ta, srd(SWS), soff), tag, False, True, sFo)
    else:
        e('v_and_or_b32 v%d, v%d, -4, s%d' % (O, O, sTag))
        e('v_and_or_b32 v%d, v%d, -4, s%d' % (O + 1, O + 1, sTag))
        store_sel('buffer_store_dwordx2 %s, v%d, %s, s%d offen' % (vp(O), l8, srd(SWS), soff), tag, False, True, sFo)
    if ack:
        e('s_waitcnt vmcnt(0)')
    a.label(lbl)


def a_ops(A, src, sw, r):
    q = lambda x: 'quad_perm:[%d,%d,%d,%d]' % (x, x, x, x)
    return ['v_mov_b32_dpp v%d, v%d %s row_mask:0xf bank_mask:0x5' % (A, src, q(r)),
            'v_mov_b32_dpp v%d, v%d %s row_mask:0xf bank_mask:0xa' % (A + 1, sw, q(3 - r)),
            'v_mov_b32_dpp v%d, v%d %s row_mask:0xf bank_mask:0x5' % (A + 2, sw, q(3 - r)),
            'v_mov_b32_dpp v%d, v%d %s row_mask:0xf bank_mask:0xa' % (A + 3, src, q(r))]


def mirror(d, s):
    return 'v_mov_b32_dpp v%d, v%d row_half_mirror %s' % (d, s, DPPF)


def tail_a(A, p, lane, M, t):
    return ['v_lshrrev_b32 v%d, 16, v%d' % (t, p), 'v_or_b32 v%d, v%d, v%d' % (t, t, p)] + \
           ['v_and_b32_dpp v%d, v%d, v%d row_newbcast:%d %s' % (A + k, t, M + k, lane, DPPF) for k in range(4)]


def merge(O1, O2):
    e('v_permlane32_swap_b32 v%d, v%d' % (O1, O1 + 2))
    e('v_permlane32_swap_b32 v%d, v%d' % (O1 + 1, O1 + 3))
    if O2 is not None:
        e('v_permlane32_swap_b32 v%d, v%d' % (O2, O2 + 2))
        e('v_permlane32_swap_b32 v%d, v%d' % (O2 + 1, O2 + 3))
        e('v_add_f32 v%d, v%d, v%d' % (O1, O1, O2 + 2))
        e('v_add_f32 v%d, v%d, v%d' % (O1 + 1, O1 + 1, O2 + 3))


def publish2(r, voff, soff):
    e('v_min_u32 v%d, -2, v%d' % (r, r))
    e('v_min_u32 v%d, -2, v%d' % (r + 1, r + 1))
    a.vmem('buffer_store_dwordx2 %s, v%d, %s, s%d offen sc1' % (vp(r), voff, srd(SWS), soff))


def publish_local(r, voff, soff, tag):
    a.vmem('buffer_store_dwordx2 %s, v%d, %s, s%d offen %s' % (vp(r), voff, srd(SWS), soff, args.ypol))


def mfma(D, A, B, first):
    e('v_mfma_f32_16x16x32_bf16 %s, %s, %s, %s' % (D, A, B, '0' if first else D))


def smf(D, A, B, idx):
    e('v_smfmac_f32_16x16x64_bf16 %s, %s, %s, v%d' % (vq(D), vq(A), B, idx))


def mk_masks(M, t):
    rep = 0x0001000100010001
    e('v_mov_b32 v%d, 0xffff' % t)
    e('v_mov_b32 v%d, 0xffff0000' % (t + 1))
    for k in range(4):
        smask(sMt, rep << (2 * k))
        e('v_cndmask_b32 v%d, 0, v%d, %s' % (M + k, t, sp(sMt)))
        smask(sMt, rep << (2 * k + 1))
        e('v_cndmask_b32 v%d, v%d, v%d, %s' % (M + k, M + k, t + 1, sp(sMt)))


def mk_c(C, n, t):
    e('v_mov_b32 v%d, %s' % (t, f32(LOG2E / math.sqrt(128.0))))
    for r in range(n):
        smask(sMt, 0x1111111111111111 << r)
        e('v_cndmask_b32 v%d, 0, v%d, %s' % (C + r, t, sp(sMt)))


def mk_koff(d, lane, t):
    e('v_and_b32 v%d, 3, v%d' % (d, lane))
    e('v_lshlrev_b32 v%d, 4, v%d' % (d, d))
    e('v_bfe_u32 v%d, v%d, 2, 2' % (t, lane))
    e('v_lshl_or_b32 v%d, v%d, 9, v%d' % (d, t, d))
    e('v_lshrrev_b32 v%d, 4, v%d' % (t, lane))
    e('v_lshl_or_b32 v%d, v%d, 6, v%d' % (d, t, d))


def mk_qoff(d, lane, t):
    e('v_and_b32 v%d, 3, v%d' % (d, lane))
    e('v_lshlrev_b32 v%d, 4, v%d' % (d, d))
    e('v_lshrrev_b32 v%d, 4, v%d' % (t, lane))
    e('v_lshl_or_b32 v%d, v%d, 6, v%d' % (d, t, d))


def idx_ops(d, l16):
    return ['v_bfe_u32 v%d, v%d, 4, 2' % (d, l16), 'v_mul_u32_u24 v%d, 0x4444, v%d' % (d, d)]


def tail_soff(dst, t):
    e('s_lshr_b32 s%d, s%d, 1' % (dst, sU))
    e('s_lshl_b32 s%d, s%d, 11' % (dst, dst))
    e('s_and_b32 s%d, s%d, 1' % (t, sU))
    e('s_lshl_b32 s%d, s%d, 8' % (t, t))
    e('s_add_u32 s%d, s%d, s%d' % (dst, dst, t))


if args.ts or args.pad:
    e('s_memrealtime s[84:85]')
e('s_cmp_ge_u32 s2, 256')
e('s_cbranch_scc0 L_go')
e('s_endpgm')
a.label('L_go')
e('s_load_dwordx16 s[4:19], s[0:1], 0')
e('s_load_dwordx8 s[20:27], s[0:1], 64')
e('v_lshrrev_b32 v1, 6, v0')
e('v_and_b32 v0, 63, v0')
e('v_readfirstlane_b32 s%d, v1' % sU)
e('s_mov_b32 s%d, %d' % (sBud, SPIN_BUDGET))
if args.ts:
    e('s_lshl_b32 s%d, s2, 2' % sTS)
    e('s_add_u32 s%d, s%d, s%d' % (sTS, sTS, sU))
    e('s_lshl_b32 s%d, s%d, 9' % (sTS, sTS))
    e('s_add_u32 s%d, s%d, 0x%x' % (sTS, sTS, TSB))
if args.map == 0:
    e('s_cmp_lt_u32 s2, 32')
    e('s_cbranch_scc1 L_service')
elif args.map == 1:
    e('s_and_b32 s%d, s2, 7' % sT0)
    e('s_lshr_b32 s2, s2, 3')
    e('s_sub_u32 s%d, s%d, 1' % (sT0, sT0))
    e('s_cbranch_scc1 L_service')
else:
    e('s_lshr_b32 s%d, s2, 5' % sT0)
    e('s_and_b32 s2, s2, 31')
    e('s_sub_u32 s%d, s%d, 1' % (sT0, sT0))
    e('s_cbranch_scc1 L_service')

vKo, vVo, vLd, vM, vC, vBT, vD = 4, 1, 11, 44, 7, 12, 28
vO1, vO2, vIdx, vMl = 12, 16, 25, 26
PA = [40, 41, 42, 43, 2]
PB = [48, 49, 50, 51, 3]
PS = [20, 21, 22, 23, 24]
vQ1, vQo, vPo = 48, 6, 5
PARK = {0: 32, 4: 16, 1: 20, 5: 24, 2: 36, 6: 44, 3: 8, 7: 0} if args.park else {}
sBM, sMM = 56, 64
vQL = 40
vSc = vMl + 1
NQ = 73
NR = 8
RING = ['v[%d:%d]' % (52 + 4 * i, 55 + 4 * i) for i in range(NR)]
_ka = ['a[%d:%d]' % (4 * i, 4 * i + 3) for i in range(64)]
_kv = ['v[%d:%d]' % (84 + 4 * i, 87 + 4 * i) for i in range(9)]
KS = _ka[:args.X - 8] + _kv[:8] + _ka[args.X - 8:] + _kv[8:]
VSR = ['v[%d:%d]' % (120 + 4 * i, 123 + 4 * i) for i in range(34)]
NLV = 38
EXO, EXM, LVB, LVS = 0, 2048, 4096, 39936
VORD = list(range(NLV)) + [72] + list(range(NLV, 72))


def vslot(i):
    return ('L', i) if i < NLV else ('L', NLV) if i == 72 else VSR[i - NLV]


for x in range(224):
    assert (x * 293) >> 11 == x // 7
if args.map == 0:
    e('s_sub_u32 s%d, s2, 32' % sT0)
    e('s_mul_i32 s%d, s%d, 293' % (sH, sT0))
    e('s_lshr_b32 s%d, s%d, 11' % (sH, sH))
    e('s_mul_i32 s%d, s%d, 7' % (sT1, sH))
    e('s_sub_u32 s%d, s%d, s%d' % (sT0, sT0, sT1))
else:
    e('s_mov_b32 s%d, s2' % sH)
e('s_lshl_b32 s%d, s%d, 21' % (sLds, sH))
e('s_mul_i32 s%d, s%d, %d' % (sT1, sT0, args.ilv * 16384 or PARTB))
e('s_add_u32 s%d, s%d, s%d' % (sLds, sLds, sT1))
e('s_lshl_b32 s%d, s%d, 12' % (sT1, sU))
e('s_add_u32 s%d, s%d, s%d' % (sBase, sLds, sT1))
sBase2 = 44
sBaseV, sTailV = 45, 46
if args.nk == 2:
    e('s_waitcnt lgkmcnt(0)')
    e('s_load_dwordx2 s[50:51], s[14:15], 0')
    e('s_waitcnt lgkmcnt(0)')
if args.nk is not None:
    e('s_andn2_b32 s47, s%d, 4' % sH)
    e('s_lshr_b32 s48, s%d, 1' % sU)
    e('s_lshl2_add_u32 s47, s48, s47')
    e('s_getreg_b32 s48, hwreg(HW_REG_XCC_ID, 2, 1)')
    e('s_xor_b32 s48, s48, s47')
    e('s_xor_b32 s48, s48, %s' % (args.nk if args.nk < 2 else 's50'))
    e('s_and_b32 s48, s48, 1')
    e('s_lshl_b32 s48, s48, 13')
    e('s_lshl_b32 s47, s47, 21')
    e('s_add_u32 s47, s47, s48')
    e('s_and_b32 s48, s%d, 1' % sU)
    e('s_lshl_b32 s49, s48, 12')
    e('s_mul_i32 s%d, s%d, %d' % (sBase, sT0, 18 * 16384))
    e('s_add_u32 s%d, s%d, s49' % (sBase, sBase))
    e('s_add_u32 s%d, s%d, s47' % (sBase, sBase))
    e('s_xor_b32 s%d, s%d, %s' % (sBaseV, sBase, (args.nk ^ args.nv) << 13 if args.nk < 2 else 's51'))
    e('s_lshr_b32 s49, s%d, 2' % sT0)
    e('s_lshl_b32 s49, s49, 14')
    e('s_add_u32 s47, s47, s49')
    e('s_and_b32 s49, s%d, 3' % sT0)
    e('s_lshl_b32 s49, s49, 11')
    e('s_add_u32 s47, s47, s49')
    e('s_lshl_b32 s48, s48, 8')
    e('s_add_u32 s47, s47, s48')
    e('s_add_u32 s47, s47, %d' % (126 * 16384))
    e('s_xor_b32 s%d, s47, %s' % (sTailV, (args.nk ^ args.nv) << 13 if args.nk < 2 else 's51'))
if args.alt:
    e('s_xor_b32 s%d, s%d, 0x2000' % (sT1, sT1))
    e('s_add_u32 s%d, s%d, s%d' % (sBase2, sLds, sT1))
e('v_lshlrev_b32 v%d, 4, v0' % vVo)
if args.kpat:
    e('v_and_b32 v%d, 1, v0' % vKo)
    e('v_lshlrev_b32 v%d, 4, v%d' % (vKo, vKo))
    e('v_bfe_u32 v%d, v0, 1, 1' % vD)
    e('v_lshl_or_b32 v%d, v%d, 10, v%d' % (vKo, vD, vKo))
    e('v_bfe_u32 v%d, v0, 2, 1' % vD)
    e('v_lshl_or_b32 v%d, v%d, 8, v%d' % (vKo, vD, vKo))
    e('v_bfe_u32 v%d, v0, 3, 1' % vD)
    e('v_lshl_or_b32 v%d, v%d, 11, v%d' % (vKo, vD, vKo))
    e('v_lshrrev_b32 v%d, 4, v0' % vD)
    e('v_lshl_or_b32 v%d, v%d, 5, v%d' % (vKo, vD, vKo))
else:
    mk_koff(vKo, 0, vD)
e('s_waitcnt lgkmcnt(0)')
mk_srd(SK, 6, 2 * BATCH)


sMode, sVote = 100, 101
MS = {'on': False, 'list': [tuple(int(y) for y in x.split(':')) for x in args.ms.split(',') if x], 'k': 0, 'pend': None, 'reg': 51, 'ok': True}


def rmode():
    if MS['on'] and args.vfull:
        e('s_cmp_lg_u32 s%d, 0' % sMode)
        e('s_cselect_b64 vcc, -1, 0')
    elif MS['on']:
        e('s_mov_b32 vcc_lo, s%d' % sMode)
        e('s_mov_b32 vcc_hi, 0')


sRep, sRp, sGl, sXb, sGb, sOwn = 52, 53, 54, 55, 46, 47


def ms_hook(n):
    if args.hm and n >= args.hm and not MS.get('hm'):
        MS['hm'] = 1
        lb = a.newlabel('L_hm')
        e('s_cmp_eq_u32 s%d, 1' % sU)
        a.skip_begin('s_cbranch_scc0', lb)
        e('s_mov_b64 exec, 1')
        e('buffer_store_byte v%d, off, %s, s%d' % (vPo, srd(SWS), sVote))
        e('s_mov_b64 exec, -1')
        a.skip_end(lb)
    if MS['pend'] and n >= MS['pend'][0] and MS['pend'][2] is None:
        _, nv, thr, reg = MS['pend']
        MS['pend'] = None
        lb = a.newlabel('L_gb')
        e('s_cmp_lt_u32 s%d, s%d' % (sRp, sRep))
        e('s_cbranch_scc0 %s' % lb)
        e('s_waitcnt vmcnt(%d)' % (len(a.vm) - nv))
        e('v_cmp_ne_u32 %s, 0, v%d' % (sp(sMt), reg))
        e('s_and_b32 s%d, s%d, 0xff' % (sMt, sMt))
        e('s_or_b32 s%d, s%d, s%d' % (sMt, sMt, sOwn))
        e('s_bcnt1_i32_b32 s%d, s%d' % (sMt, sMt))
        e('s_lshr_b32 s%d, s%d, 1' % (sMt, sMt))
        e('s_bfm_b64 %s, s%d, 0' % (sp(sMt), sMt))
        e('v_cndmask_b32 v%d, 0, 1, %s' % (reg, sp(sMt)))
        e('s_mov_b64 exec, 15')
        e('buffer_store_byte v%d, v%d, %s, s%d offen offset:%d' % (reg, vPo, srd(SWS), sGate, 224 + MS['k']))
        e('s_mov_b64 exec, -1')
        a.label(lb)
    if MS['pend'] and n >= MS['pend'][0]:
        _, tk, thr, reg = MS['pend']
        MS['pend'] = None
        a.vmwait(tk)
        e('v_cmp_ne_u32 vcc, 0, v%d' % reg)
        if args.gb:
            e('s_lshr_b32 s%d, vcc_lo, 28' % sXb)
            e('s_bcnt1_i32_b32 s%d, s%d' % (sXb, sXb))
            e('s_mul_i32 s%d, s%d, %d' % (sXb, sXb, args.gb))
        if args.msl:
            e('s_and_b32 vcc_lo, vcc_lo, 0x0fffffff')
        e('s_bcnt1_i32_b32 s%d, vcc_lo' % sMode)
        k = MS['k'] - 1
        if args.gb and str(k) in args.gbk:
            lb = a.newlabel('L_gr')
            e('v_lshlrev_b32 v%d, 7, v%d' % (reg, vPo))
            e('s_sub_u32 s%d, s%d, %d' % (sRp, sMode, args.gb0))
            e('s_cmp_lt_u32 s%d, s%d' % (sRp, sRep))
            a.skip_begin('s_cbranch_scc0', lb)
            e('s_mov_b64 exec, 0xffff')
            assert vPo & 1
            e('buffer_store_dwordx2 %s, v%d, %s, s%d offen offset:%d sc1' % (vp(vPo - 1), vPo, srd(SWS), sGl, 128 * k))
            e('s_andn2_b32 exec_lo, 0xff, s%d' % sOwn)
            e('buffer_load_dword v%d, v%d, %s, s%d offen offset:%d sc1' % (reg, reg, srd(SWS), sGb, 128 * k + 12))
            e('s_mov_b64 exec, -1')
            a.skip_end(lb)
            MS['pend'] = (n + args.gbl, len(a.vm), None, reg)
        for x in args.gd.split(','):
            if x and int(x.split(':')[0]) == k:
                lb = a.newlabel('L_gd')
                e('s_cmp_le_u32 s%d, %d' % (sXb, args.gb * int(x.split(':')[1])))
                a.skip_begin('s_cbranch_scc0', lb)
                e('s_waitcnt vmcnt(%s)' % x.split(':')[2])
                a.skip_end(lb)
        if args.gb:
            e('s_add_u32 s%d, s%d, s%d' % (sMode, sMode, sXb))
            thr += 2 * args.gb
        e('s_cmp_lt_u32 s%d, %d' % (sMode, thr))
        e('s_cselect_b32 s%d, -1, 0' % sMode)
        MS['on'] = True
        rmode()
    if MS['list'] and n >= MS['list'][0][0] and not MS['pend']:
        pos, thr = MS['list'].pop(0)
        k = MS['k']
        MS['k'] += 1
        assert k < 8 and MS['ok'] and args.msl
        lb = a.newlabel('L_nv')
        if args.msl:
            e('s_cmp_eq_u32 s%d, 1' % sU)
            a.skip_begin('s_cbranch_scc0', lb)
            e('s_mov_b64 exec, 2')
            e('buffer_store_byte v%d, off, %s, s%d offset:%d' % (vPo, srd(SWS), sVote, k))
            e('s_mov_b32 exec_lo, -1')
            a.skip_end(lb)
            e('s_mov_b32 exec_hi, 0')
            tk = a.vmem('buffer_load_ubyte v%d, v%d, %s, s%d offen offset:%d sc1' % (MS['reg'], vPo, srd(SWS), sGate, k))
            e('s_mov_b32 exec_hi, -1')
            MS['pend'] = (n + args.mlag, tk, thr, MS['reg'])
            return
        e('s_cmp_lt_u32 s%d, 256' % sVote)
        a.skip_begin('s_cbranch_scc0', lb)
        e('s_mov_b64 exec, 1')
        e('buffer_store_byte v%d, off, %s, s%d offset:%d sc1' % (vM, srd(SDBG), sVote, k))
        e('s_mov_b64 exec, -1')
        a.skip_end(lb)
        tk = a.vmem('buffer_load_ubyte v%d, v%d, %s, 0 offen offset:%d sc1' % (MS['reg'], vPo, srd(SDBG), 128 + k))
        MS['pend'] = (n + 6, tk, thr, MS['reg'])


def goff(g):
    if args.ilv:
        assert 18 % args.ilv == 0
        return (g // args.ilv * 7 * args.ilv + g % args.ilv) * 16384
    return g * 16384


class Sched:
    def __init__(self):
        self.tok = []
        self.queue = []
        self.lastgrp = None

    def issue(self, kind, b, i, dest, pol):
        g, t = i >> 2, i & 3
        LTS = [int(x) for x in args.lts.split(',') if x]
        if args.ets and len(self.tok) in (0, 6):
            kk = 48 if len(self.tok) == 0 else 52
            e('s_memrealtime s[%d:%d]' % (kk, kk + 1))
        if args.ets and len(self.tok) == 9:
            e('s_waitcnt lgkmcnt(0)')
            e('s_mov_b64 s[22:23], s[84:85]')
            for kk in range(3):
                e('s_mov_b64 s[%d:%d], s[%d:%d]' % (16 + 2 * kk, 17 + 2 * kk, 48 + 2 * kk, 49 + 2 * kk))
        if len(self.tok) in LTS:
            kk = LTS.index(len(self.tok))
            e('s_memrealtime s[%d:%d]' % (6 + 2 * kk, 7 + 2 * kk))
        key = (kind, b, g, dest[0] == 'L')
        if self.lastgrp != key:
            if g == 18:
                e('s_add_u32 s%d, s%d, 0x%x' % (sOff, sTail if args.nk is None else 47 if kind == 'K' else sTailV, b * BATCH))
            else:
                e('s_add_u32 s%d, s%d, 0x%x' % (sOff, sBase2 if args.alt and (g // args.alt) & 1 else sBaseV if args.nk is not None and kind == 'V' else sBase, goff(g) + b * BATCH))
            if dest[0] == 'L':
                e('s_add_u32 m0, s%d, 0x%x' % (sLds, (dest[1] - t) * 1024))
            self.lastgrp = key
        s = srd(SK if kind == 'K' else SV)
        vo = vKo if kind == 'K' else vVo
        imm = (t >> 1) * 2048 + (t & 1) * 256 if kind == 'K' else t * 1024
        if args.kpat and kind == 'K':
            imm = (t >> 1) * 512 + (t & 1) * 128
        if kind == 'V' and g == 18:
            e('v_and_b32 v0, 0x300, v%d' % vVo)
            e('v_add_u32 v0, v0, v%d' % vVo)
            vo = 0
        if pol == 'X':
            e('s_mov_b32 exec_lo, 0x1111')
            e('s_mov_b32 exec_hi, 0x1111')
            a.vmem('buffer_load_dword v%d, v%d, %s, s%d offen offset:%d nt' % (base_of(dest), vo, s, sOff, imm))
            e('s_mov_b64 exec, -1')
            pol = ''
        if dest[0] == 'L':
            tk = a.vmem('buffer_load_dwordx4 v%d, %s, s%d offen offset:%d %s lds' % (vo, s, sOff, imm, pol))
        else:
            tk = a.vmem('buffer_load_dwordx4 %s, v%d, %s, s%d offen offset:%d %s' % (dest, vo, s, sOff, imm, pol))
        self.tok.append(tk)
        for _ in range(args.wA.split(',').count(str(len(self.tok)))):
            warm_site('a')
        return tk

    def pace(self, d, lo=None, hi=None):
        n = len(self.tok)
        if lo is not None:
            ms_hook(n)
        if args.wD and [k for k in range(1, args.wD - 5) if str(n + k) in args.wA.split(',')]:
            d = args.wD
            if lo is not None:
                lo = hi = d
        if lo is not None and MS['on'] and lo != hi:
            a.vmwait(self.tok[n - hi])
            tk = self.tok[n - lo]
            if tk >= a.vm_done:
                lb = a.newlabel('L_pc')
                a.skip_begin('s_cbranch_vccz', lb)
                e('s_waitcnt vmcnt(%d)' % (len(a.vm) - 1 - tk))
                a.skip_end(lb)
            return
        if lo is not None and MS['on']:
            d = lo
        if n >= d:
            a.vmwait(self.tok[n - d])

    def run_item(self, it):
        for tk in it.get('need', []):
            a.vmwait(tk())
        it['fn']()
        it['done'] = True

    def ready(self, it):
        for tk in it.get('need', []):
            v = tk()
            if v is None or v >= a.vm_done:
                return False
        return True

    def run_until(self, it):
        while not it.get('done'):
            self.run_item(self.queue.pop(0))

    def run_budget(self, budget):
        while self.queue and budget > 0 and self.ready(self.queue[0]):
            it = self.queue.pop(0)
            self.run_item(it)
            budget -= it['cost']

    def drain(self):
        while self.queue:
            self.run_item(self.queue.pop(0))


S = Sched()
LT = {}
LOC = {}


def need(kind, b, i):
    return lambda: LT.get((kind, b, i))


def item(fn, cost, needs=()):
    it = {'fn': fn, 'cost': cost, 'need': list(needs)}
    S.queue.append(it)
    return it


def add_k_items(b, P, idxs):
    its = {}
    for i in idxs:
        g, t = i >> 2, i & 3
        D = vD + 4 * (g % 3)
        last = t == 3 or i == NQ - 1

        def fn(i=i, g=g, t=t, D=D, last=last):
            mfma(vq(D), LOC[('K', b, i)], vq(vBT + 4 * t), t == 0)
            if last:
                for op in score_ops(P, g, D, vC, (g & 3) == 0):
                    e(op)
        its[i] = item(fn, 4 + (18 if last else 0), [need('K', b, i)])
    return its


def att_softmax(P, g0, g1, tag):
    f1 = ['v_mov_b32 v%d, 0' % r for r in list(range(vD, vD + 12)) + list(range(vO1, vO1 + 8))] + idx_ops(vIdx, vVo)
    f2 = [mirror(PS[k], P[k]) for k in range(5)]
    f2 += a_ops(vD, P[g0 >> 2], PS[g0 >> 2], g0 & 3) + a_ops(vD + 4, P[g1 >> 2], PS[g1 >> 2], g1 & 3)
    softmax(P, vMl, 0, sStatJ, f1, f2, sEx, EXM, 's' + tag)


def pv_end(tag):
    e('s_lshl_b32 s%d, s%d, 5' % (sT0, sEx))
    e('v_add_u32 v0, s%d, v%d' % (sT0, vPo))
    merge(vO1, vO2)
    wg_publish(vO1, vSc, 0, vPo, EXO, vD, sPubJ, 'o' + tag, 'L_np' + tag)


st_ = {}


def add_v_items(b, P, temps, tag):
    tcount = [0]
    sc = {}

    def sca():
        sc['tk'] = scale_a(vSc, vVo, EXM)

    def scb():
        a.lgwait(sc['tk'])
        for op in scale_b(vSc, vMl):
            e(op)

    def tail_rd():
        k = tcount[0] % (len(temps) // 2)
        tcount[0] += 1
        sc['t'] = (temps[2 * k], temps[2 * k + 1], a.lds('ds_read_b128 %s, v%d offset:%d' % (temps[2 * k], vLd, NLV * 1024)))

    def tail_mm():
        src, A, tk = sc['t']
        for op in tail_a(base_of(A), P[4], 2, vM, 0):
            e(op)
        a.lgwait(tk)
        mfma(vq(vO1), A, src, False)

    for g in range(18):
        if g == 2:
            item(sca, 10)
        if g == 3:
            item(scb, 12)
        A = vD + 4 * (g % 3)
        An = vD + 4 * ((g + 2) % 3)
        if g + 2 < 18:
            nxt = a_ops(An, P[(g + 2) >> 2], PS[(g + 2) >> 2], (g + 2) & 3)
        else:
            nxt = []
        for half in range(2):
            i0 = 4 * g + 2 * half
            if i0 == NLV:
                item(tail_rd, 2, [need('V', b, 72)])
                st_['tmp' + tag] = item(tail_mm, 30)
            O = (vO1, vO2)[half]
            ops = nxt[:len(nxt) // 2] if half == 0 else nxt[len(nxt) // 2:]
            st = {}
            if i0 < NLV:
                def rd(i0=i0, st=st):
                    k = tcount[0] % (len(temps) // 2)
                    tcount[0] += 1
                    a.lds('ds_read_b128 %s, v%d offset:%d' % (temps[2 * k], vLd, i0 * 1024))
                    st['tk'] = a.lds('ds_read_b128 %s, v%d offset:%d' % (temps[2 * k + 1], vLd, i0 * 1024 + 1024))
                    st['src'] = pair(temps[2 * k], temps[2 * k + 1])
                item(rd, 2, [need('V', b, i0), need('V', b, i0 + 1)])

                def fn(A=A, O=O, st=st, ops=ops):
                    for op in ops:
                        e(op)
                    a.lgwait(st['tk'])
                    smf(O, A, st['src'], vIdx)
                item(fn, 30)
            else:
                def fn(A=A, O=O, i0=i0, ops=ops):
                    smf(O, A, pair(VSR[i0 - NLV], VSR[i0 + 1 - NLV]), vIdx)
                    for op in ops:
                        e(op)
                item(fn, 6, [need('V', b, i0), need('V', b, i0 + 1)])

    def pub():
        a.raw('M_pub%s:' % tag)
        pv_end(tag)
        stamp(vD)
    return item(pub, 40)


def q_load(job, land):
    e('s_add_u32 s%d, s%d, 0x%x' % (sT0, sHA, job * 256 + OFF_Q))
    return 'buffer_load_dwordx4 %s, v%d, %s, s%d offen sc1' % (vq(land), vQo, srd(SWS), sT0)


def q_check(job, land, tk, tmp):
    pf = job == 2 and (args.pfn or args.pf0)
    if pf:
        assert args.X // 4 + args.pfn * args.pfi + args.pf0 <= 18
        e('s_add_u32 s%d, s%d, 0x%x' % (sOff, sBase, args.X // 4 * 16384 + BATCH))
        e('s_mov_b32 s%d, %d' % (sT1, args.pfi))
        e('s_mov_b32 m0, 3072')
        e('v_lshlrev_b32 v%d, %d, v%d' % (tmp + 1, args.pfs, vVo))
        S.lastgrp = None
        for k in range(args.pf0):
            a.vmem('buffer_load_dword v%d, %s, s%d offen %s lds' % (tmp + 1, srd(SK), sOff, args.pfpol))
            e('s_add_u32 s%d, s%d, 16384' % (sOff, sOff))
    a.vmwait(tk)
    if job == 2 and args.q2fb:
        e('s_mov_b32 s%d, 0' % sMode)
        MS['on'] = True
    lc = a.newlabel('L_qc')
    lok = a.newlabel('L_qok')
    pf = job == 2 and args.pfn
    a.label(lc)
    e('v_max3_u32 v%d, v%d, v%d, v%d' % (tmp, land, land + 1, land + 2))
    e('v_max_u32 v%d, v%d, v%d' % (tmp, tmp, land + 3))
    e('v_cmp_eq_u32 vcc, -1, v%d' % tmp)
    e('s_cbranch_vccz %s' % lok)
    e(q_load(job, land))
    if pf:
        e('s_cmp_eq_u32 s%d, 0' % sT1)
        e('s_cbranch_scc1 L_nopf')
        e('s_sub_u32 s%d, s%d, 1' % (sT1, sT1))
        if args.pfs == 3:
            e('s_mov_b32 exec_hi, 0')
        for k in range(args.pfn):
            e('buffer_load_dword v%d, %s, s%d offen %s lds' % (tmp + 1, srd(SK), sOff, args.pfpol))
            e('s_add_u32 s%d, s%d, 16384' % (sOff, sOff))
        if args.pfs == 3:
            e('s_mov_b32 exec_hi, -1')
        e('s_waitcnt vmcnt(%d)' % args.pfn)
        e('s_branch %s' % lc)
        a.label('L_nopf')
    e('s_waitcnt vmcnt(0)')
    if job == 2 and args.q2fb:
        e('s_mov_b32 s%d, -1' % sMode)
    spin_tail(lc)
    a.label(lok)
    if job < 2:
        rmode()


def late_setup():
    mk_srd(SV, 8, 2 * BATCH)
    mk_srd(SWS, 26, WS_SIZE)
    mk_srd(SDBG, 24, 256)
    smask(sMaskV, 0x3337333733373337)
    tail_soff(sTail, sT1)
    e('s_add_u32 s%d, s%d, s%d' % (sTail, sTail, sLds))
    if args.ilv:
        e('s_mul_i32 s%d, s%d, %d' % (sT1, sT0, args.ilv * 16384 - 4096))
        e('s_sub_u32 s%d, s%d, s%d' % (sTail, sTail, sT1))
    e('s_add_u32 s%d, s%d, %d' % (sTail, sTail, (126 if args.ilv else 18) * 16384))
    e('s_mul_i32 s%d, s%d, %d' % (sLds, sU, LVS))
    e('s_add_u32 s%d, s%d, %d' % (sLds, sLds, LVB))
    e('s_lshl_b32 s%d, s%d, 4' % (sEx, sU))
    e('v_add_u32 v%d, s%d, v%d' % (vLd, sLds, vVo))
    e('s_mul_i32 s%d, s%d, %d' % (sHA, sH, HEADA))
    if args.gateA >= 0 or args.gateB >= 0:
        if args.map == 1:
            e('s_lshl_b32 s%d, s%d, 8' % (sGate, sT0))
            e('s_lshl_b32 s%d, s%d, 2' % (sGo, sH))
        else:
            e('s_and_b32 s%d, s%d, 7' % (sGate, sH))
            e('s_lshl_b32 s%d, s%d, 8' % (sGate, sGate))
            e('s_lshr_b32 s%d, s%d, 3' % (sGo, sH))
            e('s_lshl2_add_u32 s%d, s%d, s%d' % (sGo, sT0, sGo))
            e('s_lshl_b32 s%d, s%d, 2' % (sGo, sGo))
        e('s_add_u32 s%d, s%d, 0x%x' % (sGate, sGate, GATEB))
        e('s_add_u32 s%d, s%d, s%d' % (sGo, sGo, sU))
        e('s_add_u32 s%d, s%d, s%d' % (sGo, sGo, sGate))
        e('v_mov_b32 v%d, 0' % vD)
        e('s_mov_b64 exec, 1')
        a.vmem('buffer_store_byte v%d, off, %s, s%d' % (vD, srd(SWS), sGo))
        a.vmem('buffer_store_byte v%d, off, %s, s%d offset:128' % (vD, srd(SWS), sGo))
        e('s_mov_b64 exec, -1')
    if args.msl:
        e('s_and_b32 s%d, s%d, 7' % (sGate, sH))
        e('s_lshl_b32 s%d, s%d, 8' % (sGate, sGate))
        e('s_add_u32 s%d, s%d, 0x%x' % (sGate, sGate, GATEB))
        e('s_lshr_b32 s%d, s%d, 3' % (sVote, sH))
        e('s_lshl2_add_u32 s%d, s%d, s%d' % (sVote, sT0, sVote))
        e('s_lshl3_add_u32 s%d, s%d, s%d' % (sVote, sVote, sGate))
        e('v_mov_b32 v%d, 0' % vD)
        e('v_mov_b32 v%d, 0' % (vD + 1))
        e('s_cmp_eq_u32 s%d, 1' % sU)
        e('s_cbranch_scc0 L_nz')
        e('s_mov_b64 exec, 1')
        e('buffer_store_dwordx2 %s, off, %s, s%d' % (vp(vD), srd(SWS), sVote))
        if args.gb:
            e('s_cmp_eq_u32 s%d, 0' % sT0)
            e('s_cbranch_scc0 L_nz1')
            e('s_bitcmp1_b32 s%d, 4' % sH)
            e('s_cselect_b32 s%d, 0, -1' % sRep)
            e('v_mov_b32 v%d, s%d' % (vD + 2, sRep))
            e('v_mov_b32 v%d, s%d' % (vD + 3, sRep))
            e('buffer_store_dwordx2 %s, off, %s, s%d offset:224' % (vp(vD + 2), srd(SWS), sVote))
            a.label('L_nz1')
        e('s_mov_b64 exec, -1')
        e('s_nop 1')
        a.label('L_nz')
        if args.gb:
            e('s_cmp_eq_u32 s%d, 1' % sU)
            e('s_cselect_b32 s%d, %d, 0' % (sRep, args.gbn))
            e('s_and_b32 s%d, s%d, 7' % (sGl, sH))
            e('s_lshl_b32 s%d, 1, s%d' % (sOwn, sGl))
            e('s_lshl_b32 s%d, s%d, 10' % (sGl, sGl))
            e('s_mov_b32 s%d, 0x%x' % (sGb, GBB))
            e('s_add_u32 s%d, s%d, s%d' % (sGl, sGl, sGb))
            e('s_lshr_b32 s%d, s%d, 3' % (sXb, sH))
            e('s_lshl2_add_u32 s%d, s%d, s%d' % (sXb, sXb, sU))
            e('s_lshl3_add_u32 s%d, s%d, s%d' % (sXb, sXb, sT0))
            e('s_cmp_eq_u32 s%d, %d' % (sXb, 2 * 8 + 1))
            e('s_cbranch_scc0 L_nz2')
            e('v_mov_b32 v%d, 0' % (vD + 2))
            e('v_mov_b32 v%d, 0' % (vD + 3))
            e('buffer_store_dwordx4 %s, v%d, %s, s%d offen sc1' % (vq(vD), vVo, srd(SWS), sGl))
            a.label('L_nz2')
    elif args.ms:
        e('s_lshr_b32 s%d, s%d, 3' % (sVote, sH))
        e('s_lshl2_add_u32 s%d, s%d, 1' % (sVote, sVote))
        e('s_xor_b32 s%d, s%d, s%d' % (sVote, sVote, sT0))
        e('s_xor_b32 s%d, s%d, 1' % (sMode, sU))
        e('s_or_b32 s%d, s%d, s%d' % (sMode, sMode, sVote))
        e('s_lshl3_add_u32 s%d, s%d, 128' % (sVote, sH))
        e('s_cmp_eq_u32 s%d, 0' % sMode)
        e('s_cselect_b32 s%d, s%d, -1' % (sVote, sVote))
    mk_qoff(vQo, 0, vD)
    e('s_lshl_b32 s%d, s%d, 9' % (sPub, sT0))
    e('s_add_u32 s%d, s%d, s%d' % (sPub, sPub, sHA))
    e('s_add_u32 s%d, s%d, %d' % (sPub, sPub, OFF_O))
    e('s_lshl_b32 s%d, s%d, 7' % (sStat, sT0))
    e('s_lshl3_add_u32 s%d, s%d, s%d' % (sStat, sU, sStat))
    e('s_add_u32 s%d, s%d, s%d' % (sStat, sStat, sHA))
    e('s_and_b32 s%d, s%d, 7' % (sH, sH))
    e('s_lshl_b32 s%d, s%d, 4' % (sH, sH))
    e('s_getreg_b32 s%d, hwreg(HW_REG_XCC_ID, 0, 4)' % sFo)
    e('s_or_b32 s%d, s%d, 0x80000000' % (sFo, sFo))
    if not args.mkat:
        mk_masks(vM, vD)
        mk_c(vC, 4, vD)
    e('v_lshlrev_b32 v%d, 3, v0' % vPo)


GW = 32 if args.map == 1 else 28


def gate_signal(k):
    e('v_mov_b32 v0, -1')
    e('s_mov_b64 exec, 1')
    a.vmem('buffer_store_byte v0, off, %s, s%d offset:%d' % (srd(SWS), sGo, k * 128))
    e('s_mov_b64 exec, -1')


def gate_wait(k, th):
    a.vmwait_all()
    if args.gone:
        e('s_cmp_lg_u32 s%d, 0' % sU)
        e('s_cbranch_scc1 L_gok%d' % k)
    e('s_mov_b32 s%d, 100' % sT1)
    e('v_lshrrev_b32 v%d, 2, v%d' % (vD + 1, vVo))
    e('s_mov_b64 exec, 0x%x' % ((1 << GW) - 1) if GW < 32 else 's_mov_b32 exec_hi, 0')
    a.label('L_gw%d' % k)
    e('buffer_load_dword v0, v%d, %s, s%d offen offset:%d sc1' % (vD + 1, srd(SWS), sGate, k * 128))
    e('s_waitcnt vmcnt(0)')
    e('v_cmp_eq_u32 vcc, -1, v0')
    e('s_bcnt1_i32_b32 s%d, vcc_lo' % sT0)
    e('s_cmp_ge_u32 s%d, %d' % (sT0, GW - th))
    e('s_cbranch_scc1 L_gok%d' % k)
    if args.gsleep:
        e('s_sleep %d' % args.gsleep)
    e('s_sub_u32 s%d, s%d, 1' % (sT1, sT1))
    e('s_cbranch_scc0 L_gw%d' % k)
    a.label('L_gok%d' % k)
    e('s_mov_b64 exec, -1')
    if args.gone:
        e('s_barrier')


def set_job(job):
    e('s_add_u32 s%d, s%d, 0x%x' % (sPubJ, sPub, (job >> 1) * 4096 + (job & 1) * 256 * args.ob))
    e('s_add_u32 s%d, s%d, 0x%x' % (sStatJ, sStat, job * 32))
    if not args.ob:
        e('s_mov_b32 s%d, %d' % (sTag, 2 - (job & 1)))


def o_fill(r, k):
    e('v_mov_b32 v%d, -1' % r)
    e('v_mov_b32 v%d, -1' % (r + 1))
    e('s_lshl3_add_u32 s%d, s%d, s%d' % (sT0, sEx, sPub))
    if k:
        e('s_add_u32 s%d, s%d, 4096' % (sT0, sT0))
    e('s_mov_b64 exec, 0xffff')
    store_sel('buffer_store_dwordx2 %s, v%d, %s, s%d offen' % (vp(r), vPo, srd(SWS), sT0), 'fill%d' % k, True)
    e('s_mov_b64 exec, -1')
    return len(a.vm) - 1


D_ = args.D
X = args.X
R = NR
XE = args.XE or X
assert X % 4 == 0 and X <= 72 and XE % 4 == 0 and XE <= X
st = {}

seqA = [('K', i) for i in range(NQ)] + [('V', i) for i in VORD]
QF = args.QF if not args.bwtest else 2 * NQ - 1
flag_ld = 'buffer_load_dwordx4 %s, off, %s, s%d sc1' % (vq(vD), srd(SDBG), sH)
for n, (kind, i) in enumerate(seqA):
    dest = KS[i] if kind == 'K' else vslot(i)
    LOC[(kind, 0, i)] = dest
    if n >= args.D0:
        S.pace(args.DE if n >= 2 * NQ - args.NE else (args.DA or D_), *((args.Elo, args.DE) if n >= 2 * NQ - args.NE else (args.Dlo, args.Dhi)))
    LT[(kind, 0, i)] = S.issue(kind, 0, i, dest, polA)
    if n == (args.D0 or D_) - 1:
        late_setup()
        for _ in range(args.wA.split(',').count('s')):
            warm_site('a')
        stamp(vD, True)
        if args.ets:
            e('s_memrealtime s[50:51]')
    if args.mkat and n == args.mkat:
        mk_masks(vM, vD)
    if args.mkat and n == args.mkat + 1:
        mk_c(vC, 4, vD)
    if args.bwtest:
        if n in (40, 72, 112):
            stamp(vD)
        if n == 2 * NQ - 1:
            a.vmwait_all()
            stamp(vD)
            for n2, (kind, i) in enumerate(seqA):
                S.pace(D_)
                S.issue(kind, 1, i, KS[i] if kind == 'K' else vslot(i), polB1 if n2 < args.B1n else polA)
                if n2 in (40, 72):
                    stamp(vD)
            a.vmwait_all()
            stamp(vD)
            ct_dump(vD)
            e('s_endpgm')
    if n == QF - (3 * D_ if not args.bwtest else 0):
        st['ftk'] = a.vmem(flag_ld)
    if n == QF - (D_ if not args.bwtest else 0):
        a.vmwait(st['ftk'])
        a.label('L_fc')
        e('v_min3_u32 v%d, v%d, v%d, v%d' % (vD + 4, vD, vD + 1, vD + 2))
        e('v_min_u32 v%d, v%d, v%d' % (vD + 4, vD + 4, vD + 3))
        e('v_cmp_eq_u32 vcc, 0, v%d' % (vD + 4))
        e('s_cbranch_vccz L_fok')
        e(flag_ld)
        e('s_waitcnt vmcnt(0)')
        spin_tail('L_fc')
        a.label('L_fok')
        e('v_max3_u32 v%d, v%d, v%d, v%d' % (vD + 5, vD, vD + 1, vD + 2))
        e('v_max_u32 v%d, v%d, v%d' % (vD + 5, vD + 5, vD + 3))
        e('v_xor_b32 v%d, s%d, v%d' % (vD + 4, sFo, vD + 4))
        e('v_xor_b32 v%d, s%d, v%d' % (vD + 5, sFo, vD + 5))
        e('v_or_b32 v%d, v%d, v%d' % (vD + 4, vD + 4, vD + 5))
        e('v_readfirstlane_b32 s%d, v%d' % (sFo, vD + 4))
        if args.nofast:
            e('s_mov_b32 s%d, 1' % sFo)
        e('s_cmp_eq_u32 s%d, 0' % sFo)
        e('s_cselect_b32 s%d, 0, 1024' % sT0)
        e('v_add_u32 v%d, s%d, v%d' % (vQo, sT0, vQo))
        st['qtk'] = a.vmem(q_load(0, vQL))
        st['filltk'] = o_fill(vD + 6, 0)
        rmode()
    if n == 2 * NQ - 1 - D_:
        assert not MS['pend']
        MS['ok'] = False
        st['q1tk'] = a.vmem(q_load(1, vQ1))
    if n == 2 * NQ - 1 - args.gateA:
        gate_signal(0)
    if n == QF:
        q_check(0, vQL, st['qtk'], vD)
        stamp(vD)
        item(lambda: build_bt(vBT, vQL), 24)
        add_k_items(0, PA, range(NQ))

        def sm():
            a.vmwait(st['filltk'])
            set_job(0)
            att_softmax(PA, 0, 1, '0')
        item(sm, 80)
        st['pub0'] = add_v_items(0, PA, RING[:4], '0')
    S.run_budget(args.budget)

def q1_start():
    q_check(1, vQ1, st['q1tk'], vD)
    if PARK:
        for r in range(0, 4, 2):
            e('v_mov_b64 %s, %s' % (vp(vBT + r), vp(vQ1 + r)))
    else:
        build_bt(vBT, vQ1)
    MS['ok'] = True
    MS['reg'] = vQL


def c_move(d, k0, k):
    return 'v_mov_b32_dpp v%%d, v%%d quad_perm:[%d,%d,%d,%d] %%s' % tuple(k0 if p == k else k0 ^ 1 for p in range(4)) % (d, vC, DPPF)


def add_k_lean(idxs):
    its = {}
    seen = set()
    for i in idxs:
        g, t = i >> 2, i & 3

        its[i] = item(lambda i=i: mfma(vq(vD), LOC[('K', 1, i)], vq(vBT), True), 4, [need('K', 1, i)])

        def fn(i=i, g=g, t=t):
            if st['ck'] != g & 3:
                e(c_move(vC, st['ck'], g & 3))
                st['ck'] = g & 3
            for r in range(4):
                op = 'v_mul_f32_dpp' if (g >> 2, t) not in seen and r == 0 else 'v_fmac_f32_dpp'
                e('%s v%d, v%d, v%d quad_perm:[%d,%d,%d,%d] row_mask:0xf bank_mask:0x%x' % (op, PB[g >> 2], vD + r, vC, r, r, r, r, 1 << t))
            seen.add((g >> 2, t))
        item(fn, 18)
    return its


st['ck'] = 0
item(q1_start, 24, [lambda: st['q1tk']])
seqB1 = [i for i in range(XE) if i not in PARK]
seqB1[args.park:args.park] = sorted(PARK)
assert args.park <= XE - 2 * R
kits = add_k_lean(seqB1[:-R]) if PARK else add_k_items(1, PB, range(XE - R))
ringbusy = {}
lds_done = False
if args.gateA >= 0:
    S.run_until(st['pub0'])
    gate_wait(0, args.thA)
CQ = [i for i in range(XE - R) if i not in PARK]
KEEP = {i: polB1 for i in CQ[:args.B1n]}
rn = 0
for n, i in enumerate(seqB1):
    if i in PARK:
        dest = vq(PARK[i])
    else:
        dest = RING[(rn + 4) % NR]
        rn += 1
    S.pace(args.DB0 if n < args.NB0 else D_, *((args.DB0, args.DB0h or args.DB0) if n < args.NB0 else (args.B1lo or args.Dlo, args.B1hi or args.Dhi)))
    S.run_budget(1 if PARK and MS['ok'] else args.budget)
    if dest in ringbusy:
        S.run_until(ringbusy.pop(dest))
    if n == 4:
        S.run_until(st_['tmp0'])
    if i in PARK:
        S.run_until(st['pub0'])
    if st['pub0'].get('done') and not st.get('p0n'):
        st['p0n'] = 1
        print('pub0 before B1 index', n)
    LOC[('K', 1, i)] = dest
    if n == args.QI:
        st['filltk'] = o_fill(base_of(dest), 1)
    LT[('K', 1, i)] = S.issue('K', 1, i, dest, KEEP.get(i, polB))
    if i in kits:
        ringbusy[dest] = kits[i]
    if n == XE - (args.q2p or D_) + 1:
        assert st['pub0'].get('done') and not MS['pend']
        MS['reg'] = None
        st['q2tk'] = a.vmem(q_load(2, vQL))
    S.run_budget(args.budget)
S.drain()
a.raw('M_j2:')
assert not MS['pend']
assert st['filltk'] < st['q2tk']
if PARK:
    for t in range(4):
        smask(sBM + 2 * t, 0x000F000F000F000F << (4 * t))
        smask(sMM + 2 * t, 0x0003000300030003 << (2 * t))
    e('s_mov_b32 s%d, 0xffff' % sMt)
q_check(2, vQL, st['q2tk'], vD)
stamp(vD)
set_job(2)
e('s_mov_b64 vcc, -1')


def bt_ops(t):
    return ['v_mov_b32_dpp v%d, v%d quad_perm:[0,1,2,3] row_mask:0xf bank_mask:0x%x' % (vBT + 4 * t + r, vQL + r, 1 << t) for r in range(4)]


def z64(r, n):
    return ['v_mov_b64 %s, 0' % vp(r + k) for k in range(0, n, 2)]


for k in range(args.p2d):
    e('v_mov_b32 v0, v0')
ct(0)
if PARK:
    def bt_full(t):
        return ['v_cndmask_b32 v%d, 0, v%d, %s' % (vBT + 4 * t + r, vQL + r, sp(sBM + 2 * t)) for r in range(4)]
    after = {4: bt_full(1), 1: bt_full(2), 5: bt_full(3),
             3: [c_move(vC + k, st['ck'], k) for k in (1, 2, 3, 0)] + ['v_lshl_add_u32 v%d, v%d, 1, s%d' % (vLd, vPo, sLds)],
             7: ['v_lshlrev_b32 v%d, 1, v%d' % (vVo, vPo), 'v_and_b32 v0, 16, v%d' % vVo, 'v_lshlrev_b32 v0, v0, s%d' % sMt] +
                ['v_cndmask_b32 v%d, 0, v0, %s' % (vM + k, sp(sMM + 2 * k)) for k in range(4)] + ['v_mov_b32 v0, 0xff800000']}
    for op in bt_full(0):
        e(op)
    for i in (0, 4, 1, 5, 2, 6, 3, 7):
        assert LT[('K', 1, i)] < a.vm_done
        mfma(vq(vD + 4 * (i >> 2)), KS[i], vq(vBT + 4 * (i & 3)), (i & 3) == 0)
        for k in range(4):
            e('v_accvgpr_write_b32 a%d, v%d' % (base_of(KS[i]) + k, PARK[i] + k))
        for op in after.get(i, []):
            e(op)
    e('s_branch L_p2b')
else:
    a.fence()
    for op in bt_ops(0) + bt_ops(1)[:2]:
        e(op)
    a.raw('    s_branch L_p2')
    a.hist = []

mainlines, a.lines = a.lines, []
q3ld = 'buffer_load_dwordx4 %s, v%d, %s, s%d offen sc1' % (vq(vQL), vQo, srd(SWS), sT0)
a.label('L_q3r')
e(q3ld)
e('s_sub_u32 s%d, s%d, 1' % (sBud, sBud))
e('s_cbranch_scc0 L_q3')
e('s_endpgm')
a.label('L_q3')
e('s_cmp_lg_u32 s%d, s%d' % (sU, sU))
e('s_waitcnt vmcnt(0)')
e('v_max3_u32 v%d, v%d, v%d, v%d' % (vD + 8, vQL, vQL + 1, vQL + 2))
e('v_max_u32 v%d, v%d, v%d' % (vD + 8, vD + 8, vQL + 3))
e('v_cmp_eq_u32 vcc, -1, v%d' % (vD + 8))
for op in bt_ops(0) + bt_ops(1)[:2]:
    e(op)
a.raw('    s_cbranch_vccnz L_q3r')
a.pos += 1
a.raw('@Q3OK')

a.raw('L_p2:')
seqB2 = [('K', i) for i in range(X, NQ - 1)] + [('V', i) for i in VORD]
seqB2.insert(NQ - 1 - X + args.K72, ('K', NQ - 1))
gx = X // 4
SC = 84
AB = [SC, SC + 4, SC + 8]
Oa, Ob, Oc, Od = SC + 12, SC + 16, SC + 20, SC + 24
PSn = [SC + 28 + k for k in range(5)]
nIdx, nM1, nL = SC + 33, SC + 34, SC + 35
sM1, sM2 = sT0, sT1
head = [gx, gx + 1, gx - 2, gx - 1] + list(range(gx + 2, 19))
blk1 = sorted({g >> 2 for g in head})
if len(blk1) < args.P2B1:
    blk1 = [0] + blk1
blk2 = [k for k in range(5) if k not in blk1]
g1 = head + [g for g in range(18) if g >> 2 in blk1 and g not in head]
g2 = [g for g in range(18) if g >> 2 in blk2]
gg = g1 + g2
if args.P2G:
    gg = [int(x) for x in args.P2G.split(',')]
if PARK:
    gg = [0, 1] + [g for g in gg if g > 1]
assert sorted(gg) == list(range(19))
QK = []
for t in range(4):
    QK += [(0, gg[0], t), (1, gg[1], t)]
for gi, g in enumerate(gg[2:]):
    QK += [(gi + 2, g, t) for t in range(4 if g < 18 else 1)]


def scored(ks):
    return not [x for x in QK if x[1] >> 2 in ks] and not [x for x in sq if x[2] in ks]


v1 = [g for g in g1 if g < 18]
v1.sort(key=lambda g: (4 * g < NLV, g >> 2 != 4, g))
v2 = sorted(g2, key=lambda g: (4 * g < NLV, g >> 2 != max(g2) >> 2, g))
vall = v1 + v2
PV = [('t',)] + [(vi, g, h) for vi, g in enumerate(vall) for h in range(2)]
n1 = 1 + 2 * len(v1)
NP2 = [int(x) for x in args.NP2.split(',')]
P2POS = [int(x) for x in args.P2POS.split(',')]
kfree = set()
reserved = set(range(X - 8, NQ)) | set(PARK)
ldq = [NLV] + [4 * g + k for g in vall for k in range(4) if 4 * g + k < NLV]
pref = {}
tempq = []


def p2_load():
    n = NP2.pop(0) if NP2 else 0
    todo = []
    while n > 0:
        kind, i = seqB2[len(todo)]
        if kind == 'K':
            if i not in kfree or i == NQ - 1:
                break
            dest = KS[i]
        else:
            dest = vslot(i)
            if i >= NLV or i not in pref:
                break
        todo.append((kind, i, dest))
        n -= 1
    if not todo:
        return
    sk = a.newlabel('L_sk')
    a.skip_begin(*(('s_cbranch_vccnz', sk + 'o') if args.P2OOL else ('s_cbranch_vccz', sk)))
    main, a.lines, lgd = a.lines, [], a.lg_done
    S.lastgrp = None
    for kind, i, dest in todo:
        seqB2.pop(0)
        if kind == 'V':
            a.lgwait(pref[i][1])
        S.pace(args.DP2 or D_)
        LOC[(kind, 1, i)] = dest
        LT[(kind, 1, i)] = S.issue(kind, 1, i, dest, polB)
    if args.P2OOL:
        RAW2.append([sk + 'o:'] + a.lines + ['    s_branch ' + sk])
    else:
        main.append('\n'.join(a.lines))
    a.lines, a.lg_done = main, lgd
    a.skip_end(sk)


def prefetch_one():
    v = ldq[0]
    if v == NLV:
        r = tempq.pop(0)
        tempq.pop(0)
    else:
        r = tempq.pop(0)
        assert (KS.index(r) & 1) == (v & 1)
    ldq.pop(0)
    if len(a.lg) - a.lg_done >= 14:
        a._lgwait_n(7)
    pref[v] = (r, a.lds('ds_read_b128 %s, v%d offset:%d' % (r, vLd, v * 1024)))


def can_ds():
    return ldq and len(tempq) > (1 if ldq[0] == NLV else 0)


def red63(op, r):
    return allreduce_list(op, r, None, (0, 1, 2, 3)) + \
        ['%s_dpp v%d, v%d, v%d row_bcast:15 row_mask:0xa bank_mask:0xf' % (op, r, r, r),
         '%s_dpp v%d, v%d, v%d row_bcast:31 row_mask:0xc bank_mask:0xf' % (op, r, r, r)]


def pexp(k, sm):
    p = PA[k]
    return ['v_subrev_f32 v%d, s%d, v%d' % (p, sm, p), 'v_exp_f32 v%d, v%d' % (p, p), 'v_cvt_pk_bf16_f32 v%d, 0, v%d' % (p, p),
            mirror(PSn[k], p), ('P', k)]


sq = []
cq = []
fq = bt_ops(1)[2:] + bt_ops(2) + bt_ops(3) + ['v_mov_b32 v0, 0xff800000']
aq = []
flags = set()
anext = [0]
adone = set()
vdone = set()
vpend = []
lgt = {}


def pop(q):
    x = q.pop(0)
    if callable(x):
        x()
    else:
        e(x)
    while q and isinstance(q[0], tuple):
        flags.add(q.pop(0))


def ok(q):
    if not q:
        return False
    if callable(q[0]):
        w = a.lines[-1].split()[0]
        return not w.startswith('v_') or w.startswith('v_smf')
    return a.needed(q[0]) == 0


def refill():
    while anext[0] < len(vall) and not aq:
        vi = anext[0]
        g = vall[vi]
        if ('P', g >> 2) not in flags or ('Z', AB[vi % 3]) not in flags or (vi >= 3 and vi - 3 not in vdone):
            return
        aq.extend(a_ops(AB[vi % 3], PA[g >> 2], PSn[g >> 2], g & 3) + [('A', vi)])
        anext[0] += 1


def slot(order, force=False):
    refill()
    for q in order:
        if q is sq:
            seen = set()
            for k, x in enumerate(sq):
                if x[2] not in seen and a.needed(x[1]) == 0:
                    e(sq.pop(k)[1])
                    return True
                seen.add(x[2])
        elif q == 0:
            a.nop(1)
            return True
        elif ok(q):
            pop(q)
            return True
    if force:
        for q in order:
            if q is sq and sq:
                e(sq.pop(0)[1])
                return True
            if q:
                pop(q)
                return True
        assert False
    return False


def pv_ready(x):
    if x[0] == 't':
        return ('T', 0) in flags
    if QK and x[2] == 0 and ('A', x[0] + 1) not in flags:
        return False
    return {('A', x[0]), ('Z', SC + 32), ('Z', Ob), ('Z', Oc), ('Z', Ob if x[0] < len(v1) else Od)} <= flags


def emit_pv(x):
    if x[0] == 't':
        a.lgwait(pref[NLV][1])
        mfma(vq(Oa), vq(Od), pref[NLV][0], True)
        fq.extend(z64(Od, 4) + [('Z', Od)])
        return
    vi, g, h = x
    i0 = 4 * g + 2 * h
    if i0 < NLV:
        src = pair(pref[i0][0], pref[i0 + 1][0])
        a.lgwait(pref[i0 + 1][1])
    else:
        src = pair(VSR[i0 - NLV], VSR[i0 + 1 - NLV])
    smf(((Oa, Ob) if vi < len(v1) else (Oc, Od))[h], AB[vi % 3], src, nIdx)
    if h:
        vpend.append(vi)


def chain1():
    o = [4] + [k for k in blk1 if k != 4][::-1]
    c = ['v_max3_f32 v%d, v%d, v%d, v%d' % ((nM1,) + tuple(PA[k] for k in (blk1 + blk1)[:3]))] + red63('v_max_f32', nM1)
    c += ['v_readlane_b32 s%d, v%d, 63' % (sM1, nM1)]
    c += pexp(o[0], sM1)
    cq.extend(c)
    f = tail_a(Od, PA[4], 2, vM, 0) + [('T', 0)] + pexp(o[1], sM1)
    f += ['v_add_f32 v%d, v%d, v%d' % (nL, PA[o[0]], PA[o[1]]), 'v_mov_b32 v%d, s%d' % (nM1, sM1)]
    if len(o) > 2:
        f += pexp(o[2], sM1) + ['v_add_f32 v%d, v%d, v%d' % (nL, nL, PA[o[2]])]
    cq.extend(f)


vF1, vR1, vC2, vT2 = 20, 22, 24, 25


def chain2():
    o = [v2[0] >> 2] + [k for k in blk2 if k != v2[0] >> 2]
    m, l = vMl, vMl + 1
    if len(o) > 2:
        c = ['v_max3_f32 v%d, v%d, v%d, v0' % (m, PA[blk2[1]], PA[blk2[2]])] + red63('v_max_f32', m)
    else:
        c = ['v_max3_f32 v%d, v%d, v%d, s%d' % (m, PA[o[0]], PA[o[1]], sM1)] + red63('v_max_f32', m)
    c += ['v_readlane_b32 s%d, v%d, 63' % (sM2, m)]
    c += pexp(o[0], sM2)

    def wr():
        while ('X', 0) not in flags:
            pop(fq)
        e('s_brev_b64 exec, 1')
        lgt['w'] = a.lds('ds_write_b32 v%d, v%d offset:%d' % (vT2, m, EXM))
        e('s_mov_b64 exec, -1')

    def bar():
        ct(4)
        a.lgwait(lgt['w'])
        e('s_barrier')
        ct(5)
        lgt['r'] = a.lds('ds_read_b32 v%d, v%d offset:%d' % (vC2, vC2, EXM))

    def stt():
        ct(6)
        e('s_brev_b64 exec, 1')
        store_sel('buffer_store_dwordx2 %s, off, %s, s%d' % (vp(m), srd(SWS), sStatJ), 'sp', True, True)
        e('s_mov_b64 exec, -1')
    n0 = len(c)
    c += [wr] + pexp(o[1], sM2)
    c += ['v_subrev_f32 v%d, s%d, v%d' % (vF1, sM2, nM1), 'v_add_f32 v%d, v%d, v%d' % (l, PA[o[0]], PA[o[1]]),
          'v_exp_f32 v%d, v%d' % (vF1, vF1), bar, 'v_fmac_f32 v%d, v%d, v%d' % (l, nL, vF1), 'v_min_u32 v%d, -2, v%d' % (m, m)]
    if len(o) > 2:
        c += pexp(o[2], sM2) + ['v_add_f32 v%d, v%d, v%d' % (l, l, PA[o[2]])]
    c += red63('v_add_f32', l) + ['v_min_u32 v%d, -2, v%d' % (l, l), lambda: a.lgwait(lgt['r'])]
    sb = allreduce_list('v_max_f32', vC2, None, (0, 1))
    c += [sb[0], stt, sb[1], 'v_sub_f32 v%d, s%d, v%d' % (vC2, sM2, vC2), 'v_exp_f32 v%d, v%d' % (vC2, vC2), ('W', 0)]
    cq.extend(c)
    lgt['rest'] = len(c) - n0
    fq[:0] = ['v_mov_b32 v%d, s%d' % (vT2, sEx), 'v_and_b32 v%d, 0x30, v%d' % (vC2, vVo), ('X', 0)]


def chain3():
    c = ['v_permlane32_swap_b32 v%d, v%d' % (Oa, Oa + 2), 'v_permlane32_swap_b32 v%d, v%d' % (Oa + 1, Oa + 3),
         'v_permlane32_swap_b32 v%d, v%d' % (Ob, Ob + 2), 'v_permlane32_swap_b32 v%d, v%d' % (Ob + 1, Ob + 3),
         'v_mul_f32 v%d, v%d, v%d' % (vF1, vF1, vC2),
         'v_pk_add_f32 %s, %s, %s' % (vp(vR1), vp(Oa), vp(Ob + 2)),
         'v_lshl_add_u32 v0, v%d, 5, v%d' % (vT2, vPo),
         'v_pk_mul_f32 %s, %s, %s op_sel_hi:[1,0]' % (vp(vR1), vp(vR1), vp(vF1))]
    cq.extend(c)


seen_reg = set()
tnew = None
ilast = None
nm = 0
p2start = len(a.lines)
npv = 0
lastm = None
st2 = 0
left1 = len(g1)
while QK or PV:
    refill()
    vd_ = list(vpend)
    del vpend[:]
    if tnew:
        tempq.append(tnew)
    tnew = None
    if QK and not (lastm == 'q' and npv < n1 - args.P2ND and pv_ready(PV[0])):
        gi, g, t = QK.pop(0)
        D = vD + 4 * (gi % 3)
        if t == 0:
            while [x for x in sq if x[0] <= gi - 3]:
                slot([sq, cq, aq, fq]) or slot([sq], True)
        while fq and isinstance(fq[0], str) and fq[0] in bt_ops(t):
            pop(fq)
        i = 4 * g + t
        if PARK and nm == 7:
            if a.lines[-1].split() == ['s_nop', '0']:
                a.lines.pop()
                a.pos -= 1
            a.raw('    s_cbranch_scc1 L_q3')
            a.pos += 1
        mfma(vq(D), KS[i], vq(vBT + 4 * t), t == 0)
        if PARK and nm == 7:
            assert not fq and len(sq) == 4 and not [x for x in a.lines[p2start:] if x.split()[0][:3] in ('ds_', 'buf')]
            a.raw('L_p2b:')
        lastm = 'q'
        mline, mpos = len(a.lines), a.pos
        kfree.add(i)
        if i not in reserved:
            tnew = KS[i]
        if t == 3 or g == 18:
            sq.extend((gi, op, g >> 2) for op in score_ops(PA, g, D, vC, (g >> 2) not in seen_reg))
            seen_reg.add(g >> 2)
            if g >= 16 and not [x for x in QK if x[1] >= 16]:
                sq.append((gi, 'v_cndmask_b32 v%d, v0, v%d, %s' % (PA[4], PA[4], sp(sMaskV)), 4))
        if ilast is not None and KS[ilast][0] == 'v':
            b = base_of(KS[ilast])
            if b in AB:
                fq.extend(z64(b, 4) + [('Z', b)])
            if b in (Ob, Oc):
                fq.extend(z64(b, 4) + [('Z', b)])
            if b == SC + 32:
                fq.extend(idx_ops(nIdx, vVo) + [('Z', b)])
        ilast = i
        order = [[sq, cq, aq, fq]] * 2
    else:
        while not pv_ready(PV[0]):
            vdone.update(vd_)
            slot([aq, sq, cq, fq]) or slot([sq, cq, aq, fq], True)
            if st2 == 1 and not QK and not sq:
                chain2()
                st2 = 2
        emit_pv(PV.pop(0))
        npv += 1
        lastm = 'p'
        for k in range(2 if npv % 2 and args.P2DS2 else 1):
            if can_ds():
                prefetch_one()
        order = [[aq, sq, cq, fq]] if QK else [[sq, cq, fq], [aq], [aq], [sq, cq, fq]]
        if not QK and ('A', len(v1)) not in flags:
            crit = len(sq) + (12 if st2 < 2 else len(cq) - lgt['rest']) + 2
            hurry = crit > n1 - npv + args.P2H
            order = [[sq, cq], [aq, fq, 0], [aq, fq, 0] if hurry else [aq, fq]] + ([[sq, cq]] if hurry else [])
        elif st2 == 3:
            order = [[cq]]
        elif not QK and PV and ('A', PV[0][0] + 1) not in flags and PV[0][2] == 1:
            order = [[aq], [aq], [aq], [sq, cq, fq]]
    vdone.update(vd_)
    nm += 1
    if nm in P2POS:
        p2_load()
    dsd = False
    if lastm == 'q' and can_ds() and (ldq[0] == NLV or len(ldq) > args.P2DSL + len(QK)):
        prefetch_one()
        dsd = True
        order = order[:1]
    if args.P2QD and lastm == 'q' and can_ds() and not dsd and nm not in P2POS:
        q0, qs, qk = (int(x) for x in args.P2QD.split(':'))
        if nm >= q0 and nm - lgt.get('qd', -99) >= qs:
            prefetch_one()
            dsd = True
            order = order[:qk]
    if dsd:
        lgt['qd'] = nm
    for k, o in enumerate(order):
        if lastm == 'q' and k == 1 and ('v_exp' in a.lines[-1] or nm in P2POS):
            break
        if not slot(o) and lastm == 'q':
            if can_ds() and not dsd and len(a.lg) - a.lg_done < 14:
                prefetch_one()
                dsd = True
                lgt['qd'] = nm
                if k == 1:
                    a.lines.insert(mline, a.lines.pop())
                    for p in a.hist:
                        if p.pos >= mpos:
                            p.pos = mpos if p.kind == 'ds' else p.pos + 1
            elif can_ds() and not dsd:
                a._lgwait_n(7)
            elif sq or cq:
                a.nop(1)
        if st2 == 0 and scored(blk1):
            chain1()
            st2 = 1
            print('chain1 at', nm)
        if st2 == 1 and len(blk2) > 2 and 'f' not in flags and ('T', 0) in flags and scored(blk2[:1]):
            flags.add('f')
            cq.append('v_max_f32 v0, s%d, v%d' % (sM1, PA[blk2[0]]))
        if st2 == 1 and not QK and not sq:
            assert len(blk2) == 2 or 'f' in flags
            chain2()
            st2 = 2
            print('chain2 at', nm, 'pv done', npv, 'cq', len(cq))
        if st2 == 2 and ('W', 0) in flags and npv >= n1 + 2 and anext[0] == len(vall) and not aq:
            chain3()
            st2 = 3
            print('chain3 at', nm)
    if nm == 8:
        ct(1)
    if not QK and 'q' not in flags:
        flags.add('q')
        ct(2)
    if npv == n1 and lastm == 'p':
        ct(3)
assert st2 == 3 and not ldq and not sq and not aq and not fq
ct(7)
e('s_cmp_lg_u32 s%d, 0' % sU)
while cq:
    pop(cq)
merge(Oc, Od)
e('v_pk_fma_f32 %s, %s, %s, %s op_sel_hi:[1,0,1]' % (vp(Oc), vp(Oc), vp(vC2), vp(vR1)))
wg_publish(Oc, None, 0, vPo, EXO, vD, sPubJ, 'op', 'L_npp')
ct(8)


def cost(lines):
    tot, segs, cur = 0, [], None
    for ln in lines:
        w = ln.split()
        if w[0].endswith(':'):
            continue
        if w[0].startswith('v_mfma') or w[0].startswith('v_smf'):
            cur = [w[0][2], []]
            segs.append(cur)
        else:
            cur[1].append(w)
    out = []
    for kind, ws in segs:
        u, lead, seenv, pv = 0, 0, False, False
        for w in ws:
            isv = w[0].startswith('v_')
            n = int(w[1]) + 1 if w[0] == 's_nop' else 2 if w[0] == 'v_exp_f32' else 1
            if w[0].startswith('ds_') and pv:
                n += 2
            if kind == 's' and not isv and not seenv:
                lead += n
            else:
                u += n
            seenv |= isv
            pv = isv
        c = max(17, 9 + 4 * u) if kind == 'm' else max(17, 13 + 4 * (u + max(0, lead - 2)))
        out.append(c)
    return out


cc = cost(a.lines[p2start:])
print('P2 model', sum(cc[:-1]), ''.join(str(min(9, (c - 17) // 4)) for c in cc))
if os.environ.get('P2ONLY'):
    print('left', len(seqB2))
    sys.exit(0)
stamp(vD)
e('s_cbranch_vccnz L_p2ret')
ct_dump(vD)
e('s_endpgm')
for blk in RAW2:
    for ln in blk:
        a.raw(ln)
p2lines, a.lines = a.lines, mainlines
if args.lay:
    lb = a.lines.pop().split()[1]
    k = p2lines.index(lb + ':')
    a.lines += p2lines[k:]
    if PARK:
        assert p2lines[k + 1].split() == ['s_nop', '0']
        a.lines.pop(a.lines.index(lb + ':') + 1)
    p2lines = p2lines[:k] + ['    s_branch ' + lb]
a.label('L_p2ret')
S.lastgrp = None
MS['reg'] = PA[4]
rmode()

st['q1r'] = a.vmem(q_load(1, vQL))
item(lambda: build_bt(vBT, vQL), 24, [lambda: st['q1r']])
seqB2 = [('K', i) for i in range(XE, X)] + seqB2
for i in range(XE - R, NQ):
    add_k_items(1, PB, [i])
    if i < XE:
        def mv(i=i):
            src = base_of(LOC[('K', 1, i)])
            d = KS[i]
            for k in range(4):
                if d[0] == 'a':
                    e('v_accvgpr_write_b32 a%d, v%d' % (base_of(d) + k, src + k))
                else:
                    e('v_mov_b32 v%d, v%d' % (base_of(d) + k, src + k))
        item(mv, 4)


def sm1():
    set_job(1)
    att_softmax(PB, 0, 1, '1')


item(sm1, 80)
pub1 = add_v_items(1, PB, RING[:4], '1')
seqC = [('K', i) for i in CQ]
if args.Cf0 is not None:
    fa, ca = seqC[args.B1n:], seqC[args.Cf0:args.B1n]
    seqC = seqC[:args.Cf0]
    for k, x in enumerate(fa):
        seqC.append(x)
        if k >= args.Cx0:
            k -= args.Cx0
            for j in range((k + 1) * args.Cx // (len(fa) - args.Cx0) - k * args.Cx // (len(fa) - args.Cx0)):
                seqC.append(ca.pop(0))
    seqC += ca
    farn = []
if args.cskip:
    seqC = seqC[:-args.cskip]
early, seqC = seqC[:args.Ce], seqC[args.Ce:]
args.NC1 = max(0, args.NC1 - args.Ce)
nB2 = len(seqB2)
for n, (kind, i) in enumerate(seqB2 + seqC):
    assert n < nB2 or not early
    if n == nB2 - 1:
        a.raw('M_e1:')
    dest = KS[i] if kind == 'K' else vslot(i)
    if n < nB2:
        S.pace((args.DEB or args.DE) if n >= nB2 - (args.NEB or args.NE) else D_,
               *((args.B3lo or args.Elo, args.DEB or args.DE) if n >= nB2 - (args.NEB or args.NE) else (args.B2lo or args.Dlo, args.B2hi or args.Dhi)))
    else:
        if n == nB2 and args.gateB >= 0:
            S.drain()
            gate_wait(1, args.thB)
        dc = args.DC0 if n < nB2 + args.NC0 else args.DC if n < nB2 + args.NC1 else args.DC1
        if args.Cf0 is not None:
            dc = args.DC0 if n < nB2 + args.NC0 else args.DC if i in KEEP else args.DC1
            if i not in KEEP:
                if args.Cx:
                    dc = n - farn[-args.DC1] if len(farn) >= args.DC1 else args.DC
                farn.append(n)
        if args.w0 and pub1.get('done') and n < nB2 + args.NC0:
            if not pub1.get('w0'):
                pub1['w0'] = 1
                e('s_cmp_lg_u32 s%d, 0' % sU)
                e('s_cselect_b64 vcc, -1, 0')
            S.pace(dc, dc, args.DC)
        elif args.Cf0 is not None:
            S.pace(dc, dc, (args.DC0h or dc) if n < nB2 + args.NC0 and pub1.get('done') else (args.DC1h or dc) if i not in KEEP else dc)
        else:
            S.pace(dc, (args.DCl or dc) if dc == args.DC else dc, (args.DC1h or dc) if n >= nB2 + args.NC1 else dc)
        S.run_budget(args.budget)
    key = (kind, 1, i)
    tk = S.issue(kind, 1, i, dest, polB if n < nB2 else polC if args.polCf is None or n < nB2 + args.NC1 else args.polCf)
    if key not in LT:
        LOC[key] = dest
        LT[key] = tk
    if n >= args.Cs and (n - args.Cs) % args.Cp == 0:
        for x in early[:args.Cc]:
            S.issue('K', 1, x[1], KS[x[1]], polC)
            if not args.Cn:
                S.tok.pop()
        early = early[args.Cc:]
    if n == nB2 - 1 - args.gateB and args.gateB >= 0:
        gate_signal(1)
    S.run_budget(args.budget)
S.drain()
assert not MS['pend'] and not MS['list']
stamp(vD)
set_job(3)
assert q_load(3, vQL) == q3ld
QA, QB = base_of(RING[0]), base_of(RING[1])
e(q3ld.replace(vq(vQL), vq(QA)) if args.q3d else q3ld)
if args.q3d:
    e('s_mov_b32 s%d, 1' % sT1)
for op in z64(vBT, 16):
    e(op)
if PARK and args.warm:
    e('s_cmp_eq_u32 s%d, s%d' % (sU, sU))
    e('s_branch L_p2')
else:
    e('s_branch L_q3')
mainlines, a.lines = a.lines, []
if args.ts:
    stamp(vD)
    ct(0)
    if not args.quiet:
        a.nop(5)
k = p2lines.index('@Q3OK')
if args.q3d:
    assert args.lay and PARK and args.warm

    def ren(lines, q):
        return [re.sub(r'\bv(%d|%d|%d|%d)\b' % (vQL, vQL + 1, vQL + 2, vQL + 3), lambda m: 'v%d' % (int(m.group(1)) - vQL + q), x) for x in lines]
    c0 = [i for i, x in enumerate(p2lines[:k]) if 'vmcnt(0)' in x][0]
    chk, pro = p2lines[c0 + 1:k - 1], p2lines[k + 1:]
    I = '    '
    w1 = [I + 's_waitcnt vmcnt(1)']
    new = ['L_q3r:', I + q3ld.replace(vq(vQL), vq(QB)), 'L_qA:', I + 's_cmp_lg_u32 s%d, s%d' % (sU, sU)] + w1 + ren(chk, QA)
    new += [I + 's_cbranch_vccnz L_qAr'] + a.lines + ren(pro, QA)
    new += ['L_qAr:', I + q3ld.replace(vq(vQL), vq(QA)), I + 's_sub_u32 s%d, s%d, 1' % (sBud, sBud), I + 's_cbranch_scc1 L_qend',
            I + 's_cmp_eq_u32 s%d, 1' % sT1, I + 's_cbranch_scc1 L_p2B'] + w1 + ren(chk, QB) + [I + 's_cbranch_vccnz L_q3r'] + a.lines
    new += [x.replace('L_p2:', 'L_p2B:').replace('scc1 L_q3', 'scc1 L_qB0') for x in ren(pro, QB)]
    new += ['L_q3:', I + 's_waitcnt vmcnt(0)', I + 's_branch L_qA', 'L_qB0:', I + 's_mov_b32 s%d, 0' % sT1, I + 's_branch L_q3r', 'L_qend:', I + 's_endpgm']
    a.lines = mainlines + new
else:
    a.lines = mainlines + p2lines[:k] + a.lines + p2lines[k + 1:]

for k in range(args.sh):
    a.raw('    s_endpgm')
a.label('L_service')
if args.bwtest == 1:
    e('s_endpgm')
a.reset_counters()
vL16, vL8, vSI, vOg, vSt, vXo, vEw, vQr, vFr, vFr2, vWw, vWr, vSw = 1, 2, 3, 4, 5, 6, 7, 8, 9, 10, 11, 12, 13
vX0 = 14
vA = 16
vT = 28
vLA = 32
vAc = 96
vX, vX1, vCq, vCf = 112, 114, 116, 118
vMi = 120
TILES = ['a[%d:%d]' % (4 * i, 4 * i + 3) for i in range(64)] + ['v[%d:%d]' % (128 + 4 * i, 131 + 4 * i) for i in range(32)]
TQ, TO, TG = TILES[0:32], TILES[32:64], TILES[64:96]
E1, EO, EOM, E2, E2S, E3, E3S, EQ, EKV, EDN = 0, 2048, 4096, 8192, 10240, 12288, 14336, 15360, 20480, 65536
wpol = args.wpol
t0, t1 = vLA, vLA + 1
vRs, vAd = vLA + 2, vLA + 3

e('v_lshlrev_b32 v%d, 4, v0' % vL16)
if args.x4:
    e('v_and_b32 v%d, 0xf0, v%d' % (vXo, vL16))
    e('v_lshrrev_b32 v%d, 5, v0' % t0)
    e('v_lshl_or_b32 v%d, v%d, 2, v%d' % (vXo, t0, vXo))
    e('v_lshlrev_b32 v%d, 2, v%d' % (vRs, t0))
    e('v_bfe_u32 v%d, v0, 4, 1' % t0)
    e('v_lshl_or_b32 v%d, v%d, 3, v%d' % (vXo, t0, vXo))
    e('v_lshl_or_b32 v%d, v%d, 5, v%d' % (vRs, t0, vRs))
    e('s_lshl_b32 s%d, s%d, 8' % (sT0, sU))
    e('v_add_u32 v%d, s%d, v%d' % (vXo, sT0, vXo))
else:
    e('v_and_b32 v%d, 7, v0' % t0)
    e('v_lshlrev_b32 v%d, 5, v%d' % (vXo, t0))
    e('v_lshrrev_b32 v%d, 5, v0' % t0)
    e('v_lshl_or_b32 v%d, v%d, 4, v%d' % (vXo, t0, vXo))
    e('v_bfe_u32 v%d, v0, 3, 1' % t0)
    e('v_lshl_or_b32 v%d, v%d, 3, v%d' % (vXo, t0, vXo))
    e('v_bfe_u32 v%d, v0, 4, 1' % t0)
    e('v_lshl_or_b32 v%d, v%d, 2, v%d' % (vXo, t0, vXo))
    e('s_lshl_b32 s%d, s%d, 8' % (sT0, sU))
    e('v_add_u32 v%d, s%d, v%d' % (vXo, sT0, vXo))
    e('v_lshlrev_b32 v%d, %d, v%d' % (vRs, 5 if args.tr else 6, t0))
    e('v_lshrrev_b32 v%d, 5, v0' % t0)
    e('v_lshl_or_b32 v%d, v%d, 1, v%d' % (vRs, t0, vRs))
e('v_and_b32 v%d, 0xf0, v%d' % (t1, vL16))
e('v_lshl_or_b32 v%d, v%d, 13, v%d' % (vAd, vRs, t1))
e('s_lshl_b32 s%d, s%d, 20' % (sT0, sU))
e('s_lshl_b32 s%d, s2, 8' % sT1)
e('s_add_u32 s%d, s%d, s%d' % (sT0, sT0, sT1))
e('s_waitcnt lgkmcnt(0)')
mk_srd(SWQ, 10, 512 * 8192)
mk_srd(SX, 4, 2048)


def gtile(n):
    tau, pi, r, k = n & 1, (n >> 1) & 1, (n >> 2) & 3, n >> 4
    if args.tr:
        return 64 * (r & 1) + 16 * pi + 8 * k + 4 * (r >> 1) + tau
    return 16 * r + 8 * tau + 4 * pi + k


sPl, sPh = 0, 1
LAND = [TG[2 * n + 1] for n in range(16)] + [TG[2 * n] for n in range(16)]
LANDG = LAND[:16] + [vq(vLA + 32 + 4 * k) for k in range(8)] + [vq(vAc + 4 * k) for k in range(4)] + [vq(vMi), vq(vMi + 4), vq(vA), vq(vA + 4)]


def turn(tiles, land, n, tmp):
    qd, b, p_ = n >> 4, (n >> 2) & 3, (n >> 1) & 1
    w = []
    for t_ in range(8):
        k = (b - (t_ & 2) - (t_ >> 2)) & 3
        d = tiles[16 * (k >> 1) + 2 * t_ + qd]
        r = base_of(d) + 2 * (k & 1) + p_
        e('v_perm_b32 v%d, v%d, v%d, s%d' % (r if d[0] == 'v' else tmp + t_, base_of(land[n + 1]) + (t_ >> 1), base_of(land[n]) + (t_ >> 1), (sPl, sPh)[t_ & 1]))
        if d[0] == 'a':
            w.append('v_accvgpr_write_b32 a%d, v%d' % (r, tmp + t_))
    for op in w:
        e(op)


def xtile(n):
    tau, pi, r, k = n & 1, (n >> 1) & 1, (n >> 2) & 3, n >> 4
    return 8 * r + 64 * pi + 2 * tau + k if args.x4 else gtile(n)


if 'c' in args.skip:
    e('v_mov_b32 v%d, v%d' % (vAd, vL16))
    e('s_lshl_b32 s%d, s2, 17' % sT0)
    e('s_lshl_b32 s%d, s%d, 12' % (sT1, sU))
    e('s_add_u32 s%d, s%d, s%d' % (sT0, sT0, sT1))
if 'k' in args.skip:
    e('v_mov_b32 v%d, v%d' % (vAd, vL16))
    e('s_lshr_b32 s%d, s2, 3' % sT0)
    e('s_lshl_b32 s%d, s%d, 20' % (sT0, sT0))
    e('s_lshl_b32 s%d, s%d, 18' % (sT1, sU))
    e('s_add_u32 s%d, s%d, s%d' % (sT0, sT0, sT1))
    e('s_and_b32 s%d, s2, 7' % sT1)
    e('s_lshl_b32 s%d, s%d, 10' % (sT1, sT1))
    e('s_add_u32 s%d, s%d, s%d' % (sT0, sT0, sT1))
def fills():
    mk_srd(SWS, 26, WS_SIZE)
    e('v_lshlrev_b32 v%d, 3, v0' % vL8)
    e('s_mul_i32 s%d, s2, %d' % (sHA, HEADA))
    for k in range(4):
        e('v_mov_b32 v%d, -1' % (vT + k))
    e('s_lshl_b32 s%d, s%d, 8' % (sG0, sU))
    e('s_add_u32 s%d, s%d, s%d' % (sG0, sG0, sHA))
    e('s_mov_b64 exec, 0xffff')
    a.vmem('buffer_store_dwordx4 %s, v%d, %s, s%d offen %s' % (vq(vT), vL16, srd(SWS), sG0, sc('B')))
    a.vmem('buffer_store_dwordx4 %s, v%d, %s, s%d offen offset:1024' % (vq(vT), vL16, srd(SWS), sG0))
    a.vmem('buffer_store_dwordx4 %s, v%d, %s, s%d offen offset:2048 %s' % (vq(vT), vL16, srd(SWS), sG0, sc('C')))
    e('s_mov_b64 exec, -1')
    if not (args.zo and args.yb):
        e('s_and_b32 s%d, s2, 16' % sHS)
        e('s_add_u32 s%d, s%d, s2' % (sHS, sHS))
        e('s_lshl_b32 s%d, s%d, 9' % (sHS, sHS))
        e('s_lshl_b32 s%d, s%d, 15' % (sG0, sU))
        e('s_add_u32 s%d, s%d, s%d' % (sG0, sG0, sHS))
        e('v_lshrrev_b32 v%d, 5, v0' % t0)
        e('v_mul_u32_u24 v%d, %d, v%d' % (t0, 8192 - 512, t0))
        e('v_add_u32 v%d, v%d, v%d' % (t0, t0, vL16))
        e('s_add_u32 s%d, s%d, 0x%x' % (sT1, sG0, YB))
    if args.nofyz < 5 and not args.yb:
        a.vmem('buffer_store_dwordx4 %s, v%d, %s, s%d offen %s' % (vq(vT), t0, srd(SWS), sT1, args.fpol))
    for k in range(4 if args.zo else 2 if args.zb else 0, 4 + args.xfill - min(4, args.nofyz)):
        e('s_add_u32 s%d, s%d, 0x%x' % (sT1, sG0, ZB + k * 131072))
        a.vmem('buffer_store_dwordx4 %s, v%d, %s, s%d offen %s' % (vq(vT), t0, srd(SWS), sT1, args.fpol))
    if args.zb:
        assert args.zl == 2
        e('v_and_b32 v%d, 0xf0, v%d' % (t0, vL16))
        e('v_bfe_u32 v%d, v0, 4, 1' % t1)
        e('v_lshl_or_b32 v%d, v%d, 13, v%d' % (t0, t1, t0))
        e('v_lshrrev_b32 v%d, 5, v0' % t1)
        e('v_lshl_or_b32 v%d, v%d, 17, v%d' % (t0, t1, t0))
        e('s_lshl_b32 s%d, s%d, 7' % (sT1, sU))
        e('s_add_u32 s%d, s%d, s2' % (sT1, sT1))
        e('s_lshl_b32 s%d, s%d, 8' % (sT1, sT1))
        e('s_add_u32 s%d, s%d, 0x%x' % (sT1, sT1, ZB))
        if args.z28:
            e('s_cmp_lt_u32 s2, 28')
            e('s_cselect_b32 exec_lo, -1, 0xff')
            e('s_cselect_b32 exec_hi, -1, 0xff')
        a.vmem('buffer_store_dwordx4 %s, v%d, %s, s%d offen %s' % (vq(vT), t0, srd(SWS), sT1, args.fpol))
    if args.zo:
        e('s_add_u32 s%d, s%d, 0x%x' % (sG0, sT1, 2 * 131072))
        a.vmem('buffer_store_dwordx4 %s, v%d, %s, s%d offen %s' % (vq(vT), t0, srd(SWS), sG0, args.fpol))
        if args.z28:
            e('s_mov_b64 exec, -1')
    if args.yb:
        e('s_sub_u32 s%d, s%d, 0x%x' % (sT1, sT1, ZB - YB))
        e('s_mov_b32 exec_hi, 0')
        a.vmem('buffer_store_dwordx4 %s, v%d, %s, s%d offen %s' % (vq(vT), t0, srd(SWS), sT1, args.fpol))
        e('s_mov_b32 exec_hi, -1')


WT = []
for n in range(32):
    if n == args.ffirst:
        fills()
    e('s_add_u32 s%d, s%d, 0x%x' % (sT1, sT0, (n >> 2) * 16384 + (n & 3) * 1024 if 'c' in args.skip else n * 8192 if 'k' in args.skip else xtile(n) * 8192))
    if 't' in args.skip and n >= 8:
        e('s_waitcnt vmcnt(7)')
    wqtk = a.vmem('buffer_load_dwordx4 %s, v%d, %s, s%d offen %s' % (LAND[n] if args.tr else TQ[n], vAd, srd(SWQ), sT1, wpol))
    WT.append(wqtk)
a.vmem('buffer_load_dword v%d, v%d, %s, 0 offen' % (vX0, vXo, srd(SX)))
wqtk = a.vmem('buffer_load_dword v%d, v%d, %s, 0 offen offset:1024' % (vX1, vXo, srd(SX)))
if args.ffirst >= 32:
    fills()
mk_srd(SK, 6, 2 * BATCH)
mk_srd(SV, 8, 2 * BATCH)
mk_srd(SDBG, 24, 256)
mk_srd(SWO, 12, 4096 * 1024)
mk_srd(SGA, 16, 512 * 3584)
mk_srd(SUP, 18, 512 * 3584)
mk_srd(SDN, 20, 1792 * 1024)
mk_srd(SOUT, 22, 2048)
smask(sMaskJ8, 0x00FF00FF00FF00FF)
smask(sMaskV, 0x0001000100010001)
mk_koff(t0, 0, t1)
e('v_and_b32 v%d, 0x300, v%d' % (t1, vL16))
e('v_add_u32 v%d, v%d, v%d' % (t1, t1, vL16))
tail_soff(sT0, sT1)
e('s_lshl_b32 s%d, s2, 21' % sT1)
e('s_add_u32 s%d, s%d, s%d' % (sT0, sT0, sT1))
e('s_lshl_b32 s%d, s%d, 12' % (sKV, sU))
e('s_add_u32 s%d, s%d, %d' % (sKV, sKV, EKV))
for b in range(2):
    e('s_add_u32 s%d, s%d, 0x%x' % (sT1, sT0, 7 * PARTB + b * BATCH))
    for kv in range(2):
        e('s_add_u32 m0, s%d, 0x%x' % (sKV, (b * 2 + kv) * 1024))
        a.vmem('buffer_load_dwordx4 v%d, %s, s%d offen %s lds' % ((t0, t1)[kv], srd((SK, SV)[kv]), sT1, wpol))
if args.tr:
    e('v_mov_b32 v%d, 0x44444444' % vSI)
    e('v_mov_b32 v%d, 0x11114444' % t0)
    e('v_cndmask_b32 v%d, v%d, v%d, %s' % (vSI, t0, vSI, sp(sMaskJ8)))
    e('v_and_b32 v%d, 1, v0' % t0)
    e('v_sub_u32 v%d, 0, v%d' % (t0, t0))
    e('v_and_b32 v%d, 0xaaaaaaaa, v%d' % (t0, t0))
    e('v_or_b32 v%d, v%d, v%d' % (vSI, vSI, t0))
else:
    for op in idx_ops(vSI, vL16):
        e(op)
    for k in range(12):
        e('v_mov_b32 v%d, 0' % (vA + k))
e('v_and_b32 v%d, 0x18, v%d' % (vSt, vL8))
e('v_bfe_u32 v%d, v0, 2, %d' % (t0, 2 - args.ob))
e('v_lshl_or_b32 v%d, v%d, %d, v%d' % (vSt, t0, 8 + args.ob, vSt))
e('v_lshrrev_b32 v%d, %d, v0' % (t0, 5 - args.ob))
e('v_lshl_or_b32 v%d, v%d, 7, v%d' % (vSt, t0, vSt))
e('v_lshlrev_b32 v%d, 9, v0' % vOg)
e('s_lshl_b32 s%d, s%d, 9' % (sT0, sU))
e('v_add_u32 v%d, s%d, v%d' % (vEw, sT0, vL8))
e('s_and_b32 s%d, s2, 7' % sT0)
e('s_lshl3_add_u32 s%d, s%d, s%d' % (sG3, sU, sT0))
e('s_mul_i32 s%d, s%d, %d' % (sHU, sG3, HEADA))
if args.x4:
    e('s_lshl_b32 s%d, s%d, 3' % (sT0, sU))
    e('s_lshl_b64 %s, 0xff, s%d' % (sp(sQm), sT0))
e('s_lshl_b32 s%d, s%d, 4' % (sT0, sU))
if args.yb:
    e('s_bitcmp1_b32 s%d, 0' % sU)
    e('s_cselect_b32 s%d, 0, -1' % sQm)
    e('s_cselect_b32 s%d, -1, 0' % (sQm + 1))
elif not args.x4:
    e('s_lshl_b64 %s, 0xffff, s%d' % (sp(sQm), sT0))
e('v_lshrrev_b32 v%d, 4, v0' % vSw)
e('v_lshlrev_b32 v%d, 2, v%d' % (vSw, vSw))
e('v_add_u32 v%d, s%d, v%d' % (vSw, sT0, vSw))
e('v_and_b32 v%d, 0x30, v%d' % (vWr, vL16))
e('s_lshl_b32 s%d, s%d, 14' % (sT0, sU))
e('s_add_u32 s%d, s%d, %d' % (sT0, sT0, EDN))
e('v_add_u32 v%d, s%d, v%d' % (vWw, sT0, vL16))
e('v_lshrrev_b32 v%d, 2, v0' % t0)
e('v_lshlrev_b32 v%d, 3, v%d' % (vQr, t0))
e('v_and_b32 v%d, 1, v0' % t0)
e('v_lshl_or_b32 v%d, v%d, 8, v%d' % (vQr, t0, vQr))
e('v_bfe_u32 v%d, v0, 1, 1' % t0)
e('v_lshl_or_b32 v%d, v%d, 7, v%d' % (vQr, t0, vQr))
e('v_and_b32 v%d, 15, v0' % t0)
e('v_lshlrev_b32 v%d, 2, v%d' % (t0, t0))
e('v_lshrrev_b32 v%d, 4, v0' % t1)
e('v_lshl_or_b32 v%d, v%d, 7, v%d' % (t0, t1, t0))
e('v_add_u32 v%d, %d, v%d' % (vFr, E2, t0))
e('v_add_u32 v%d, %d, v%d' % (vFr2, E2 + 1024, t0))
e('s_lshl_b32 s%d, s%d, 8' % (sQa, sU))
e('s_add_u32 s%d, s%d, %d' % (sQa, sQa, EQ))
DQ = [vAc + 4 * k for k in range(4)] + [vLA + 48 + 4 * k for k in range(4)]
DO = DQ[:4] + [vLA + 32 + 4 * k for k in range(4)]
vR = vAc + 2 if args.tr else vAc


def zero_acc(lo, n, D=DQ):
    if args.tr:
        for d in D:
            e('v_mov_b64 %s, 0' % vp(d))
        return
    for k in range(n):
        e('v_mov_b32 v%d, 0' % (vAc + lo + k))


def ones():
    e('v_mov_b32 v%d, 1.0' % (vT if args.tr else vX))
    e('v_mov_b32 v%d, 1.0' % ((vT if args.tr else vX) + 1))
    if args.tr:
        e('s_mov_b64 vcc, 0')
    zero_acc(0, 8)


ones()
vZa, vEy, vL4, vTc = (vA + 8, vA + 9, vA + 10, vA + 11) if args.tr else (None, vLA + 60, vLA + 61, None)


def y_addr():
    e('v_and_b32 v%d, 0x1f0, v%d' % (vEy, vL16))
    e('v_lshrrev_b32 v%d, 5, v0' % vL4)
    e('v_lshl_or_b32 v%d, v%d, 3, v%d' % (vEy, vL4, vEy))
    if args.tr:
        e('v_mul_u32_u24 v%d, %d, v%d' % (vZa, 8192 - 256, vL4))
        e('v_add_u32 v%d, v%d, v%d' % (vZa, vZa, vL8))
    e('s_lshl_b32 s%d, s%d, 9' % (sT1, sU))
    e('v_add_u32 v%d, s%d, v%d' % (vEy, sT1, vEy))
    e('v_lshlrev_b32 v%d, 2, v0' % vL4)


if args.tr:
    y_addr()
    e('s_mov_b32 s%d, 0x05040100' % sPl)
    e('s_mov_b32 s%d, 0x07060302' % sPh)
e('v_and_b32 v%d, 0xf0, v%d' % (t0, vL16))
if args.x4:
    e('v_bfe_u32 v%d, v0, 4, 1' % t1)
    e('v_lshl_or_b32 v%d, v%d, 16, v%d' % (t0, t1, t0))
    e('v_lshrrev_b32 v%d, 5, v0' % t1)
    e('v_lshl_or_b32 v%d, v%d, 11, v%d' % (vAd, t1, t0))
else:
    e('v_lshl_or_b32 v%d, v%d, 10, v%d' % (vAd, vRs, t0))
e('s_lshl_b32 s%d, s%d, 17' % (sG3, sG3))
e('s_lshr_b32 s%d, s2, 3' % sT0)
e('s_lshl_b32 s%d, s%d, 8' % (sT0, sT0))
e('s_add_u32 s%d, s%d, s%d' % (sG3, sG3, sT0))


def wo_loads(lst):
    for it_ in lst:
        if it_ >= 8:
            continue
        for n in range(4 * it_, 4 * it_ + 4):
            e('s_add_u32 s%d, s%d, 0x%x' % (sT1, sG3, gtile(n) * 1024))
            WT.append(a.vmem('buffer_load_dwordx4 %s, v%d, %s, s%d offen %s' % (LAND[n] if args.tr else TO[n], vAd, srd(SWO), sT1, wpol)))


W0 = args.wo0
wo_loads(range(W0))
stamp(vT, True)
sq_(0)
if args.tr:
    assert not W0
    for n in range(0, 32, 2):
        a.vmwait(WT[n + 1])
        turn(TQ, LAND, n, vLA + 8)
        if n == 30 - args.wo1:
            wo_loads(range(2))
a.vmwait(wqtk)
sq_(1)
stamp(vT)
if not args.tr:
    wo_loads(range(W0, W0 + 2))
e('v_and_b32 v%d, 0xffff0000, v%d' % (vX0 + 1, vX0))
e('v_lshlrev_b32 v%d, 16, v%d' % (vX0, vX0))
e('v_and_b32 v%d, 0xffff0000, v%d' % (vX1 + 1, vX1))
e('v_lshlrev_b32 v%d, 16, v%d' % (vX1, vX1))
e('v_mul_u32_u24 v%d, 3584, v%d' % (vRs, vRs))
e('v_and_b32 v%d, 0x70, v%d' % (t1, vL16))
e('v_add_u32 v%d, v%d, v%d' % (vRs, t1, vRs))
e('s_mul_i32 s%d, s%d, %d' % (sG2, sU, 128 * 3584))
e('s_lshl_b32 s%d, s2, 7' % sT1)
e('s_add_u32 s%d, s%d, s%d' % (sG2, sG2, sT1))
e('s_cmp_ge_u32 s2, 28')
e('s_cselect_b32 s%d, 0x40000000, s%d' % (sG2, sG2))
e('s_mov_b32 s%d, 0' % sRet)
e('s_branch L_qstage')


def setx(src, pk=False):
    d = vT if args.tr and pk else vX
    e('v_mov_b32 v%d, v%d' % (d, src))
    e('v_mov_b32 v%d, v%d' % (d + 1, src + 1))
    if args.tr and pk:
        e('s_mov_b64 vcc, 0')


def q_slot():
    e('s_lshl3_add_u32 s%d, s%d, s%d' % (sQs, sJA, sHA))


sQs = sYp if args.tr else sT0


def bound(n):
    a.reset_counters()
    e('s_waitcnt vmcnt(%d)' % n)
    a.vm = list(range(n))


GT = {}


def gu_loads(lst):
    e('s_not_b64 %s, %s' % (sp(sMt), sp(sMaskJ8)))
    for n in lst:
        e('s_add_u32 s%d, s%d, 0x%x' % (sT1, sG2, xtile(n) * 3584))
        e('s_mov_b64 exec, %s' % sp(sMaskJ8))
        a.vmem('buffer_load_dwordx4 %s, v%d, %s, s%d offen %s' % (LANDG[n] if args.tr else TG[n], vRs, srd(SGA), sT1, wpol))
        e('s_mov_b64 exec, %s' % sp(sMt))
        GT[n] = a.vmem('buffer_load_dwordx4 %s, v%d, %s, s%d offen %s' % (LANDG[n] if args.tr else TG[n], vRs, srd(SUP), sT1, wpol))
    e('s_mov_b64 exec, -1')


a.label('L_csq')
e('v_mov_b32 v%d, v%d' % (vCq, vR))
e('v_mov_b32 v%d, v%d' % (vCq + 1, vR + 1))
zero_acc(0, 8)
setx(vX0, True)
e('s_getreg_b32 s%d, hwreg(HW_REG_XCC_ID, 0, 4)' % sFast)
e('s_or_b32 s%d, s%d, 0x80000000' % (sT0, sFast))
e('v_mov_b32 v%d, s%d' % (vMi + 7, sT0))
e('s_and_b32 s%d, s2, 7' % sT0)
e('s_lshr_b32 s%d, s2, 3' % sT1)
e('s_lshl2_add_u32 s%d, s%d, s%d' % (sT0, sT0, sT1))
e('s_lshl_b32 s%d, s%d, 2' % (sT0, sT0))
bound(8 + 4 * W0)
wo_loads(range(W0 + 2, W0 + 4))
e('s_mov_b32 s%d, 0' % sJA)
e('s_mov_b32 s%d, 1' % sRet)
if args.tr:
    q_slot()
e('s_barrier')
e('s_cmp_lg_u32 s%d, 0' % sU)
e('s_cbranch_scc1 L_qstage')
e('s_mov_b64 exec, 1')
e('buffer_store_dword v%d, off, %s, s%d sc1' % (vMi + 7, srd(SDBG), sT0))
e('s_mov_b64 exec, -1')
e('s_branch L_qstage')

a.label('L_i1')
zero_acc(0, 8)
setx(vX1, True)
bound(30)
wo_loads(range(W0 + 4, W0 + 6))
e('s_mov_b32 s%d, 32' % sJA)
e('s_add_u32 s%d, s%d, 1024' % (sQa, sQa))
e('s_mov_b32 s%d, 2' % sRet)
if args.tr:
    q_slot()
e('s_barrier')
e('s_branch L_qstage')

a.label('L_i2')
fl4 = vLA + 8
fl4ld = 'buffer_load_dwordx4 %s, off, %s, s%d sc1' % (vq(fl4), srd(SDBG), sLoc)


def fl4_load():
    e('s_and_b32 s%d, s2, 7' % sLoc)
    e('s_lshl_b32 s%d, s%d, 4' % (sLoc, sLoc))
    return a.vmem(fl4ld)


def dn_loads():
    e('v_bfe_u32 v%d, v0, 4, 1' % t0)
    e('v_lshlrev_b32 v%d, 14, v%d' % (vAd, t0))
    e('v_lshrrev_b32 v%d, 5, v0' % t0)
    e('v_lshl_or_b32 v%d, v%d, 12, v%d' % (vAd, t0, vAd))
    e('v_and_b32 v%d, 0xf0, v%d' % (t0, vL16))
    e('v_or_b32 v%d, v%d, v%d' % (vAd, vAd, t0))
    e('s_lshl_b32 s%d, s2, 16' % sT0)
    e('s_lshl_b32 s%d, s%d, 8' % (sT1, sU))
    e('s_add_u32 s%d, s%d, s%d' % (sT0, sT0, sT1))
    e('s_lshl_b32 s%d, s%d, 14' % (sG0, sU))
    for n in range(16):
        tau, pi, r = n & 1, (n >> 1) & 1, n >> 2
        e('s_add_u32 s%d, s%d, 0x%x' % (sT1, sT0, (32 * pi + 8 * (r >> 1) + 2 * tau + (r & 1)) * 1024))
        e('s_add_u32 m0, s%d, 0x%x' % (sG0, EDN + n * 1024))
        a.vmem('buffer_load_dwordx4 v%d, %s, s%d offen %s lds' % (vAd, srd(SDN), sT1, wpol))


if args.tr:
    a.reset_counters()
    a.vm = list(range(24))
    WT = list(range(24))
    wo_loads(range(6, 8))
    dn_loads()
    ftk = fl4_load()
    for n in range(0, 32, 2):
        a.vmwait(WT[n + 1])
        turn(TO, LAND, n, vLA + 16)
        gu_loads(range(n, n + 2))
    a.vmwait(ftk)
else:
    bound(30)
    wo_loads(range(W0 + 6, 8))
    gu_loads(range(12))
    fl4_load()
    gu_loads(range(12, 32))
    dn_loads()
sq_(2)
if args.wS:
    warm_site('s')
if not args.tr:
    bound(52)
sq_(3)
stamp(vT)
a.label('L_f4')
e('v_min3_u32 v%d, v%d, v%d, v%d' % (vT, fl4, fl4 + 1, fl4 + 2))
e('v_min_u32 v%d, v%d, v%d' % (vT, vT, fl4 + 3))
e('v_cmp_eq_u32 vcc, 0, v%d' % vT)
e('s_cbranch_vccz L_f4ok')
e(fl4ld)
e('s_waitcnt vmcnt(0)')
spin_tail('L_f4')
a.label('L_f4ok')
e('v_max3_u32 v%d, v%d, v%d, v%d' % (vT + 1, fl4, fl4 + 1, fl4 + 2))
e('v_max_u32 v%d, v%d, v%d' % (vT + 1, vT + 1, fl4 + 3))
e('v_xor_b32 v%d, v%d, v%d' % (vT, vT, vT + 1))
e('v_readfirstlane_b32 s%d, v%d' % (sLoc, vT))
if args.nofast:
    e('s_mov_b32 s%d, 1' % sLoc)
e('s_sub_u32 s%d, s%d, 1024' % (sQa, sQa))
e('s_mov_b32 s%d, 0' % sJA)
e('s_mov_b32 s%d, 4' % sRet)
if args.tr:
    for qd in range(2):
        for k in range(8):
            a.lds('ds_read_b128 %s, v%d offset:%d' % (vq(vLA + 4 * k), vWw, (2 * k + qd) * 1024))
        a.lgwait_all()
        for t_ in range(8):
            for r in range(4):
                e('v_perm_b32 v%d, v%d, v%d, s%d' % (vT + r, vLA + 8 * r + 4 + (t_ >> 1), vLA + 8 * r + (t_ >> 1), (sPl, sPh)[t_ & 1]))
            a.lds('ds_write_b128 v%d, %s offset:%d' % (vWw, vq(vT), (2 * t_ + qd) * 1024))
            a.nop(2)
    a.lgwait_all()
    for n in range(0, 16, 2):
        a.vmwait(GT[n + 1])
        turn(TG, LANDG, n, None)
e('s_branch L_own')

a.label('L_i4')
sq_(4)
if args.tr:
    for n in range(16, 32, 2):
        turn(TG, LANDG, n, None)
ones()
stamp(vT)
e('s_branch L_fgemv')

a.label('L_csf')
if args.bwtest == 2:
    e('s_endpgm')
a.reset_counters()
e('v_mov_b32 v%d, v%d' % (vCf, vR))
e('v_mov_b32 v%d, v%d' % (vCf + 1, vR + 1))
setx(vX0)
vMe = vX0
if args.tr:
    smask(sMt, 0x0F0F0F0F0F0F0F0F)
    e('v_cndmask_b32 v%d, 0, -1, %s' % (vMe, sp(sMt)))
    e('v_cndmask_b32 v%d, -1, 0, %s' % (vMe + 1, sp(sMt)))
e('v_lshlrev_b32 v%d, 2, v0' % vT)
e('s_lshr_b32 s%d, s%d, 2' % (sIod, sFast))
if args.RR:
    e('s_cmp_lt_u32 s2, 28')
    e('s_cbranch_scc1 L_flags')
    e('s_lshl2_add_u32 s%d, s2, s%d' % (sG0, sU))
    e('s_lshl_b32 s%d, s%d, 8' % (sT0, sG0))
    e('s_add_u32 s%d, s%d, 0x%x' % (sT0, sT0, RACEB - 112 * 256))
    e('s_mov_b32 s%d, 0' % sVt)
    e('s_mov_b32 exec_hi, 0')
    e('s_waitcnt vmcnt(0)')
    for k in range(2 * args.RR):
        r = k >> 1
        c = (k ^ r) & 1
        e('s_movk_i32 s%d, 1000' % sG1)
        e('s_add_u32 s%d, s%d, 0x%x' % (sG2, sT0, (r >> 1) * 16384 + (r & 1) * 4096 + c * 8192))
        e('buffer_store_dword v%d, v%d, %s, s%d offen sc1' % (vT, vT, srd(SWS), sG2))
        a.label('L_rc%d' % k)
        e('s_getreg_b32 s%d, hwreg(HW_REG_IB_STS, 0, 4)' % sT1)
        e('s_%s_u32 s%d, s%d, 1' % ('add' if c else 'sub', sVt, sVt))
        e('s_sub_u32 s%d, s%d, 1' % (sG1, sG1))
        e('s_cselect_b32 s%d, 0, s%d' % (sT1, sT1))
        e('s_cmp_lg_u32 s%d, 0' % sT1)
        e('s_cbranch_scc1 L_rc%d' % k)
    if args.par == 'dbg':
        e('s_mov_b32 s11, s%d' % sVt)
    e('s_lshr_b32 s%d, s%d, 31' % (sVt, sVt))
    e('s_xor_b32 s%d, s%d, s%d' % (sVt, sVt, sIod))
    e('s_add_u32 s%d, s%d, 1' % (sVt, sVt))
    e('v_mov_b32 v%d, s%d' % (vT + 1, sVt if args.par != 'dbg' else 11))
    e('s_lshl_b32 s%d, s%d, 2' % (sG0, sG0))
    e('s_sub_u32 s%d, s%d, %d' % (sG0, sG0, 448 - 128))
    e('s_mov_b64 exec, 1')
    e('buffer_store_dword v%d, off, %s, s%d sc1' % (vT + 1, srd(SDBG), sG0))
    e('s_mov_b64 exec, -1')
    e('s_waitcnt vmcnt(0)')
    stamp(vT + 2)
    if args.ts and not args.quiet:
        e('s_sub_u32 s%d, s%d, 8' % (sTS, sTS))
a.label('L_flags')
e('buffer_load_dword v%d, v%d, %s, 0 offen sc1' % (vT + 1, vT, srd(SDBG)))
e('s_waitcnt vmcnt(0)')
e('v_cmp_eq_u32 vcc, 0, v%d' % (vT + 1))
e('s_nop 0')
e('s_cmp_eq_u32 vcc_lo, 0')
e('s_cbranch_scc1 L_flagsok')
spin_tail('L_flags', 4)
a.label('L_flagsok')
sq_(5)


def count_votes():
    e('v_cmp_eq_u32 vcc, 2, v%d' % (vT + 1))
    e('s_bcnt1_i32_b32 s%d, vcc_hi' % sT0)
    e('v_cmp_eq_u32 vcc, 1, v%d' % (vT + 1))
    e('s_bcnt1_i32_b32 s%d, vcc_hi' % sT1)
    e('s_cmp_gt_u32 s%d, s%d' % (sT0, sT1))
    e('s_cselect_b32 s%d, 1, 0' % sVt)
    if args.par.startswith('host'):
        e('s_load_dword s%d, s[14:15], 8' % sVt)
        e('s_waitcnt lgkmcnt(0)')
        e('s_lshr_b32 s%d, s%d, 13' % (sVt, sVt))
        if args.par == 'hostx':
            e('s_xor_b32 s%d, s%d, 1' % (sVt, sVt))
    e('s_xor_b32 s%d, s%d, s%d' % (sVt, sVt, sIod))
    e('s_and_b32 s%d, s%d, 1' % (sVt, sVt))
    e('s_lshl_b32 s%d, s%d, 13' % (sFast, sVt))


count_votes()
e('s_mov_b32 s%d, 0' % sIt)
e('s_mov_b32 s%d, 0' % sOutB)
e('s_mov_b32 s%d, 5' % sRet)

a.label('L_loop')
a.reset_counters()
e('s_and_b32 s%d, s%d, 1' % (sT0, sIt))
e('s_lshl_b32 s%d, s%d, 1' % (sT0, sT0))
e('s_lshr_b32 s%d, s%d, 1' % (sT1, sIt))
e('s_or_b32 s%d, s%d, s%d' % (sT0, sT0, sT1))
e(('s_lshl_b32 s%d, s%d, 8' if args.ob else 's_add_u32 s%d, s%d, 1') % (sOm, sT1))
e('s_lshl_b32 s%d, s%d, 5' % (sJA, sT0))
e('s_add_u32 s%d, s%d, s%d' % (sG1, sJA, sHU))
e('s_bitcmp1_b32 s%d, 0' % sIt)
e('s_cselect_b32 s%d, 4096, 0' % sG0)
e('s_add_u32 s%d, s%d, %d' % (sG0, sG0, OFF_O))
if args.ob:
    e('s_add_u32 s%d, s%d, s%d' % (sG0, sG0, sOm))
e('s_add_u32 s%d, s%d, s%d' % (sG0, sG0, sHU))
e('s_lshl_b32 s%d, s%d, 15' % (sYg, sT0))
if args.yb:
    e('s_add_u32 s%d, s%d, 0x%x' % (sYg, sYg, YB))
    e('s_and_b32 s%d, s%d, 2' % (sT1, sU))
    e('s_lshl4_add_u32 s%d, s%d, s2' % (sT1, sT1))
    e('s_lshl_b32 s%d, s%d, 8' % (sT1, sT1))
    e('s_add_u32 s%d, s%d, s%d' % (sYp, sYg, sT1))
    e('s_lshl_b32 s%d, s%d, 11' % (sT1, sU))
    e('s_add_u32 s%d, s%d, s%d' % (sYg, sYg, sT1))
    e('s_add_u32 s%d, s%d, s%d' % (sYg, sYg, sFast))
    if not args.tr:
        y_addr()
else:
    if not args.y1:
        e('s_add_u32 s%d, s%d, s%d' % (sYg, sYg, sFast))
    e('s_add_u32 s%d, s%d, 0x%x' % (sYg, sYg, YB))
    e('s_add_u32 s%d, s%d, s%d' % (sYp, sYg, sHS))
    e('s_xor_b32 s%d, s%d, 8192' % (sVt, sYp))
    e('s_and_b32 s%d, s%d, 2' % (sT1, sU))
    e('s_add_u32 s%d, s%d, s%d' % (sT1, sT1, sU))
    e('s_lshl_b32 s%d, s%d, 12' % (sT1, sT1))
    e('s_add_u32 s%d, s%d, s%d' % (sYg, sYg, sT1))
e('s_lshl2_add_u32 s%d, s%d, s%d' % ((sZg, sU, sT0) if args.zl == 1 else (sZg, sT0, sU)))
e('s_lshl_b32 s%d, s%d, 15' % (sZg, sZg))
if args.zc == 1:
    e('s_bitcmp1_b32 s%d, 0' % sU)
    e('s_cselect_b32 s%d, 8192, 0' % sT1)
    e('s_add_u32 s%d, s%d, s%d' % (sZg, sZg, sT1))
else:
    e('s_add_u32 s%d, s%d, s%d' % (sZg, sZg, sFast))
e('s_add_u32 s%d, s%d, 0x%x' % (sZg, sZg, ZB))
zero_acc(0, 16, DO)
oA_, vHm, vOa = vLA + 24, vLA + 4, vLA + 5
if args.ob:
    for op in z64(oA_, 8):
        e(op)
    e('v_and_b32 v%d, 16, v%d' % (vHm, vL16))
    e('s_mov_b32 s%d, 0xffff' % sT0)
    e('v_lshlrev_b32 v%d, v%d, s%d' % (vHm, vHm, sT0))
    e('v_and_b32 v%d, 0x300, v%d' % (vOa, vL16))
    e('v_add_u32 v%d, v%d, v%d' % (vOa, vOa, vL16))
    smask(sMt, 0xCCCCCCCCCCCCCCCC)
    for i in range(2):
        e('buffer_load_dwordx4 %s, v%d, %s, s%d offen offset:%d sc1' % (vq(vLA + 16 + 4 * i), vOa, srd(SWS), sG0, i * 2048))
sq_dump(vT)
stamp(vT)
sv = vLA
a.label('L_stats')
e('buffer_load_dwordx2 %s, v%d, %s, s%d offen sc1' % (vp(sv), vSt, srd(SWS), sG1))
e('s_waitcnt vmcnt(0)')
e('v_max_u32 v%d, v%d, v%d' % (vT, sv, sv + 1))
e('v_cmp_eq_u32 vcc, -1, v%d' % vT)
e('s_cbranch_vccz L_statsok')
spin_tail('L_stats', args.ssl)
a.label('L_statsok')
sq_(0)
stamp(vT)
oa = vLA + 16
fF = vLA + 8
Gs = [sG0, sG1, sG2, sG3]


def o_loads(k=0):
    if args.ob:
        for i in range(2):
            e('buffer_load_dwordx4 %s, v%d, %s, s%d offen offset:%d sc1' % (vq(oa + 32 * k + 4 * i), vOa, srd(SWS), sG0, i * 2048))
        return
    for i in range(4):
        e('buffer_load_dwordx4 %s, v%d, %s, s%d offen offset:%d sc1' % (vq(oa + 16 * k + 4 * i), vL16, srd(SWS), sG0, i * 1024))


def touch(k, r):
    if k not in args.stch:
        return
    e('s_cmp_lg_u32 s%d, 0' % sIt)
    e('s_cbranch_scc1 L_nt' + k)
    e('v_lshlrev_b32 v%d, 3, v%d' % (r, vL16))
    e('s_mov_b32 exec_lo, 0xff00ffff')
    e('s_mov_b32 exec_hi, 0x00ffffff')
    e('buffer_load_dword v%d, v%d, %s, s%d offen sc1' % (r, r, srd(SWS), sHU))
    e('s_mov_b64 exec, -1')
    a.label('L_nt' + k)


e('s_bitcmp1_b32 s%d, 0' % sIt)
e('s_cbranch_scc1 L_noprobe')
if args.hm:
    e('s_cmp_lg_u32 s%d, 2' % sIt)
    e('s_cbranch_scc1 L_nohelp')
    e('s_and_b32 s%d, s2, 7' % sG3)
    e('s_lshl_b32 s%d, s%d, 8' % (sG2, sG3))
    e('s_add_u32 s%d, s%d, 0x%x' % (sG2, sG2, GATEB))
    a.label('L_help')
    e('s_mov_b64 exec, 0x7f')
    e('buffer_load_dword v%d, v%d, %s, s%d offen sc1' % (oa, vOg, srd(SWS), sG0))
    e('s_mov_b32 exec_lo, 0x0fffffff')
    e('buffer_load_ubyte v%d, v%d, %s, s%d offen sc1' % (vT, vL8, srd(SWS), sG2))
    e('s_waitcnt vmcnt(0)')
    e('v_cmp_ne_u32 %s, 0, v%d' % (sp(sMt), vT))
    e('s_mov_b64 exec, 0x7f')
    e('v_and_b32 v%d, s%d, v%d' % (oa, sOm, oa))
    e('v_cmp_eq_u32 vcc, 0, v%d' % oa)
    e('s_cbranch_vccnz L_probeok')
    e('s_bcnt1_i32_b32 s%d, s%d' % (sT0, sMt))
    e('s_cmp_le_u32 s%d, %d' % (sT0, args.hn))
    e('s_cbranch_scc1 L_dohelp')
    spin_tail('L_help', args.psl)
    a.label('L_dohelp')
    e('s_mov_b64 exec, -1')
    e('s_lshr_b32 s%d, s2, 3' % sT0)
    e('s_lshl2_add_u32 s%d, s%d, s%d' % (sT0, sU, sT0))
    e('s_and_b32 s%d, s%d, %d' % (sT1, sT0, (16 >> args.hs) - 1))
    e('s_lshr_b32 s%d, s%d, %d' % (sT0, sT0, 4 - args.hs))
    e('v_mbcnt_lo_u32_b32 v%d, s%d, 0' % (vT, sMt))
    e('v_cmp_eq_u32 vcc, s%d, v%d' % (sT1, vT))
    e('s_and_b32 s%d, vcc_lo, s%d' % (sMt, sMt))
    e('s_cbranch_scc0 L_nohelp')
    e('s_ff1_i32_b32 s%d, s%d' % (sMt, sMt))
    e('s_and_b32 s%d, s%d, 3' % (sT1, sMt))
    e('s_lshl3_add_u32 s%d, s%d, s%d' % (sG3, sT1, sG3))
    e('s_lshl_b32 s%d, s%d, 21' % (sG3, sG3))
    e('s_lshr_b32 s%d, s%d, 2' % (sMt, sMt))
    e('s_mul_i32 s%d, s%d, %d' % (sMt, sMt, PARTB))
    e('s_add_u32 s%d, s%d, s%d' % (sG3, sG3, sMt))
    e('s_lshl_b32 s%d, s%d, %d' % (sT0, sT0, 6 + args.hl))
    e('s_sub_u32 s%d, 0x20000, s%d' % (sT0, sT0))
    e('s_add_u32 s%d, s%d, s%d' % (sG3, sG3, sT0))
    e('v_lshlrev_b32 v%d, %d, v0' % (vT, args.hl))
    e('v_add_u32 v%d, s%d, v%d' % (vT, sG3, vT))
    for k in range(args.hp):
        e('s_mov_b32 s%d, 0x%x' % (sT0, BATCH + 10 * 16384 - (64 << args.hl) * (1 + (k << args.hs))))
        e('buffer_load_dword v%d, v%d, %s, s%d offen %s' % (vT + 1, vT, srd(SV), sT0, args.hpol))
    a.label('L_nohelp')
e('s_mov_b64 exec, 0x7f')
a.label('L_probe')
e('buffer_load_dword v%d, v%d, %s, s%d offen sc1' % (oa, vOg, srd(SWS), sG0))
e('s_waitcnt vmcnt(0)')
if args.ob:
    assert not args.hm
    e('v_cmp_ne_u32 vcc, -1, v%d' % oa)
else:
    e('v_and_b32 v%d, s%d, v%d' % (oa, sOm, oa))
    e('v_cmp_eq_u32 vcc, 0, v%d' % oa)
if args.pall:
    e('s_bcnt1_i32_b32 s%d, vcc_lo' % sT0)
    e('s_cmp_ge_u32 s%d, %d' % (sT0, args.pall))
    e('s_cbranch_scc1 L_probeok')
else:
    e('s_cbranch_vccnz L_probeok')
spin_tail('L_probe', args.psl)
a.label('L_probeok')
e('s_mov_b64 exec, -1')
touch('p', oa)
a.label('L_noprobe')
o_loads()
M_, L_ = vT, vT + 1
e('v_mov_b32 v%d, v%d' % (fF, sv))
a.chain(allreduce_list('v_max_f32', fF, None, (0, 1)), [])
e('v_mov_b32 v%d, v%d' % (M_, fF))
a.chain(allreduce_list('v_max_f32', M_, vT + 2, (2, 3 + args.ob, 5)), [])
e('v_sub_f32 v%d, v%d, v%d' % (L_, sv, M_))
e('v_sub_f32 v%d, v%d, v%d' % (fF, fF, M_))
e('v_exp_f32 v%d, v%d' % (L_, L_))
e('v_exp_f32 v%d, v%d' % (fF, fF))
e('v_mul_f32 v%d, v%d, v%d' % (L_, L_, sv + 1))
if args.ons > 2 or args.o2 == 2:
    o_loads(1)
a.chain(allreduce_list('v_add_f32', L_, vT + 2, (0, 1, 2, 3 + args.ob, 5)), [])
e('v_rcp_f32 v%d, v%d' % (L_, L_))
e('v_mul_f32 v%d, v%d, v%d' % (fF, fF, L_))
if args.ob:
    e('v_cvt_pk_bf16_f32 v%d, 0, v%d' % (vT, fF))
    e('v_sub_f32 v%d, v%d, v%d' % (vT, fF, vT))
    e('v_cndmask_b32 v%d, v%d, v%d, %s' % (fF, fF, vT, sp(sMt)))
    e('v_cvt_pk_bf16_f32 v%d, v%d, v%d' % (fF, fF, fF))
    e('v_and_b32 v%d, v%d, v%d' % (fF, fF, vHm))
    if args.o2 == 1:
        o_loads(1)
    for i in range(2):
        for k in range(4):
            e('v_mov_b32_dpp v%d, v%d %s row_mask:0xf bank_mask:0x%x' % (oA_ + 4 * i + k, fF, 'quad_perm:[0,1,2,3]' if k & 1 == i else 'row_ror:4', 1 << k))
ac = vLA + 12
od = vLA + 10


def sentinel_check(base, n, t):
    e('v_max3_u32 v%d, v%d, v%d, v%d' % (t, base, base + 1, base + 2))
    k = 3
    while k + 1 < n:
        e('v_max3_u32 v%d, v%d, v%d, v%d' % (t, t, base + k, base + k + 1))
        k += 2
    if k < n:
        e('v_max_u32 v%d, v%d, v%d' % (t, t, base + k))
    e('v_cmp_eq_u32 vcc, -1, v%d' % t)


if args.ons > 1:
    o_loads(args.ons - 1)
a.label('L_ogather')
assert args.ons == 1
ob = oa
ot = vT + 1
for i in range(2 * args.ob):
    e('s_waitcnt vmcnt(%d)' % (1 - i + 2 * bool(args.o2)))
    mfma(vq(ac), vq(oA_ + 4 * i), vq(oa + 4 * i), i == 0)
for i in range(0 if args.ob else 4):
    e('s_waitcnt vmcnt(%d)' % (3 - i))
    for k in range(4):
        e('%s v%d, v%d, v%d row_newbcast:%d %s' % ('v_mul_f32_dpp' if i == 0 else 'v_fmac_f32_dpp', ac + k, fF, ob + 4 * i + k, 4 * i, DPPF))
    r = ob + 4 * i
    if i == 0:
        e('v_or3_b32 v%d, v%d, v%d, v%d' % (ot, r, r + 1, r + 2))
        e('v_or_b32 v%d, v%d, v%d' % (ot, ot, r + 3))
    elif i < 3:
        e('v_or3_b32 v%d, v%d, v%d, v%d' % (ot, ot, r, r + 1))
        e('v_or3_b32 v%d, v%d, v%d, v%d' % (ot, ot, r + 2, r + 3))
if args.ob:
    sentinel_check(oa, 8, ot)
    e('v_pk_add_f32 %s, %s, %s' % (vp(ac), vp(ac), vp(ac + 2)))
else:
    e('v_or3_b32 v%d, v%d, v%d, v%d' % (ot, ot, r, r + 1))
    e('v_permlane32_swap_b32 v%d, v%d' % (ac, ac + 2))
    e('v_permlane32_swap_b32 v%d, v%d' % (ac + 1, ac + 3))
    e('v_or3_b32 v%d, v%d, v%d, v%d' % (ot, ot, r + 2, r + 3))
    e('v_add_f32 v%d, v%d, v%d' % (ac, ac, ac + 2))
    e('v_and_b32 v%d, s%d, v%d' % (ot, sOm, ot))
    e('v_cmp_ne_u32 vcc, 0, v%d' % ot)
    e('v_add_f32 v%d, v%d, v%d' % (ac + 1, ac + 1, ac + 3))
ROT = [0, 4, 2, 6, 8, 12, 10, 14]


def rot(m):
    return 'v_mov_b32_dpp v%d, v%d row_ror:%d %s' % (vA + m, vA, 16 - ROT[m], DPPF)


if args.tr:
    e('v_cvt_pk_bf16_f32 v%d, v%d, v%d' % (vA, ac, ac + 1))
    e(rot(1))
    a.raw('    s_cbranch_vccnz L_oagain')
    a.pos += 1

    def oagain():
        o_loads()
        if args.o2:
            for i in range(2):
                e('s_waitcnt vmcnt(%d)' % (3 - i))
                mfma(vq(ac), vq(oA_ + 4 * i), vq(oa + 32 + 4 * i), i == 0)
            sentinel_check(oa + 32, 8, ot)
            e('v_pk_add_f32 %s, %s, %s' % (vp(ac), vp(ac), vp(ac + 2)))
            e('v_cvt_pk_bf16_f32 v%d, v%d, v%d' % (vA, ac, ac + 1))
            e(rot(1))
            a.raw('    s_cbranch_vccz L_ook')
            a.pos += 1
            o_loads(1)
        spin_tail('L_ogather')
    OOL.append(('L_oagain', oagain))
    a.raw('L_ook:')
else:
    e('v_cvt_pk_bf16_f32 v%d, 0, v%d' % (od, ac))
    e('v_cvt_pk_bf16_f32 v%d, 0, v%d' % (od + 1, ac + 1))
    e('s_cbranch_vccz L_ook')
    o_loads()
    spin_tail('L_ogather')
    a.label('L_ook')
sq_(1)
ct(0)
stamp(vT + 2)
if args.noit1 == 2:
    e('s_cmp_eq_u32 s%d, 1' % sIt)
    e('s_cbranch_scc1 L_next')


def ackwait(n):
    if not args.noack:
        e('s_waitcnt vmcnt(%d)' % (n and n + (1 if args.ts and not args.cts and not args.quiet else 0)))


NPF = 12


def dn_read(c):
    return a.lds('ds_read_b128 %s, v%d offset:%d' % (vq(vLA + 4 * c), vWw, c * 1024))


def shadow(tag, B, A, t):
    n = len(B)
    for i, b in enumerate(B):
        e('s_waitcnt vmcnt(%d)' % (n - 1 - i))
        mfma(vq(vT), vq(A), vq(b), i == 0)
        if i == 0:
            e('v_max3_u32 v%d, v%d, v%d, v%d' % (t, b, b + 1, b + 2))
            e('v_max_u32 v%d, v%d, v%d' % (t, t, b + 3))
        else:
            e('v_max3_u32 v%d, v%d, v%d, v%d' % (t, t, b, b + 1))
            e('v_max3_u32 v%d, v%d, v%d, v%d' % (t, t, b + 2, b + 3))
    e('v_cmp_eq_u32 vcc, -1, v%d' % t)
    e('s_sub_u32 s%d, s%d, 1' % (sBud, sBud))
    a.raw('    s_cbranch_scc1 L_%s_bad' % tag)
    a.pos += 1
    a.nop(args.shn)
    a.raw('    s_cbranch_vccnz L_%s_ld' % tag)
    a.pos += 1
    OOL.append(('L_%s_bad' % tag, lambda: e('s_endpgm')))


def gather_y():
    e('s_waitcnt vmcnt(%d)' % ((3 if args.ts and not args.cts and not args.quiet else 2) - bool(args.yb)))
    touch('y', vTc if args.tr else vLA + 63)
    for c in range(NPF):
        dn_read(c)
    zero_acc(0, 8)
    if args.zo:
        e('s_lshl_b32 s%d, s2, 8' % sYp)
        e('s_add_u32 s%d, s%d, s%d' % (sYp, sYp, sZg))
    elif args.zb:
        e('s_lshl_b32 s%d, s2, 8' % sYp)
        e('s_bitcmp1_b32 s%d, 0' % sIt)
        e('s_cselect_b32 s%d, s%d, s%d' % (sYp, sHS, sYp))
        e('s_add_u32 s%d, s%d, s%d' % (sYp, sYp, sZg))
        e('s_xor_b32 s%d, s%d, 8192' % (sVt, sYp))
    if args.z1:
        e('s_andn2_b32 s%d, s%d, 8192' % (sG0, sYp))
    if args.z28:
        assert sG1 % 2 == 0 and args.zo
        e('s_cmp_lt_u32 s2, 28')
        e('s_cselect_b32 s%d, -1, %d' % (sG1, args.z28))
        e('s_cselect_b32 s%d, -1, 0' % (sG1 + 1))
    if args.yb:
        pick_a(vMi if args.tr else vLA + 56, vT)
    if args.yh:
        e('v_and_b32 v%d, 0x300, v%d' % (vLA + 56, vL16))
        e('v_add_u32 v%d, v%d, v%d' % (vLA + 56, vLA + 56, vL16))
    ackwait(args.acky)
    if args.ysl > 0:
        e('s_sleep %d' % args.ysl)
    if args.ysl < 0:
        a._lgwait_n(-1 - args.ysl)
    b = vLA + 48
    if args.yb:
        B = [vMi + 4, vA + 4] if args.tr else [b, b + 4]
        a.label('L_y_ld')
        for i in range(2):
            e('buffer_load_dwordx4 %s, v%d, %s, s%d offen offset:%d %s' % (vq(B[i]), vL16, srd(SWS), sYg, i * 1024, args.lpol))
        if 'y' in args.shd:
            shadow('y', B, vMi, vA + 1)
            finish_x('y', False)
            return
        for i in range(2):
            e('s_waitcnt vmcnt(%d)' % (1 - i))
            mfma(vq(vT), vq(vMi if args.tr else b + 8), vq(B[i]), i == 0)
        finish_x('y', False)

        def bad():
            e('v_max3_u32 v%d, v%d, v%d, v%d' % (vT + 3, B[0], B[0] + 1, B[0] + 2))
            e('v_max3_u32 v%d, v%d, v%d, v%d' % (vT + 3, vT + 3, B[0] + 3, B[1]))
            e('v_max3_u32 v%d, v%d, v%d, v%d' % (vT + 3, vT + 3, B[1] + 1, B[1] + 2))
            e('v_max_u32 v%d, v%d, v%d' % (vT + 3, vT + 3, B[1] + 3))
            e('v_cmp_eq_u32 vcc, -1, v%d' % (vT + 3))
            e('s_cbranch_vccz L_y_ok')
            spin_tail('L_y_ld')
        OOL.append(('L_y_bad', bad))
        return
    if args.yh:
        a.label('L_y_ld')
        for i in range(2):
            e('buffer_load_dwordx4 %s, v%d, %s, s%d offen offset:%d sc1' % (vq(b + 4 * i), b + 8, srd(SWS), sYg, i * 2048))
        e('s_waitcnt vmcnt(0)')
        e('v_pk_add_f32 %s, %s, %s' % (vp(vT), vp(b), vp(b + 4)))
        e('v_pk_add_f32 %s, %s, %s' % (vp(vT + 2), vp(b + 2), vp(b + 6)))
        finish_x('y')
        OOL.append(('L_y_bad', lambda: (sentinel_check(b, 8, vT + 2), e('s_cbranch_vccz L_y_ok'), spin_tail('L_y_ld'))))
        return
    a.label('L_y_ld')
    for i in range(4):
        e('buffer_load_dwordx4 %s, v%d, %s, s%d offen offset:%d sc1' % (vq(b + 4 * i), vL16, srd(SWS), sYg, i * 1024))
    e('s_waitcnt vmcnt(2)')
    e('v_pk_add_f32 %s, %s, %s' % (vp(vT), vp(b), vp(b + 4)))
    e('v_pk_add_f32 %s, %s, %s' % (vp(vT + 2), vp(b + 2), vp(b + 6)))
    e('s_waitcnt vmcnt(1)')
    e('v_pk_add_f32 %s, %s, %s' % (vp(vT), vp(vT), vp(b + 8)))
    e('v_pk_add_f32 %s, %s, %s' % (vp(vT + 2), vp(vT + 2), vp(b + 10)))
    e('s_waitcnt vmcnt(0)')
    e('v_pk_add_f32 %s, %s, %s' % (vp(vT), vp(vT), vp(b + 12)))
    e('v_pk_add_f32 %s, %s, %s' % (vp(vT + 2), vp(vT + 2), vp(b + 14)))
    finish_x('y')
    OOL.append(('L_y_bad', lambda: (sentinel_check(b, 16, vT + 2), e('s_cbranch_vccz L_y_ok'), spin_tail('L_y_ld'))))


def finish_x(tag, fold=True):
    if fold:
        e('v_permlane32_swap_b32 v%d, v%d' % (vT, vT + 2))
        e('v_permlane32_swap_b32 v%d, v%d' % (vT + 1, vT + 3))
        e('v_add_f32 v%d, v%d, v%d' % (vT, vT, vT + 2))
        e('v_add_f32 v%d, v%d, v%d' % (vT + 1, vT + 1, vT + 3))
    if tag not in args.shd:
        e('v_cmp_u_f32 vcc, v%d, v%d' % (vT, vT + 1))
    e('v_cvt_pk_bf16_f32 v%d, 0, v%d' % (vT, vT))
    e('v_cvt_pk_bf16_f32 v%d, 0, v%d' % (vT + 1, vT + 1))
    if args.tr:
        e('v_pk_add_f32 %s, %s, %s' % (vp(vT), vp(vX), vp(vT)))
        a.raw({'y': 'L_fgemv:', 'z': 'L_qstage:'}[tag])
        e('v_cvt_pk_bf16_f32 v%d, v%d, v%d' % (vA, vT, vT + 1))
        e('v_readfirstlane_b32 s%d, v%d' % (sT1, vT))
        if tag in args.shd:
            return
        a.raw('    s_cbranch_vccnz L_%s_bad' % tag)
        a.pos += 1
        a.raw('L_%s_ok:' % tag)
        return
    e('v_add_f32 v%d, v%d, v%d' % (vT, vX, vT))
    e('v_add_f32 v%d, v%d, v%d' % (vT + 1, vX + 1, vT + 1))
    e('s_nop 0')
    a.raw('    s_cbranch_vccnz L_%s_bad' % tag)
    a.pos += 1
    a.raw('L_%s_ok:' % tag)
    e('v_cvt_pk_bf16_f32 v%d, 0, v%d' % (vX, vT))
    e('v_cvt_pk_bf16_f32 v%d, 0, v%d' % (vX + 1, vT + 1))


def pick_a(A, t):
    e('v_and_b32 v%d, 16, v%d' % (t, vL16))
    e('s_movk_i32 s%d, 0x3f80' % sT0)
    e('v_lshlrev_b32 v%d, v%d, s%d' % (t, t, sT0))
    for k in range(4):
        smask(sMt, 0x0003000300030003 << (4 * k))
        e('v_cndmask_b32 v%d, 0, v%d, %s' % (A + k, t, sp(sMt)))


def gather_b():
    A = vLA + 32
    pick_a(A, vT)
    if args.zb == 2:
        e('s_lshr_b32 s%d, s2, 3' % sT0)
        for q in range(3):
            e('s_add_u32 s%d, s%d, %d' % (sT1, sT0, q))
            e('s_sub_u32 s%d, s%d, 3' % (Gs[q], sT1))
            e('s_cselect_b32 s%d, s%d, s%d' % (sT1, sT1, Gs[q]))
            e('s_lshl_b32 s%d, s%d, 11' % (sT1, sT1))
            e('s_add_u32 s%d, s%d, s%d' % (Gs[q], sZg, sT1))
        e('s_add_u32 s%d, s%d, 6144' % (Gs[3], sZg))
        at = lambda i: (Gs[i >> 1], (i & 1) * 1024)
    else:
        e('s_add_u32 s%d, s%d, 4096' % (Gs[0], sZg))
        at = lambda i: (Gs[0] if i >> 2 else sZg, (i & 3) * 1024)
    zero_acc(0, 8)
    if args.tr:
        e('s_add_u32 s%d, s%d, 64' % (sJA, sJA))
        q_slot()
    touch('z', vLA + 40)
    ackwait(args.ackz)
    if args.zsl:
        e('s_sleep %d' % args.zsl)
    a.label('L_z_ld')
    for i in range(7):
        e('buffer_load_dwordx4 %s, v%d, %s, s%d offen offset:%d %s' % ((vq(vLA + 4 * i), vL16, srd(SWS)) + at(i) + (args.lpol,)))
    if 'z' in args.shd:
        shadow('z', [vLA + 4 * i for i in range(7)], A, vA + 1)
        finish_x('z', False)
        return
    for i in range(7):
        e('s_waitcnt vmcnt(%d)' % (6 - i))
        mfma(vq(vT), vq(A), vq(vLA + 4 * i), i == 0)
    finish_x('z', False)
    OOL.append(('L_z_bad', lambda: (sentinel_check(vLA, 28, vT + 2), e('s_cbranch_vccz L_z_ok'), spin_tail('L_z_ld'))))


def gather(tag, yz, nz):
    e('s_lshr_b32 s%d, s2, 3' % sT0)
    for q in range(4):
        e('s_add_u32 s%d, s%d, %d' % (sT1, sT0, q))
        e('s_and_b32 s%d, s%d, 2' % (Gs[q], sT1))
        e('s_and_b32 s%d, s%d, 3' % (sT1, sT1))
        e('s_add_u32 s%d, s%d, s%d' % (sT1, sT1, Gs[q]))
        e('s_lshl_b32 s%d, s%d, 12' % (sT1, sT1))
        e('s_add_u32 s%d, s%d, s%d' % (Gs[q], sZg, sT1))
    zero_acc(0, nz)
    touch('z', vLA + (7 if args.zh else 63))
    pend = sMt

    if args.zh:
        e('v_and_b32 v%d, 0x300, v%d' % (vMi + 7, vL16))
        e('v_add_u32 v%d, v%d, v%d' % (vMi + 7, vMi + 7, vL16))
        for q in range(4):
            for k in range(8, 16):
                e('v_mov_b32 v%d, 0' % (vLA + 16 * q + k))
    ackwait(args.ackz)

    def loads(q):
        if args.zh:
            for i in range(2):
                e('buffer_load_dwordx4 %s, v%d, %s, s%d offen offset:%d sc1' % (vq(vLA + 16 * q + 4 * i), vMi + 7, srd(SWS), Gs[q], i * 2048))
            return
        for i in range(4):
            e('buffer_load_dwordx4 %s, v%d, %s, s%d offen offset:%d sc1' % (vq(vLA + 16 * q + 4 * i), vL16, srd(SWS), Gs[q], i * 1024))

    def red(q):
        b = vLA + 16 * q
        e('v_pk_add_f32 %s, %s, %s' % (vp(b), vp(b), vp(b + 4)))
        e('v_pk_add_f32 %s, %s, %s' % (vp(b + 2), vp(b + 2), vp(b + 6)))
        e('v_pk_add_f32 %s, %s, %s' % (vp(b + 8), vp(b + 8), vp(b + 12)))
        e('v_pk_add_f32 %s, %s, %s' % (vp(b + 10), vp(b + 10), vp(b + 14)))
        e('v_pk_add_f32 %s, %s, %s' % (vp(b), vp(b), vp(b + 8)))
        e('v_pk_add_f32 %s, %s, %s' % (vp(b + 2), vp(b + 2), vp(b + 10)))

    def s02():
        e('v_pk_add_f32 %s, %s, %s' % (vp(vMi), vp(vLA), vp(vLA + 32)))
        e('v_pk_add_f32 %s, %s, %s' % (vp(vMi + 2), vp(vLA + 2), vp(vLA + 34)))

    def fin():
        e('v_pk_add_f32 %s, %s, %s' % (vp(vT), vp(vLA + 16), vp(vLA + 48)))
        e('v_pk_add_f32 %s, %s, %s' % (vp(vT + 2), vp(vLA + 18), vp(vLA + 50)))
        e('v_pk_add_f32 %s, %s, %s' % (vp(vT), vp(vT), vp(vMi)))
        e('v_pk_add_f32 %s, %s, %s' % (vp(vT + 2), vp(vT + 2), vp(vMi + 2)))
    for q in range(4):
        loads(q)
    e('s_mov_b32 s%d, 15' % pend)
    for q in range(4):
        e('s_waitcnt vmcnt(%d)' % (6 - 2 * q if args.zh else 12 - 4 * q))
        red(q)
        if q == 2:
            s02()
    a.raw('L_%s_fin:' % tag)
    fin()
    finish_x(tag)

    def bad():
        e('s_cmp_eq_u32 s%d, 0' % pend)
        e('s_cbranch_scc1 L_%s_ok' % tag)
        for q in range(4):
            b = vLA + 16 * q
            e('v_add_f32 v%d, v%d, v%d' % (vT, b, b + 1))
            e('v_add_f32 v%d, v%d, v%d' % (vT + 1, b + 2, b + 3))
            e('v_cmp_u_f32 vcc, v%d, v%d' % (vT, vT + 1))
            e('s_cbranch_vccnz L_%s_n%d' % (tag, q))
            e('s_bitset0_b32 s%d, %d' % (pend, q))
            a.label('L_%s_n%d' % (tag, q))
        a.label('L_%s_again' % tag)
        for q in range(4):
            lk = 'L_%s_r%d' % (tag, q)
            e('s_bitcmp1_b32 s%d, %d' % (pend, q))
            e('s_cbranch_scc0 %s' % lk)
            loads(q)
            a.label(lk)
        e('s_waitcnt vmcnt(0)')
        for q in range(4):
            lk = 'L_%s_k%d' % (tag, q)
            e('s_bitcmp1_b32 s%d, %d' % (pend, q))
            e('s_cbranch_scc0 %s' % lk)
            sentinel_check(vLA + 16 * q, 16, vT)
            red(q)
            e('s_cbranch_vccnz %s' % lk)
            e('s_bitset0_b32 s%d, %d' % (pend, q))
            a.label(lk)
        s02()
        e('s_cmp_eq_u32 s%d, 0' % pend)
        e('s_cbranch_scc1 L_%s_fin' % tag)
        spin_tail('L_%s_again' % tag)
    OOL.append(('L_%s_bad' % tag, bad))


def resid():
    e('v_cvt_pk_bf16_f32 v%d, 0, v%d' % (vT, vT))
    e('v_cvt_pk_bf16_f32 v%d, 0, v%d' % (vT + 1, vT + 1))
    e('v_add_f32 v%d, v%d, v%d' % (vX, vX, vT))
    e('v_add_f32 v%d, v%d, v%d' % (vX + 1, vX + 1, vT + 1))
    e('v_cvt_pk_bf16_f32 v%d, 0, v%d' % (vX, vX))
    e('v_cvt_pk_bf16_f32 v%d, 0, v%d' % (vX + 1, vX + 1))


RD = [vR + (4 if args.tr else 2) * k for k in range(4)]
SEQL = [(t_, 0) for t_ in range(args.sl)] + [(t_, 1) for t_ in range(4)] + [(t_, 0) for t_ in range(args.sl, 8)] + [(t_, 1) for t_ in range(4, 8)]
SEQO = [(0, 0), (1, 0), (2, 0), (3, 0), (0, 1), (1, 1), (2, 1), (3, 1), (4, 0), (5, 0), (4, 1), (5, 1), (6, 0), (7, 0), (6, 1), (7, 1)]


def gemv32(tiles, E, ES, reads, extra=(), vX=vX, cs=None, ret=None, lbl=None, pre=(), wide=None, vEw=vEw, post=()):
    sC = sT1
    r, t2, d0, d1 = vMi, vMi + 1, vMi + 2, vMi + 3
    side = []
    if ES is not None:
        side = ['v_readfirstlane_b32 s%d, v%d' % (sC, vX),
                'v_subrev_f32 v%d, s%d, v%d' % (d0, sC, vX), 'v_subrev_f32 v%d, s%d, v%d' % (d1, sC, vX + 1),
                'v_mul_f32 v%d, v%d, v%d' % (t2, d0, d0), 'v_add_f32 v%d, v%d, v%d' % (r, d0, d1),
                'v_fmac_f32 v%d, v%d, v%d' % (t2, d1, d1),
                'v_permlane32_swap_b32 v%d, v%d' % (r, t2), 'v_add_f32 v%d, v%d, v%d' % (r, r, t2)]
        side += allreduce_list('v_add_f32', r, None, (0, 1, 2, 3))
        side += ['v_add_f32_dpp v%d, v%d, v%d row_bcast:15 row_mask:0xa bank_mask:0xf' % (r, r, r),
                 'v_writelane_b32 v%d, s%d, 0' % (r, sC)]
    extra = list(extra)
    aset = lambda j: a_ops(vA + 4 * (j % 3), vX + (j >> 2), vT + (j >> 2), j & 3)
    a0, a1 = aset(0), aset(1)
    q = [mirror(vT, vX), a0[0], a0[3]] + side[:1] + [a0[1], a0[2], a1[0], a1[3]]
    if args.tr:
        q = [rot(m) for m in range(2, 6)]
        if ES is not None:
            q = [rot(m) for m in range(1, 4)] + ['v_cvt_pk_bf16_f32 v%d, 0, v%d' % (vX + k, vT + k) for k in range(2)]
    side = side[1:]
    for op in q:
        e(op)
    build = [a1[1], a1[2], mirror(vT + 1, vX + 1)]
    for j in range(2, 8):
        build += aset(j)
    if args.tr:
        build = [rot(m) for m in range(4 if ES is not None else 6, 8)]
        D = DQ if ES is not None else DO
        adds = ['v_add_f32_dpp v%d, v%d, v%d quad_perm:[0,1,2,3] row_mask:0x%x bank_mask:0xf' %
                (vT + (t_ & 1), D[t_], D[t_] + 1, 1 << ((t_ & 2) + (t_ >> 2))) for t_ in range(8)]
    wtk = None
    stk = None
    ndone = 0
    for n2 in range(16):
        j, pi = n2 >> 1, n2 & 1
        if args.tr:
            t_, hh = (SEQL if ES is not None else SEQO)[n2]
            assert hh == 0 or not build
            smf(D[t_], vA + 4 * hh, pair(tiles[16 * hh + 2 * t_], tiles[16 * hh + 2 * t_ + 1]), vSI)
            ndone += hh
            if wtk is not None and stk is None and n2 >= wn + args.lnb:
                a.lgwait(wtk)
                e('s_barrier')
                stk = a.lds('ds_read_b128 %s, v%d offset:%d' % (vq(vMi + 4), vWr, ES))
            lead = a.lines[-1].split()[0].startswith('v_smf')
            did = 0
            while did < 2:
                if side and a.needed(side[0]) == 0:
                    e(side.pop(0))
                elif build and (not did or side):
                    e(build.pop(0))
                elif side and not did and a.needed(side[0]) <= 2:
                    e(side.pop(0))
                elif not did and 8 - len(adds) < ndone and a.needed(adds[0]) <= (2 if lead else 0):
                    if lead and not side:
                        a.nop(2)
                    e(adds.pop(0))
                else:
                    if not did and lead and not side and ndone:
                        a.nop(2)
                    break
                did += 1
        else:
            smf(vAc + 4 * pi, vA + 4 * (j % 3), pair(tiles[2 * n2], tiles[2 * n2 + 1]), vSI)
            nb = 3 if n2 == 0 else 2
            for k in range(nb):
                if build:
                    e(build.pop(0))
                if side and a.needed(side[0]) == 0:
                    e(side.pop(0))
        if ES is not None and not side and wtk is None:
            e('s_mov_b64 exec, %s' % sp(sMaskV))
            wtk = a.lds('ds_write_b32 v%d, v%d offset:%d' % (vSw, r, ES))
            e('s_mov_b64 exec, -1')
            wn = n2
        elif wtk is not None and stk is None and n2 >= wn + 3 and not args.tr:
            a.lgwait(wtk)
            e('s_barrier')
            stk = a.lds('ds_read_b128 %s, v%d offset:%d' % (vq(vMi + 4), vWr, ES))
        if extra and n2 >= 12 and not args.tr:
            extra.pop(0)()
    assert not side and not build
    math_ = []
    nm, rs = vMi, vMi + 2
    if ES is not None:
        assert stk is not None
        c, S_, T_ = vMi + 4, vMi + 5, vMi + 7
        mw, mu, v, ee = vMi + 4, vMi + 6, vMi + 7, vMi + 5
        qs = lambda d, s_: ['v_add_f32_dpp v%d, v%d, v%d quad_perm:[1,0,3,2] %s' % (d, s_, s_, DPPF),
                            'v_add_f32_dpp v%d, v%d, v%d quad_perm:[2,3,0,1] %s' % (d, d, d, DPPF)]
        math_ = ['v_mul_f32 v%d, %s, v%d' % (S_, f32(1.0 / 128), S_),
                 'v_mul_f32 v%d, %s, v%d' % (T_, f32(1.0 / 128), T_),
                 'v_add_f32 v%d, v%d, v%d' % (mw, c, S_),
                 'v_fma_f32 v%d, -v%d, v%d, v%d' % (v, S_, S_, T_)]
        math_ += qs(mu, mw)
        math_ += ['v_mul_f32 v%d, 0.25, v%d' % (mu, mu),
                  'v_sub_f32 v%d, v%d, v%d' % (ee, mw, mu),
                  'v_fmac_f32 v%d, v%d, v%d' % (v, ee, ee),
                  'v_cvt_pk_bf16_f32 v%d, 0, v%d' % (mu, mu),
                  'v_mul_f32 v%d, v%d, v%d' % (nm, mu, cs)]
        math_ += [qs(v, v)[0], 'v_mul_f32 v%d, v%d, v%d' % (nm + 1, mu, cs + 1), qs(v, v)[1]]
        math_ += ['v_mul_f32 v%d, 0.25, v%d' % (v, v),
                  'v_max_f32 v%d, 0, v%d' % (v, v),
                  'v_cvt_pk_bf16_f32 v%d, 0, v%d' % (v, v),
                  'v_add_f32 v%d, %s, v%d' % (v, f32(1e-5), v),
                  'v_cvt_pk_bf16_f32 v%d, 0, v%d' % (v, v),
                  'v_sqrt_f32 v%d, v%d' % (v, v),
                  'v_cvt_pk_bf16_f32 v%d, 0, v%d' % (v, v),
                  'v_rcp_f32 v%d, v%d' % (rs, v),
                  'v_mul_f32 v%d, -v%d, v%d' % (nm, nm, rs),
                  'v_mul_f32 v%d, -v%d, v%d' % (nm + 1, nm + 1, rs)]
        a.lgwait(stk)
    math_[5:5] = list(pre)
    if args.tr:
        for op in adds:
            while math_ and a.needed(op) > 0 and a.needed(math_[0]) == 0:
                e(math_.pop(0))
            e(op)
        wtk = a.lds('ds_write_b64 v%d, %s offset:%d' % (vEw, vp(vT), E))
    else:
        m0 = 'v_permlane32_swap_b32 v%d, v%d' % (vAc, vAc + 2)
        while math_ and a.needed(m0) > 0:
            e(math_.pop(0))
        merge(vAc, vAc + 4)
        a.lds('ds_write_b64 v%d, %s offset:%d' % (vEw, vp(vAc), E))
    for k in range(13):
        if math_:
            e(math_.pop(0))
    if wide:
        e('s_mov_b64 exec, %s' % sp(sQm))
    a.lgwait_all()
    e('s_barrier')
    tks = [a.lds(x) for x in reads]
    for x in extra:
        x()
    if wide:
        add = lambda d, s_: [e('v_pk_add_f32 %s, %s, %s' % (vp(d + k), vp(d + k), vp(s_ + k))) for k in (0, 2)]
        a.lgwait(tks[1])
        add(wide[0], wide[1])
        a.lgwait(tks[2])
        add(wide[0], wide[2])
        a.lgwait(tks[3])
        add(wide[0], wide[3])
        return
    if ret is not None:
        e('s_cmp_eq_u32 s%d, %d' % (sRet, ret))
    for op in math_:
        e(op)
    for op in post:
        e(op)
    a.lgwait(tks[1])
    e('v_pk_add_f32 %s, %s, %s' % (vp(RD[0]), vp(RD[0]), vp(RD[1])))
    a.lgwait(tks[3])
    e('v_pk_add_f32 %s, %s, %s' % (vp(RD[2]), vp(RD[2]), vp(RD[3])))
    e('v_pk_add_f32 %s, %s, %s' % (vp(RD[0]), vp(RD[0]), vp(RD[2])))
    if ES is not None:
        a.raw('    s_cbranch_scc1 %s' % lbl)
        a.pos += 1
        e('v_pk_fma_f32 %s, %s, %s, %s op_sel_hi:[1,0,1]' % (vp(vR), vp(vR), vp(rs), vp(nm)))


def publish4(r, s0, s1):
    for s_ in (s1, s0) if args.far1 else (s0, s1):
        a.vmem('buffer_store_dwordx4 %s, v%d, %s, s%d offen %s' % (vq(r), vL16, srd(SWS), s_, args.ypol))


if args.x4:
    assert E1 == 0
    WD = [vAc, vAc + 4, vLA + 48, vLA + 52]
    gemv32(TO, E1, None, ['ds_read2_b64 %s, v%d offset0:%d offset1:%d' % (vq(WD[w]), vL8, 64 * w, 64 * w + 32) for w in range(4)], (), od, wide=WD)
    publish4(vAc, sYp, sVt)
else:
    gemv32(TO, E1, None, ['ds_read_b64 %s, v%d offset:%d' % (vp(RD[w]), vL8, E1 + 512 * w) for w in range(4)], (), od,
           vEw=vEy if args.yb else vEw)
    ct(1)
    e('s_mov_b64 exec, %s' % sp(sQm))
    if args.yb:
        e('v_cvt_pk_bf16_f32 v%d, v%d, v%d' % (vR, vR, vR + 1))
        e('v_min_u32 v%d, -2, v%d' % (vR, vR))
        a.vmem('buffer_store_dword v%d, v%d, %s, s%d offen %s' % (vR, vL4, srd(SWS), sYp, args.ypol))
    elif args.yh == 2:
        e('s_bitcmp1_b32 s%d, 1' % sU)
        e('s_cselect_b32 s%d, s%d, s%d' % (sT0, sVt, sYp))
        e('s_cselect_b32 s%d, 256, 0' % sT1)
        e('s_sub_u32 s%d, s%d, s%d' % (sT0, sT0, sT1))
        publish_local(vAc, vL8, sT0, 'y')
        e('s_mov_b64 exec, 1')
        e('buffer_load_dword v%d, off, %s, 0' % (vLA + 63, srd(SX)))
    else:
        publish_local(vAc, vL8, sYp, 'y')
        publish_local(vAc, vL8, sVt, 'y')
sq_(2)
ct(2)
e('s_mov_b64 exec, -1')
stamp(vT + 2)

gather_y()
sq_(3)
ct(3)
stamp(vT + 2)
if not args.tr:
    a.raw('L_fgemv:')
ex = [(lambda c=c: dn_read(c)) for c in range(NPF, 16)]
k1 = -2.0 * math.sqrt(2.0 / math.pi) * LOG2E
G_, U_ = vR, vR + 1
t, z = vT + 2, vT + 3
gemv32(TG, E2, E2S, ['ds_read2_b32 %s, v%d offset0:%d offset1:%d' % (vp(RD[i]), (vFr, vFr2)[i >> 1], 128 * (i & 1), 128 * (i & 1) + 16) for i in range(4)],
       ex, vX, vCf, 4, 'L_csf', ['v_mov_b32 v%d, %s' % (t, f32(k1))])
zd = ['v_mov_b64 %s, 0' % vp(d) for d in DQ[:4]]
ct(4)
ct(5)
e('v_cvt_pk_bf16_f32 v%d, 0, v%d' % (G_, G_))
e('v_mul_f32 v%d, v%d, v%d' % (z, G_, G_))
e('v_fmac_f32 v%d, %s, v%d' % (t, f32(k1 * 0.044715), z))
e('v_mul_f32 v%d, v%d, v%d' % (z, t, G_))
e('v_exp_f32 v%d, v%d' % (z, z))
e('v_cvt_pk_bf16_f32 v%d, 0, v%d' % (U_, U_))
e('v_add_f32 v%d, 1.0, v%d' % (z, z))
e('v_rcp_f32 v%d, v%d' % (z, z))
if args.tr:
    e(zd[0])
e('v_mul_f32 v%d, v%d, v%d' % (z, z, G_))
e('v_cvt_pk_bf16_f32 v%d, 0, v%d' % (z, z))
e('v_mul_f32 v%d, v%d, v%d' % (z, z, U_))
if args.tr:
    assert args.z1 and args.zo
    e('s_bitcmp1_b32 s%d, 0' % sIt)
    e(zd[1])
    e('v_mov_b32_dpp v%d, v%d row_ror:8 %s' % (t, z, DPPF))
    e('v_cvt_pk_bf16_f32 v%d, v%d, v%d' % (z, z, t))
    e(zd[2])
    e(zd[3])

    def drot(m):
        r_ = (16 - 2 * (m & 3) + 4 * (m >> 2)) & 15
        if not r_:
            return 'v_and_b32 v%d, v%d, v%d' % (vA + m, z, vMe + (m >> 2))
        return 'v_and_b32_dpp v%d, v%d, v%d row_ror:%d %s' % (vA + m, z, vMe + (m >> 2), r_, DPPF)
    for m in range(6):
        e(drot(m))
    a.lgwait_all()
    tail_ = []
    for k in range(4):
        tail_.append('v_add_f32 v%d, v%d, v%d' % (DQ[k], DQ[k], DQ[k] + 1))
        if k & 1:
            tail_.append('v_cvt_pk_bf16_f32 v%d, v%d, v%d' % (vAc + 2 + (k >> 1), DQ[k - 1], DQ[k]))
            tail_.append('v_min_u32 v%d, -2, v%d' % (vAc + 2 + (k >> 1), vAc + 2 + (k >> 1)))
    for n_, t_ in enumerate((0, 1, 2, 4, 5, 3, 6, 7)):
        e('v_smfmac_f32_16x16x64_bf16 %s, %s, v[%d:%d], v%d abid:1' % (vq(DQ[t_ & 3]), vq(vA + 4 * (t_ >> 2)), vLA + 8 * t_, vLA + 8 * t_ + 7, vSI))
        if n_ < 2:
            e(drot(6 + n_))
        elif n_ >= 3:
            a.nop(2)
            if a.needed(tail_[0]) == 0:
                e(tail_.pop(0))
    for op in tail_:
        e(op)
    publish_local(vAc + 2, vZa, sG0, 'z')
if not args.tr:
    e('v_cvt_pk_bf16_f32 v%d, 0, v%d' % (z, z))
if not args.zb:
    e('s_add_u32 s%d, s%d, s%d' % (sT0, sHS, sZg))
    e('s_xor_b32 s%d, s%d, 8192' % (sVt, sT0))
ct(6)
dset = lambda r: a_ops(vA + 4 * (r % 3), z, t, r)
d0_, d1_ = dset(0), dset(1)
for op in () if args.tr else (mirror(t, z), d0_[0], d0_[3], d0_[1], d0_[2], d1_[0], d1_[3]):
    e(op)
build = [d1_[1], d1_[2]] + dset(2) + dset(3)
for r in range(0 if args.tr else 4):
    for pi in (1, 0) if args.x4 or args.zb and not args.z1 else (0, 1):
        n = (r * 2 + pi) * 2
        smf(vAc + 8 + 4 * pi, vA + 4 * (r % 3), 'v[%d:%d]' % (vLA + 4 * n, vLA + 4 * n + 7), vSI)
        for k in range(2):
            if build:
                e(build.pop(0))
if args.noit1 == 1:
    e('s_cmp_eq_u32 s%d, 1' % sIt)
    e('s_cbranch_scc1 L_next')
if not args.tr:
    e('s_bitcmp1_b32 s%d, 0' % sIt)
if args.tr:
    pass
elif args.z1:
    e('v_lshrrev_b32 v%d, 5, v0' % vT)
    e('v_mul_u32_u24 v%d, %d, v%d' % (vT, 8192 - 256, vT))
    e('v_add_u32 v%d, v%d, v%d' % (vT, vT, vL8))
    merge(vAc + 8, vAc + 12)
    if not args.zo:
        a.raw('    s_cbranch_scc1 L_zodd')
        a.pos += 1
    e('v_cvt_pk_bf16_f32 v%d, v%d, v%d' % (vAc + 10, vAc + 8, vAc + 9))
    for k in (0, 1):
        e('v_min_u32 v%d, -2, v%d' % (vAc + 8 + k, vAc + 10))
    e('v_permlane32_swap_b32 v%d, v%d' % (vAc + 8, vAc + 9))
    if args.z28:
        e('s_mov_b64 exec, %s' % sp(sG1))
    if args.zc == 1:
        e('s_mov_b32 exec_hi, 0')
    publish_local(vAc + 8, vT, sYp if args.zc == 1 else sG0, 'z')
    if args.z28 or args.zc:
        e('s_mov_b64 exec, -1')
elif args.zb:
    a.raw('    s_cbranch_scc1 L_zodd')
    a.pos += 1
    zodd = a.needed('v_permlane32_swap_b32 v%d, v%d' % (vAc + 12, vAc + 14))
    for k in range(4):
        e('v_permlane32_swap_b32 v%d, v%d' % (vAc + 12 + k, vT + k))
    e('s_mov_b32 exec_hi, 0')
    for k in (0, 2):
        e('v_pk_add_f32 %s, %s, %s' % (vp(vAc + 8 + k), vp(vAc + 8 + k), vp(vT + k)))
    for k in (0, 1):
        e('v_cvt_pk_bf16_f32 v%d, v%d, v%d' % (vAc + 8 + k, vAc + 8 + 2 * k, vAc + 9 + 2 * k))
    for k in (0, 1):
        e('v_min_u32 v%d, -2, v%d' % (vAc + 8 + k, vAc + 8 + k))
    publish_local(vAc + 8, vL8, sYp, 'z')
    publish_local(vAc + 8, vL8, sVt, 'z')
    e('s_mov_b32 exec_hi, -1')
elif args.x4:
    for k in range(4):
        e('v_permlane32_swap_b32 v%d, v%d' % (vAc + 12 + k, vT + k))
    e('s_mov_b32 exec_hi, 0')
    for k in (0, 2):
        e('v_pk_add_f32 %s, %s, %s' % (vp(vAc + 8 + k), vp(vAc + 8 + k), vp(vT + k)))
    publish4(vAc + 8, sT0, sVt)
    e('s_mov_b32 exec_hi, -1')
else:
    merge(vAc + 8, vAc + 12)
    publish_local(vAc + 8, vL8, sT0, 'z')
    publish_local(vAc + 8, vL8, sVt, 'z')
sq_(4)
ct(7)
stamp(vT)
if args.zb:
    if args.zo:
        assert args.z1
        if args.ts:
            e('s_bitcmp1_b32 s%d, 0' % sIt)
        e('s_cbranch_scc1 L_out')
    gather_b()
else:
    if args.ts:
        e('s_bitcmp1_b32 s%d, 0' % sIt)
    e('s_cbranch_scc1 L_out')
    gather('z', 1, 8)
sq_(5)
ct(9)
stamp(vT + 2)
if not args.tr:
    e('s_add_u32 s%d, s%d, 64' % (sJA, sJA))
    a.raw('L_qstage:')
a.reset_counters()
if not args.tr:
    q_slot()
qd = vT
gemv32(TQ, E3, E3S, ['ds_read_b64 %s, v%d offset:%d' % (vp(RD[i]), vQr, E3 + 512 * i) for i in range(4)], (), vX, vCq, 0, 'L_csq',
       *([['v_lshlrev_b32 v%d, 2, v0' % (vT + 1)]] if not args.tr else []))
vQa = vL4 if args.tr else vT + 1
e('s_cmp_lg_u32 s%d, 0' % sU)
e('v_cvt_pk_bf16_f32 v%d, v%d, v%d' % (qd, vR, vR + 1))
e('v_min_u32 v%d, -2, v%d' % (qd, qd))
a.raw('    s_cbranch_scc1 L_qn')
e('buffer_store_dword v%d, v%d, %s, s%d offen offset:1024' % (qd, vQa, srd(SWS), sQs))
e('buffer_store_dword v%d, v%d, %s, s%d offen offset:2048 %s' % (qd, vQa, srd(SWS), sQs, sc('F')))
a.label('L_qn')
if args.quiet and not args.sq:
    e('s_memrealtime s[18:19]')
sq_(6)
ct(10)
stamp(vT + 2)
e('v_add_u32 v%d, s%d, v%d' % (vT + 1, sQa, vQa))
a.lds('ds_write_b32 v%d, v%d' % (vT + 1, qd))
a.lgwait_all()
e('s_cmp_eq_u32 s%d, 1' % sRet)
e('s_cbranch_scc1 L_i1')
e('s_cmp_eq_u32 s%d, 2' % sRet)
e('s_cbranch_scc1 L_i2')
a.label('L_own')
a.reset_counters()
oq, obt, ok_, ov, oc, om, op_, oml, oA, oD = vLA, vLA + 4, vLA + 8, vLA + 12, vLA + 16, vLA + 20, vLA + 17, vLA + 18, vLA + 24, vLA + 28
mk_qoff(vT + 2, 0, vT + 3)
e('v_add_u32 v%d, s%d, v%d' % (vT + 2, sQa, vT + 2))
e('v_add_u32 v%d, s%d, v%d' % (vT + 3, sKV, vL16))
a.lds('ds_read_b128 %s, v%d' % (vq(oq), vT + 2))
a.lds('ds_read_b128 %s, v%d' % (vq(ok_), vT + 3))
a.lds('ds_read_b128 %s, v%d offset:1024' % (vq(ov), vT + 3))
mk_c(oc, 1, vT)
mk_masks(om, vT)
a.lgwait_all()
build_bt(obt, oq, 1)
mfma(vq(oD), vq(ok_), vq(obt), True)
for o in score_ops([op_], 0, oD, oc, True):
    e(o)
e('s_lshl3_add_u32 s%d, s%d, s%d' % (sT0, sU, sJA))
e('s_add_u32 s%d, s%d, s%d' % (sT0, sT0, sHA))
e('s_lshl_b32 s%d, s%d, 4' % (sT1, sU))
softmax([op_], oml, vT, None, [], [], sT1, EOM, None)
osc = oc if args.tr else vLA + 32
for o in tail_a(oA, op_, 0, om, vT):
    e(o)
mfma(vq(oD), vq(oA), vq(ov), True)
tk = scale_a(osc, vL16, EOM)
e('s_bitcmp1_b32 s%d, 5' % sJA)
e(('s_cselect_b32 s%d, 256, 0' if args.ob else 's_cselect_b32 s%d, 1, 2') % sOt)
e('s_bitcmp1_b32 s%d, 6' % sJA)
e('s_cselect_b32 s%d, 4096, 0' % sT1)
e('s_add_u32 s%d, s%d, %d' % (sT1, sT1, OFF_O + 7 * 512))
if args.ob:
    e('s_add_u32 s%d, s%d, s%d' % (sT1, sT1, sOt))
e('s_add_u32 s%d, s%d, s%d' % (sT1, sT1, sHA))
merge(oD, None)
a.lgwait(tk)
for o in scale_b(osc, oml):
    e(o)
wg_publish(oD, osc, vEw, vL8, EO, vLA, sT1, 'own', 'L_ownn', 0, sOt, sLoc)
e('s_waitcnt vmcnt(0)')
e('s_mov_b64 exec, 1')
store_sel('buffer_store_dwordx2 %s, off, %s, s%d offset:896' % (vp(oml), srd(SWS), sT0), 'owns', False, False, sLoc)
e('s_mov_b64 exec, -1')
e('s_cmp_eq_u32 s%d, 4' % sRet)
e('s_cbranch_scc1 L_i4')
e('s_add_u32 s%d, s%d, 1' % (sIt, sIt))
e('s_branch L_loop')

if args.zb and not args.zo:
    a.label('L_zodd')
    if not args.z1:
        a.nop(zodd)
        for O in (vAc + 12, vAc + 8):
            e('v_permlane32_swap_b32 v%d, v%d' % (O, O + 2))
            e('v_permlane32_swap_b32 v%d, v%d' % (O + 1, O + 3))
        e('v_add_f32 v%d, v%d, v%d' % (vAc + 8, vAc + 8, vAc + 14))
        e('v_add_f32 v%d, v%d, v%d' % (vAc + 9, vAc + 9, vAc + 15))
    publish_local(vAc + 8, vL8, sYp, 'z')
    publish_local(vAc + 8, vL8, sVt, 'z')
    sq_(4)
    stamp(vT)
    a.raw('L_out:')
else:
    a.label('L_out')
a.reset_counters()
if args.zo == 2:
    e('s_lshr_b32 s%d, s2, 1' % sT0)
    e('s_sub_u32 s%d, s%d, %d' % (sT0, sT0, 4 * args.osv))
    e('s_cmp_eq_u32 s%d, s%d' % (sT0, sU))
    e('s_cbranch_scc0 L_outn')
    oA = vLA + 16
    pick_a(oA, vT)
    e('v_and_b32 v%d, 0x380, v%d' % (vLA + 20, vL16))
    e('v_add_u32 v%d, v%d, v%d' % (vLA + 20, vLA + 20, vL16))
    for op in z64(vLA + 12, 4):
        e(op)
    e('s_and_b32 s%d, s2, 1' % sT1)
    e('s_lshl_b32 s%d, s%d, 7' % (sT0, sT1))
    e('s_add_u32 s%d, s%d, s%d' % (sT0, sT0, sZg))
    e('s_lshl_b32 s%d, s%d, 3' % (sT1, sT1))
    e('s_lshl_b64 %s, %s, s%d' % (sp(sMt), sp(sMaskJ8), sT1))
    e('s_add_u32 s%d, s%d, 4096' % (sT1, sT0))
    ackwait(args.acko)
    if args.osl:
        e('s_sleep %d' % args.osl)
    a.label('L_o_ld')
    for i in range(4):
        if i == 3:
            e('s_mov_b32 exec_hi, 0')
        e('buffer_load_dwordx4 %s, v%d, %s, s%d offen offset:%d %s' % (vq(vLA + 4 * i), vLA + 20, srd(SWS), (sT0, sT1)[i >> 1], (i & 1) * 2048, args.lpolo or args.lpol))
    e('s_mov_b32 exec_hi, -1')
    if 'o' in args.shd:
        shadow('o', [vLA + 4 * i for i in range(4)], oA, vA + 1)
    else:
        for i in range(4):
            e('s_waitcnt vmcnt(%d)' % (3 - i))
            mfma(vq(vT), vq(oA), vq(vLA + 4 * i), i == 0)
    for k in range(2):
        e('v_add_f32_dpp v%d, v%d, v%d row_ror:8 %s' % (vT + k, vT + k, vT + k, DPPF))
    if 'o' not in args.shd:
        e('v_cmp_u_f32 vcc, v%d, v%d' % (vT, vT + 1))
        OOL.append(('L_o_bad', lambda: (sentinel_check(vLA, 16, vT + 2), e('s_cbranch_vccz L_o_ok'), spin_tail('L_o_ld'))))
elif args.zo:
    e('v_and_b32 v%d, 31, v0' % t0)
    e('v_lshlrev_b32 v%d, 8, v%d' % (t0, t0))
    e('v_lshrrev_b32 v%d, 5, v0' % t1)
    e('v_lshl_or_b32 v%d, v%d, 3, v%d' % (t0, t1, t0))
    e('v_mov_b32 v%d, 0' % t1)
    e('s_and_b32 s%d, s2, 15' % sT0)
    e('s_lshr_b32 s%d, s2, 4' % sT1)
    e('s_lshl2_add_u32 s%d, s%d, s%d' % (sT0, sT0, sT1))
    e('s_lshl2_add_u32 s%d, s%d, s%d' % (sT0, sT0, sZg))
    e('s_lshl_b32 s%d, 1, s2' % sMt)
    e('s_mov_b32 s%d, s%d' % (sMt + 1, sMt))
    a.label('L_outw')
    e('s_mov_b32 exec_lo, 0x0fffffff')
    e('s_mov_b32 exec_hi, 0x0fffffff')
    ackwait(args.acko)
    e('buffer_load_dword v%d, v%d, %s, s%d offen sc1' % (t1, t0, srd(SWS), sT0))
    e('s_mov_b64 exec, -1')
    e('s_waitcnt vmcnt(0)')
    e('v_lshlrev_b32 v%d, 16, v%d' % (vT, t1))
    e('v_and_b32 v%d, 0xffff0000, v%d' % (vT + 1, t1))
    e('v_cmp_eq_u32 vcc, -1, v%d' % t1)
    OOL.append(('L_outr', lambda: spin_tail('L_outw')))
else:
    e('v_and_b32 v%d, 31, v0' % t0)
    e('v_and_b32 v%d, 16, v0' % t1)
    e('v_add_lshl_u32 v%d, v%d, v%d, 9' % (t0, t0, t1))
    e('v_lshrrev_b32 v%d, 5, v0' % t1)
    e('v_lshl_or_b32 v%d, v%d, 3, v%d' % (t0, t1, t0))
    e('s_lshl_b32 s%d, s2, 4' % sT0)
    e('s_add_u32 s%d, s%d, s%d' % (sT0, sT0, sZg))
    ackwait(args.acko)
    a.label('L_outw')
    e('buffer_load_dwordx2 %s, v%d, %s, s%d offen sc1' % (vp(vT), t0, srd(SWS), sT0))
    e('s_waitcnt vmcnt(0)')
    e('v_max_u32 v%d, v%d, v%d' % (t1, vT, vT + 1))
    e('v_cmp_eq_u32 vcc, -1, v%d' % t1)
    e('s_cbranch_vccz L_outok')
    spin_tail('L_outw')
    a.label('L_outok')
sq_(5)
ra = allreduce_list('v_add_f32', vT, vT + 2, (0, 1, 2, 3, 4))
rb = allreduce_list('v_add_f32', vT + 1, vT + 3, (0, 1, 2, 3, 4))
for k, (x, y) in enumerate(zip(ra, rb)):
    if args.zo == 2:
        break
    if args.zo and k == 2:
        a.raw('    s_cbranch_vccnz L_outr')
        a.pos += 1
    e(x)
    e(y)
e('v_cvt_pk_bf16_f32 v%d, 0, v%d' % (vT, vT))
e('v_cvt_pk_bf16_f32 v%d, 0, v%d' % (vT + 1, vT + 1))
if 'o' in args.shd:
    e('v_pk_add_f32 %s, %s, %s' % (vp(vT), vp(vX), vp(vT)))
else:
    e('v_add_f32 v%d, v%d, v%d' % (vT, vX, vT))
    e('v_add_f32 v%d, v%d, v%d' % (vT + 1, vX + 1, vT + 1))
e('v_cvt_pk_bf16_f32 v%d, v%d, v%d' % (vT, vT, vT + 1))
if args.zo == 2 and 'o' not in args.shd:
    a.raw('    s_cbranch_vccnz L_o_bad')
    a.pos += 1
    a.raw('L_o_ok:')
if not args.zo:
    e('s_lshl_b32 s%d, 1, s2' % sMt)
    e('s_mov_b32 s%d, s%d' % (sMt + 1, sMt))
e('s_mov_b64 exec, %s' % sp(sMt))
e('buffer_store_dword v%d, v%d, %s, s%d offen %s' % (vT, vXo, srd(SOUT), sOutB, args.opol))
e('s_mov_b64 exec, -1')
if args.zo == 2:
    a.label('L_outn')
stamp(vLA)
ct(8)
e('s_cmp_eq_u32 s%d, 3' % sIt)
e('s_cbranch_scc0 L_next')
sq_dump(vLA)
ct_dump(vLA)
if args.pad:
    a.label('L_pad')
    e('s_memrealtime s[82:83]')
    e('s_waitcnt lgkmcnt(0)')
    e('s_sub_u32 s82, s82, s84')
    e('s_cmp_lt_u32 s82, %d' % (args.pad * 100))
    e('s_cbranch_scc1 L_pad')
if args.icprobe:
    e('s_branch L_ic0')
e('s_endpgm')
a.label('L_next')
if args.quiet and not args.sq:
    e('s_mov_b32 s16, s18')
if not args.novote:
    e('v_lshlrev_b32 v%d, 2, v0' % vT)
    e('buffer_load_dword v%d, v%d, %s, 0 offen sc1' % (vT + 1, vT, srd(SDBG)))
    e('s_waitcnt vmcnt(0)')
    count_votes()
setx(vX1)
e('s_add_u32 s%d, s%d, 2048' % (sKV, sKV))
e('s_mov_b32 s%d, 1024' % sOutB)
e('s_add_u32 s%d, s%d, 1024' % (sQa, sQa))
e('s_mov_b32 s%d, 32' % sJA)
e('s_branch L_own')

for lbl, ops in OOL:
    a.label(lbl)
    if callable(ops):
        e('s_nop 1')
        ops()
        continue
    for op in ops:
        e(op)

for blk in RAW:
    for ln in blk:
        a.raw(ln)
for k in range(args.icprobe):
    a.raw('    s_endpgm\n.p2align 11\nL_ic%d:\n    s_branch L_ic%d' % (k, k + 1))
if args.icprobe:
    a.raw('L_ic%d:' % args.icprobe)

hdr = open('cdna_kernels/%s.s.ref' % NAME).read().split('\n')
head = []
for ln in hdr:
    if ln.startswith('; @launch'):
        head.append('; @launch grid=(256,1,1) block=(256,1,1) lds=163840')
    elif ln.startswith('.p2align 8') and args.al:
        head += ['.p2align 12', ln]
    elif ln.startswith(NAME + '_kernel:'):
        head.append(ln)
        break
    else:
        head.append(ln)
tail = '''.section .rodata,"a"
.p2align 6
.amdhsa_kernel %s_kernel
  .amdhsa_next_free_vgpr 512
  .amdhsa_next_free_sgpr 102
  .amdhsa_accum_offset 256
  .amdhsa_group_segment_fixed_size 0
  .amdhsa_kernarg_size 96
  .amdhsa_user_sgpr_count 2
  .amdhsa_user_sgpr_kernarg_segment_ptr 1
  .amdhsa_system_sgpr_workgroup_id_x 1
.end_amdhsa_kernel
''' % NAME
if args.alk:
    AL = {x.split(':')[0]: x.split(':')[1:] for x in args.alk.split(',')}
    o_, prev = [], ''
    for ln in '\n'.join(a.lines).split('\n'):
        k = re.sub(r'_\d+$', '', ln[2:-1]) if ln.endswith(':') else None
        if k in AL:
            o_.append(';@AL %s %s %s' % (AL[k][0], AL[k][1], '' if prev in ('s_branch', 's_endpgm') else ln[:-1]))
        o_.append(ln)
        prev = ln.split()[0] if ln.strip() else prev
    a.lines = o_
if SITES:
    import warm
    warm.NOFILL = args.nofill
    warm.FIRST = args.wF
    warm.ROT = args.wX
    a.lines = warm.place('\n'.join(a.lines).split('\n'), head, tail, SITES, 0 if args.al else 0xc00, args.wR,
                         [x.split(':') for x in args.hot.split(',') if x], args.tgt.split(','))
open(args.o, 'w').write('\n'.join(head) + '\n' + a.text() + 's_endpgm\n' + tail + ('; TSB=%d\n' % (TSB + (args.wsoff << 20)) if args.ts else ''))
print('wrote', args.o, len(a.lines), 'lines')
```
